```python
import torch

def _softmax(x, axis=-1):
    return torch.softmax(x, dim=axis)
def _gelu(x):
    return torch.nn.functional.gelu(x, approximate="tanh")
def _silu(x):
    return torch.nn.functional.silu(x)
def _sigmoid(x):
    return torch.sigmoid(x)
def _layernorm(x, axis=-1, eps=1e-5):
    m = x.mean(dim=axis, keepdim=True)
    v = x.var(dim=axis, keepdim=True, unbiased=False)
    return (x - m) / torch.sqrt(v + eps)
def _scatter_add(tgt, idx, src, axis=0):
    return tgt.clone().index_add_(axis, idx, src)
def _segment_sum(src, seg, n):
    out = torch.zeros((n,) + src.shape[1:], dtype=src.dtype)
    return out.index_add_(0, seg, src)
def _pad(x, pw):
    flat = tuple(v for pair in reversed(pw) for v in pair)
    return torch.nn.functional.pad(x, flat)

kernel_name = 'standalone__mha_block_cached__near_ridge'

def setup_inputs():

    _w = (lambda a: (lambda t: t.to(torch.bfloat16) if t.is_floating_point() else t)(torch.as_tensor(a)))
    B, Sq, D = 8, 224, 576
    H, Sk, Dh = 32, 1024, 128
    return {
        "x": _w((lambda *s: torch.randn(*s, dtype=torch.bfloat16) * 0.8)(B, Sq, D)),
        "k_cache": _w((lambda *s: torch.randn(*s, dtype=torch.bfloat16) * 0.8)(B, H, Sk, Dh)),
        "v_cache": _w((lambda *s: torch.randn(*s, dtype=torch.bfloat16) * 0.05)(B, H, Sk, Dh)),
        "wq": _w((lambda *s: torch.randn(*s, dtype=torch.bfloat16) * 0.8)(D, H * Dh) * (D ** -0.5)),
        "wo": _w((lambda *s: torch.randn(*s, dtype=torch.bfloat16) * 0.05)(H * Dh, D) * ((H * Dh) ** -0.5)),
    }

def reference(x, k_cache, v_cache, wq, wo):
    B, Sq, D = x.shape
    H, Dh = 32, 128
    q = (lambda x, *d: x.permute(*d))((x @ wq).reshape(B, Sq, H, Dh), 0, 2, 1, 3)
    scores = torch.einsum("bhqd,bhkd->bhqk", q, k_cache) * (Dh ** -0.5)
    p = _softmax(scores, axis=-1)
    o = torch.einsum("bhqk,bhkd->bhqd", p, v_cache)
    return (lambda x, *d: x.permute(*d))(o, 0, 2, 1, 3).reshape(B, Sq, H * Dh) @ wo
```

```python
import sys, struct, re, argparse

NAME = "standalone__mha_block_cached__near_ridge"

def f32(x):
    return struct.unpack("<I", struct.pack("<f", x))[0]

class Asm:
    def __init__(self):
        self.L = []
    def e(self, s):
        self.L.append("    " + s)
    def c(self, s):
        self.L.append("    ; " + s)
    def lab(self, s):
        self.L.append(s + ":")
    def many(self, xs):
        for x in xs:
            self.e(x)

def vr(b, n=4):
    return f"v[{b}:{b+n-1}]" if n > 1 else f"v{b}"
def ar(b, n=4):
    return f"a[{b}:{b+n-1}]" if n > 1 else f"a{b}"
def sr(b, n=4):
    return f"s[{b}:{b+n-1}]" if n > 1 else f"s{b}"

MF = "v_mfma_f32_16x16x32_bf16"

def interleave(mfmas, fillers, per_gap=2, start_gap=0):
    out = []
    fi = 0
    for i, m in enumerate(mfmas):
        out.append(m)
        if i >= start_gap:
            for _ in range(per_gap):
                if fi < len(fillers):
                    out.append(fillers[fi]); fi += 1
    out.extend(fillers[fi:])
    return out

BUF = {0: 90112, 1: 45056, 2: 0}
def PAIR(n):
    return 32768 + ((3 - n) & 3) * 32768
QX = 0
OX = 0
LX = 114688
FL = 121856
MXX = 16384

V_OOWN = 0
V_K = 112
V_V = 144
V_S = 176
V_P = 192
V_NEGM = 200
V_KA = 228
V_VA = 232
V_OFFKV = 240
V_TID = 242
V_T0 = 243
V_OFFX = 112
V_OFFW = 119
V_XR = 124
V_WR = 128
V_QW = 132
V_QR = 133
V_QT = 136
A_Q = 0
A_OOTH = 112
A_L = 224
A_ONES = 252
S_X, S_WQ, S_K, S_V, S_O = 16, 20, 24, 28, 32
S_W, S_QH, S_KH = 36, 37, 38
S_W1K7 = 39
S_SC = 40
S_SOX, S_SOW = 42, 43
S_W4K = 44
S_B, S_H = 45, 46
S_CNT = 47
S_PASS = 48
S_T0, S_T1, S_T2, S_T3 = 49, 50, 51, 52
S_OB = 53
S_TMP64 = 54
S_SOKV = 56
S_ST = 60


def o_reg(j, tp):
    if tp < 4:
        return vr(V_OOWN + (j * 4 + tp) * 4)
    return ar(A_OOTH + (j * 4 + tp - 4) * 4)


class GenA:
    def __init__(self, opt):
        self.o = opt
        self.a = Asm()
        self.nst = 0

    def stamp(self, lst=None):
        if not self.o.stamps:
            return
        s = f"s_memtime s[{S_ST + 2*self.nst}:{S_ST + 2*self.nst + 1}]"
        self.nst += 1
        if lst is None:
            self.a.e(s)
        else:
            lst.append(s)

    def kvpol(self):
        return " nt" if self.o.nt else ""

    def emit_lane(self, dst):
        self.a.e(f"v_and_b32 v{dst}, 63, v{V_TID}")

    def emit_kv_addr(self):
        a = self.a
        L, l15, g, r4, c4, t, u = V_T0, V_T0+1, V_T0+2, V_T0+3, V_T0+4, V_T0+5, V_T0+6
        a.e(f"v_and_b32 v{L}, 63, v{V_TID}")
        a.e(f"v_and_b32 v{l15}, 15, v{L}")
        a.e(f"v_lshrrev_b32 v{g}, 4, v{L}")
        a.e(f"v_bfe_u32 v{r4}, v{L}, 2, 2")
        a.e(f"v_and_b32 v{c4}, 3, v{L}")
        a.e(f"s_lshl_b32 s{S_T0}, s{S_KH}, 13")
        a.e(f"s_add_u32 s{S_T1}, s{S_T0}, {PAIR(0) + 16384}")
        a.e(f"v_and_b32 v{t}, 7, v{l15}")
        a.e(f"v_lshlrev_b32 v{t}, 1, v{t}")
        a.e(f"v_xor_b32 v{t}, v{t}, v{g}")
        a.e(f"v_lshlrev_b32 v{t}, 4, v{t}")
        a.e(f"v_lshlrev_b32 v{u}, 8, v{l15}")
        a.e(f"v_add_u32 v{u}, s{S_T1}, v{u}")
        for ks in range(4):
            a.e(f"v_xor_b32 v{V_KA+ks}, {ks*64}, v{t}")
            a.e(f"v_add_u32 v{V_KA+ks}, v{V_KA+ks}, v{u}")
        a.e(f"s_add_u32 s{S_T1}, s{S_T0}, {PAIR(0)}")
        a.e(f"v_lshlrev_b32 v{u}, 2, v{g}")
        a.e(f"v_add_u32 v{u}, v{u}, v{r4}")
        a.e(f"v_and_b32 v{t}, 7, v{u}")
        a.e(f"s_lshl_b32 s{S_T2}, s{S_KH}, 2")
        a.e(f"v_xor_b32 v{t}, s{S_T2}, v{t}")
        a.e(f"v_lshlrev_b32 v{t}, 5, v{t}")
        a.e(f"v_lshlrev_b32 v{u}, 8, v{u}")
        a.e(f"v_add_u32 v{u}, s{S_T1}, v{u}")
        a.e(f"v_lshlrev_b32 v{c4}, 3, v{c4}")
        a.e(f"v_add_u32 v{u}, v{u}, v{c4}")
        for tp in range(8):
            a.e(f"v_xor_b32 v{V_VA+tp}, {tp*32}, v{t}")
            a.e(f"v_add_u32 v{V_VA+tp}, v{V_VA+tp}, v{u}")
        a.e(f"v_lshlrev_b32 v{t}, 1, v{g}")
        a.e(f"v_xor_b32 v{t}, v{t}, v{l15}")
        a.e(f"v_lshlrev_b32 v{t}, 4, v{t}")
        a.e(f"v_lshlrev_b32 v{u}, 8, v{g}")
        a.e(f"v_add_u32 v{u}, s{S_W4K}, v{u}")
        a.e(f"v_add_u32 v{V_OFFKV}, v{t}, v{u}")
        a.e(f"v_xor_b32 v{t}, 128, v{t}")
        a.e(f"v_add_u32 v{V_OFFKV+1}, v{t}, v{u}")

    def kv_dma(self, which, tile_lds, soff):
        srd = S_K if which == "K" else S_V
        r = [f"s_add_u32 m0, s{S_W4K}, {tile_lds}"]
        for i in range(4):
            off = f" offset:{i*1024}" if i else ""
            r.append(f"buffer_load_dwordx4 v{V_OFFKV + (i & 1)}, {sr(srd)}, {soff} offen{off}{self.kvpol()} lds")
        return r

    def x_dma(self, st):
        buf = BUF[st % 3]
        r = []
        r.append(f"s_mov_b32 s{S_SOX}, {st*128}")
        r.append(f"s_add_u32 m0, s{S_W1K7}, {buf}")
        for i in range(7):
            if i == 4:
                r.append(f"s_add_u32 m0, s{S_W1K7}, {buf + 4096}")
            off = f" offset:{(i%4)*1024}" if i % 4 else ""
            r.append(f"buffer_load_dwordx4 v{V_OFFX+i}, {sr(S_X)}, s{S_SOX} offen{off} lds")
        r.append(f"s_mov_b32 s{S_SOW}, {st*64*8192}")
        r.append(f"s_add_u32 m0, s{S_W4K}, {buf + 28672}")
        for i in range(4):
            off = f" offset:{i*1024}" if i else ""
            r.append(f"buffer_load_dwordx4 v{V_OFFW+i}, {sr(S_WQ)}, s{S_SOW} offen{off} lds")
        return r

    def q_reads(self, st):
        buf = BUF[st % 3]
        sset = 1 if buf == 90112 else 0
        base = buf - (90112 if sset else 0)
        p = (st & 1) * 88
        r = []
        for s in range(2):
            for T in range(4):
                jj = T >> 1
                for hf in range(2):
                    off = base + 8192 * s + 1024 * hf + 8 * (T & 1)
                    r.append(f"ds_read_b64_tr_b16 {ar(p + 56 + (s*4+T)*4 + 2*hf, 2)}, v{V_WR + sset*2 + jj} offset:{off}")
            for qt in range(7):
                off = base + qt * 2048
                r.append(f"ds_read_b128 {ar(p + (s*7+qt)*4)}, v{V_XR + sset*2 + s} offset:{off}")
        return r

    def q_mfmas(self, st, first):
        p = (st & 1) * 88
        r = []
        for s in range(2):
            for T in range(4):
                for qt in range(7):
                    d = vr((T * 7 + qt) * 4)
                    c = "0" if (first and s == 0) else d
                    r.append(f"{MF} {d}, {ar(p + 56 + (s*4+T)*4)}, {ar(p + (s*7+qt)*4)}, {c}")
        return r

    def k_read(self, kt, ks):
        off = f" offset:{kt*4096}" if kt else ""
        return f"ds_read_b128 {vr(V_K + (kt*4+ks)*4)}, v{V_KA+ks}{off}"

    def v_read(self, tp, hf):
        off = f" offset:{hf*4096}" if hf else ""
        return f"ds_read_b64_tr_b16 {vr(V_V + tp*4 + 2*hf, 2)}, v{V_VA+tp}{off}"

    def qk_mfmas(self, par, j2):
        r = []
        for kt in range(2):
            for ks in range(4):
                d = vr(V_S + par * 8 + kt * 4)
                c = vr(V_NEGM + j2 * 4) if ks == 0 else d
                r.append(f"{MF} {d}, {vr(V_K + (kt*4+ks)*4)}, {ar(A_Q + (j2*4+ks)*4)}, {c}")
        return r

    def pv_mfmas(self, par, j, first):
        r = []
        p = vr(V_P + par * 4)
        for tp in range(8):
            d = o_reg(j, tp)
            r.append(f"{MF} {d}, {vr(V_V + tp*4)}, {p}, {'0' if first else d}")
        d = ar(A_L + j * 4)
        r.append(f"{MF} {d}, {ar(A_ONES)}, {p}, {'0' if first else d}")
        return r

    def exps(self, par):
        return [f"v_exp_f32 v{V_S + par*8 + i}, v{V_S + par*8 + i}" for i in range(8)]

    def cvts(self, par):
        return [f"v_cvt_pk_bf16_f32 v{V_P + par*4 + i}, v{V_S + par*8 + 2*i}, v{V_S + par*8 + 2*i + 1}" for i in range(4)]

    def tile(self, n, first):
        a = self.a
        dlt = PAIR(n + 1) - PAIR(n)
        dl = dlt & 0xffffffff
        kdma = self.kv_dma("K", PAIR(n + 3) + 16384, "0")
        vdma_prev = self.kv_dma("V", PAIR(n + 2), "0")
        for j in range(7):
            s_par = (n + j) & 1
            mf = self.pv_mfmas(s_par, j, first) + self.qk_mfmas(s_par, (j + 2) % 7)
            ex = self.exps(s_par ^ 1)
            cv = self.cvts(s_par ^ 1)
            G = {g: [] for g in range(17)}
            PRE = {g: [] for g in range(17)}
            for i in range(8):
                G[2 * i].append(ex[i])
            for i in range(4):
                G[4 * i + 3].append(cv[i])
            if j == 0:
                PRE[0].append("s_waitcnt lgkmcnt(8)")
                G[1] += [self.v_read(7, 0), self.v_read(7, 1)]
                PRE[3].append("s_waitcnt lgkmcnt(4)")
                PRE[6].append("s_waitcnt lgkmcnt(0)")
                G[9] += [vdma_prev[0]]
                G[11] += [vdma_prev[1]]
                G[13] += [vdma_prev[2]]
            if j == 1:
                G[1] += [vdma_prev[3]]
                G[5] += [vdma_prev[4]]
                G[9] += [f"v_add_u32 v{V_OFFKV}, 16384, v{V_OFFKV}", f"v_add_u32 v{V_OFFKV+1}, 16384, v{V_OFFKV+1}"]
                G[13] += [f"v_add_u32 v{V_VA+0}, {dl}, v{V_VA+0}", f"v_add_u32 v{V_VA+1}, {dl}, v{V_VA+1}"]
                G[16] += [f"v_add_u32 v{V_VA+2}, {dl}, v{V_VA+2}", f"v_add_u32 v{V_VA+3}, {dl}, v{V_VA+3}"]
            if j == 2:
                G[1] += [f"v_add_u32 v{V_VA+4}, {dl}, v{V_VA+4}", f"v_add_u32 v{V_VA+5}, {dl}, v{V_VA+5}"]
                G[5] += [f"v_add_u32 v{V_VA+6}, {dl}, v{V_VA+6}", f"v_add_u32 v{V_VA+7}, {dl}, v{V_VA+7}"]
            if j == 3:
                G[1] += [f"v_add_u32 v{V_KA+0}, {dl}, v{V_KA+0}", f"v_add_u32 v{V_KA+1}, {dl}, v{V_KA+1}"]
                G[5] += [f"v_add_u32 v{V_KA+2}, {dl}, v{V_KA+2}", f"v_add_u32 v{V_KA+3}, {dl}, v{V_KA+3}"]
            if j == 4:
                G[5] += ["s_waitcnt vmcnt(8)"]
                G[7] += ["s_barrier"]
                G[9] += [self.k_read(0, 0)]
                G[11] += [self.k_read(0, 1)]
                G[13] += [self.k_read(0, 2), self.k_read(0, 3)]
                G[15] += [self.k_read(1, 0)]
                G[16] += [self.k_read(1, 1), self.k_read(1, 2)]
            if j == 5:
                G[1] += [self.k_read(1, 3), kdma[0]]
                G[5] += [kdma[1]]
                PRE[9].append("s_waitcnt lgkmcnt(0)")
                G[9] += [kdma[2]]
                G[13] += [kdma[3]]
                G[16] += [kdma[4]]
            if j == 6:
                v = self.v_read
                G[1] += [v(0, 0), v(0, 1)]
                G[3] += [v(1, 0)]
                G[5] += [v(1, 1), v(2, 0)]
                G[7] += [v(2, 1)]
                G[9] += [v(3, 0), v(3, 1)]
                G[11] += [v(4, 0)]
                G[13] += [v(4, 1), v(5, 0)]
                G[15] += [v(5, 1)]
                G[16] += [v(6, 0), v(6, 1)]
            a.c(f"tile%4={n} slot {j}")
            for g in range(17):
                a.many(PRE[g])
                a.e(mf[g])
                a.many(G[g])

    def gen(self):
        a = self.a
        o = self.o
        kn = f"{NAME}_kernel"
        a.L.append(f".globl {kn}\n.p2align 8\n.type {kn},@function\n{kn}:")
        a.e("s_cmp_ge_u32 s2, 256")
        a.e("s_cbranch_scc1 A_END")
        self.stamp()
        if o.stamps:
            a.e(f"s_memrealtime s[{S_ST+36}:{S_ST+37}]")
        a.e("s_load_dwordx8 s[4:11], s[0:1], 0")
        a.e("s_load_dwordx2 s[12:13], s[0:1], 56")
        a.e(f"v_mov_b32 v{V_TID}, v0")
        a.e(f"v_lshrrev_b32 v1, 6, v0")
        a.e("s_and_b32 s3, s2, 7")
        a.e(f"s_lshr_b32 s{S_T0}, s2, 3")
        a.e(f"v_readfirstlane_b32 s{S_W}, v1")
        a.e(f"s_and_b32 s{S_T1}, s3, 1")
        a.e(f"s_lshl_b32 s{S_T1}, s{S_T1}, 2")
        a.e(f"s_and_b32 s{S_T2}, s{S_T0}, 3")
        a.e(f"s_add_u32 s{S_B}, s{S_T1}, s{S_T2}")
        a.e(f"s_lshr_b32 s{S_T1}, s3, 1")
        a.e(f"s_lshl_b32 s{S_T1}, s{S_T1}, 3")
        a.e(f"s_lshr_b32 s{S_T2}, s{S_T0}, 2")
        a.e(f"s_add_u32 s{S_H}, s{S_T1}, s{S_T2}")
        a.e(f"s_lshr_b32 s{S_QH}, s{S_W}, 1")
        a.e(f"s_and_b32 s{S_KH}, s{S_W}, 1")
        a.e(f"s_mul_i32 s{S_W1K7}, s{S_W}, 7168")
        a.e(f"s_lshl_b32 s{S_W4K}, s{S_W}, 12")
        sc = f32(1.4426950408889634 / (128 ** 0.5))
        a.e(f"s_mov_b32 s{S_SC}, {hex(sc)}")
        a.e(f"s_mov_b32 s{S_SC+1}, {hex(sc)}")
        a.e(f"s_mov_b32 s{S_PASS}, 0")
        L, l15, g, r4, c4, t, u = V_T0, V_T0+1, V_T0+2, V_T0+3, V_T0+4, V_T0+5, V_T0+6
        a.e(f"v_and_b32 v{L}, 63, v{V_TID}")
        a.e(f"v_and_b32 v{l15}, 15, v{L}")
        a.e(f"v_lshrrev_b32 v{g}, 4, v{L}")
        a.e(f"v_lshrrev_b32 v{t}, 3, v{L}")
        a.e(f"v_lshrrev_b32 v{u}, 4, v{L}")
        a.e(f"v_and_b32 v{r4}, 7, v{L}")
        a.e(f"v_xor_b32 v{u}, v{u}, v{r4}")
        a.e(f"v_lshlrev_b32 v{u}, 4, v{u}")
        a.e(f"s_lshl_b32 s{S_T0}, s{S_KH}, 6")
        a.e(f"v_xor_b32 v{u}, s{S_T0}, v{u}")
        a.e(f"v_mul_u32_u24 v{t}, 1152, v{t}")
        a.e(f"s_mul_i32 s{S_T1}, s{S_W}, {56*1152}")
        a.e(f"v_add_u32 v{t}, s{S_T1}, v{t}")
        a.e(f"v_xor_b32 v{c4}, 64, v{u}")
        for i in range(7):
            src = u if (i & 1) == 0 else c4
            a.e(f"v_add_u32 v{V_OFFX+i}, v{src}, v{t}")
            k = i * 9216 - (i % 4) * 1024
            if k:
                a.e(f"v_add_u32 v{V_OFFX+i}, {k}, v{V_OFFX+i}")
        a.e(f"v_lshlrev_b32 v{t}, 2, v{g}")
        a.e(f"v_xor_b32 v{t}, v{t}, v{l15}")
        a.e(f"v_lshlrev_b32 v{t}, 4, v{t}")
        a.e(f"v_lshlrev_b32 v{u}, 13, v{g}")
        a.e(f"s_lshl_b32 s{S_T1}, s{S_W}, 17")
        a.e(f"v_add_u32 v{u}, s{S_T1}, v{u}")
        a.e(f"v_add_u32 v{V_OFFW}, v{t}, v{u}")
        for i in range(1, 4):
            a.e(f"v_add_u32 v{V_OFFW+i}, {i*(32768-1024)}, v{V_OFFW}")
        self.emit_kv_addr()
        a.e("s_waitcnt lgkmcnt(0)")
        a.e(f"s_mul_i32 s{S_T0}, s{S_B}, 258048")
        a.e(f"s_add_u32 s{S_X}, s4, s{S_T0}")
        a.e(f"s_addc_u32 s{S_X+1}, s5, 0")
        a.e(f"s_mov_b32 s{S_X+2}, 258048")
        a.e(f"s_mov_b32 s{S_X+3}, 0x00020000")
        a.e(f"s_lshl_b32 s{S_T0}, s{S_H}, 8")
        a.e(f"s_add_u32 s{S_WQ}, s10, s{S_T0}")
        a.e(f"s_addc_u32 s{S_WQ+1}, s11, 0")
        a.e(f"s_sub_u32 s{S_WQ+2}, {576*8192}, s{S_T0}")
        a.e(f"s_mov_b32 s{S_WQ+3}, 0x00020000")
        a.e(f"s_lshl_b32 s{S_T0}, s{S_B}, 5")
        a.e(f"s_add_u32 s{S_T0}, s{S_T0}, s{S_H}")
        a.e(f"s_lshl_b32 s{S_T0}, s{S_T0}, 18")
        a.e(f"s_add_u32 s{S_K}, s6, s{S_T0}")
        a.e(f"s_addc_u32 s{S_K+1}, s7, 0")
        a.e(f"s_mov_b32 s{S_K+2}, 262144")
        a.e(f"s_mov_b32 s{S_K+3}, 0x00020000")
        a.e(f"s_add_u32 s{S_V}, s8, s{S_T0}")
        a.e(f"s_addc_u32 s{S_V+1}, s9, 0")
        a.e(f"s_mov_b32 s{S_V+2}, 262144")
        a.e(f"s_mov_b32 s{S_V+3}, 0x00020000")
        a.e(f"s_mov_b32 s{S_O}, s12")
        a.e(f"s_mov_b32 s{S_O+1}, s13")
        a.e(f"s_mov_b32 s{S_O+2}, {112*128*1024}")
        a.e(f"s_mov_b32 s{S_O+3}, 0x00020000")
        a.many(self.x_dma(0))
        a.many(self.x_dma(1))
        a.many(self.kv_dma("K", PAIR(0) + 16384, "0"))
        a.e(f"v_and_b32 v{L}, 63, v{V_TID}")
        a.e(f"v_and_b32 v{l15}, 15, v{L}")
        a.e(f"v_lshrrev_b32 v{g}, 4, v{L}")
        a.e(f"v_bfe_u32 v{r4}, v{L}, 2, 2")
        a.e(f"v_and_b32 v{c4}, 3, v{L}")
        a.e(f"v_lshrrev_b32 v{t}, 1, v{l15}")
        a.e(f"v_xor_b32 v{t}, v{t}, v{g}")
        a.e(f"v_lshlrev_b32 v{t}, 4, v{t}")
        a.e(f"v_lshlrev_b32 v{u}, 7, v{l15}")
        a.e(f"s_mul_i32 s{S_T0}, s{S_QH}, {112*128}")
        a.e(f"v_add_u32 v{u}, s{S_T0}, v{u}")
        a.e(f"v_add_u32 v{V_XR}, v{t}, v{u}")
        a.e(f"v_xor_b32 v{t}, 64, v{t}")
        a.e(f"v_add_u32 v{V_XR+1}, v{t}, v{u}")
        a.e(f"v_add_u32 v{V_XR+2}, 90112, v{V_XR}")
        a.e(f"v_add_u32 v{V_XR+3}, 90112, v{V_XR+1}")
        a.e(f"s_lshl_b32 s{S_T0}, s{S_KH}, 1")
        a.e(f"v_xor_b32 v{t}, s{S_T0}, v{r4}")
        a.e(f"v_lshlrev_b32 v{t}, 6, v{t}")
        a.e(f"v_lshlrev_b32 v{u}, 3, v{g}")
        a.e(f"v_add_u32 v{u}, v{u}, v{r4}")
        a.e(f"v_lshlrev_b32 v{u}, 8, v{u}")
        a.e(f"v_lshlrev_b32 v{c4}, 4, v{c4}")
        a.e(f"v_add_u32 v{u}, v{u}, v{c4}")
        a.e(f"v_add_u32 v{u}, 28672, v{u}")
        a.e(f"v_add_u32 v{V_WR}, v{t}, v{u}")
        a.e(f"v_xor_b32 v{t}, 64, v{t}")
        a.e(f"v_add_u32 v{V_WR+1}, v{t}, v{u}")
        a.e(f"v_add_u32 v{V_WR+2}, 90112, v{V_WR}")
        a.e(f"v_add_u32 v{V_WR+3}, 90112, v{V_WR+1}")
        a.e(f"v_lshlrev_b32 v{t}, 4, v{L}")
        a.e(f"s_mul_i32 s{S_T0}, s{S_QH}, 28672")
        a.e(f"v_add_u32 v{V_QR}, s{S_T0}, v{t}")
        a.e(f"s_mul_i32 s{S_T1}, s{S_KH}, 14336")
        a.e(f"v_add_u32 v{V_QW}, s{S_T1}, v{V_QR}")
        for i in range(28):
            a.e(f"v_mov_b32 v{V_NEGM+i}, 0")
        a.e(f"v_mov_b32 v{t}, 0x3f803f80")
        for i in range(4):
            a.e(f"v_accvgpr_write_b32 a{A_ONES+i}, v{t}")
        N = {0: 15, 1: 15, 8: 12}
        for k in range(10):
            a.c(f"---- Q-proj period {k}")
            if k <= 8:
                a.e(f"s_waitcnt vmcnt({N.get(k, 11)}) lgkmcnt(0)")
            else:
                a.e("s_waitcnt lgkmcnt(0)")
            a.e("s_barrier")
            if k in (0, 1, 9):
                self.stamp()
            fill = []
            rd = self.q_reads(k) if k <= 8 else []
            dm = []
            if k <= 6:
                dm = self.x_dma(k + 2)
            elif k == 7:
                dm = [f"s_mov_b32 s{S_SOKV}, 16384"]
                dm = self.kv_dma("V", PAIR(0), "0") + dm + self.kv_dma("K", PAIR(1) + 16384, f"s{S_SOKV}") + \
                     self.kv_dma("V", PAIR(1), f"s{S_SOKV}")
            elif k == 8:
                dm = [f"s_mov_b32 s{S_SOKV}, 32768"]
                dm += self.kv_dma("K", PAIR(2) + 16384, f"s{S_SOKV}")
            i1 = i2 = 0
            while i1 < len(rd) or i2 < len(dm):
                if i1 < len(rd):
                    fill.append(rd[i1]); i1 += 1
                if i2 < len(dm):
                    fill.append(dm[i2]); i2 += 1
            mf = self.q_mfmas(k - 1, k == 1) if k >= 1 else []
            a.many(interleave(mf, fill, 2) if mf else fill)
        a.c("---- Q finalise")
        self.stamp()
        a.e("s_nop 7")
        for jj in range(2):
            for qt in range(7):
                tb = V_QT + ((jj * 7 + qt) & 1) * 4
                r0 = ((2 * jj) * 7 + qt) * 4
                r1 = ((2 * jj + 1) * 7 + qt) * 4
                for r in (r0, r0 + 2, r1, r1 + 2):
                    a.e(f"v_pk_mul_f32 {vr(r,2)}, {vr(r,2)}, s[{S_SC}:{S_SC+1}]")
                a.e(f"v_cvt_pk_bf16_f32 v{tb}, v{r0}, v{r0+1}")
                a.e(f"v_cvt_pk_bf16_f32 v{tb+1}, v{r0+2}, v{r0+3}")
                a.e(f"v_cvt_pk_bf16_f32 v{tb+2}, v{r1}, v{r1+1}")
                a.e(f"v_cvt_pk_bf16_f32 v{tb+3}, v{r1+2}, v{r1+3}")
                a.e(f"ds_write_b128 v{V_QW}, {vr(tb)} offset:{(jj*7+qt)*1024}")
        nadv = 2
        a.e(f"s_waitcnt vmcnt(12) lgkmcnt(0)")
        a.e("s_barrier")
        for ks in range(4):
            for qt in range(7):
                a.e(f"ds_read_b128 {ar(A_Q + (qt*4+ks)*4)}, v{V_QR} offset:{(ks*7+qt)*1024}")
        if o.dbgq:
            a.e("s_waitcnt lgkmcnt(0)")
            a.e(f"s_lshl_b32 s{S_T0}, s2, 2")
            a.e(f"s_add_u32 s{S_T0}, s{S_T0}, s{S_W}")
            a.e(f"s_mul_i32 s{S_T0}, s{S_T0}, 28672")
            a.e(f"s_add_u32 s{S_T0}, s{S_T0}, {32<<20}")
            a.e(f"s_mov_b32 s{S_O+2}, {256<<20}")
            a.e(f"v_and_b32 v{V_T0}, 63, v{V_TID}")
            a.e(f"v_lshlrev_b32 v{V_T0}, 4, v{V_T0}")
            for i in range(28):
                a.e(f"buffer_store_dwordx4 {ar(A_Q + i*4)}, v{V_T0}, {sr(S_O)}, s{S_T0} offen")
                a.e(f"s_add_u32 s{S_T0}, s{S_T0}, 1024")
            a.e("s_waitcnt vmcnt(0)")
            a.e(f"s_mov_b32 s{S_O+2}, {112*128*1024}")
        a.lab("A_ATT")
        a.e(f"v_add_u32 v{V_OFFKV}, {nadv*16384}, v{V_OFFKV}")
        a.e(f"v_add_u32 v{V_OFFKV+1}, {nadv*16384}, v{V_OFFKV+1}")
        for kt in range(2):
            for ks in range(4):
                a.e(self.k_read(kt, ks))
        for tp in range(7):
            a.e(self.v_read(tp, 0)); a.e(self.v_read(tp, 1))
        a.e("s_waitcnt lgkmcnt(14)")
        self.stamp()
        a.many(self.qk_mfmas(0, 0))
        m1 = self.qk_mfmas(1, 1)
        ex = self.exps(0); cv = self.cvts(0)
        fl = ex[:4] + ["s_nop 7"] + ex[4:] + ["s_nop 0"] + cv
        a.many(m1[:4])
        a.many(interleave(m1[4:], fl, 3))
        a.e("s_nop 1")
        self.in_loop(first=True)
        a.e(f"s_mov_b32 s{S_CNT}, 3")
        a.lab("A_LOOP")
        self.in_loop(first=False)
        a.e(f"s_sub_u32 s{S_CNT}, s{S_CNT}, 1")
        a.e(f"s_cmp_lg_u32 s{S_CNT}, 0")
        a.e("s_cbranch_scc1 A_LOOP")
        self.stamp()
        self.epilogue()
        self.slowpath()
        a.lab("A_END")
        a.e("s_endpgm")
        return "\n".join(a.L)

    def in_loop(self, first):
        for n in range(4):
            self.tile(n, first and n == 0)

    def epilogue(self):
        a = self.a
        o = self.o
        a.c("---- epilogue")
        a.e("s_waitcnt vmcnt(0) lgkmcnt(0)")
        a.e("s_nop 15")
        T = V_S
        lo, hi = f32(2.0 ** -24), f32(2.0 ** 30)
        a.e(f"s_mov_b32 s{S_T0}, {hex(lo)}")
        a.e(f"s_mov_b32 s{S_T1}, {hex(hi - lo)}")
        for qt in range(7):
            a.e(f"v_accvgpr_read_b32 v{T+qt}, a{A_L + 4*qt}")
        a.e(f"v_subrev_u32 v{T+8}, s{S_T0}, v{T}")
        for qt in range(1, 7):
            a.e(f"v_subrev_u32 v{T+9}, s{S_T0}, v{T+qt}")
            a.e(f"v_max_u32 v{T+8}, v{T+8}, v{T+9}")
        a.e(f"v_cmp_lt_u32 vcc, s{S_T1}, v{T+8}")
        a.e(f"s_cmp_lg_u64 vcc, 0")
        a.e(f"s_cselect_b32 s{S_T2}, 1, 0")
        a.e(f"v_mov_b32 v{T+10}, s{S_T2}")
        L = T + 11
        a.e(f"v_and_b32 v{L}, 63, v{V_TID}")
        a.e(f"v_lshlrev_b32 v{T+12}, 4, v{L}")
        a.e(f"v_lshlrev_b32 v{T+13}, 2, v{L}")
        a.e(f"s_mul_i32 s{S_T0}, s{S_W}, 28672")
        a.e(f"v_add_u32 v{T+14}, s{S_T0}, v{T+12}")
        a.e(f"s_mul_i32 s{S_T1}, s{S_W}, 1792")
        a.e(f"s_add_u32 s{S_T1}, s{S_T1}, {LX}")
        a.e(f"v_add_u32 v{T+15}, s{S_T1}, v{T+13}")
        a.e(f"s_lshl_b32 s{S_T2}, s{S_W}, 2")
        a.e(f"s_add_u32 s{S_T2}, s{S_T2}, {FL}")
        a.e(f"v_mov_b32 v{V_P}, s{S_T2}")
        a.e("s_barrier")
        for qt in range(7):
            for tpp in range(4):
                i = qt * 4 + tpp
                a.e(f"ds_write_b128 v{T+14}, {ar(A_OOTH + i*4)} offset:{i*1024}")
        for qt in range(7):
            a.e(f"ds_write_b32 v{T+15}, v{T+qt} offset:{qt*256}")
        a.e(f"ds_write_b32 v{V_P}, v{T+10}")
        a.e(f"s_xor_b32 s{S_T3}, s{S_W}, 1")
        a.e(f"s_mul_i32 s{S_T0}, s{S_T3}, 28672")
        a.e(f"v_add_u32 v{T+14}, s{S_T0}, v{T+12}")
        a.e(f"s_mul_i32 s{S_T1}, s{S_T3}, 1792")
        a.e(f"s_add_u32 s{S_T1}, s{S_T1}, {LX}")
        a.e(f"v_add_u32 v{T+15}, s{S_T1}, v{T+13}")
        a.e(f"v_mov_b32 v{V_P}, {FL}")
        a.e("s_waitcnt lgkmcnt(0)")
        a.e("s_barrier")
        self.stamp()
        F = V_P + 4
        a.e(f"ds_read_b128 {vr(F)}, v{V_P}")
        PL = V_KA
        for qt in range(7):
            a.e(f"ds_read_b32 v{PL+qt}, v{T+15} offset:{qt*256}")
        a.e("s_waitcnt lgkmcnt(7)")
        a.e(f"v_or_b32 v{F}, v{F}, v{F+1}")
        a.e(f"v_or_b32 v{F+2}, v{F+2}, v{F+3}")
        a.e(f"v_or_b32 v{F}, v{F}, v{F+2}")
        a.e("s_nop 1")
        a.e(f"v_readfirstlane_b32 s{S_T0}, v{F}")
        a.e(f"s_xor_b32 s{S_T1}, s{S_PASS}, 1")
        a.e(f"s_and_b32 s{S_T0}, s{S_T0}, s{S_T1}")
        a.e(f"s_cmp_lg_u32 s{S_T0}, 0")
        a.e("s_cbranch_scc1 A_SLOW")
        a.e("s_waitcnt lgkmcnt(0)")
        for qt in range(7):
            a.e(f"v_add_f32 v{T+qt}, v{T+qt}, v{PL+qt}")
        for qt in range(7):
            a.e(f"v_rcp_f32 v{T+qt}, v{T+qt}")
        a.e(f"s_mul_i32 s{S_T0}, s{S_B}, 14")
        a.e(f"s_mul_i32 s{S_T1}, s{S_QH}, 7")
        a.e(f"s_add_u32 s{S_T0}, s{S_T0}, s{S_T1}")
        a.e(f"s_lshl_b32 s{S_T0}, s{S_T0}, 7")
        a.e(f"s_lshl_b32 s{S_T1}, s{S_H}, 2")
        a.e(f"s_add_u32 s{S_T0}, s{S_T0}, s{S_T1}")
        a.e(f"s_lshl_b32 s{S_T1}, s{S_KH}, 1")
        a.e(f"s_add_u32 s{S_T0}, s{S_T0}, s{S_T1}")
        a.e(f"s_lshl_b32 s{S_OB}, s{S_T0}, 10")
        PB = 112
        def rd(qt):
            r = []
            for tpp in range(4):
                i = qt * 4 + tpp
                r.append(f"ds_read_b128 {vr(PB + ((qt & 3) * 4 + tpp) * 4)}, v{T+14} offset:{i*1024}")
            return r
        for qt in range(4):
            a.many(rd(qt))
        for qt in range(7):
            outstanding_after = min(3, 6 - qt) * 4
            a.e(f"s_waitcnt lgkmcnt({outstanding_after})")
            pb = PB + (qt & 3) * 16
            ob = V_OOWN + qt * 16
            for k in range(8):
                a.e(f"v_pk_add_f32 {vr(ob+2*k,2)}, {vr(ob+2*k,2)}, {vr(pb+2*k,2)}")
            if qt + 4 < 7:
                a.many(rd(qt + 4))
            rr = T + qt
            rb = rr & ~1
            sel = rr & 1
            for k in range(8):
                a.e(f"v_pk_mul_f32 {vr(ob+2*k,2)}, {vr(ob+2*k,2)}, {vr(rb,2)} op_sel:[0,{sel}] op_sel_hi:[1,{sel}]")
            tb = V_NEGM + (qt & 1) * 8
            for jj in range(2):
                s0 = ob + jj * 8
                for k in range(4):
                    a.e(f"v_cvt_pk_bf16_f32 v{tb + jj*4 + k}, v{s0 + 2*k}, v{s0 + 2*k + 1}")
            for jj in range(2):
                off = " offset:1024" if jj else ""
                a.e(f"buffer_store_dwordx4 {vr(tb + jj*4)}, v{T+12}, {sr(S_O)}, s{S_OB} offen{off}")
            a.e(f"s_add_u32 s{S_OB}, s{S_OB}, 131072")
        self.stamp()
        if o.stamps:
            a.e(f"s_memrealtime s[{S_ST+38}:{S_ST+39}]")
            a.e("s_waitcnt lgkmcnt(0)")
            a.e(f"s_cmp_lg_u32 s{S_W}, 0")
            a.e("s_cbranch_scc1 A_END")
            ns = 20
            a.e(f"s_mul_i32 s{S_T0}, s2, {ns*4*2}")
            a.e(f"s_add_u32 s{S_T0}, s{S_T0}, {64<<20}")
            a.e(f"s_mov_b32 s{S_O+2}, {256<<20}")
            a.e(f"v_mov_b32 v{V_T0+1}, 0")
            for i in range(ns * 2):
                if 2 * self.nst <= i < 36:
                    a.e(f"v_mov_b32 v{V_T0}, 0")
                else:
                    a.e(f"v_mov_b32 v{V_T0}, s{S_ST+i}")
                a.e(f"buffer_store_dword v{V_T0}, v{V_T0+1}, {sr(S_O)}, s{S_T0} offen offset:{i*4}")
                a.e("s_nop 1")
        a.e("s_endpgm")

    def slowpath(self):
        a = self.a
        o = self.o
        a.lab("A_SLOW")
        a.c("---- fallback: true row maximum, then redo the attention loop with it")
        a.e("s_waitcnt lgkmcnt(0)")
        a.e("s_barrier")
        a.e(f"s_mov_b32 s{S_PASS}, 1")
        self.emit_kv_addr()
        for qt in range(7):
            a.e(f"v_mov_b32 v{V_NEGM + 4*qt}, 0xff800000")
        KA = V_V
        for ks in range(4):
            a.e(f"v_subrev_u32 v{KA+ks}, {PAIR(0)+16384}, v{V_KA+ks}")
        a.e(f"s_mov_b32 s{S_SOKV}, 0")
        a.lab("A_MAXLOOP")
        a.many(self.kv_dma("K", 0, f"s{S_SOKV}"))
        a.e("s_waitcnt vmcnt(0)")
        a.e("s_barrier")
        for kt in range(2):
            for ks in range(4):
                off = f" offset:{kt*4096}" if kt else ""
                a.e(f"ds_read_b128 {vr(V_K + (kt*4+ks)*4)}, v{KA+ks}{off}")
        a.e("s_waitcnt lgkmcnt(0)")
        for qt in range(7):
            for kt in range(2):
                for ks in range(4):
                    d = vr(V_S + kt * 4)
                    a.e(f"{MF} {d}, {vr(V_K + (kt*4+ks)*4)}, {ar(A_Q + (qt*4+ks)*4)}, {'0' if ks == 0 else d}")
            a.e("s_nop 15")
            m = V_NEGM + 4 * qt
            for i in range(4):
                a.e(f"v_max3_f32 v{m}, v{m}, v{V_S+2*i}, v{V_S+2*i+1}")
            a.e("s_nop 3")
        a.e("s_barrier")
        a.e(f"s_add_u32 s{S_SOKV}, s{S_SOKV}, 16384")
        a.e(f"s_cmp_lt_u32 s{S_SOKV}, 262144")
        a.e("s_cbranch_scc1 A_MAXLOOP")
        L, t, u = V_T0, V_T0 + 1, V_T0 + 2
        a.e(f"v_and_b32 v{L}, 63, v{V_TID}")
        a.e(f"v_lshlrev_b32 v{t}, 2, v{L}")
        a.e(f"s_mul_i32 s{S_T0}, s{S_W}, 1792")
        a.e(f"s_add_u32 s{S_T0}, s{S_T0}, {MXX}")
        a.e(f"v_add_u32 v{t}, s{S_T0}, v{t}")
        for qt in range(7):
            a.e(f"ds_write_b32 v{t}, v{V_NEGM + 4*qt} offset:{qt*256}")
        a.e("s_waitcnt lgkmcnt(0)")
        a.e("s_barrier")
        a.e(f"v_and_b32 v{u}, 15, v{L}")
        a.e(f"v_lshlrev_b32 v{u}, 2, v{u}")
        a.e(f"s_mul_i32 s{S_T0}, s{S_QH}, 3584")
        a.e(f"s_add_u32 s{S_T0}, s{S_T0}, {MXX}")
        a.e(f"v_add_u32 v{u}, s{S_T0}, v{u}")
        for qt in range(7):
            for i in range(8):
                off = (i >> 2) * 1792 + qt * 256 + (i & 3) * 64
                a.e(f"ds_read_b32 v{V_S+i}, v{u} offset:{off}")
            a.e("s_waitcnt lgkmcnt(0)")
            m = V_NEGM + 4 * qt
            a.e(f"v_max3_f32 v{m}, v{V_S}, v{V_S+1}, v{V_S+2}")
            a.e(f"v_max3_f32 v{m}, v{m}, v{V_S+3}, v{V_S+4}")
            a.e(f"v_max3_f32 v{m}, v{m}, v{V_S+5}, v{V_S+6}")
            a.e(f"v_max_f32 v{m}, v{m}, v{V_S+7}")
            a.e(f"v_sub_f32 v{m}, 0, v{m}")
            for i in range(1, 4):
                a.e(f"v_mov_b32 v{m+i}, v{m}")
        a.e("s_barrier")
        a.many(self.kv_dma("K", PAIR(0) + 16384, "0"))
        a.many(self.kv_dma("V", PAIR(0), "0"))
        a.e(f"s_mov_b32 s{S_SOKV}, 16384")
        a.many(self.kv_dma("K", PAIR(1) + 16384, f"s{S_SOKV}"))
        a.many(self.kv_dma("V", PAIR(1), f"s{S_SOKV}"))
        a.e(f"s_mov_b32 s{S_SOKV}, 32768")
        a.many(self.kv_dma("K", PAIR(2) + 16384, f"s{S_SOKV}"))
        a.e(f"s_waitcnt vmcnt(12)")
        a.e("s_barrier")
        a.e("s_branch A_ATT")


class GenB:
    def __init__(self, opt):
        self.o = opt
        self.a = Asm()

    def gen(self):
        a = self.a
        o = self.o
        NW = o.bw
        RS = o.brs
        KS = 128 // NW
        kn = "oproj_kernel"
        a.L.append(f".globl {kn}\n.p2align 8\n.type {kn},@function\n{kn}:")
        S_OO, S_WO, S_OUT = 16, 20, 24
        S_Wv, S_MG, S_NG, S_SO, S_SW, S_LW, T0, T1, T2 = 28, 29, 30, 31, 32, 33, 34, 35, 36
        V_ACC = 0
        V_OF = 64
        V_AF = V_OF + RS * 16
        V_OO = V_AF + 16
        V_WOf = V_OO + 4
        V_TR = V_WOf + 4
        V_TM = V_TR + 4
        nv = V_TM + 12
        self.nv = nv
        a.e("s_cmp_ge_u32 s2, 256")
        a.e("s_cbranch_scc1 B_END")
        if o.stamps:
            a.e("s_memtime s[60:61]")
            a.e("s_memrealtime s[64:65]")
        a.e("s_load_dwordx4 s[4:7], s[0:1], 32")
        a.e("s_load_dwordx2 s[8:9], s[0:1], 56")
        a.e("s_and_b32 s3, s2, 7")
        a.e(f"s_lshr_b32 s{T0}, s2, 3")
        a.e(f"s_and_b32 s{T1}, s3, 1")
        a.e(f"s_lshl_b32 s{T1}, s{T1}, 5")
        a.e(f"s_add_u32 s{T0}, s{T0}, s{T1}")
        a.e(f"s_cmp_ge_u32 s{T0}, 63")
        a.e("s_cbranch_scc1 B_END")
        a.e(f"s_mul_i32 s{S_NG}, s{T0}, 37")
        a.e(f"s_lshr_b32 s{S_NG}, s{S_NG}, 8")
        a.e(f"s_mul_i32 s{T1}, s{S_NG}, 7")
        a.e(f"s_sub_u32 s{T0}, s{T0}, s{T1}")
        a.e(f"s_lshr_b32 s{T1}, s3, 1")
        a.e(f"s_mul_i32 s{T1}, s{T1}, 7")
        a.e(f"s_add_u32 s{S_MG}, s{T0}, s{T1}")
        t0, t1, t2, t3, t4, L = V_TM, V_TM+1, V_TM+2, V_TM+3, V_TM+4, V_TM+5
        a.e(f"v_lshrrev_b32 v{t0}, 6, v0")
        a.e(f"v_and_b32 v{L}, 63, v0")
        a.e("s_nop 0")
        a.e(f"v_readfirstlane_b32 s{S_Wv}, v{t0}")
        a.e(f"v_lshlrev_b32 v{V_OO}, 4, v{L}")
        for mi in range(1, 4):
            a.e(f"v_add_u32 v{V_OO+mi}, {mi*131072}, v{V_OO}")
        a.e(f"v_lshrrev_b32 v{t0}, 3, v{L}")
        a.e(f"v_and_b32 v{t1}, 7, v{L}")
        a.e(f"v_bfe_u32 v{t2}, v{L}, 4, 2")
        a.e(f"v_lshlrev_b32 v{t2}, 1, v{t2}")
        a.e(f"v_xor_b32 v{t1}, v{t1}, v{t2}")
        a.e(f"v_lshlrev_b32 v{t1}, 4, v{t1}")
        a.e(f"v_mul_u32_u24 v{t0}, 1152, v{t0}")
        a.e(f"v_add_u32 v{V_WOf}, v{t0}, v{t1}")
        for i in range(1, 4):
            a.e(f"v_add_u32 v{V_WOf+i}, {i*(9216-1024)}, v{V_WOf}")
        a.e(f"v_lshrrev_b32 v{t0}, 2, v{L}")
        a.e(f"v_bfe_u32 v{t1}, v{L}, 3, 2")
        a.e(f"v_lshlrev_b32 v{t1}, 5, v{t1}")
        a.e(f"v_lshlrev_b32 v{t0}, 7, v{t0}")
        a.e(f"v_and_b32 v{t2}, 3, v{L}")
        a.e(f"v_lshlrev_b32 v{t2}, 3, v{t2}")
        a.e(f"v_add_u32 v{t0}, v{t0}, v{t2}")
        a.e(f"s_mul_i32 s{S_LW}, s{S_Wv}, {RS*4096}")
        a.e(f"v_add_u32 v{t0}, s{S_LW}, v{t0}")
        for nt in range(4):
            a.e(f"v_xor_b32 v{V_TR+nt}, {nt*32}, v{t1}")
            a.e(f"v_add_u32 v{V_TR+nt}, v{V_TR+nt}, v{t0}")
        a.e("s_waitcnt lgkmcnt(0)")
        a.e(f"s_mov_b32 s{S_OO}, s8"); a.e(f"s_mov_b32 s{S_OO+1}, s9")
        a.e(f"s_mov_b32 s{S_OO+2}, {112*128*1024}"); a.e(f"s_mov_b32 s{S_OO+3}, 0x00020000")
        a.e(f"s_mov_b32 s{S_WO}, s4"); a.e(f"s_mov_b32 s{S_WO+1}, s5")
        a.e(f"s_mov_b32 s{S_WO+2}, {4096*1152}"); a.e(f"s_mov_b32 s{S_WO+3}, 0x00020000")
        a.e(f"s_mov_b32 s{S_OUT}, s6"); a.e(f"s_mov_b32 s{S_OUT+1}, s7")
        a.e(f"s_mov_b32 s{S_OUT+2}, {1792*1152}"); a.e(f"s_mov_b32 s{S_OUT+3}, 0x00020000")
        a.e(f"s_lshl_b32 s{T0}, s{S_MG}, 9")
        a.e(f"s_mul_i32 s{T1}, s{S_Wv}, {KS}")
        a.e(f"s_add_u32 s{T0}, s{T0}, s{T1}")
        a.e(f"s_lshl_b32 s{S_SO}, s{T0}, 10")
        a.e(f"s_mul_i32 s{T1}, s{T1}, {32*1152}")
        a.e(f"s_lshl_b32 s{T2}, s{S_NG}, 7")
        a.e(f"s_add_u32 s{S_SW}, s{T1}, s{T2}")

        def issue(k):
            r = []
            st = k % RS
            r.append(f"s_add_u32 m0, s{S_LW}, {st*4096}")
            for mi in range(4):
                off = f" offset:{(k%4)*1024}" if k % 4 else ""
                r.append(f"buffer_load_dwordx4 {vr(V_OF + st*16 + mi*4)}, v{V_OO+mi}, {sr(S_OO)}, s{S_SO} offen{off}")
            for i in range(4):
                off = f" offset:{i*1024}" if i else ""
                r.append(f"buffer_load_dwordx4 v{V_WOf+i}, {sr(S_WO)}, s{S_SW} offen{off} lds")
            r.append(f"s_add_u32 s{S_SW}, s{S_SW}, {32*1152}")
            if k % 4 == 3:
                r.append(f"s_add_u32 s{S_SO}, s{S_SO}, 4096")
            return r
        for k in range(RS - 1):
            a.many(issue(k))
        for k in range(KS):
            st = k % RS
            nxt = k + RS - 1
            if nxt < KS:
                a.many(issue(nxt))
                a.e(f"s_waitcnt vmcnt({8*(RS-1)})")
            else:
                a.e(f"s_waitcnt vmcnt({8*(KS-1-k)})")
            for nt in range(4):
                for hf in range(2):
                    a.e(f"ds_read_b64_tr_b16 {vr(V_AF + nt*4 + 2*hf, 2)}, v{V_TR+nt} offset:{st*4096 + hf*2048}")
            for nt in range(4):
                if nt == 0:
                    a.e("s_waitcnt lgkmcnt(6)")
                elif nt == 1:
                    a.e("s_waitcnt lgkmcnt(4)")
                elif nt == 2:
                    a.e("s_waitcnt lgkmcnt(2)")
                else:
                    a.e("s_waitcnt lgkmcnt(0)")
                for mi in range(4):
                    d = vr(V_ACC + (mi * 4 + nt) * 4)
                    a.e(f"{MF} {d}, {vr(V_AF + nt*4)}, {vr(V_OF + st*16 + mi*4)}, {'0' if k == 0 else d}")
        a.e("s_nop 15")
        a.e("s_barrier")
        a.e(f"v_and_b32 v{t0}, 15, v{L}")
        a.e(f"v_lshrrev_b32 v{t1}, 4, v{L}")
        a.e(f"v_xor_b32 v{t1}, v{t1}, v{t0}")
        a.e(f"v_lshlrev_b32 v{t1}, 4, v{t1}")
        a.e(f"v_lshlrev_b32 v{t0}, 8, v{t0}")
        a.e(f"s_lshl_b32 s{T0}, s{S_Wv}, 14")
        a.e(f"v_add_u32 v{t0}, s{T0}, v{t0}")
        for nt in range(4):
            a.e(f"v_xor_b32 v{V_TR+nt}, {nt*64}, v{t1}")
            a.e(f"v_add_u32 v{V_TR+nt}, v{V_TR+nt}, v{t0}")
        for mi in range(4):
            for nt in range(4):
                a.e(f"ds_write_b128 v{V_TR+nt}, {vr(V_ACC + (mi*4+nt)*4)} offset:{mi*4096}")
        a.e("s_waitcnt lgkmcnt(0)")
        a.e("s_barrier")
        RW = 64 // NW
        npass = RW // 8
        a.e(f"v_lshrrev_b32 v{t0}, 3, v{L}")
        a.e(f"s_mul_i32 s{T0}, s{S_Wv}, {RW}")
        a.e(f"v_add_u32 v{t0}, s{T0}, v{t0}")
        a.e(f"v_and_b32 v{t1}, 7, v{L}")
        a.e(f"v_lshlrev_b32 v{t1}, 1, v{t1}")
        for ps in range(npass):
            R = V_OF
            if ps:
                a.e(f"v_add_u32 v{t0}, 8, v{t0}")
            a.e(f"v_and_b32 v{t2}, 15, v{t0}")
            a.e(f"v_xor_b32 v{t3}, v{t1}, v{t2}")
            a.e(f"v_lshlrev_b32 v{t3}, 4, v{t3}")
            a.e(f"v_lshlrev_b32 v{t4}, 8, v{t0}")
            a.e(f"v_add_u32 v{t3}, v{t3}, v{t4}")
            a.e(f"v_xor_b32 v{t2}, 16, v{t3}")
            for wv in range(NW):
                if wv * 16384 < 65536:
                    a.e(f"ds_read_b128 {vr(R + wv*8)}, v{t3} offset:{wv*16384}")
                    a.e(f"ds_read_b128 {vr(R + wv*8 + 4)}, v{t2} offset:{wv*16384}")
                else:
                    if wv * 16384 == 65536:
                        a.e(f"v_add_u32 v{t3}, 65536, v{t3}")
                        a.e(f"v_add_u32 v{t2}, 65536, v{t2}")
                    a.e(f"ds_read_b128 {vr(R + wv*8)}, v{t3} offset:{wv*16384 - 65536}")
                    a.e(f"ds_read_b128 {vr(R + wv*8 + 4)}, v{t2} offset:{wv*16384 - 65536}")
            a.e("s_waitcnt lgkmcnt(0)")
            for wv in range(1, NW):
                for k in range(4):
                    a.e(f"v_pk_add_f32 {vr(R+2*k,2)}, {vr(R+2*k,2)}, {vr(R + wv*8 + 2*k,2)}")
            for k in range(4):
                a.e(f"v_cvt_pk_bf16_f32 v{V_ACC + ps*4 + k}, v{R+2*k}, v{R+2*k+1}")
            a.e(f"s_lshl_b32 s{T0}, s{S_MG}, 6")
            a.e(f"v_add_u32 v{t4}, s{T0}, v{t0}")
            a.e(f"v_mul_u32_u24 v{t4}, 1152, v{t4}")
            a.e(f"v_lshlrev_b32 v{t2}, 3, v{t1}")
            a.e(f"v_add_u32 v{t4}, v{t4}, v{t2}")
            a.e(f"s_lshl_b32 s{T1}, s{S_NG}, 7")
            a.e(f"buffer_store_dwordx4 {vr(V_ACC + ps*4)}, v{t4}, {sr(S_OUT)}, s{T1} offen")
        if o.stamps:
            a.e("s_memtime s[62:63]")
            a.e("s_memrealtime s[66:67]")
            a.e("s_waitcnt lgkmcnt(0)")
            a.e(f"s_cmp_lg_u32 s{S_Wv}, 0")
            a.e("s_cbranch_scc1 B_END")
            a.e(f"s_mul_i32 s{T0}, s2, 32")
            a.e(f"s_add_u32 s{T0}, s{T0}, {65<<20}")
            a.e(f"s_mov_b32 s{S_OO+2}, {256<<20}")
            a.e(f"v_mov_b32 v{t1}, 0")
            for i in range(8):
                a.e(f"v_mov_b32 v{t0}, s{60+i}")
                a.e(f"buffer_store_dword v{t0}, v{t1}, {sr(S_OO)}, s{T0} offen offset:{i*4}")
                a.e("s_nop 1")
        a.lab("B_END")
        a.e("s_endpgm")
        return "\n".join(a.L)


def fix_hazards(text):
    lines = text.split("\n")
    out = []
    prev = ""
    for ln in lines:
        s = ln.strip()
        if not s or s.startswith(";") or s.endswith(":") or s.startswith("."):
            out.append(ln); continue
        if s.endswith(" lds") and re.match(r"s_\w+ m0,", prev):
            out.append("    s_nop 0")
        out.append(ln)
        prev = s
    return "\n".join(out)


HDR = """; MHA block (Q-projection + cached attention + out-projection) for gfx950.
"""

def descriptor(kn, nv, acc, extra=""):
    return f""".amdhsa_kernel {kn}
  .amdhsa_next_free_vgpr {nv}
  .amdhsa_next_free_sgpr 102
  .amdhsa_accum_offset {acc}
  .amdhsa_group_segment_fixed_size 0
  .amdhsa_kernarg_size 64
  .amdhsa_user_sgpr_count 2
  .amdhsa_user_sgpr_kernarg_segment_ptr 1
  .amdhsa_system_sgpr_workgroup_id_x 1
.end_amdhsa_kernel
"""

def main():
    ap = argparse.ArgumentParser()
    ap.add_argument("-o", default="cdna_kernels/" + NAME + ".s")
    ap.add_argument("--nt", type=int, default=0)
    ap.add_argument("--stamps", type=int, default=0)
    ap.add_argument("--dbgq", type=int, default=0)
    ap.add_argument("--bw", type=int, default=8)
    ap.add_argument("--brs", type=int, default=4)
    ap.add_argument("--only", default="")
    o = ap.parse_args()
    ga = GenA(o); ta = ga.gen()
    gb = GenB(o); tb = gb.gen()
    hdr = HDR
    blds = max(o.bw * o.brs * 4096, o.bw * 16384)
    if o.only != "B":
        hdr += f"; @launch kernel={NAME}_kernel grid=(256,1,1) block=(256,1,1) lds=163840\n"
    if o.only != "A":
        hdr += f"; @launch kernel=oproj_kernel grid=(256,1,1) block=({o.bw*64},1,1) lds={blds}\n"
    txt = hdr + '.amdgcn_target "amdgcn-amd-amdhsa--gfx950"\n.text\n' + fix_hazards(ta) + "\n" + fix_hazards(tb) + "\n"
    txt += '.section .rodata,"a"\n.p2align 6\n' + descriptor(NAME + "_kernel", 512, 256)
    nvb = (gb.nv + 7) // 8 * 8
    txt += ".p2align 6\n" + descriptor("oproj_kernel", nvb, (gb.nv + 3) // 4 * 4)
    open(o.o, "w").write(txt)
    print("wrote", o.o, len(txt), "bytes; B vgprs", gb.nv)

if __name__ == "__main__":
    main()
```

```python
import sys, struct, re, argparse

NAME = "standalone__mha_block_cached__near_ridge"

def f32(x):
    return struct.unpack("<I", struct.pack("<f", x))[0]

class Asm:
    def __init__(self):
        self.L = []
    def e(self, s):
        self.L.append("    " + s)
    def c(self, s):
        self.L.append("    ; " + s)
    def lab(self, s):
        self.L.append(s + ":")
    def many(self, xs):
        for x in xs:
            self.e(x)

def vr(b, n=4):
    return f"v[{b}:{b+n-1}]" if n > 1 else f"v{b}"
def ar(b, n=4):
    return f"a[{b}:{b+n-1}]" if n > 1 else f"a{b}"
def sr(b, n=4):
    return f"s[{b}:{b+n-1}]" if n > 1 else f"s{b}"

MF = "v_mfma_f32_16x16x32_bf16"

def interleave(mfmas, fillers, per_gap=2, start_gap=0):
    out = []
    fi = 0
    for i, m in enumerate(mfmas):
        out.append(m)
        if i >= start_gap:
            for _ in range(per_gap):
                if fi < len(fillers):
                    out.append(fillers[fi]); fi += 1
    out.extend(fillers[fi:])
    return out

BUF = {0: 90112, 1: 45056, 2: 0}
def PAIR(n):
    return 32768 + ((3 - n) & 3) * 32768
QX = 0
OX = 0
LX = 114688
FL = 121856
MXX = 16384

V_OOWN = 0
V_K = 112
V_V = 144
V_S = 176
V_P = 192
V_NEGM = 200
V_KA = 228
V_VA = 232
V_OFFKV = 240
V_TID = 242
V_T0 = 243
V_OFFX = 112
V_OFFW = 119
V_XR = 124
V_WR = 128
V_QW = 132
V_QR = 133
V_QT = 136
A_Q = 0
A_OOTH = 112
A_L = 224
A_ONES = 252
S_X, S_WQ, S_K, S_V, S_O = 16, 20, 24, 28, 32
S_W, S_QH, S_KH = 36, 37, 38
S_W1K7 = 39
S_SC = 40
S_SOX, S_SOW = 42, 43
S_W4K = 44
S_B, S_H = 45, 46
S_CNT = 47
S_PASS = 48
S_T0, S_T1, S_T2, S_T3 = 49, 50, 51, 52
S_OB = 53
S_TMP64 = 54
S_SOKV = 56
S_ST = 60


def o_reg(j, tp):
    if tp < 4:
        return vr(V_OOWN + (j * 4 + tp) * 4)
    return ar(A_OOTH + (j * 4 + tp - 4) * 4)


class GenA:
    def __init__(self, opt):
        self.o = opt
        self.a = Asm()
        self.nst = 0

    def stamp(self, lst=None):
        if not self.o.stamps:
            return
        ins = "s_memrealtime" if self.o.rts else "s_memtime"
        s = f"{ins} s[{S_ST + 2*self.nst}:{S_ST + 2*self.nst + 1}]"
        self.nst += 1
        if lst is None:
            self.a.e(s)
        else:
            lst.append(s)

    def kvpol(self):
        return " nt" if self.o.nt else ""

    def emit_lane(self, dst):
        self.a.e(f"v_and_b32 v{dst}, 63, v{V_TID}")

    def emit_kv_addr(self):
        a = self.a
        L, l15, g, r4, c4, t, u = V_T0, V_T0+1, V_T0+2, V_T0+3, V_T0+4, V_T0+5, V_T0+6
        a.e(f"v_and_b32 v{L}, 63, v{V_TID}")
        a.e(f"v_and_b32 v{l15}, 15, v{L}")
        a.e(f"v_lshrrev_b32 v{g}, 4, v{L}")
        a.e(f"v_bfe_u32 v{r4}, v{L}, 2, 2")
        a.e(f"v_and_b32 v{c4}, 3, v{L}")
        a.e(f"s_lshl_b32 s{S_T0}, s{S_KH}, 13")
        a.e(f"s_add_u32 s{S_T1}, s{S_T0}, {PAIR(0) + 16384}")
        a.e(f"v_and_b32 v{t}, 7, v{l15}")
        a.e(f"v_lshlrev_b32 v{t}, 1, v{t}")
        a.e(f"v_xor_b32 v{t}, v{t}, v{g}")
        a.e(f"v_lshlrev_b32 v{t}, 4, v{t}")
        a.e(f"v_lshlrev_b32 v{u}, 8, v{l15}")
        a.e(f"v_add_u32 v{u}, s{S_T1}, v{u}")
        for ks in range(4):
            a.e(f"v_xor_b32 v{V_KA+ks}, {ks*64}, v{t}")
            a.e(f"v_add_u32 v{V_KA+ks}, v{V_KA+ks}, v{u}")
        a.e(f"s_add_u32 s{S_T1}, s{S_T0}, {PAIR(0)}")
        a.e(f"v_lshlrev_b32 v{u}, 2, v{g}")
        a.e(f"v_add_u32 v{u}, v{u}, v{r4}")
        a.e(f"v_and_b32 v{t}, 7, v{u}")
        a.e(f"s_lshl_b32 s{S_T2}, s{S_KH}, 2")
        a.e(f"v_xor_b32 v{t}, s{S_T2}, v{t}")
        a.e(f"v_lshlrev_b32 v{t}, 5, v{t}")
        a.e(f"v_lshlrev_b32 v{u}, 8, v{u}")
        a.e(f"v_add_u32 v{u}, s{S_T1}, v{u}")
        a.e(f"v_lshlrev_b32 v{c4}, 3, v{c4}")
        a.e(f"v_add_u32 v{u}, v{u}, v{c4}")
        for tp in range(8):
            a.e(f"v_xor_b32 v{V_VA+tp}, {tp*32}, v{t}")
            a.e(f"v_add_u32 v{V_VA+tp}, v{V_VA+tp}, v{u}")
        a.e(f"v_lshlrev_b32 v{t}, 1, v{g}")
        a.e(f"v_xor_b32 v{t}, v{t}, v{l15}")
        a.e(f"v_lshlrev_b32 v{t}, 4, v{t}")
        a.e(f"v_lshlrev_b32 v{u}, 8, v{g}")
        a.e(f"v_add_u32 v{u}, s{S_W4K}, v{u}")
        a.e(f"v_add_u32 v{V_OFFKV}, v{t}, v{u}")
        a.e(f"v_xor_b32 v{t}, 128, v{t}")
        a.e(f"v_add_u32 v{V_OFFKV+1}, v{t}, v{u}")

    def kv_dma(self, which, tile_lds, soff):
        srd = S_K if which == "K" else S_V
        r = [f"s_add_u32 m0, s{S_W4K}, {tile_lds}"]
        for i in range(4):
            off = f" offset:{i*1024}" if i else ""
            r.append(f"buffer_load_dwordx4 v{V_OFFKV + (i & 1)}, {sr(srd)}, {soff} offen{off}{self.kvpol()} lds")
        return r

    def x_dma(self, st):
        buf = BUF[st % 3]
        r = []
        r.append(f"s_mov_b32 s{S_SOX}, {st*128}")
        r.append(f"s_add_u32 m0, s{S_W1K7}, {buf}")
        for i in range(7):
            if i == 4:
                r.append(f"s_add_u32 m0, s{S_W1K7}, {buf + 4096}")
            off = f" offset:{(i%4)*1024}" if i % 4 else ""
            r.append(f"buffer_load_dwordx4 v{V_OFFX+i}, {sr(S_X)}, s{S_SOX} offen{off} lds")
        r.append(f"s_mov_b32 s{S_SOW}, {st*64*8192}")
        r.append(f"s_add_u32 m0, s{S_W4K}, {buf + 28672}")
        for i in range(4):
            off = f" offset:{i*1024}" if i else ""
            r.append(f"buffer_load_dwordx4 v{V_OFFW+i}, {sr(S_WQ)}, s{S_SOW} offen{off} lds")
        return r

    def q_reads(self, st):
        buf = BUF[st % 3]
        sset = 1 if buf == 90112 else 0
        base = buf - (90112 if sset else 0)
        p = (st & 1) * 88
        r = []
        for s in range(2):
            for T in range(4):
                jj = T >> 1
                for hf in range(2):
                    off = base + 8192 * s + 1024 * hf + 8 * (T & 1)
                    r.append(f"ds_read_b64_tr_b16 {ar(p + 56 + (s*4+T)*4 + 2*hf, 2)}, v{V_WR + sset*2 + jj} offset:{off}")
            for qt in range(7):
                off = base + qt * 2048
                r.append(f"ds_read_b128 {ar(p + (s*7+qt)*4)}, v{V_XR + sset*2 + s} offset:{off}")
        return r

    def q_mfmas(self, st, first):
        p = (st & 1) * 88
        r = []
        for s in range(2):
            for T in range(4):
                for qt in range(7):
                    d = vr((T * 7 + qt) * 4)
                    c = "0" if (first and s == 0) else d
                    r.append(f"{MF} {d}, {ar(p + 56 + (s*4+T)*4)}, {ar(p + (s*7+qt)*4)}, {c}")
        return r

    def k_read(self, kt, ks):
        off = f" offset:{kt*4096}" if kt else ""
        return f"ds_read_b128 {vr(V_K + (kt*4+ks)*4)}, v{V_KA+ks}{off}"

    def v_read(self, tp, hf):
        off = f" offset:{hf*4096}" if hf else ""
        return f"ds_read_b64_tr_b16 {vr(V_V + tp*4 + 2*hf, 2)}, v{V_VA+tp}{off}"

    def qk_mfmas(self, par, j2):
        r = []
        for kt in range(2):
            for ks in range(4):
                d = vr(V_S + par * 8 + kt * 4)
                c = vr(V_NEGM + j2 * 4) if ks == 0 else d
                r.append(f"{MF} {d}, {vr(V_K + (kt*4+ks)*4)}, {ar(A_Q + (j2*4+ks)*4)}, {c}")
        return r

    def pv_mfmas(self, par, j, first):
        r = []
        p = vr(V_P + par * 4)
        for tp in range(8):
            d = o_reg(j, tp)
            r.append(f"{MF} {d}, {vr(V_V + tp*4)}, {p}, {'0' if first else d}")
        d = ar(A_L + j * 4)
        r.append(f"{MF} {d}, {ar(A_ONES)}, {p}, {'0' if first else d}")
        return r

    def exps(self, par):
        return [f"v_exp_f32 v{V_S + par*8 + i}, v{V_S + par*8 + i}" for i in range(8)]

    def cvts(self, par):
        return [f"v_cvt_pk_bf16_f32 v{V_P + par*4 + i}, v{V_S + par*8 + 2*i}, v{V_S + par*8 + 2*i + 1}" for i in range(4)]

    def tile(self, n, first):
        a = self.a
        dlt = PAIR(n + 1) - PAIR(n)
        dl = dlt & 0xffffffff
        kdma = self.kv_dma("K", PAIR(n + 3) + 16384, "0")
        vdma_prev = self.kv_dma("V", PAIR(n + 2), "0")
        for j in range(7):
            s_par = (n + j) & 1
            mf = self.pv_mfmas(s_par, j, first) + self.qk_mfmas(s_par, (j + 2) % 7)
            ex = self.exps(s_par ^ 1)
            cv = self.cvts(s_par ^ 1)
            G = {g: [] for g in range(17)}
            PRE = {g: [] for g in range(17)}
            for i in range(8):
                G[2 * i].append(ex[i])
            for i in range(4):
                G[4 * i + 3].append(cv[i])
            if j == 0:
                PRE[0].append("s_waitcnt lgkmcnt(8)")
                G[1] += [self.v_read(7, 0), self.v_read(7, 1)]
                PRE[3].append("s_waitcnt lgkmcnt(4)")
                PRE[6].append("s_waitcnt lgkmcnt(0)")
                G[9] += [vdma_prev[0]]
                G[11] += [vdma_prev[1]]
                G[13] += [vdma_prev[2]]
            if j == 1:
                G[1] += [vdma_prev[3]]
                G[5] += [vdma_prev[4]]
                G[9] += [f"v_add_u32 v{V_OFFKV}, 16384, v{V_OFFKV}", f"v_add_u32 v{V_OFFKV+1}, 16384, v{V_OFFKV+1}"]
                G[13] += [f"v_add_u32 v{V_VA+0}, {dl}, v{V_VA+0}", f"v_add_u32 v{V_VA+1}, {dl}, v{V_VA+1}"]
                G[16] += [f"v_add_u32 v{V_VA+2}, {dl}, v{V_VA+2}", f"v_add_u32 v{V_VA+3}, {dl}, v{V_VA+3}"]
            if j == 2:
                G[1] += [f"v_add_u32 v{V_VA+4}, {dl}, v{V_VA+4}", f"v_add_u32 v{V_VA+5}, {dl}, v{V_VA+5}"]
                G[5] += [f"v_add_u32 v{V_VA+6}, {dl}, v{V_VA+6}", f"v_add_u32 v{V_VA+7}, {dl}, v{V_VA+7}"]
            if j == 3:
                G[1] += [f"v_add_u32 v{V_KA+0}, {dl}, v{V_KA+0}", f"v_add_u32 v{V_KA+1}, {dl}, v{V_KA+1}"]
                G[5] += [f"v_add_u32 v{V_KA+2}, {dl}, v{V_KA+2}", f"v_add_u32 v{V_KA+3}, {dl}, v{V_KA+3}"]
            if j == 4:
                G[5] += ["s_waitcnt vmcnt(8)"]
                G[7] += ["s_barrier"]
                G[9] += [self.k_read(0, 0)]
                G[11] += [self.k_read(0, 1)]
                G[13] += [self.k_read(0, 2), self.k_read(0, 3)]
                G[15] += [self.k_read(1, 0)]
                G[16] += [self.k_read(1, 1), self.k_read(1, 2)]
            if j == 5:
                G[1] += [self.k_read(1, 3), kdma[0]]
                G[5] += [kdma[1]]
                PRE[9].append("s_waitcnt lgkmcnt(0)")
                G[9] += [kdma[2]]
                G[13] += [kdma[3]]
                G[16] += [kdma[4]]
            if j == 6:
                v = self.v_read
                G[1] += [v(0, 0), v(0, 1)]
                G[3] += [v(1, 0)]
                G[5] += [v(1, 1), v(2, 0)]
                G[7] += [v(2, 1)]
                G[9] += [v(3, 0), v(3, 1)]
                G[11] += [v(4, 0)]
                G[13] += [v(4, 1), v(5, 0)]
                G[15] += [v(5, 1)]
                G[16] += [v(6, 0), v(6, 1)]
            a.c(f"tile%4={n} slot {j}")
            for g in range(17):
                a.many(PRE[g])
                a.e(mf[g])
                a.many(G[g])

    def gen(self):
        a = self.a
        o = self.o
        kn = f"{NAME}_kernel"
        a.L.append(f".globl {kn}\n.p2align 8\n.type {kn},@function\n{kn}:")
        a.e("s_cmp_ge_u32 s2, 256")
        a.e("s_cbranch_scc1 A_END")
        self.stamp()
        if o.stamps:
            a.e(f"s_memrealtime s[{S_ST+36}:{S_ST+37}]")
        a.e("s_load_dwordx8 s[4:11], s[0:1], 0")
        a.e("s_load_dwordx2 s[12:13], s[0:1], 56")
        a.e(f"v_mov_b32 v{V_TID}, v0")
        a.e(f"v_lshrrev_b32 v1, 6, v0")
        a.e("s_and_b32 s3, s2, 7")
        a.e(f"s_lshr_b32 s{S_T0}, s2, 3")
        a.e(f"v_readfirstlane_b32 s{S_W}, v1")
        a.e(f"s_and_b32 s{S_T1}, s3, 1")
        a.e(f"s_lshl_b32 s{S_T1}, s{S_T1}, 2")
        a.e(f"s_and_b32 s{S_T2}, s{S_T0}, 3")
        a.e(f"s_add_u32 s{S_B}, s{S_T1}, s{S_T2}")
        a.e(f"s_lshr_b32 s{S_T1}, s3, 1")
        a.e(f"s_lshl_b32 s{S_T1}, s{S_T1}, 3")
        a.e(f"s_lshr_b32 s{S_T2}, s{S_T0}, 2")
        a.e(f"s_add_u32 s{S_H}, s{S_T1}, s{S_T2}")
        a.e(f"s_lshr_b32 s{S_QH}, s{S_W}, 1")
        a.e(f"s_and_b32 s{S_KH}, s{S_W}, 1")
        a.e(f"s_mul_i32 s{S_W1K7}, s{S_W}, 7168")
        a.e(f"s_lshl_b32 s{S_W4K}, s{S_W}, 12")
        sc = f32(1.4426950408889634 / (128 ** 0.5))
        a.e(f"s_mov_b32 s{S_SC}, {hex(sc)}")
        a.e(f"s_mov_b32 s{S_SC+1}, {hex(sc)}")
        a.e(f"s_mov_b32 s{S_PASS}, 0")
        L, l15, g, r4, c4, t, u = V_T0, V_T0+1, V_T0+2, V_T0+3, V_T0+4, V_T0+5, V_T0+6
        a.e(f"v_and_b32 v{L}, 63, v{V_TID}")
        a.e(f"v_and_b32 v{l15}, 15, v{L}")
        a.e(f"v_lshrrev_b32 v{g}, 4, v{L}")
        a.e(f"v_lshrrev_b32 v{t}, 3, v{L}")
        a.e(f"v_lshrrev_b32 v{u}, 4, v{L}")
        a.e(f"v_and_b32 v{r4}, 7, v{L}")
        a.e(f"v_xor_b32 v{u}, v{u}, v{r4}")
        a.e(f"v_lshlrev_b32 v{u}, 4, v{u}")
        a.e(f"s_lshl_b32 s{S_T0}, s{S_KH}, 6")
        a.e(f"v_xor_b32 v{u}, s{S_T0}, v{u}")
        a.e(f"v_mul_u32_u24 v{t}, 1152, v{t}")
        a.e(f"s_mul_i32 s{S_T1}, s{S_W}, {56*1152}")
        a.e(f"v_add_u32 v{t}, s{S_T1}, v{t}")
        a.e(f"v_xor_b32 v{c4}, 64, v{u}")
        for i in range(7):
            src = u if (i & 1) == 0 else c4
            a.e(f"v_add_u32 v{V_OFFX+i}, v{src}, v{t}")
            k = i * 9216 - (i % 4) * 1024
            if k:
                a.e(f"v_add_u32 v{V_OFFX+i}, {k}, v{V_OFFX+i}")
        a.e(f"v_lshlrev_b32 v{t}, 2, v{g}")
        a.e(f"v_xor_b32 v{t}, v{t}, v{l15}")
        a.e(f"v_lshlrev_b32 v{t}, 4, v{t}")
        a.e(f"v_lshlrev_b32 v{u}, 13, v{g}")
        a.e(f"s_lshl_b32 s{S_T1}, s{S_W}, 17")
        a.e(f"v_add_u32 v{u}, s{S_T1}, v{u}")
        a.e(f"v_add_u32 v{V_OFFW}, v{t}, v{u}")
        for i in range(1, 4):
            a.e(f"v_add_u32 v{V_OFFW+i}, {i*(32768-1024)}, v{V_OFFW}")
        self.emit_kv_addr()
        a.e("s_waitcnt lgkmcnt(0)")
        a.e(f"s_mul_i32 s{S_T0}, s{S_B}, 258048")
        a.e(f"s_add_u32 s{S_X}, s4, s{S_T0}")
        a.e(f"s_addc_u32 s{S_X+1}, s5, 0")
        a.e(f"s_mov_b32 s{S_X+2}, 258048")
        a.e(f"s_mov_b32 s{S_X+3}, 0x00020000")
        a.e(f"s_lshl_b32 s{S_T0}, s{S_H}, 8")
        a.e(f"s_add_u32 s{S_WQ}, s10, s{S_T0}")
        a.e(f"s_addc_u32 s{S_WQ+1}, s11, 0")
        a.e(f"s_sub_u32 s{S_WQ+2}, {576*8192}, s{S_T0}")
        a.e(f"s_mov_b32 s{S_WQ+3}, 0x00020000")
        a.e(f"s_lshl_b32 s{S_T0}, s{S_B}, 5")
        a.e(f"s_add_u32 s{S_T0}, s{S_T0}, s{S_H}")
        a.e(f"s_lshl_b32 s{S_T0}, s{S_T0}, 18")
        a.e(f"s_add_u32 s{S_K}, s6, s{S_T0}")
        a.e(f"s_addc_u32 s{S_K+1}, s7, 0")
        a.e(f"s_mov_b32 s{S_K+2}, 262144")
        a.e(f"s_mov_b32 s{S_K+3}, 0x00020000")
        a.e(f"s_add_u32 s{S_V}, s8, s{S_T0}")
        a.e(f"s_addc_u32 s{S_V+1}, s9, 0")
        a.e(f"s_mov_b32 s{S_V+2}, 262144")
        a.e(f"s_mov_b32 s{S_V+3}, 0x00020000")
        a.e(f"s_mov_b32 s{S_O}, s12")
        a.e(f"s_mov_b32 s{S_O+1}, s13")
        a.e(f"s_mov_b32 s{S_O+2}, {112*128*1024}")
        a.e(f"s_mov_b32 s{S_O+3}, 0x00020000")
        a.many(self.x_dma(0))
        a.many(self.x_dma(1))
        a.many(self.kv_dma("K", PAIR(0) + 16384, "0"))
        a.e(f"v_and_b32 v{L}, 63, v{V_TID}")
        a.e(f"v_and_b32 v{l15}, 15, v{L}")
        a.e(f"v_lshrrev_b32 v{g}, 4, v{L}")
        a.e(f"v_bfe_u32 v{r4}, v{L}, 2, 2")
        a.e(f"v_and_b32 v{c4}, 3, v{L}")
        a.e(f"v_lshrrev_b32 v{t}, 1, v{l15}")
        a.e(f"v_xor_b32 v{t}, v{t}, v{g}")
        a.e(f"v_lshlrev_b32 v{t}, 4, v{t}")
        a.e(f"v_lshlrev_b32 v{u}, 7, v{l15}")
        a.e(f"s_mul_i32 s{S_T0}, s{S_QH}, {112*128}")
        a.e(f"v_add_u32 v{u}, s{S_T0}, v{u}")
        a.e(f"v_add_u32 v{V_XR}, v{t}, v{u}")
        a.e(f"v_xor_b32 v{t}, 64, v{t}")
        a.e(f"v_add_u32 v{V_XR+1}, v{t}, v{u}")
        a.e(f"v_add_u32 v{V_XR+2}, 90112, v{V_XR}")
        a.e(f"v_add_u32 v{V_XR+3}, 90112, v{V_XR+1}")
        a.e(f"s_lshl_b32 s{S_T0}, s{S_KH}, 1")
        a.e(f"v_xor_b32 v{t}, s{S_T0}, v{r4}")
        a.e(f"v_lshlrev_b32 v{t}, 6, v{t}")
        a.e(f"v_lshlrev_b32 v{u}, 3, v{g}")
        a.e(f"v_add_u32 v{u}, v{u}, v{r4}")
        a.e(f"v_lshlrev_b32 v{u}, 8, v{u}")
        a.e(f"v_lshlrev_b32 v{c4}, 4, v{c4}")
        a.e(f"v_add_u32 v{u}, v{u}, v{c4}")
        a.e(f"v_add_u32 v{u}, 28672, v{u}")
        a.e(f"v_add_u32 v{V_WR}, v{t}, v{u}")
        a.e(f"v_xor_b32 v{t}, 64, v{t}")
        a.e(f"v_add_u32 v{V_WR+1}, v{t}, v{u}")
        a.e(f"v_add_u32 v{V_WR+2}, 90112, v{V_WR}")
        a.e(f"v_add_u32 v{V_WR+3}, 90112, v{V_WR+1}")
        a.e(f"v_lshlrev_b32 v{t}, 4, v{L}")
        a.e(f"s_mul_i32 s{S_T0}, s{S_QH}, 28672")
        a.e(f"v_add_u32 v{V_QR}, s{S_T0}, v{t}")
        a.e(f"s_mul_i32 s{S_T1}, s{S_KH}, 14336")
        a.e(f"v_add_u32 v{V_QW}, s{S_T1}, v{V_QR}")
        for i in range(28):
            a.e(f"v_mov_b32 v{V_NEGM+i}, 0")
        a.e(f"v_mov_b32 v{t}, 0x3f803f80")
        for i in range(4):
            a.e(f"v_accvgpr_write_b32 a{A_ONES+i}, v{t}")
        N = {0: 15, 1: 15, 8: 12}
        for k in range(10):
            a.c(f"---- Q-proj period {k}")
            if k <= 8:
                a.e(f"s_waitcnt vmcnt({N.get(k, 11)}) lgkmcnt(0)")
            else:
                a.e("s_waitcnt lgkmcnt(0)")
            a.e("s_barrier")
            if k in (0, 1, 9):
                self.stamp()
            fill = []
            rd = self.q_reads(k) if k <= 8 else []
            dm = []
            if k <= 6:
                dm = self.x_dma(k + 2)
            elif k == 7:
                dm = [f"s_mov_b32 s{S_SOKV}, 16384"]
                dm = self.kv_dma("V", PAIR(0), "0") + dm + self.kv_dma("K", PAIR(1) + 16384, f"s{S_SOKV}") + \
                     self.kv_dma("V", PAIR(1), f"s{S_SOKV}")
            elif k == 8:
                dm = [f"s_mov_b32 s{S_SOKV}, 32768"]
                dm += self.kv_dma("K", PAIR(2) + 16384, f"s{S_SOKV}")
            i1 = i2 = 0
            while i1 < len(rd) or i2 < len(dm):
                if i1 < len(rd):
                    fill.append(rd[i1]); i1 += 1
                if i2 < len(dm):
                    fill.append(dm[i2]); i2 += 1
            mf = self.q_mfmas(k - 1, k == 1) if k >= 1 else []
            a.many(interleave(mf, fill, 2) if mf else fill)
        a.c("---- Q finalise")
        self.stamp()
        a.e("s_nop 7")
        for jj in range(2):
            for qt in range(7):
                tb = V_QT + ((jj * 7 + qt) & 1) * 4
                r0 = ((2 * jj) * 7 + qt) * 4
                r1 = ((2 * jj + 1) * 7 + qt) * 4
                for r in (r0, r0 + 2, r1, r1 + 2):
                    a.e(f"v_pk_mul_f32 {vr(r,2)}, {vr(r,2)}, s[{S_SC}:{S_SC+1}]")
                a.e(f"v_cvt_pk_bf16_f32 v{tb}, v{r0}, v{r0+1}")
                a.e(f"v_cvt_pk_bf16_f32 v{tb+1}, v{r0+2}, v{r0+3}")
                a.e(f"v_cvt_pk_bf16_f32 v{tb+2}, v{r1}, v{r1+1}")
                a.e(f"v_cvt_pk_bf16_f32 v{tb+3}, v{r1+2}, v{r1+3}")
                a.e(f"ds_write_b128 v{V_QW}, {vr(tb)} offset:{(jj*7+qt)*1024}")
        nadv = 2
        a.e(f"s_waitcnt vmcnt(12) lgkmcnt(0)")
        a.e("s_barrier")
        for ks in range(4):
            for qt in range(7):
                a.e(f"ds_read_b128 {ar(A_Q + (qt*4+ks)*4)}, v{V_QR} offset:{(ks*7+qt)*1024}")
        if o.dbgq:
            a.e("s_waitcnt lgkmcnt(0)")
            a.e(f"s_lshl_b32 s{S_T0}, s2, 2")
            a.e(f"s_add_u32 s{S_T0}, s{S_T0}, s{S_W}")
            a.e(f"s_mul_i32 s{S_T0}, s{S_T0}, 28672")
            a.e(f"s_add_u32 s{S_T0}, s{S_T0}, {32<<20}")
            a.e(f"s_mov_b32 s{S_O+2}, {256<<20}")
            a.e(f"v_and_b32 v{V_T0}, 63, v{V_TID}")
            a.e(f"v_lshlrev_b32 v{V_T0}, 4, v{V_T0}")
            for i in range(28):
                a.e(f"buffer_store_dwordx4 {ar(A_Q + i*4)}, v{V_T0}, {sr(S_O)}, s{S_T0} offen")
                a.e(f"s_add_u32 s{S_T0}, s{S_T0}, 1024")
            a.e("s_waitcnt vmcnt(0)")
            a.e(f"s_mov_b32 s{S_O+2}, {112*128*1024}")
        a.lab("A_ATT")
        a.e(f"v_add_u32 v{V_OFFKV}, {nadv*16384}, v{V_OFFKV}")
        a.e(f"v_add_u32 v{V_OFFKV+1}, {nadv*16384}, v{V_OFFKV+1}")
        for kt in range(2):
            for ks in range(4):
                a.e(self.k_read(kt, ks))
        for tp in range(7):
            a.e(self.v_read(tp, 0)); a.e(self.v_read(tp, 1))
        a.e("s_waitcnt lgkmcnt(14)")
        self.stamp()
        a.many(self.qk_mfmas(0, 0))
        m1 = self.qk_mfmas(1, 1)
        ex = self.exps(0); cv = self.cvts(0)
        fl = ex[:4] + ["s_nop 7"] + ex[4:] + ["s_nop 0"] + cv
        a.many(m1[:4])
        a.many(interleave(m1[4:], fl, 3))
        a.e("s_nop 1")
        self.in_loop(first=True)
        a.e(f"s_mov_b32 s{S_CNT}, 3")
        a.lab("A_LOOP")
        self.in_loop(first=False)
        a.e(f"s_sub_u32 s{S_CNT}, s{S_CNT}, 1")
        a.e(f"s_cmp_lg_u32 s{S_CNT}, 0")
        a.e("s_cbranch_scc1 A_LOOP")
        self.stamp()
        self.epilogue()
        self.slowpath()
        a.lab("A_END")
        a.e("s_endpgm")
        return "\n".join(a.L)

    def in_loop(self, first):
        for n in range(4):
            self.tile(n, first and n == 0)

    def epilogue(self):
        a = self.a
        o = self.o
        a.c("---- epilogue")
        a.e("s_waitcnt vmcnt(0) lgkmcnt(0)")
        a.e("s_nop 15")
        T = V_S
        lo, hi = f32(2.0 ** -24), f32(2.0 ** 30)
        a.e(f"s_mov_b32 s{S_T0}, {hex(lo)}")
        a.e(f"s_mov_b32 s{S_T1}, {hex(hi - lo)}")
        for qt in range(7):
            a.e(f"v_accvgpr_read_b32 v{T+qt}, a{A_L + 4*qt}")
        a.e(f"v_subrev_u32 v{T+8}, s{S_T0}, v{T}")
        for qt in range(1, 7):
            a.e(f"v_subrev_u32 v{T+9}, s{S_T0}, v{T+qt}")
            a.e(f"v_max_u32 v{T+8}, v{T+8}, v{T+9}")
        a.e(f"v_cmp_lt_u32 vcc, s{S_T1}, v{T+8}")
        a.e(f"s_cmp_lg_u64 vcc, 0")
        a.e(f"s_cselect_b32 s{S_T2}, 1, 0")
        a.e(f"v_mov_b32 v{T+10}, s{S_T2}")
        L = T + 11
        a.e(f"v_and_b32 v{L}, 63, v{V_TID}")
        a.e(f"v_lshlrev_b32 v{T+12}, 4, v{L}")
        a.e(f"v_lshlrev_b32 v{T+13}, 2, v{L}")
        a.e(f"s_mul_i32 s{S_T0}, s{S_W}, 28672")
        a.e(f"v_add_u32 v{T+14}, s{S_T0}, v{T+12}")
        a.e(f"s_mul_i32 s{S_T1}, s{S_W}, 1792")
        a.e(f"s_add_u32 s{S_T1}, s{S_T1}, {LX}")
        a.e(f"v_add_u32 v{T+15}, s{S_T1}, v{T+13}")
        a.e(f"s_lshl_b32 s{S_T2}, s{S_W}, 2")
        a.e(f"s_add_u32 s{S_T2}, s{S_T2}, {FL}")
        a.e(f"v_mov_b32 v{V_P}, s{S_T2}")
        a.e("s_barrier")
        for qt in range(7):
            for tpp in range(4):
                i = qt * 4 + tpp
                a.e(f"ds_write_b128 v{T+14}, {ar(A_OOTH + i*4)} offset:{i*1024}")
        for qt in range(7):
            a.e(f"ds_write_b32 v{T+15}, v{T+qt} offset:{qt*256}")
        a.e(f"ds_write_b32 v{V_P}, v{T+10}")
        a.e(f"s_xor_b32 s{S_T3}, s{S_W}, 1")
        a.e(f"s_mul_i32 s{S_T0}, s{S_T3}, 28672")
        a.e(f"v_add_u32 v{T+14}, s{S_T0}, v{T+12}")
        a.e(f"s_mul_i32 s{S_T1}, s{S_T3}, 1792")
        a.e(f"s_add_u32 s{S_T1}, s{S_T1}, {LX}")
        a.e(f"v_add_u32 v{T+15}, s{S_T1}, v{T+13}")
        a.e(f"v_mov_b32 v{V_P}, {FL}")
        a.e("s_waitcnt lgkmcnt(0)")
        a.e("s_barrier")
        self.stamp()
        F = V_P + 4
        a.e(f"ds_read_b128 {vr(F)}, v{V_P}")
        PL = V_KA
        for qt in range(7):
            a.e(f"ds_read_b32 v{PL+qt}, v{T+15} offset:{qt*256}")
        a.e("s_waitcnt lgkmcnt(7)")
        a.e(f"v_or_b32 v{F}, v{F}, v{F+1}")
        a.e(f"v_or_b32 v{F+2}, v{F+2}, v{F+3}")
        a.e(f"v_or_b32 v{F}, v{F}, v{F+2}")
        a.e("s_nop 1")
        a.e(f"v_readfirstlane_b32 s{S_T0}, v{F}")
        a.e(f"s_xor_b32 s{S_T1}, s{S_PASS}, 1")
        a.e(f"s_and_b32 s{S_T0}, s{S_T0}, s{S_T1}")
        a.e(f"s_cmp_lg_u32 s{S_T0}, 0")
        a.e("s_cbranch_scc1 A_SLOW")
        a.e("s_waitcnt lgkmcnt(0)")
        for qt in range(7):
            a.e(f"v_add_f32 v{T+qt}, v{T+qt}, v{PL+qt}")
        for qt in range(7):
            a.e(f"v_rcp_f32 v{T+qt}, v{T+qt}")
        a.e(f"s_mul_i32 s{S_T0}, s{S_B}, 14")
        a.e(f"s_mul_i32 s{S_T1}, s{S_QH}, 7")
        a.e(f"s_add_u32 s{S_T0}, s{S_T0}, s{S_T1}")
        a.e(f"s_lshl_b32 s{S_T0}, s{S_T0}, 7")
        a.e(f"s_lshl_b32 s{S_T1}, s{S_H}, 2")
        a.e(f"s_add_u32 s{S_T0}, s{S_T0}, s{S_T1}")
        a.e(f"s_lshl_b32 s{S_T1}, s{S_KH}, 1")
        a.e(f"s_add_u32 s{S_T0}, s{S_T0}, s{S_T1}")
        a.e(f"s_lshl_b32 s{S_OB}, s{S_T0}, 10")
        PB = 112
        def rd(qt):
            r = []
            for tpp in range(4):
                i = qt * 4 + tpp
                r.append(f"ds_read_b128 {vr(PB + ((qt & 3) * 4 + tpp) * 4)}, v{T+14} offset:{i*1024}")
            return r
        for qt in range(4):
            a.many(rd(qt))
        for qt in range(7):
            outstanding_after = min(3, 6 - qt) * 4
            a.e(f"s_waitcnt lgkmcnt({outstanding_after})")
            pb = PB + (qt & 3) * 16
            ob = V_OOWN + qt * 16
            for k in range(8):
                a.e(f"v_pk_add_f32 {vr(ob+2*k,2)}, {vr(ob+2*k,2)}, {vr(pb+2*k,2)}")
            if qt + 4 < 7:
                a.many(rd(qt + 4))
            rr = T + qt
            rb = rr & ~1
            sel = rr & 1
            for k in range(8):
                a.e(f"v_pk_mul_f32 {vr(ob+2*k,2)}, {vr(ob+2*k,2)}, {vr(rb,2)} op_sel:[0,{sel}] op_sel_hi:[1,{sel}]")
            tb = V_NEGM + (qt & 1) * 8
            for jj in range(2):
                s0 = ob + jj * 8
                for k in range(4):
                    a.e(f"v_cvt_pk_bf16_f32 v{tb + jj*4 + k}, v{s0 + 2*k}, v{s0 + 2*k + 1}")
            for jj in range(2):
                off = " offset:1024" if jj else ""
                a.e(f"buffer_store_dwordx4 {vr(tb + jj*4)}, v{T+12}, {sr(S_O)}, s{S_OB} offen{off}")
            a.e(f"s_add_u32 s{S_OB}, s{S_OB}, 131072")
        self.stamp()
        if o.stamps:
            a.e(f"s_memrealtime s[{S_ST+38}:{S_ST+39}]")
            a.e("s_waitcnt lgkmcnt(0)")
            a.e(f"s_cmp_lg_u32 s{S_W}, 0")
            a.e("s_cbranch_scc1 A_END")
            ns = 20
            a.e(f"s_mul_i32 s{S_T0}, s2, {ns*4*2}")
            a.e(f"s_add_u32 s{S_T0}, s{S_T0}, {64<<20}")
            a.e(f"s_mov_b32 s{S_O+2}, {256<<20}")
            a.e(f"v_mov_b32 v{V_T0+1}, 0")
            for i in range(ns * 2):
                if 2 * self.nst <= i < 36:
                    a.e(f"v_mov_b32 v{V_T0}, 0")
                else:
                    a.e(f"v_mov_b32 v{V_T0}, s{S_ST+i}")
                a.e(f"buffer_store_dword v{V_T0}, v{V_T0+1}, {sr(S_O)}, s{S_T0} offen offset:{i*4}")
                a.e("s_nop 1")
        a.e("s_endpgm")

    def slowpath(self):
        a = self.a
        o = self.o
        a.lab("A_SLOW")
        a.c("---- fallback: true row maximum, then redo the attention loop with it")
        a.e("s_waitcnt lgkmcnt(0)")
        a.e("s_barrier")
        a.e(f"s_mov_b32 s{S_PASS}, 1")
        self.emit_kv_addr()
        for qt in range(7):
            a.e(f"v_mov_b32 v{V_NEGM + 4*qt}, 0xff800000")
        KA = V_V
        for ks in range(4):
            a.e(f"v_subrev_u32 v{KA+ks}, {PAIR(0)+16384}, v{V_KA+ks}")
        a.e(f"s_mov_b32 s{S_SOKV}, 0")
        a.lab("A_MAXLOOP")
        a.many(self.kv_dma("K", 0, f"s{S_SOKV}"))
        a.e("s_waitcnt vmcnt(0)")
        a.e("s_barrier")
        for kt in range(2):
            for ks in range(4):
                off = f" offset:{kt*4096}" if kt else ""
                a.e(f"ds_read_b128 {vr(V_K + (kt*4+ks)*4)}, v{KA+ks}{off}")
        a.e("s_waitcnt lgkmcnt(0)")
        for qt in range(7):
            for kt in range(2):
                for ks in range(4):
                    d = vr(V_S + kt * 4)
                    a.e(f"{MF} {d}, {vr(V_K + (kt*4+ks)*4)}, {ar(A_Q + (qt*4+ks)*4)}, {'0' if ks == 0 else d}")
            a.e("s_nop 15")
            m = V_NEGM + 4 * qt
            for i in range(4):
                a.e(f"v_max3_f32 v{m}, v{m}, v{V_S+2*i}, v{V_S+2*i+1}")
            a.e("s_nop 3")
        a.e("s_barrier")
        a.e(f"s_add_u32 s{S_SOKV}, s{S_SOKV}, 16384")
        a.e(f"s_cmp_lt_u32 s{S_SOKV}, 262144")
        a.e("s_cbranch_scc1 A_MAXLOOP")
        L, t, u = V_T0, V_T0 + 1, V_T0 + 2
        a.e(f"v_and_b32 v{L}, 63, v{V_TID}")
        a.e(f"v_lshlrev_b32 v{t}, 2, v{L}")
        a.e(f"s_mul_i32 s{S_T0}, s{S_W}, 1792")
        a.e(f"s_add_u32 s{S_T0}, s{S_T0}, {MXX}")
        a.e(f"v_add_u32 v{t}, s{S_T0}, v{t}")
        for qt in range(7):
            a.e(f"ds_write_b32 v{t}, v{V_NEGM + 4*qt} offset:{qt*256}")
        a.e("s_waitcnt lgkmcnt(0)")
        a.e("s_barrier")
        a.e(f"v_and_b32 v{u}, 15, v{L}")
        a.e(f"v_lshlrev_b32 v{u}, 2, v{u}")
        a.e(f"s_mul_i32 s{S_T0}, s{S_QH}, 3584")
        a.e(f"s_add_u32 s{S_T0}, s{S_T0}, {MXX}")
        a.e(f"v_add_u32 v{u}, s{S_T0}, v{u}")
        for qt in range(7):
            for i in range(8):
                off = (i >> 2) * 1792 + qt * 256 + (i & 3) * 64
                a.e(f"ds_read_b32 v{V_S+i}, v{u} offset:{off}")
            a.e("s_waitcnt lgkmcnt(0)")
            m = V_NEGM + 4 * qt
            a.e(f"v_max3_f32 v{m}, v{V_S}, v{V_S+1}, v{V_S+2}")
            a.e(f"v_max3_f32 v{m}, v{m}, v{V_S+3}, v{V_S+4}")
            a.e(f"v_max3_f32 v{m}, v{m}, v{V_S+5}, v{V_S+6}")
            a.e(f"v_max_f32 v{m}, v{m}, v{V_S+7}")
            a.e(f"v_sub_f32 v{m}, 0, v{m}")
            for i in range(1, 4):
                a.e(f"v_mov_b32 v{m+i}, v{m}")
        a.e("s_barrier")
        a.many(self.kv_dma("K", PAIR(0) + 16384, "0"))
        a.many(self.kv_dma("V", PAIR(0), "0"))
        a.e(f"s_mov_b32 s{S_SOKV}, 16384")
        a.many(self.kv_dma("K", PAIR(1) + 16384, f"s{S_SOKV}"))
        a.many(self.kv_dma("V", PAIR(1), f"s{S_SOKV}"))
        a.e(f"s_mov_b32 s{S_SOKV}, 32768")
        a.many(self.kv_dma("K", PAIR(2) + 16384, f"s{S_SOKV}"))
        a.e(f"s_waitcnt vmcnt(12)")
        a.e("s_barrier")
        a.e("s_branch A_ATT")


class GenB:
    def __init__(self, opt):
        self.o = opt
        self.a = Asm()

    def gen(self):
        a = self.a
        o = self.o
        NW = o.bw
        RS = o.brs
        KS = 128 // NW
        kn = "oproj_kernel"
        a.L.append(f".globl {kn}\n.p2align 8\n.type {kn},@function\n{kn}:")
        S_OO, S_WO, S_OUT = 16, 20, 24
        S_Wv, S_MG, S_NG, S_SO, S_SW, S_LW, T0, T1, T2 = 28, 29, 30, 31, 32, 33, 34, 35, 36
        V_ACC = 0
        V_OF = 64
        V_AF = V_OF + RS * 16
        V_OO = V_AF + 16
        V_WOf = V_OO + 4
        V_TR = V_WOf + 4
        V_TM = V_TR + 4
        nv = V_TM + 12
        self.nv = nv
        a.e("s_cmp_ge_u32 s2, 256")
        a.e("s_cbranch_scc1 B_END")
        if o.stamps:
            a.e("s_memtime s[60:61]")
            a.e("s_memrealtime s[64:65]")
        a.e("s_load_dwordx4 s[4:7], s[0:1], 32")
        a.e("s_load_dwordx2 s[8:9], s[0:1], 56")
        a.e("s_and_b32 s3, s2, 7")
        a.e(f"s_lshr_b32 s{T0}, s2, 3")
        a.e(f"s_and_b32 s{T1}, s3, 1")
        a.e(f"s_lshl_b32 s{T1}, s{T1}, 5")
        a.e(f"s_add_u32 s{T0}, s{T0}, s{T1}")
        a.e(f"s_cmp_ge_u32 s{T0}, 63")
        a.e("s_cbranch_scc1 B_END")
        a.e(f"s_mul_i32 s{S_NG}, s{T0}, 37")
        a.e(f"s_lshr_b32 s{S_NG}, s{S_NG}, 8")
        a.e(f"s_mul_i32 s{T1}, s{S_NG}, 7")
        a.e(f"s_sub_u32 s{T0}, s{T0}, s{T1}")
        a.e(f"s_lshr_b32 s{T1}, s3, 1")
        a.e(f"s_mul_i32 s{T1}, s{T1}, 7")
        a.e(f"s_add_u32 s{S_MG}, s{T0}, s{T1}")
        t0, t1, t2, t3, t4, L = V_TM, V_TM+1, V_TM+2, V_TM+3, V_TM+4, V_TM+5
        a.e(f"v_lshrrev_b32 v{t0}, 6, v0")
        a.e(f"v_and_b32 v{L}, 63, v0")
        a.e("s_nop 0")
        a.e(f"v_readfirstlane_b32 s{S_Wv}, v{t0}")
        a.e(f"v_lshlrev_b32 v{V_OO}, 4, v{L}")
        for mi in range(1, 4):
            a.e(f"v_add_u32 v{V_OO+mi}, {mi*131072}, v{V_OO}")
        a.e(f"v_lshrrev_b32 v{t0}, 3, v{L}")
        a.e(f"v_and_b32 v{t1}, 7, v{L}")
        a.e(f"v_bfe_u32 v{t2}, v{L}, 4, 2")
        a.e(f"v_lshlrev_b32 v{t2}, 1, v{t2}")
        a.e(f"v_xor_b32 v{t1}, v{t1}, v{t2}")
        a.e(f"v_lshlrev_b32 v{t1}, 4, v{t1}")
        a.e(f"v_mul_u32_u24 v{t0}, 1152, v{t0}")
        a.e(f"v_add_u32 v{V_WOf}, v{t0}, v{t1}")
        for i in range(1, 4):
            a.e(f"v_add_u32 v{V_WOf+i}, {i*(9216-1024)}, v{V_WOf}")
        a.e(f"v_lshrrev_b32 v{t0}, 2, v{L}")
        a.e(f"v_bfe_u32 v{t1}, v{L}, 3, 2")
        a.e(f"v_lshlrev_b32 v{t1}, 5, v{t1}")
        a.e(f"v_lshlrev_b32 v{t0}, 7, v{t0}")
        a.e(f"v_and_b32 v{t2}, 3, v{L}")
        a.e(f"v_lshlrev_b32 v{t2}, 3, v{t2}")
        a.e(f"v_add_u32 v{t0}, v{t0}, v{t2}")
        a.e(f"s_mul_i32 s{S_LW}, s{S_Wv}, {RS*4096}")
        a.e(f"v_add_u32 v{t0}, s{S_LW}, v{t0}")
        for nt in range(4):
            a.e(f"v_xor_b32 v{V_TR+nt}, {nt*32}, v{t1}")
            a.e(f"v_add_u32 v{V_TR+nt}, v{V_TR+nt}, v{t0}")
        a.e("s_waitcnt lgkmcnt(0)")
        a.e(f"s_mov_b32 s{S_OO}, s8"); a.e(f"s_mov_b32 s{S_OO+1}, s9")
        a.e(f"s_mov_b32 s{S_OO+2}, {112*128*1024}"); a.e(f"s_mov_b32 s{S_OO+3}, 0x00020000")
        a.e(f"s_mov_b32 s{S_WO}, s4"); a.e(f"s_mov_b32 s{S_WO+1}, s5")
        a.e(f"s_mov_b32 s{S_WO+2}, {4096*1152}"); a.e(f"s_mov_b32 s{S_WO+3}, 0x00020000")
        a.e(f"s_mov_b32 s{S_OUT}, s6"); a.e(f"s_mov_b32 s{S_OUT+1}, s7")
        a.e(f"s_mov_b32 s{S_OUT+2}, {1792*1152}"); a.e(f"s_mov_b32 s{S_OUT+3}, 0x00020000")
        a.e(f"s_lshl_b32 s{T0}, s{S_MG}, 9")
        a.e(f"s_mul_i32 s{T1}, s{S_Wv}, {KS}")
        a.e(f"s_add_u32 s{T0}, s{T0}, s{T1}")
        a.e(f"s_lshl_b32 s{S_SO}, s{T0}, 10")
        a.e(f"s_mul_i32 s{T1}, s{T1}, {32*1152}")
        a.e(f"s_lshl_b32 s{T2}, s{S_NG}, 7")
        a.e(f"s_add_u32 s{S_SW}, s{T1}, s{T2}")

        def issue(k):
            r = []
            st = k % RS
            r.append(f"s_add_u32 m0, s{S_LW}, {st*4096}")
            for mi in range(4):
                off = f" offset:{(k%4)*1024}" if k % 4 else ""
                r.append(f"buffer_load_dwordx4 {vr(V_OF + st*16 + mi*4)}, v{V_OO+mi}, {sr(S_OO)}, s{S_SO} offen{off}")
            for i in range(4):
                off = f" offset:{i*1024}" if i else ""
                r.append(f"buffer_load_dwordx4 v{V_WOf+i}, {sr(S_WO)}, s{S_SW} offen{off} lds")
            r.append(f"s_add_u32 s{S_SW}, s{S_SW}, {32*1152}")
            if k % 4 == 3:
                r.append(f"s_add_u32 s{S_SO}, s{S_SO}, 4096")
            return r
        for k in range(RS - 1):
            a.many(issue(k))
        for k in range(KS):
            st = k % RS
            nxt = k + RS - 1
            if nxt < KS:
                a.many(issue(nxt))
                a.e(f"s_waitcnt vmcnt({8*(RS-1)})")
            else:
                a.e(f"s_waitcnt vmcnt({8*(KS-1-k)})")
            for nt in range(4):
                for hf in range(2):
                    a.e(f"ds_read_b64_tr_b16 {vr(V_AF + nt*4 + 2*hf, 2)}, v{V_TR+nt} offset:{st*4096 + hf*2048}")
            for nt in range(4):
                if nt == 0:
                    a.e("s_waitcnt lgkmcnt(6)")
                elif nt == 1:
                    a.e("s_waitcnt lgkmcnt(4)")
                elif nt == 2:
                    a.e("s_waitcnt lgkmcnt(2)")
                else:
                    a.e("s_waitcnt lgkmcnt(0)")
                for mi in range(4):
                    d = vr(V_ACC + (mi * 4 + nt) * 4)
                    a.e(f"{MF} {d}, {vr(V_AF + nt*4)}, {vr(V_OF + st*16 + mi*4)}, {'0' if k == 0 else d}")
        a.e("s_nop 15")
        a.e("s_barrier")
        a.e(f"v_and_b32 v{t0}, 15, v{L}")
        a.e(f"v_lshrrev_b32 v{t1}, 4, v{L}")
        a.e(f"v_xor_b32 v{t1}, v{t1}, v{t0}")
        a.e(f"v_lshlrev_b32 v{t1}, 4, v{t1}")
        a.e(f"v_lshlrev_b32 v{t0}, 8, v{t0}")
        a.e(f"s_lshl_b32 s{T0}, s{S_Wv}, 14")
        a.e(f"v_add_u32 v{t0}, s{T0}, v{t0}")
        for nt in range(4):
            a.e(f"v_xor_b32 v{V_TR+nt}, {nt*64}, v{t1}")
            a.e(f"v_add_u32 v{V_TR+nt}, v{V_TR+nt}, v{t0}")
        for mi in range(4):
            for nt in range(4):
                a.e(f"ds_write_b128 v{V_TR+nt}, {vr(V_ACC + (mi*4+nt)*4)} offset:{mi*4096}")
        a.e("s_waitcnt lgkmcnt(0)")
        a.e("s_barrier")
        RW = 64 // NW
        npass = RW // 8
        a.e(f"v_lshrrev_b32 v{t0}, 3, v{L}")
        a.e(f"s_mul_i32 s{T0}, s{S_Wv}, {RW}")
        a.e(f"v_add_u32 v{t0}, s{T0}, v{t0}")
        a.e(f"v_and_b32 v{t1}, 7, v{L}")
        a.e(f"v_lshlrev_b32 v{t1}, 1, v{t1}")
        for ps in range(npass):
            R = V_OF
            if ps:
                a.e(f"v_add_u32 v{t0}, 8, v{t0}")
            a.e(f"v_and_b32 v{t2}, 15, v{t0}")
            a.e(f"v_xor_b32 v{t3}, v{t1}, v{t2}")
            a.e(f"v_lshlrev_b32 v{t3}, 4, v{t3}")
            a.e(f"v_lshlrev_b32 v{t4}, 8, v{t0}")
            a.e(f"v_add_u32 v{t3}, v{t3}, v{t4}")
            a.e(f"v_xor_b32 v{t2}, 16, v{t3}")
            for wv in range(NW):
                if wv * 16384 < 65536:
                    a.e(f"ds_read_b128 {vr(R + wv*8)}, v{t3} offset:{wv*16384}")
                    a.e(f"ds_read_b128 {vr(R + wv*8 + 4)}, v{t2} offset:{wv*16384}")
                else:
                    if wv * 16384 == 65536:
                        a.e(f"v_add_u32 v{t3}, 65536, v{t3}")
                        a.e(f"v_add_u32 v{t2}, 65536, v{t2}")
                    a.e(f"ds_read_b128 {vr(R + wv*8)}, v{t3} offset:{wv*16384 - 65536}")
                    a.e(f"ds_read_b128 {vr(R + wv*8 + 4)}, v{t2} offset:{wv*16384 - 65536}")
            a.e("s_waitcnt lgkmcnt(0)")
            for wv in range(1, NW):
                for k in range(4):
                    a.e(f"v_pk_add_f32 {vr(R+2*k,2)}, {vr(R+2*k,2)}, {vr(R + wv*8 + 2*k,2)}")
            for k in range(4):
                a.e(f"v_cvt_pk_bf16_f32 v{V_ACC + ps*4 + k}, v{R+2*k}, v{R+2*k+1}")
            a.e(f"s_lshl_b32 s{T0}, s{S_MG}, 6")
            a.e(f"v_add_u32 v{t4}, s{T0}, v{t0}")
            a.e(f"v_mul_u32_u24 v{t4}, 1152, v{t4}")
            a.e(f"v_lshlrev_b32 v{t2}, 3, v{t1}")
            a.e(f"v_add_u32 v{t4}, v{t4}, v{t2}")
            a.e(f"s_lshl_b32 s{T1}, s{S_NG}, 7")
            a.e(f"buffer_store_dwordx4 {vr(V_ACC + ps*4)}, v{t4}, {sr(S_OUT)}, s{T1} offen")
        if o.stamps:
            a.e("s_memtime s[62:63]")
            a.e("s_memrealtime s[66:67]")
            a.e("s_waitcnt lgkmcnt(0)")
            a.e(f"s_cmp_lg_u32 s{S_Wv}, 0")
            a.e("s_cbranch_scc1 B_END")
            a.e(f"s_mul_i32 s{T0}, s2, 32")
            a.e(f"s_add_u32 s{T0}, s{T0}, {65<<20}")
            a.e(f"s_mov_b32 s{S_OO+2}, {256<<20}")
            a.e(f"v_mov_b32 v{t1}, 0")
            for i in range(8):
                a.e(f"v_mov_b32 v{t0}, s{60+i}")
                a.e(f"buffer_store_dword v{t0}, v{t1}, {sr(S_OO)}, s{T0} offen offset:{i*4}")
                a.e("s_nop 1")
        a.lab("B_END")
        a.e("s_endpgm")
        return "\n".join(a.L)


def gen_probe(spec):
    mode, bA, sA, cA, bB, sB, cB, fac = spec.split(":")
    bA, sA, cA, bB, sB, cB, fac = [int(z, 0) for z in (bA, sA, cA, bB, sB, cB, fac)]
    a = Asm()
    kn = "probe_kernel"
    a.L.append(f".globl {kn}\n.p2align 8\n.type {kn},@function\n{kn}:")
    a.e("s_cmp_ge_u32 s2, 1")
    a.e("s_cbranch_scc1 P_END")
    a.e("s_load_dwordx2 s[4:5], s[0:1], 56")
    a.e("s_waitcnt lgkmcnt(0)")
    a.e("s_mov_b32 s8, s4"); a.e("s_mov_b32 s9, s5"); a.e(f"s_mov_b32 s10, {256<<20}"); a.e("s_mov_b32 s11, 0x00020000")
    for i in range(4):
        a.e(f"v_add_u32 v1, {64*i}, v0")
        a.e(f"v_min_u32 v1, 247, v1")
        a.e(f"v_mul_u32_u24 v2, {sA}, v1")
        a.e(f"v_add_u32 v2, {bA + cA*8}, v2")
        a.e(f"v_mul_u32_u24 v3, {sB}, v1")
        a.e(f"v_add_u32 v3, {bB + cB*8}, v3")
        a.e(f"buffer_load_dword v{8+i}, v2, s[8:11], 0 offen")
        a.e(f"buffer_load_dword v{12+i}, v3, s[8:11], 0 offen")
    a.e("s_waitcnt vmcnt(0)")
    a.e("v_readfirstlane_b32 s12, v8")
    for i in range(8):
        a.e(f"v_subrev_u32 v{8+i}, s12, v{8+i}")
    if mode == "mean":
        for i in range(4):
            a.e(f"v_sub_u32 v{8+i}, v{12+i}, v{8+i}")
        a.e("v_add_u32 v8, v8, v9"); a.e("v_add_u32 v10, v10, v11"); a.e("v_add_u32 v8, v8, v10")
        a.e("s_nop 1")
        a.e("s_mov_b32 s13, 0")
        for l in range(64):
            a.e(f"v_readlane_b32 s14, v8, {l}")
            a.e("s_add_u32 s13, s13, s14")
        a.e(f"s_mul_i32 s13, s13, {fac}")
        a.e("s_lshr_b32 s13, s13, 8")
    else:
        opa, opb = ("min", "max") if mode == "span" else ("max", "min")
        a.e(f"v_{opa}_i32 v8, v8, v9"); a.e(f"v_{opa}_i32 v10, v10, v11"); a.e(f"v_{opa}_i32 v8, v8, v10")
        a.e(f"v_{opb}_i32 v12, v12, v13"); a.e(f"v_{opb}_i32 v14, v14, v15"); a.e(f"v_{opb}_i32 v12, v12, v14")
        a.e("s_nop 1")
        a.e("v_readlane_b32 s15, v8, 0"); a.e("v_readlane_b32 s16, v12, 0")
        for l in range(1, 64):
            a.e(f"v_readlane_b32 s14, v8, {l}")
            a.e(f"s_{opa}_i32 s15, s15, s14")
            a.e(f"v_readlane_b32 s14, v12, {l}")
            a.e(f"s_{opb}_i32 s16, s16, s14")
        a.e("s_sub_i32 s13, s16, s15")
        a.e("s_max_i32 s13, s13, 0")
        a.e(f"s_mul_i32 s13, s13, {fac}")
    a.e(f"s_min_u32 s13, s13, 200000")
    a.e("s_memrealtime s[18:19]")
    a.e("s_waitcnt lgkmcnt(0)")
    a.lab("P_SPIN")
    a.e("s_memrealtime s[20:21]")
    a.e("s_waitcnt lgkmcnt(0)")
    a.e("s_sub_u32 s22, s20, s18")
    a.e("s_cmp_lt_u32 s22, s13")
    a.e("s_cbranch_scc1 P_SPIN")
    a.lab("P_END")
    a.e("s_endpgm")
    return "\n".join(a.L)


def fix_hazards(text):
    lines = text.split("\n")
    out = []
    prev = ""
    for ln in lines:
        s = ln.strip()
        if not s or s.startswith(";") or s.endswith(":") or s.startswith("."):
            out.append(ln); continue
        if s.endswith(" lds") and re.match(r"s_\w+ m0,", prev):
            out.append("    s_nop 0")
        out.append(ln)
        prev = s
    return "\n".join(out)


HDR = """; MHA block (Q-projection + cached attention + out-projection) for gfx950.
"""

def descriptor(kn, nv, acc, extra=""):
    return f""".amdhsa_kernel {kn}
  .amdhsa_next_free_vgpr {nv}
  .amdhsa_next_free_sgpr 102
  .amdhsa_accum_offset {acc}
  .amdhsa_group_segment_fixed_size 0
  .amdhsa_kernarg_size 64
  .amdhsa_user_sgpr_count 2
  .amdhsa_user_sgpr_kernarg_segment_ptr 1
  .amdhsa_system_sgpr_workgroup_id_x 1
.end_amdhsa_kernel
"""

def main():
    ap = argparse.ArgumentParser()
    ap.add_argument("-o", default="cdna_kernels/" + NAME + ".s")
    ap.add_argument("--nt", type=int, default=0)
    ap.add_argument("--stamps", type=int, default=0)
    ap.add_argument("--dbgq", type=int, default=0)
    ap.add_argument("--bw", type=int, default=8)
    ap.add_argument("--brs", type=int, default=4)
    ap.add_argument("--only", default="")
    ap.add_argument("--rts", type=int, default=0)
    ap.add_argument("--probe", default="")
    o = ap.parse_args()
    ga = GenA(o); ta = ga.gen()
    gb = GenB(o); tb = gb.gen()
    hdr = HDR
    blds = max(o.bw * o.brs * 4096, o.bw * 16384)
    if o.only != "B":
        hdr += f"; @launch kernel={NAME}_kernel grid=(256,1,1) block=(256,1,1) lds=163840\n"
    if o.only != "A":
        hdr += f"; @launch kernel=oproj_kernel grid=(256,1,1) block=({o.bw*64},1,1) lds={blds}\n"
    if o.probe:
        hdr += "; @launch kernel=probe_kernel grid=(1,1,1) block=(64,1,1) lds=0\n"
    txt = hdr + '.amdgcn_target "amdgcn-amd-amdhsa--gfx950"\n.text\n' + fix_hazards(ta) + "\n" + fix_hazards(tb) + "\n"
    if o.probe:
        txt += gen_probe(o.probe) + "\n"
    txt += '.section .rodata,"a"\n.p2align 6\n' + descriptor(NAME + "_kernel", 512, 256)
    nvb = (gb.nv + 7) // 8 * 8
    txt += ".p2align 6\n" + descriptor("oproj_kernel", nvb, (gb.nv + 3) // 4 * 4)
    if o.probe:
        txt += ".p2align 6\n" + descriptor("probe_kernel", 32, 32)
    open(o.o, "w").write(txt)
    print("wrote", o.o, len(txt), "bytes; B vgprs", gb.nv)

if __name__ == "__main__":
    main()
```

```python
import sys, struct, re, argparse
from collections import defaultdict
sys.path.insert(0, "tools")

NAME = "standalone__mha_block_cached__near_ridge"
MF = "v_mfma_f32_16x16x32_bf16"

def f32(x):
    return struct.unpack("<I", struct.pack("<f", x))[0]
def vr(b, n=4): return f"v[{b}:{b+n-1}]" if n > 1 else f"v{b}"
def ar(b, n=4): return f"a[{b}:{b+n-1}]" if n > 1 else f"a{b}"
def sr(b, n=4): return f"s[{b}:{b+n-1}]" if n > 1 else f"s{b}"

class DS:
    def __init__(s, t, tag): s.t, s.tag = t, tag
class VM:
    def __init__(s, t, tag): s.t, s.tag = t, tag
class WL:
    def __init__(s, *tags): s.tags = set(tags)
class WV:
    def __init__(s, *tags): s.tags = set(tags)
class WALL:
    def __init__(s, k): s.k = k

class Trace:
    def __init__(self):
        self.L = []
        self.lq = []
        self.vq = []
    def raw(self, s): self.L.append(s)
    def lab(self, s): self.L.append(s + ":")
    def c(self, s): self.L.append("    ; " + s)
    def e(self, x):
        if isinstance(x, str):
            self.L.append("    " + x)
        elif isinstance(x, DS):
            self.L.append("    " + x.t); self.lq.append(x.tag)
        elif isinstance(x, VM):
            self.L.append("    " + x.t); self.vq.append(x.tag)
        elif isinstance(x, WL):
            idx = max([i for i, t in enumerate(self.lq) if t in x.tags], default=-1)
            if idx >= 0:
                n = len(self.lq) - 1 - idx
                if n > 15:
                    n = 15
                self.L.append(f"    s_waitcnt lgkmcnt({n})")
                self.lq = self.lq[len(self.lq) - n:] if n else []
        elif isinstance(x, WV):
            idx = max([i for i, t in enumerate(self.vq) if t in x.tags], default=-1)
            if idx >= 0:
                n = len(self.vq) - 1 - idx
                if n > 63:
                    n = 63
                self.L.append(f"    s_waitcnt vmcnt({n})")
                self.vq = self.vq[len(self.vq) - n:] if n else []
        elif isinstance(x, WALL):
            w = []
            if 'v' in x.k: w.append("vmcnt(0)"); self.vq = []
            if 'l' in x.k: w.append("lgkmcnt(0)"); self.lq = []
            self.L.append("    s_waitcnt " + " ".join(w))
        else:
            raise TypeError(x)
    def many(self, xs):
        for x in xs: self.e(x)

class Sched:
    def __init__(self, mf):
        self.mf = mf
        self.pre = defaultdict(list)
        self.post = defaultdict(list)
    def emit(self, t):
        for g, m in enumerate(self.mf):
            t.many(self.pre[g])
            t.e(m)
            t.many(self.post[g])
        n = len(self.mf)
        for g in sorted(set(list(self.pre) + list(self.post))):
            if g >= n:
                t.many(self.pre[g]); t.many(self.post[g])

BUF = {0: 90112, 1: 45056, 2: 0}
def PAIR(n):
    return 32768 + ((3 - n) & 3) * 32768
QX = 0
OXW = [0, 65536, 94208, 122880]
LX = 151552
FL = 158720
MXX = 16384

V_OOWN = 0
V_K = 112
V_V = 144
V_S = 176
V_P = 192
V_NEGM = 200
V_KA = 228
V_VA = 232
V_OFFKV = 240
V_TID = 242
V_T0 = 243
V_OFFX = 144
V_OFFW = 151
V_XR = 156
V_WR = 160
V_QW = 253
V_QR = 254
V_QT = 176
A_Q = 0
A_OOTH = 112
A_L = 224
A_ONES = 252
S_X, S_WQ, S_K, S_V, S_O = 16, 20, 24, 28, 32
S_W, S_QH, S_KH = 36, 37, 38
S_W1K7 = 39
S_SC = 40
S_SOX, S_SOW = 42, 43
S_W4K = 44
S_B, S_H = 45, 46
S_CNT = 47
S_PASS = 48
S_T0, S_T1, S_T2, S_T3 = 49, 50, 51, 52
S_OB = 53
S_SOKV = 56
S_ST = 60


def o_reg(j, tp):
    if tp < 4:
        return vr(V_OOWN + (j * 4 + tp) * 4)
    return ar(A_OOTH + (j * 4 + tp - 4) * 4)


class GenA:
    def __init__(self, opt):
        self.o = opt
        self.t = Trace()
        self.nst = 0

    def stamp(self):
        if not self.o.stamps:
            return []
        ins = "s_memrealtime" if self.o.rts else "s_memtime"
        s = f"{ins} s[{S_ST + 2*self.nst}:{S_ST + 2*self.nst + 1}]"
        self.nst += 1
        assert self.nst <= 18
        return [s]

    def kvpol(self):
        return " nt" if self.o.nt else ""

    def emit_kv_addr(self, rd=True, dma=True):
        t_ = self.t
        L, l15, g, r4, c4, t, u = V_T0, V_T0+1, V_T0+2, V_T0+3, V_T0+4, V_T0+5, V_T0+6
        t_.e(f"v_and_b32 v{L}, 63, v{V_TID}")
        t_.e(f"v_and_b32 v{l15}, 15, v{L}")
        t_.e(f"v_lshrrev_b32 v{g}, 4, v{L}")
        if dma:
            t_.e(f"v_lshlrev_b32 v{t}, 1, v{g}")
            t_.e(f"v_xor_b32 v{t}, v{t}, v{l15}")
            t_.e(f"v_lshlrev_b32 v{t}, 4, v{t}")
            t_.e(f"v_lshlrev_b32 v{u}, 8, v{g}")
            t_.e(f"v_add_u32 v{u}, s{S_W4K}, v{u}")
            t_.e(f"v_add_u32 v{V_OFFKV}, v{t}, v{u}")
            t_.e(f"v_xor_b32 v{t}, 128, v{t}")
            t_.e(f"v_add_u32 v{V_OFFKV+1}, v{t}, v{u}")
        if rd:
            t_.e(f"v_bfe_u32 v{r4}, v{L}, 2, 2")
            t_.e(f"v_and_b32 v{c4}, 3, v{L}")
            t_.e(f"s_lshl_b32 s{S_T0}, s{S_KH}, 13")
            t_.e(f"s_add_u32 s{S_T1}, s{S_T0}, {PAIR(0) + 16384}")
            t_.e(f"v_and_b32 v{t}, 7, v{l15}")
            t_.e(f"v_lshlrev_b32 v{t}, 1, v{t}")
            t_.e(f"v_xor_b32 v{t}, v{t}, v{g}")
            t_.e(f"v_lshlrev_b32 v{t}, 4, v{t}")
            t_.e(f"v_lshlrev_b32 v{u}, 8, v{l15}")
            t_.e(f"v_add_u32 v{u}, s{S_T1}, v{u}")
            for ks in range(4):
                t_.e(f"v_xor_b32 v{V_KA+ks}, {ks*64}, v{t}")
                t_.e(f"v_add_u32 v{V_KA+ks}, v{V_KA+ks}, v{u}")
            t_.e(f"s_add_u32 s{S_T1}, s{S_T0}, {PAIR(0)}")
            t_.e(f"v_lshlrev_b32 v{u}, 2, v{g}")
            t_.e(f"v_add_u32 v{u}, v{u}, v{r4}")
            t_.e(f"v_and_b32 v{t}, 7, v{u}")
            t_.e(f"s_lshl_b32 s{S_T2}, s{S_KH}, 2")
            t_.e(f"v_xor_b32 v{t}, s{S_T2}, v{t}")
            t_.e(f"v_lshlrev_b32 v{t}, 5, v{t}")
            t_.e(f"v_lshlrev_b32 v{u}, 8, v{u}")
            t_.e(f"v_add_u32 v{u}, s{S_T1}, v{u}")
            t_.e(f"v_lshlrev_b32 v{c4}, 3, v{c4}")
            t_.e(f"v_add_u32 v{u}, v{u}, v{c4}")
            for tp in range(8):
                t_.e(f"v_xor_b32 v{V_VA+tp}, {tp*32}, v{t}")
                t_.e(f"v_add_u32 v{V_VA+tp}, v{V_VA+tp}, v{u}")

    def kv_dma(self, which, n, soff, lds=None):
        srd = S_K if which == "K" else S_V
        if lds is None:
            lds = PAIR(n) + (16384 if which == "K" else 0)
        r = [f"s_add_u32 m0, s{S_W4K}, {lds}"]
        for i in range(4):
            off = f" offset:{i*1024}" if i else ""
            r.append(VM(f"buffer_load_dwordx4 v{V_OFFKV + (i & 1)}, {sr(srd)}, {soff} offen{off}{self.kvpol()} lds", f"{which}{n}"))
        return r

    def x_dma(self, st):
        buf = BUF[st % 3]
        r = []
        r.append(f"s_mov_b32 s{S_SOX}, {st*128}")
        r.append(f"s_add_u32 m0, s{S_W1K7}, {buf}")
        for i in range(7):
            if i == 4:
                r.append(f"s_add_u32 m0, s{S_W1K7}, {buf + 4096}")
            off = f" offset:{(i%4)*1024}" if i % 4 else ""
            r.append(VM(f"buffer_load_dwordx4 v{V_OFFX+i}, {sr(S_X)}, s{S_SOX} offen{off} lds", f"X{st}"))
        r.append(f"s_mov_b32 s{S_SOW}, {st*64*8192}")
        r.append(f"s_add_u32 m0, s{S_W4K}, {buf + 28672}")
        for i in range(4):
            off = f" offset:{i*1024}" if i else ""
            r.append(VM(f"buffer_load_dwordx4 v{V_OFFW+i}, {sr(S_WQ)}, s{S_SOW} offen{off} lds", f"X{st}"))
        return r

    def q_reads(self, st):
        buf = BUF[st % 3]
        sset = 1 if buf == 90112 else 0
        base = buf - (90112 if sset else 0)
        p = (st & 1) * 88
        r = []
        for s in range(2):
            for T in range(4):
                jj = T >> 1
                for hf in range(2):
                    off = base + 8192 * s + 1024 * hf + 8 * (T & 1)
                    r.append(DS(f"ds_read_b64_tr_b16 {ar(p + 56 + (s*4+T)*4 + 2*hf, 2)}, v{V_WR + sset*2 + jj} offset:{off}", f"R{st}"))
            for qt in range(7):
                off = base + qt * 2048
                r.append(DS(f"ds_read_b128 {ar(p + (s*7+qt)*4)}, v{V_XR + sset*2 + s} offset:{off}", f"R{st}"))
        return r

    def q_mf(self, st, s, T, qt, first):
        p = (st & 1) * 88
        d = vr((T * 7 + qt) * 4)
        c = "0" if (first and s == 0) else d
        return f"{MF} {d}, {ar(p + 56 + (s*4+T)*4)}, {ar(p + (s*7+qt)*4)}, {c}"

    def q_mfmas(self, st, first):
        return [self.q_mf(st, s, T, qt, first) for s in range(2) for T in range(4) for qt in range(7)]

    def k_read(self, kt, ks, n):
        off = f" offset:{kt*4096}" if kt else ""
        return DS(f"ds_read_b128 {vr(V_K + (kt*4+ks)*4)}, v{V_KA+ks}{off}", f"k{n}.{kt}")

    def v_read(self, tp, hf, n):
        off = f" offset:{hf*4096}" if hf else ""
        return DS(f"ds_read_b64_tr_b16 {vr(V_V + tp*4 + 2*hf, 2)}, v{V_VA+tp}{off}", f"v{n}.{tp}")

    def q_read(self, qt):
        return [DS(f"ds_read_b128 {ar(A_Q + (qt*4+ks)*4)}, v{V_QR} offset:{(ks*7+qt)*1024}", f"q{qt}") for ks in range(4)]

    def qk_mfmas(self, par, j2):
        r = []
        for kt in range(2):
            for ks in range(4):
                d = vr(V_S + par * 8 + kt * 4)
                c = vr(V_NEGM + j2 * 4) if ks == 0 else d
                r.append(f"{MF} {d}, {vr(V_K + (kt*4+ks)*4)}, {ar(A_Q + (j2*4+ks)*4)}, {c}")
        return r

    def pv_mfmas(self, par, j, first):
        r = []
        p = vr(V_P + par * 4)
        for tp in range(8):
            d = o_reg(j, tp)
            r.append(f"{MF} {d}, {vr(V_V + tp*4)}, {p}, {'0' if first else d}")
        d = ar(A_L + j * 4)
        r.append(f"{MF} {d}, {ar(A_ONES)}, {p}, {'0' if first else d}")
        return r

    def exps(self, par):
        return [f"v_exp_f32 v{V_S + par*8 + i}, v{V_S + par*8 + i}" for i in range(8)]

    def cvts(self, par):
        return [f"v_cvt_pk_bf16_f32 v{V_P + par*4 + i}, v{V_S + par*8 + 2*i}, v{V_S + par*8 + 2*i + 1}" for i in range(4)]

    def tile(self, n):
        t = self.t
        first = (n == 0)
        last = (n == 15)
        dl = (PAIR(n + 1) - PAIR(n)) & 0xffffffff
        vdma = self.kv_dma("V", n + 3, "0") if (n + 3 <= 15 and n >= 1) else None
        kdma = self.kv_dma("K", n + 4, "0") if n + 4 <= 15 else None
        adv = [f"v_add_u32 v{V_OFFKV}, 16384, v{V_OFFKV}", f"v_add_u32 v{V_OFFKV+1}, 16384, v{V_OFFKV+1}"]
        for j in range(7):
            par = (n + j) & 1
            mf = self.pv_mfmas(par, j, first)
            has_qk = not (last and j >= 5)
            if has_qk:
                mf = mf + self.qk_mfmas(par, (j + 2) % 7)
            S = Sched(mf)
            G, PRE = S.post, S.pre
            if not (last and j == 6):
                ex = self.exps(par ^ 1); cv = self.cvts(par ^ 1)
                if has_qk:
                    for i in range(8): G[2 * i].append(ex[i])
                    for i in range(4): G[4 * i + 3].append(cv[i])
                else:
                    for i in range(8): G[i // 2].append(ex[i])
                    G[2].append(cv[0]); G[3].append(cv[1]); G[4].append(cv[2]); G[5].append(cv[3])
            nn = n + 1
            if j == 0:
                PRE[0].append(WL(f"v{n}.0", f"v{n}.1", f"v{n}.2"))
                G[1] += [self.v_read(7, 0, n), self.v_read(7, 1, n)]
                PRE[3].append(WL(f"v{n}.3", f"v{n}.4", f"v{n}.5"))
                PRE[6].append(WL(f"v{n}.6", f"v{n}.7"))
                if vdma:
                    G[9] += [vdma[0]]
                    G[13] += [vdma[1]]
            if first and j <= 3:
                q = self.q_read(j + 3)
                G[5] += q[:2]; G[9] += q[2:]
            if first and j <= 4:
                PRE[9].append(WL(f"q{j+2}"))
            if j == 1:
                if vdma: G[5] += [vdma[2]]
                if not last:
                    G[9] += [f"v_add_u32 v{V_VA+0}, {dl}, v{V_VA+0}", f"v_add_u32 v{V_VA+1}, {dl}, v{V_VA+1}"] if not first else []
                    G[13] += [f"v_add_u32 v{V_VA+2}, {dl}, v{V_VA+2}", f"v_add_u32 v{V_VA+3}, {dl}, v{V_VA+3}"]
                    if first:
                        G[1] += [f"v_add_u32 v{V_VA+0}, {dl}, v{V_VA+0}", f"v_add_u32 v{V_VA+1}, {dl}, v{V_VA+1}"]
            if j == 2:
                if vdma: G[5] += [vdma[3]]
                if not last:
                    G[1] += [f"v_add_u32 v{V_VA+4}, {dl}, v{V_VA+4}", f"v_add_u32 v{V_VA+5}, {dl}, v{V_VA+5}"]
                    G[13] += [f"v_add_u32 v{V_VA+6}, {dl}, v{V_VA+6}", f"v_add_u32 v{V_VA+7}, {dl}, v{V_VA+7}"]
            if j == 3:
                if vdma: G[5] += [vdma[4]]
                if not last:
                    G[1] += [f"v_add_u32 v{V_KA+0}, {dl}, v{V_KA+0}", f"v_add_u32 v{V_KA+1}, {dl}, v{V_KA+1}"]
                    G[13] += [f"v_add_u32 v{V_KA+2}, {dl}, v{V_KA+2}", f"v_add_u32 v{V_KA+3}, {dl}, v{V_KA+3}"]
                if kdma and not first:
                    G[16] += adv
            if j == 4:
                if first:
                    G[5] += [WL("q6")]
                if not last:
                    G[5] += [WV(f"K{nn}", f"V{nn}")]
                else:
                    G[5] += [WL("ow0", "ow1", "ow2", "ow3")]
                G[7] += ["s_barrier"]
                if not last:
                    G[9] += [self.k_read(0, 0, nn)]
                    G[11] += [self.k_read(0, 1, nn)]
                    G[13] += [self.k_read(0, 2, nn), self.k_read(0, 3, nn)]
                    G[15] += [self.k_read(1, 0, nn)]
                    G[16] += [self.k_read(1, 1, nn), self.k_read(1, 2, nn)]
                if first:
                    k3 = self.kv_dma("K", 3, "0")
                    G[9] += [k3[0]]
                    self.k3 = k3
            if j == 5 and not last:
                G[1] += [self.k_read(1, 3, nn)]
                PRE[9].append(WL(f"k{nn}.0", f"k{nn}.1"))
                if first:
                    k3 = self.k3
                    G[1] += [k3[1]]; G[3] += [k3[2]]; G[5] += [k3[3]]; G[7] += [k3[4]]
                    v3 = self.kv_dma("V", 3, "0")
                    G[9] += [v3[0], v3[1]]; G[11] += [v3[2]]; G[13] += [v3[3]]; G[15] += [v3[4]]
                    G[16] += adv
                elif kdma:
                    G[0] += [kdma[0]]
                    G[1] += [kdma[1]]; G[5] += [kdma[2]]; G[9] += [kdma[3]]; G[13] += [kdma[4]]
            if j == 6 and not last:
                v = lambda a, b: self.v_read(a, b, nn)
                G[1] += [v(0, 0), v(0, 1)]
                G[3] += [v(1, 0)]
                G[5] += [v(1, 1), v(2, 0)]
                G[7] += [v(2, 1)]
                G[9] += [v(3, 0), v(3, 1)]
                G[11] += [v(4, 0)]
                G[13] += [v(4, 1), v(5, 0)]
                G[15] += [v(5, 1)]
                G[16] += [v(6, 0), v(6, 1)]
                if first:
                    PRE[0] += [kdma[0]]
                    G[0] += [kdma[1]]; G[4] += [kdma[2]]; G[8] += [kdma[3]]; G[12] += [kdma[4]]
            if last:
                if j <= 4:
                    w = self.o_writes(j)
                    G[10] += [w[0]]; G[11] += [w[1]]; G[13] += [w[2], w[3]]; G[15] += [w[4]]
                if j == 6:
                    w = self.o_writes(5)
                    G[1] += [w[0]]; G[3] += [w[1]]; G[4] += [w[2]]; G[6] += [w[3]]; G[7] += [w[4]]
                if j == 0:
                    PRE[0] = self.ox_addr() + PRE[0]
            t.c(f"tile {n} slot {j}")
            S.emit(t)

    def ox_addr(self):
        r = []
        T = V_T0
        r.append(f"v_and_b32 v{T}, 63, v{V_TID}")
        r.append(f"v_lshlrev_b32 v{T+1}, 4, v{T}")
        r.append(f"v_lshlrev_b32 v{T}, 2, v{T}")
        r.append(f"s_mul_i32 s{S_T0}, s{S_W}, 28672")
        r.append(f"s_cmp_lg_u32 s{S_W}, 0")
        r.append(f"s_cselect_b32 s{S_T1}, 36864, 0")
        r.append(f"s_add_u32 s{S_T0}, s{S_T0}, s{S_T1}")
        r.append(f"v_add_u32 v{V_KA}, s{S_T0}, v{T+1}")
        r.append(f"s_mul_i32 s{S_T0}, s{S_W}, 1792")
        r.append(f"s_add_u32 s{S_T0}, s{S_T0}, {LX}")
        r.append(f"v_add_u32 v{V_KA+1}, s{S_T0}, v{T}")
        r.append(f"s_xor_b32 s{S_T3}, s{S_W}, 1")
        r.append(f"s_mul_i32 s{S_T0}, s{S_T3}, 28672")
        r.append(f"s_cmp_lg_u32 s{S_T3}, 0")
        r.append(f"s_cselect_b32 s{S_T1}, 36864, 0")
        r.append(f"s_add_u32 s{S_T0}, s{S_T0}, s{S_T1}")
        r.append(f"v_add_u32 v{V_KA+2}, s{S_T0}, v{T+1}")
        r.append(f"s_mul_i32 s{S_T0}, s{S_T3}, 1792")
        r.append(f"s_add_u32 s{S_T0}, s{S_T0}, {LX}")
        r.append(f"v_add_u32 v{V_KA+3}, s{S_T0}, v{T}")
        r.append(f"s_mul_i32 s{S_T0}, s{S_B}, 14")
        r.append(f"s_mul_i32 s{S_T1}, s{S_QH}, 7")
        r.append(f"s_add_u32 s{S_T0}, s{S_T0}, s{S_T1}")
        r.append(f"s_lshl_b32 s{S_T0}, s{S_T0}, 7")
        r.append(f"s_lshl_b32 s{S_T1}, s{S_H}, 2")
        r.append(f"s_add_u32 s{S_T0}, s{S_T0}, s{S_T1}")
        r.append(f"s_lshl_b32 s{S_T1}, s{S_KH}, 1")
        r.append(f"s_add_u32 s{S_T0}, s{S_T0}, s{S_T1}")
        r.append(f"s_lshl_b32 s{S_OB}, s{S_T0}, 10")
        return r

    def o_writes(self, j):
        r = []
        for tpp in range(4):
            i = j * 4 + tpp
            r.append(DS(f"ds_write_b128 v{V_KA}, {ar(A_OOTH + i*4)} offset:{i*1024}", f"ow{j}"))
        r.append(DS(f"ds_write_b32 v{V_KA+1}, a{A_L + 4*j} offset:{j*256}", f"ow{j}"))
        return r

    def gen(self):
        t_ = self.t
        o = self.o
        kn = f"{NAME}_kernel"
        t_.raw(f".globl {kn}\n.p2align 8\n.type {kn},@function\n{kn}:")
        t_.e("s_cmp_ge_u32 s2, 256")
        t_.e("s_cbranch_scc1 A_END")
        t_.e("s_load_dwordx8 s[4:11], s[0:1], 0")
        t_.e("s_load_dwordx2 s[12:13], s[0:1], 56")
        t_.many(self.stamp())
        if o.stamps:
            t_.e(f"s_memrealtime s[{S_ST+36}:{S_ST+37}]")
        t_.e(f"v_mov_b32 v{V_TID}, v0")
        t_.e(f"v_lshrrev_b32 v1, 6, v0")
        t_.e("s_and_b32 s3, s2, 7")
        t_.e(f"s_lshr_b32 s{S_T0}, s2, 3")
        t_.e(f"v_readfirstlane_b32 s{S_W}, v1")
        t_.e(f"s_and_b32 s{S_T1}, s3, 1")
        t_.e(f"s_lshl_b32 s{S_T1}, s{S_T1}, 2")
        t_.e(f"s_and_b32 s{S_T2}, s{S_T0}, 3")
        t_.e(f"s_add_u32 s{S_B}, s{S_T1}, s{S_T2}")
        t_.e(f"s_lshr_b32 s{S_T1}, s3, 1")
        t_.e(f"s_lshl_b32 s{S_T1}, s{S_T1}, 3")
        t_.e(f"s_lshr_b32 s{S_T2}, s{S_T0}, 2")
        t_.e(f"s_add_u32 s{S_H}, s{S_T1}, s{S_T2}")
        t_.e(f"s_lshr_b32 s{S_QH}, s{S_W}, 1")
        t_.e(f"s_and_b32 s{S_KH}, s{S_W}, 1")
        t_.e(f"s_mul_i32 s{S_W1K7}, s{S_W}, 7168")
        t_.e(f"s_lshl_b32 s{S_W4K}, s{S_W}, 12")
        L, l15, g, r4, c4, t, u = V_T0, V_T0+1, V_T0+2, V_T0+3, V_T0+4, V_T0+5, V_T0+6
        t_.e(f"v_and_b32 v{L}, 63, v{V_TID}")
        t_.e(f"v_and_b32 v{l15}, 15, v{L}")
        t_.e(f"v_lshrrev_b32 v{g}, 4, v{L}")
        t_.e(f"v_lshrrev_b32 v{t}, 3, v{L}")
        t_.e(f"v_and_b32 v{r4}, 7, v{L}")
        t_.e(f"v_xor_b32 v{u}, v{g}, v{r4}")
        t_.e(f"v_lshlrev_b32 v{u}, 4, v{u}")
        t_.e(f"s_lshl_b32 s{S_T0}, s{S_KH}, 6")
        t_.e(f"v_xor_b32 v{u}, s{S_T0}, v{u}")
        t_.e(f"v_mul_u32_u24 v{t}, 1152, v{t}")
        t_.e(f"s_mul_i32 s{S_T1}, s{S_W}, {56*1152}")
        t_.e(f"v_add_u32 v{t}, s{S_T1}, v{t}")
        t_.e(f"v_xor_b32 v{c4}, 64, v{u}")
        t_.e(f"v_add_u32 v{V_OFFX}, v{u}, v{t}")
        t_.e(f"v_add_u32 v{c4}, v{c4}, v{t}")
        for i in range(1, 7):
            src = V_OFFX if (i & 1) == 0 else c4
            k = i * 9216 - (i % 4) * 1024
            t_.e(f"v_add_u32 v{V_OFFX+i}, {k}, v{src}")
        t_.e(f"v_lshlrev_b32 v{t}, 2, v{g}")
        t_.e(f"v_xor_b32 v{t}, v{t}, v{l15}")
        t_.e(f"v_lshlrev_b32 v{t}, 4, v{t}")
        t_.e(f"v_lshlrev_b32 v{u}, 13, v{g}")
        t_.e(f"s_lshl_b32 s{S_T1}, s{S_W}, 17")
        t_.e(f"v_add_u32 v{u}, s{S_T1}, v{u}")
        t_.e(f"v_add_u32 v{V_OFFW}, v{t}, v{u}")
        for i in range(1, 4):
            t_.e(f"v_add_u32 v{V_OFFW+i}, {i*(32768-1024)}, v{V_OFFW}")
        t_.e(f"s_mul_i32 s{S_T0}, s{S_B}, 258048")
        t_.e(f"s_lshl_b32 s{S_T1}, s{S_H}, 8")
        t_.e(f"s_mov_b32 s{S_X+2}, 258048")
        t_.e(f"s_mov_b32 s{S_X+3}, 0x00020000")
        t_.e(f"s_sub_u32 s{S_WQ+2}, {576*8192}, s{S_T1}")
        t_.e(f"s_mov_b32 s{S_WQ+3}, 0x00020000")
        t_.e("s_waitcnt lgkmcnt(0)")
        t_.many(self.stamp())
        t_.e(f"s_add_u32 s{S_X}, s4, s{S_T0}")
        t_.e(f"s_addc_u32 s{S_X+1}, s5, 0")
        t_.e(f"s_add_u32 s{S_WQ}, s10, s{S_T1}")
        t_.e(f"s_addc_u32 s{S_WQ+1}, s11, 0")
        t_.many(self.x_dma(0))
        t_.many(self.x_dma(1))
        t_.e(f"s_lshl_b32 s{S_T0}, s{S_B}, 5")
        t_.e(f"s_add_u32 s{S_T0}, s{S_T0}, s{S_H}")
        t_.e(f"s_lshl_b32 s{S_T0}, s{S_T0}, 18")
        t_.e(f"s_add_u32 s{S_K}, s6, s{S_T0}")
        t_.e(f"s_addc_u32 s{S_K+1}, s7, 0")
        t_.e(f"s_mov_b32 s{S_K+2}, 262144")
        t_.e(f"s_mov_b32 s{S_K+3}, 0x00020000")
        t_.e(f"s_add_u32 s{S_V}, s8, s{S_T0}")
        t_.e(f"s_addc_u32 s{S_V+1}, s9, 0")
        t_.e(f"s_mov_b32 s{S_V+2}, 262144")
        t_.e(f"s_mov_b32 s{S_V+3}, 0x00020000")
        t_.e(f"s_mov_b32 s{S_O}, s12")
        t_.e(f"s_mov_b32 s{S_O+1}, s13")
        t_.e(f"s_mov_b32 s{S_O+2}, {112*128*1024}")
        t_.e(f"s_mov_b32 s{S_O+3}, 0x00020000")
        self.emit_kv_addr(rd=False, dma=True)
        t_.many(self.kv_dma("K", 0, "0"))
        t_.many(self.stamp())
        self.emit_kv_addr(rd=True, dma=False)
        sc = f32(1.4426950408889634 / (128 ** 0.5))
        t_.e(f"s_mov_b32 s{S_SC}, {hex(sc)}")
        t_.e(f"s_mov_b32 s{S_PASS}, 0")
        t_.e(f"v_bfe_u32 v{r4}, v{L}, 2, 2")
        t_.e(f"v_and_b32 v{c4}, 3, v{L}")
        t_.e(f"v_lshrrev_b32 v{t}, 1, v{l15}")
        t_.e(f"v_xor_b32 v{t}, v{t}, v{g}")
        t_.e(f"v_lshlrev_b32 v{t}, 4, v{t}")
        t_.e(f"v_lshlrev_b32 v{u}, 7, v{l15}")
        t_.e(f"s_mul_i32 s{S_T0}, s{S_QH}, {112*128}")
        t_.e(f"v_add_u32 v{u}, s{S_T0}, v{u}")
        t_.e(f"v_add_u32 v{V_XR}, v{t}, v{u}")
        t_.e(f"v_xor_b32 v{t}, 64, v{t}")
        t_.e(f"v_add_u32 v{V_XR+1}, v{t}, v{u}")
        t_.e(f"v_add_u32 v{V_XR+2}, 90112, v{V_XR}")
        t_.e(f"v_add_u32 v{V_XR+3}, 90112, v{V_XR+1}")
        t_.e(f"s_lshl_b32 s{S_T0}, s{S_KH}, 1")
        t_.e(f"v_xor_b32 v{t}, s{S_T0}, v{r4}")
        t_.e(f"v_lshlrev_b32 v{t}, 6, v{t}")
        t_.e(f"v_lshlrev_b32 v{u}, 3, v{g}")
        t_.e(f"v_add_u32 v{u}, v{u}, v{r4}")
        t_.e(f"v_lshlrev_b32 v{u}, 8, v{u}")
        t_.e(f"v_lshlrev_b32 v{c4}, 4, v{c4}")
        t_.e(f"v_add_u32 v{u}, v{u}, v{c4}")
        t_.e(f"v_add_u32 v{u}, 28672, v{u}")
        t_.e(f"v_add_u32 v{V_WR}, v{t}, v{u}")
        t_.e(f"v_xor_b32 v{t}, 64, v{t}")
        t_.e(f"v_add_u32 v{V_WR+1}, v{t}, v{u}")
        t_.e(f"v_add_u32 v{V_WR+2}, 90112, v{V_WR}")
        t_.e(f"v_add_u32 v{V_WR+3}, 90112, v{V_WR+1}")
        t_.e(f"v_lshlrev_b32 v{t}, 4, v{L}")
        t_.e(f"s_mul_i32 s{S_T0}, s{S_QH}, 28672")
        t_.e(f"v_add_u32 v{V_QR}, s{S_T0}, v{t}")
        t_.e(f"s_mul_i32 s{S_T1}, s{S_KH}, 14336")
        t_.e(f"v_add_u32 v{V_QW}, s{S_T1}, v{V_QR}")
        for i in range(28):
            t_.e(f"v_mov_b32 v{V_NEGM+i}, 0")
        t_.e(f"v_mov_b32 v{t}, 0x3f803f80")
        for i in range(4):
            t_.e(f"v_accvgpr_write_b32 a{A_ONES+i}, v{t}")
        for k in range(9):
            t_.c(f"---- Q-proj period {k}")
            t_.e(WV(f"X{k}"))
            if k: t_.e(WL(f"R{k-1}"))
            t_.e("s_barrier")
            if k in (0, 1, 8):
                t_.many(self.stamp())
            rd = self.q_reads(k)
            if k <= 6:
                dm = self.x_dma(k + 2)
            elif k == 7:
                dm = self.kv_dma("V", 0, "0") + [f"s_mov_b32 s{S_SOKV}, 16384"] + self.kv_dma("K", 1, f"s{S_SOKV}") + \
                     self.kv_dma("V", 1, f"s{S_SOKV}")
            else:
                dm = [f"s_mov_b32 s{S_SOKV}, 32768"] + self.kv_dma("K", 2, f"s{S_SOKV}") + self.kv_dma("V", 2, f"s{S_SOKV}")
            if k == 0:
                t_.many(rd); t_.many(dm)
                continue
            S = Sched(self.q_mfmas(k - 1, k == 1))
            pos = [g for g in range(56) if g % 5 != 2][:len(rd)]
            for p_, r_ in zip(pos, rd): S.post[p_].append(r_)
            nvm = sum(isinstance(x, VM) for x in dm)
            step = 56.0 / nvm
            i = 0
            pend = []
            for x in dm:
                if isinstance(x, VM):
                    gpos = int(i * step + 2 - (i * step + 2) % 1)
                    gpos = min(55, gpos)
                    if pend:
                        S.post[gpos - 1] += pend; pend = []
                    S.post[gpos].append(x); i += 1
                else:
                    pend.append(x)
            S.emit(t_)
        t_.c("---- Q-proj period 9 + finalisation")
        t_.e(WL("R8"))
        t_.e("s_barrier")
        t_.many(self.stamp())
        groups = [(jj, qt) for jj in range(2) for qt in range(7)]
        mf = []
        for (jj, qt) in groups:
            for s in range(2):
                for T in (2 * jj, 2 * jj + 1):
                    mf.append(self.q_mf(8, s, T, qt, False))
        S = Sched(mf)
        def fin(gi):
            jj, qt = groups[gi]
            tb = V_QT + (gi & 1) * 4
            r0 = ((2 * jj) * 7 + qt) * 4
            r1 = ((2 * jj + 1) * 7 + qt) * 4
            m0_ = [f"v_mul_f32 v{r0+i}, s{S_SC}, v{r0+i}" for i in range(4)]
            m1_ = [f"v_mul_f32 v{r1+i}, s{S_SC}, v{r1+i}" for i in range(4)]
            c_ = [f"v_cvt_pk_bf16_f32 v{tb}, v{r0}, v{r0+1}", f"v_cvt_pk_bf16_f32 v{tb+1}, v{r0+2}, v{r0+3}",
                  f"v_cvt_pk_bf16_f32 v{tb+2}, v{r1}, v{r1+1}", f"v_cvt_pk_bf16_f32 v{tb+3}, v{r1+2}, v{r1+3}"]
            w_ = DS(f"ds_write_b128 v{V_QW}, {vr(tb)} offset:{(jj*7+qt)*1024}", "qw")
            return m0_, m1_, c_, w_
        for gi in range(13):
            m0_, m1_, c_, w_ = fin(gi)
            b = 4 * (gi + 1) + 1
            S.post[b] += m0_; S.post[b + 1] += m1_; S.post[b + 2] += c_; S.post[b + 3] += [w_]
        kr = [self.k_read(kt, ks, 0) for kt in range(2) for ks in range(4)]
        for i, x in enumerate(kr): S.post[i].append(x)
        S.emit(t_)
        t_.e("s_nop 7")
        m0_, m1_, c_, w_ = fin(13)
        t_.many(m0_); t_.many(m1_); t_.many(c_); t_.e(w_)
        t_.e(WL("qw"))
        t_.e(WV("V0"))
        t_.e("s_barrier")
        t_.many(self.stamp())
        if o.dbgq:
            for qt in range(7): t_.many(self.q_read(qt))
            t_.e(WALL('l'))
            t_.e(f"s_lshl_b32 s{S_T0}, s2, 2")
            t_.e(f"s_add_u32 s{S_T0}, s{S_T0}, s{S_W}")
            t_.e(f"s_mul_i32 s{S_T0}, s{S_T0}, 28672")
            t_.e(f"s_add_u32 s{S_T0}, s{S_T0}, {32<<20}")
            t_.e(f"s_mov_b32 s{S_O+2}, {256<<20}")
            t_.e(f"v_and_b32 v{V_T0}, 63, v{V_TID}")
            t_.e(f"v_lshlrev_b32 v{V_T0}, 4, v{V_T0}")
            for i in range(28):
                t_.e(f"buffer_store_dwordx4 {ar(A_Q + i*4)}, v{V_T0}, {sr(S_O)}, s{S_T0} offen")
                t_.e(f"s_add_u32 s{S_T0}, s{S_T0}, 1024")
            t_.e("s_waitcnt vmcnt(0)")
            t_.e(f"s_mov_b32 s{S_O+2}, {112*128*1024}")
        t_.lab("A_ATT")
        t_.many(self.q_read(0)); t_.many(self.q_read(1))
        t_.e(f"v_add_u32 v{V_OFFKV}, {3*16384}, v{V_OFFKV}")
        t_.e(f"v_add_u32 v{V_OFFKV+1}, {3*16384}, v{V_OFFKV+1}")
        self.preamble(True)
        self.body()
        self.epilogue()
        self.slowpath()
        t_.lab("A_END")
        t_.e("s_endpgm")
        return "\n".join(t_.L)

    def preamble(self, with_q):
        t_ = self.t
        vr_ = [self.v_read(tp, hf, 0) for tp in range(7) for hf in range(2)]
        t_.e(WL("k0.0", "k0.1", "q0"))
        S = Sched(self.qk_mfmas(0, 0))
        for i, x in enumerate(vr_): S.post[i // 2].append(x)
        if with_q:
            q2 = self.q_read(2)
            S.post[7] += q2
        S.emit(t_)
        t_.e(WL("q1"))
        m1 = self.qk_mfmas(1, 1)
        ex = self.exps(0); cv = self.cvts(0)
        S = Sched(m1)
        S.post[0] += ex[0:2]; S.post[1] += ex[2:4]; S.post[2] += ex[4:6]; S.post[3] += ex[6:8]
        S.post[4] += cv[0:2]; S.post[5] += cv[2:4]
        S.emit(t_)
        t_.many(self.stamp())

    def body(self):
        t_ = self.t
        texts = []
        start = len(t_.L)
        for n in range(4):
            self.tile(n)
        i0 = len(t_.L)
        for n in range(4, 8): self.tile(n)
        i1 = len(t_.L)
        for n in range(8, 12): self.tile(n)
        i2 = len(t_.L)
        strip = lambda xs: [x for x in xs if not x.strip().startswith(";")]
        assert strip(t_.L[i0:i1]) == strip(t_.L[i1:i2]), "loop iterations differ"
        body = t_.L[i0:i1]
        t_.L = t_.L[:i0]
        t_.e(f"s_mov_b32 s{S_CNT}, 2")
        t_.lab("A_LOOP")
        t_.L += body
        t_.e(f"s_sub_u32 s{S_CNT}, s{S_CNT}, 1")
        t_.e(f"s_cmp_lg_u32 s{S_CNT}, 0")
        t_.e("s_cbranch_scc1 A_LOOP")
        t_.many(self.stamp())
        for n in range(12, 16): self.tile(n)
        t_.many(self.stamp())

    def fin_tile(self, qt, pb, tb, lt):
        r = []
        ob = V_OOWN + qt * 16
        r.append(f"v_accvgpr_read_b32 v{lt}, a{A_L + 4*qt}")
        r.append(f"v_add_f32 v{lt}, v{lt}, v{lt+1}")
        r.append(f"v_rcp_f32 v{lt}, v{lt}")
        for k in range(8):
            r.append(f"v_pk_add_f32 {vr(ob+2*k,2)}, {vr(ob+2*k,2)}, {vr(pb+2*k,2)}")
        for k in range(8):
            r.append(f"v_pk_mul_f32 {vr(ob+2*k,2)}, {vr(ob+2*k,2)}, {vr(lt,2)} op_sel:[0,0] op_sel_hi:[1,0]")
        for jj in range(2):
            s0 = ob + jj * 8
            for k in range(4):
                r.append(f"v_cvt_pk_bf16_f32 v{tb + jj*4 + k}, v{s0 + 2*k}, v{s0 + 2*k + 1}")
        pol = " sc1" if self.o.osc1 else ""
        for jj in range(2):
            off = " offset:1024" if jj else ""
            r.append(VM(f"buffer_store_dwordx4 {vr(tb + jj*4)}, v{V_T0+1}, {sr(S_O)}, s{S_OB} offen{off}{pol}", "ost"))
        r.append(f"s_add_u32 s{S_OB}, s{S_OB}, 131072")
        return r

    def p_reads(self, qt, pb, lt):
        r = []
        for tpp in range(4):
            i = qt * 4 + tpp
            r.append(DS(f"ds_read_b128 {vr(pb + tpp*4)}, v{V_KA+2} offset:{i*1024}", f"p{qt}"))
        r.append(DS(f"ds_read_b32 v{lt+1}, v{V_KA+3} offset:{qt*256}", f"p{qt}"))
        return r

    def epilogue(self):
        t_ = self.t
        o = self.o
        t_.c("---- epilogue")
        PB = [112, 128, 144, 160]
        LT = [V_NEGM + 16, V_NEGM + 18, V_NEGM + 20, V_NEGM + 22]
        TB = [V_NEGM, V_NEGM + 8]
        t_.many(self.p_reads(0, PB[0], LT[0]))
        t_.many(self.p_reads(1, PB[1], LT[1]))
        t_.e("s_nop 7")
        t_.many(self.o_writes(6))
        t_.many(self.p_reads(2, PB[2], LT[2]))
        t_.many(self.p_reads(3, PB[3], LT[3]))
        T = V_S
        lo, hi = f32(2.0 ** -24), f32(2.0 ** 30)
        t_.e(f"s_mov_b32 s{S_T0}, {hex(lo)}")
        t_.e(f"s_mov_b32 s{S_T1}, {hex(hi - lo)}")
        for qt in range(7):
            t_.e(f"v_accvgpr_read_b32 v{T+qt}, a{A_L + 4*qt}")
        t_.e(f"v_subrev_u32 v{T+8}, s{S_T0}, v{T}")
        for qt in range(1, 7):
            t_.e(f"v_subrev_u32 v{T+9}, s{S_T0}, v{T+qt}")
            t_.e(f"v_max_u32 v{T+8}, v{T+8}, v{T+9}")
        t_.e(f"v_cmp_lt_u32 vcc, s{S_T1}, v{T+8}")
        t_.e(f"s_lshl_b32 s{S_T3}, s{S_W}, 2")
        t_.e(f"s_add_u32 s{S_T3}, s{S_T3}, {FL}")
        t_.e(f"s_cmp_lg_u64 vcc, 0")
        t_.e(f"s_cselect_b32 s{S_T2}, 1, 0")
        t_.e(f"v_mov_b32 v{T+10}, s{S_T2}")
        t_.e(f"v_mov_b32 v{T+11}, s{S_T3}")
        t_.e(DS(f"ds_write_b32 v{T+11}, v{T+10}", "fl"))
        for qt in range(4):
            t_.e(WL(f"p{qt}"))
            t_.many(self.fin_tile(qt, PB[qt], TB[qt & 1], LT[qt]))
        t_.e(WL("fl", "ow4", "ow5", "ow6"))
        t_.e("s_barrier")
        t_.many(self.stamp())
        F = V_P + 4
        t_.e(f"v_mov_b32 v{T+11}, {FL}")
        t_.e(DS(f"ds_read_b128 {vr(F)}, v{T+11}", "flr"))
        for qt in range(4, 7):
            t_.many(self.p_reads(qt, PB[qt - 4], LT[qt - 4]))
        t_.e(WL("flr"))
        t_.e(f"v_or_b32 v{F}, v{F}, v{F+1}")
        t_.e(f"v_or_b32 v{F+2}, v{F+2}, v{F+3}")
        t_.e(f"v_or_b32 v{F}, v{F}, v{F+2}")
        t_.e("s_nop 1")
        t_.e(f"v_readfirstlane_b32 s{S_T0}, v{F}")
        t_.e(f"s_xor_b32 s{S_T1}, s{S_PASS}, 1")
        t_.e(f"s_and_b32 s{S_T0}, s{S_T0}, s{S_T1}")
        t_.e(f"s_cmp_lg_u32 s{S_T0}, 0")
        t_.e("s_cbranch_scc1 A_SLOW")
        for qt in range(4, 7):
            t_.e(WL(f"p{qt}"))
            t_.many(self.fin_tile(qt, PB[qt - 4], TB[qt & 1], LT[qt - 4]))
        t_.many(self.stamp())
        if o.stamps:
            t_.e(f"s_memrealtime s[{S_ST+38}:{S_ST+39}]")
            t_.e("s_waitcnt lgkmcnt(0)")
            t_.e(f"s_cmp_lg_u32 s{S_W}, 0")
            t_.e("s_cbranch_scc1 A_END")
            ns = 20
            t_.e(f"s_mul_i32 s{S_T0}, s2, {ns*4*2}")
            t_.e(f"s_add_u32 s{S_T0}, s{S_T0}, {64<<20}")
            t_.e(f"s_mov_b32 s{S_O+2}, {256<<20}")
            t_.e(f"v_mov_b32 v{V_T0+1}, 0")
            for i in range(ns * 2):
                if 2 * self.nst <= i < 36:
                    t_.e(f"v_mov_b32 v{V_T0}, 0")
                else:
                    t_.e(f"v_mov_b32 v{V_T0}, s{S_ST+i}")
                t_.e(f"buffer_store_dword v{V_T0}, v{V_T0+1}, {sr(S_O)}, s{S_T0} offen offset:{i*4}")
                t_.e("s_nop 1")
        t_.e("s_endpgm")

    def slowpath(self):
        a = self.t
        a.lab("A_SLOW")
        a.c("---- fallback: true row maximum, then redo the attention loop with it")
        a.lq, a.vq = [], []
        a.e("s_waitcnt vmcnt(0) lgkmcnt(0)")
        a.e("s_barrier")
        a.e(f"s_mov_b32 s{S_PASS}, 1")
        self.emit_kv_addr()
        for qt in range(7):
            a.e(f"v_mov_b32 v{V_NEGM + 4*qt}, 0xff800000")
        KA = V_V
        for ks in range(4):
            a.e(f"v_subrev_u32 v{KA+ks}, {PAIR(0)+16384}, v{V_KA+ks}")
        a.e(f"s_mov_b32 s{S_SOKV}, 0")
        a.lab("A_MAXLOOP")
        a.many([x.t if isinstance(x, VM) else x for x in self.kv_dma("K", 0, f"s{S_SOKV}", lds=0)])
        a.e("s_waitcnt vmcnt(0)")
        a.e("s_barrier")
        for kt in range(2):
            for ks in range(4):
                off = f" offset:{kt*4096}" if kt else ""
                a.e(f"ds_read_b128 {vr(V_K + (kt*4+ks)*4)}, v{KA+ks}{off}")
        a.e("s_waitcnt lgkmcnt(0)")
        for qt in range(7):
            for kt in range(2):
                for ks in range(4):
                    d = vr(V_S + kt * 4)
                    a.e(f"{MF} {d}, {vr(V_K + (kt*4+ks)*4)}, {ar(A_Q + (qt*4+ks)*4)}, {'0' if ks == 0 else d}")
            a.e("s_nop 15")
            m = V_NEGM + 4 * qt
            for i in range(4):
                a.e(f"v_max3_f32 v{m}, v{m}, v{V_S+2*i}, v{V_S+2*i+1}")
            a.e("s_nop 3")
        a.e("s_barrier")
        a.e(f"s_add_u32 s{S_SOKV}, s{S_SOKV}, 16384")
        a.e(f"s_cmp_lt_u32 s{S_SOKV}, 262144")
        a.e("s_cbranch_scc1 A_MAXLOOP")
        L, t, u = V_T0, V_T0 + 1, V_T0 + 2
        a.e(f"v_and_b32 v{L}, 63, v{V_TID}")
        a.e(f"v_lshlrev_b32 v{t}, 2, v{L}")
        a.e(f"s_mul_i32 s{S_T0}, s{S_W}, 1792")
        a.e(f"s_add_u32 s{S_T0}, s{S_T0}, {MXX}")
        a.e(f"v_add_u32 v{t}, s{S_T0}, v{t}")
        for qt in range(7):
            a.e(f"ds_write_b32 v{t}, v{V_NEGM + 4*qt} offset:{qt*256}")
        a.e("s_waitcnt lgkmcnt(0)")
        a.e("s_barrier")
        a.e(f"v_and_b32 v{u}, 15, v{L}")
        a.e(f"v_lshlrev_b32 v{u}, 2, v{u}")
        a.e(f"s_mul_i32 s{S_T0}, s{S_QH}, 3584")
        a.e(f"s_add_u32 s{S_T0}, s{S_T0}, {MXX}")
        a.e(f"v_add_u32 v{u}, s{S_T0}, v{u}")
        for qt in range(7):
            for i in range(8):
                off = (i >> 2) * 1792 + qt * 256 + (i & 3) * 64
                a.e(f"ds_read_b32 v{V_S+i}, v{u} offset:{off}")
            a.e("s_waitcnt lgkmcnt(0)")
            m = V_NEGM + 4 * qt
            a.e(f"v_max3_f32 v{m}, v{V_S}, v{V_S+1}, v{V_S+2}")
            a.e(f"v_max3_f32 v{m}, v{m}, v{V_S+3}, v{V_S+4}")
            a.e(f"v_max3_f32 v{m}, v{m}, v{V_S+5}, v{V_S+6}")
            a.e(f"v_max_f32 v{m}, v{m}, v{V_S+7}")
            a.e(f"v_sub_f32 v{m}, 0, v{m}")
            for i in range(1, 4):
                a.e(f"v_mov_b32 v{m+i}, v{m}")
        a.e("s_barrier")
        a.e(f"v_lshlrev_b32 v{t}, 4, v{L}")
        a.e(f"s_mul_i32 s{S_T0}, s{S_QH}, 28672")
        a.e(f"v_add_u32 v{V_QR}, s{S_T0}, v{t}")
        for ks in range(4):
            for qt in range(7):
                a.e(f"ds_write_b128 v{V_QR}, {ar(A_Q + (qt*4+ks)*4)} offset:{(ks*7+qt)*1024}")
        strip = lambda xs: [x.t if isinstance(x, VM) else x for x in xs]
        a.many(strip(self.kv_dma("K", 0, "0")))
        a.many(strip(self.kv_dma("V", 0, "0")))
        a.e(f"s_mov_b32 s{S_SOKV}, 16384")
        a.many(strip(self.kv_dma("K", 1, f"s{S_SOKV}")))
        a.many(strip(self.kv_dma("V", 1, f"s{S_SOKV}")))
        a.e(f"s_mov_b32 s{S_SOKV}, 32768")
        a.many(strip(self.kv_dma("K", 2, f"s{S_SOKV}")))
        a.many(strip(self.kv_dma("V", 2, f"s{S_SOKV}")))
        a.e(f"s_waitcnt vmcnt(16) lgkmcnt(0)")
        a.e("s_barrier")
        for kt in range(2):
            for ks in range(4):
                a.e(self.k_read(kt, ks, 0).t)
        a.e("s_branch A_ATT")


def main():
    import gen as G1
    ap = argparse.ArgumentParser()
    ap.add_argument("-o", default="cdna_kernels/" + NAME + ".s")
    ap.add_argument("--nt", type=int, default=0)
    ap.add_argument("--stamps", type=int, default=0)
    ap.add_argument("--dbgq", type=int, default=0)
    ap.add_argument("--bw", type=int, default=8)
    ap.add_argument("--brs", type=int, default=4)
    ap.add_argument("--only", default="")
    ap.add_argument("--rts", type=int, default=0)
    ap.add_argument("--osc1", type=int, default=0)
    ap.add_argument("--probe", default="")
    o = ap.parse_args()
    ga = GenA(o); ta = ga.gen()
    gb = G1.GenB(o); tb = gb.gen()
    hdr = G1.HDR
    blds = max(o.bw * o.brs * 4096, o.bw * 16384)
    if o.only != "B":
        hdr += f"; @launch kernel={NAME}_kernel grid=(256,1,1) block=(256,1,1) lds=163840\n"
    if o.only != "A":
        hdr += f"; @launch kernel=oproj_kernel grid=(256,1,1) block=({o.bw*64},1,1) lds={blds}\n"
    if o.probe:
        hdr += "; @launch kernel=probe_kernel grid=(1,1,1) block=(64,1,1) lds=0\n"
    txt = hdr + '.amdgcn_target "amdgcn-amd-amdhsa--gfx950"\n.text\n' + G1.fix_hazards(ta) + "\n" + G1.fix_hazards(tb) + "\n"
    if o.probe:
        txt += G1.gen_probe(o.probe) + "\n"
    txt += '.section .rodata,"a"\n.p2align 6\n' + G1.descriptor(NAME + "_kernel", 512, 256)
    nvb = (gb.nv + 7) // 8 * 8
    txt += ".p2align 6\n" + G1.descriptor("oproj_kernel", nvb, (gb.nv + 3) // 4 * 4)
    if o.probe:
        txt += ".p2align 6\n" + G1.descriptor("probe_kernel", 32, 32)
    open(o.o, "w").write(txt)
    print("wrote", o.o, len(txt), "bytes; B vgprs", gb.nv, "stamps", ga.nst)

if __name__ == "__main__":
    main()
```

```python
import sys, struct, re, argparse
from collections import defaultdict
sys.path.insert(0, "tools")

NAME = "standalone__mha_block_cached__near_ridge"
MF = "v_mfma_f32_16x16x32_bf16"

def f32(x):
    return struct.unpack("<I", struct.pack("<f", x))[0]
def vr(b, n=4): return f"v[{b}:{b+n-1}]" if n > 1 else f"v{b}"
def ar(b, n=4): return f"a[{b}:{b+n-1}]" if n > 1 else f"a{b}"
def sr(b, n=4): return f"s[{b}:{b+n-1}]" if n > 1 else f"s{b}"

class DS:
    def __init__(s, t, tag): s.t, s.tag = t, tag
class VM:
    def __init__(s, t, tag): s.t, s.tag = t, tag
class WL:
    def __init__(s, *tags): s.tags = set(tags)
class WV:
    def __init__(s, *tags): s.tags = set(tags)
class WALL:
    def __init__(s, k): s.k = k

class Trace:
    def __init__(self):
        self.L = []
        self.lq = []
        self.vq = []
    def raw(self, s): self.L.append(s)
    def lab(self, s): self.L.append(s + ":")
    def c(self, s): self.L.append("    ; " + s)
    def e(self, x):
        if isinstance(x, str):
            self.L.append("    " + x)
        elif isinstance(x, DS):
            self.L.append("    " + x.t); self.lq.append(x.tag)
        elif isinstance(x, VM):
            self.L.append("    " + x.t); self.vq.append(x.tag)
        elif isinstance(x, WL):
            idx = max([i for i, t in enumerate(self.lq) if t in x.tags], default=-1)
            if idx >= 0:
                n = len(self.lq) - 1 - idx
                if n > 15:
                    n = 15
                self.L.append(f"    s_waitcnt lgkmcnt({n})")
                self.lq = self.lq[len(self.lq) - n:] if n else []
        elif isinstance(x, WV):
            idx = max([i for i, t in enumerate(self.vq) if t in x.tags], default=-1)
            if idx >= 0:
                n = len(self.vq) - 1 - idx
                if n > 63:
                    n = 63
                self.L.append(f"    s_waitcnt vmcnt({n})")
                self.vq = self.vq[len(self.vq) - n:] if n else []
        elif isinstance(x, WALL):
            w = []
            if 'v' in x.k: w.append("vmcnt(0)"); self.vq = []
            if 'l' in x.k: w.append("lgkmcnt(0)"); self.lq = []
            self.L.append("    s_waitcnt " + " ".join(w))
        else:
            raise TypeError(x)
    def many(self, xs):
        for x in xs: self.e(x)

class Sched:
    def __init__(self, mf):
        self.mf = mf
        self.pre = defaultdict(list)
        self.post = defaultdict(list)
    def emit(self, t):
        for g, m in enumerate(self.mf):
            t.many(self.pre[g])
            t.e(m)
            t.many(self.post[g])
        n = len(self.mf)
        for g in sorted(set(list(self.pre) + list(self.post))):
            if g >= n:
                t.many(self.pre[g]); t.many(self.post[g])

BUF = {0: 90112, 1: 45056, 2: 0}
def PAIR(n):
    return 32768 + ((3 - n) & 3) * 32768
QX = 0
RG = 40960
LOFF = 7 * 4096
FOFF = 7 * 4096 + 2048
MXX = 16384

V_OOWN = 0
V_K = 112
V_V = 144
V_S = 176
V_P = 192
V_NEGM = 200
V_KA = 228
V_VA = 232
V_OFFKV = 240
V_TID = 242
V_T0 = 243
V_OFFX = 144
V_OFFW = 151
V_XR = 156
V_WR = 160
V_QW = 253
V_QR = 254
V_QT = 176
V_WOF = 245
V_TR = 249
V_OO = [244, 253, 254, 255]
S_WO, S_OUT = 16, 20
S_MG, S_NG, S_SW, S_SO, S_L0, S_L1, S_RB, S_SWC, S_SOC = 57, 58, 59, 10, 11, 3, 100, 101, 42
S_PF = 12
V_PF, V_PFD = 243, 255
A_Q = 0
A_OOTH = 112
A_L = 224
A_ONES = 252
S_X, S_WQ, S_K, S_V, S_O = 16, 20, 24, 28, 32
S_W, S_QH, S_KH = 36, 37, 38
S_W1K7 = 39
S_SC = 40
S_SOX, S_SOW = 42, 43
S_W4K = 44
S_B, S_H = 45, 46
S_CNT = 47
S_PASS = 48
S_T0, S_T1, S_T2, S_T3 = 49, 50, 51, 52
S_OB = 53
S_SOKV = 56
S_ST = 60


def o_reg(j, tp):
    if tp < 4:
        return vr(V_OOWN + (j * 4 + tp) * 4)
    return ar(A_OOTH + (j * 4 + tp - 4) * 4)


class GenA:
    def __init__(self, opt):
        self.o = opt
        self.t = Trace()
        self.nst = 0
        self.npf = 0
        self.pfc = [int(z) for z in opt.pfc.split(",")]
        assert len(self.pfc) == 10
        self.pf_on = (sum(self.pfc) > 0 or opt.pfa)
        self.QS = 131072 + opt.opad

    def stamp(self):
        if not self.o.stamps:
            return []
        ins = "s_memrealtime" if self.o.rts else "s_memtime"
        s = f"{ins} s[{S_ST + 2*self.nst}:{S_ST + 2*self.nst + 1}]"
        self.nst += 1
        assert self.nst <= 18
        return [s]

    def kvpol(self):
        return " nt" if self.o.nt else ""

    def emit_kv_addr(self, rd=True, dma=True):
        t_ = self.t
        L, l15, g, r4, c4, t, u = V_T0, V_T0+1, V_T0+2, V_T0+3, V_T0+4, V_T0+5, V_T0+6
        t_.e(f"v_and_b32 v{L}, 63, v{V_TID}")
        t_.e(f"v_and_b32 v{l15}, 15, v{L}")
        t_.e(f"v_lshrrev_b32 v{g}, 4, v{L}")
        if dma:
            t_.e(f"v_lshlrev_b32 v{t}, 1, v{g}")
            t_.e(f"v_xor_b32 v{t}, v{t}, v{l15}")
            t_.e(f"v_lshlrev_b32 v{t}, 4, v{t}")
            t_.e(f"v_lshlrev_b32 v{u}, 8, v{g}")
            t_.e(f"v_add_u32 v{u}, s{S_W4K}, v{u}")
            t_.e(f"v_add_u32 v{V_OFFKV}, v{t}, v{u}")
            t_.e(f"v_xor_b32 v{t}, 128, v{t}")
            t_.e(f"v_add_u32 v{V_OFFKV+1}, v{t}, v{u}")
        if rd:
            t_.e(f"v_bfe_u32 v{r4}, v{L}, 2, 2")
            t_.e(f"v_and_b32 v{c4}, 3, v{L}")
            t_.e(f"s_lshl_b32 s{S_T0}, s{S_KH}, 13")
            t_.e(f"s_add_u32 s{S_T1}, s{S_T0}, {PAIR(0) + 16384}")
            t_.e(f"v_and_b32 v{t}, 7, v{l15}")
            t_.e(f"v_lshlrev_b32 v{t}, 1, v{t}")
            t_.e(f"v_xor_b32 v{t}, v{t}, v{g}")
            t_.e(f"v_lshlrev_b32 v{t}, 4, v{t}")
            t_.e(f"v_lshlrev_b32 v{u}, 8, v{l15}")
            t_.e(f"v_add_u32 v{u}, s{S_T1}, v{u}")
            for ks in range(4):
                t_.e(f"v_xor_b32 v{V_KA+ks}, {ks*64}, v{t}")
                t_.e(f"v_add_u32 v{V_KA+ks}, v{V_KA+ks}, v{u}")
            t_.e(f"s_add_u32 s{S_T1}, s{S_T0}, {PAIR(0)}")
            t_.e(f"v_lshlrev_b32 v{u}, 2, v{g}")
            t_.e(f"v_add_u32 v{u}, v{u}, v{r4}")
            t_.e(f"v_and_b32 v{t}, 7, v{u}")
            t_.e(f"s_lshl_b32 s{S_T2}, s{S_KH}, 2")
            t_.e(f"v_xor_b32 v{t}, s{S_T2}, v{t}")
            t_.e(f"v_lshlrev_b32 v{t}, 5, v{t}")
            t_.e(f"v_lshlrev_b32 v{u}, 8, v{u}")
            t_.e(f"v_add_u32 v{u}, s{S_T1}, v{u}")
            t_.e(f"v_lshlrev_b32 v{c4}, 3, v{c4}")
            t_.e(f"v_add_u32 v{u}, v{u}, v{c4}")
            for tp in range(8):
                t_.e(f"v_xor_b32 v{V_VA+tp}, {tp*32}, v{t}")
                t_.e(f"v_add_u32 v{V_VA+tp}, v{V_VA+tp}, v{u}")

    def kv_dma(self, which, n, soff, lds=None):
        srd = S_K if which == "K" else S_V
        if lds is None:
            lds = PAIR(n) + (16384 if which == "K" else 0)
        r = [f"s_add_u32 m0, s{S_W4K}, {lds}"]
        for i in range(4):
            off = f" offset:{i*1024}" if i else ""
            r.append(VM(f"buffer_load_dwordx4 v{V_OFFKV + (i & 1)}, {sr(srd)}, {soff} offen{off}{self.kvpol()} lds", f"{which}{n}"))
        return r

    def kv_touch(self):
        self.npf += 1
        return [VM(f"buffer_load_dword v{V_PFD}, v{V_PF}, {sr(S_PF)}, 0 offen{self.o.pfpol}", "PF"),
                f"v_add_u32 v{V_PF}, 16384, v{V_PF}"]

    def x_dma(self, st):
        buf = BUF[st % 3]
        r = []
        r.append(f"s_mov_b32 s{S_SOX}, {st*128}")
        r.append(f"s_add_u32 m0, s{S_W1K7}, {buf}")
        for i in range(7):
            if i == 4:
                r.append(f"s_add_u32 m0, s{S_W1K7}, {buf + 4096}")
            off = f" offset:{(i%4)*1024}" if i % 4 else ""
            r.append(VM(f"buffer_load_dwordx4 v{V_OFFX+i}, {sr(S_X)}, s{S_SOX} offen{off} lds", f"X{st}"))
        r.append(f"s_mov_b32 s{S_SOW}, {st*64*8192}")
        r.append(f"s_add_u32 m0, s{S_W4K}, {buf + 28672}")
        for i in range(4):
            off = f" offset:{i*1024}" if i else ""
            r.append(VM(f"buffer_load_dwordx4 v{V_OFFW+i}, {sr(S_WQ)}, s{S_SOW} offen{off} lds", f"X{st}"))
        return r

    def q_reads(self, st):
        buf = BUF[st % 3]
        sset = 1 if buf == 90112 else 0
        base = buf - (90112 if sset else 0)
        p = (st & 1) * 88
        r = []
        for s in range(2):
            for T in range(4):
                jj = T >> 1
                for hf in range(2):
                    off = base + 8192 * s + 1024 * hf + 8 * (T & 1)
                    r.append(DS(f"ds_read_b64_tr_b16 {ar(p + 56 + (s*4+T)*4 + 2*hf, 2)}, v{V_WR + sset*2 + jj} offset:{off}", f"R{st}"))
            for qt in range(7):
                off = base + qt * 2048
                r.append(DS(f"ds_read_b128 {ar(p + (s*7+qt)*4)}, v{V_XR + sset*2 + s} offset:{off}", f"R{st}"))
        return r

    def q_mf(self, st, s, T, qt, first):
        p = (st & 1) * 88
        d = vr((T * 7 + qt) * 4)
        c = "0" if (first and s == 0) else d
        return f"{MF} {d}, {ar(p + 56 + (s*4+T)*4)}, {ar(p + (s*7+qt)*4)}, {c}"

    def q_mfmas(self, st, first):
        return [self.q_mf(st, s, T, qt, first) for s in range(2) for T in range(4) for qt in range(7)]

    def k_read(self, kt, ks, n):
        off = f" offset:{kt*4096}" if kt else ""
        return DS(f"ds_read_b128 {vr(V_K + (kt*4+ks)*4)}, v{V_KA+ks}{off}", f"k{n}.{kt}")

    def v_read(self, tp, hf, n):
        off = f" offset:{hf*4096}" if hf else ""
        return DS(f"ds_read_b64_tr_b16 {vr(V_V + tp*4 + 2*hf, 2)}, v{V_VA+tp}{off}", f"v{n}.{tp}")

    def q_read(self, qt):
        return [DS(f"ds_read_b128 {ar(A_Q + (qt*4+ks)*4)}, v{V_QR} offset:{(ks*7+qt)*1024}", f"q{qt}") for ks in range(4)]

    def qk_mfmas(self, par, j2):
        r = []
        for kt in range(2):
            for ks in range(4):
                d = vr(V_S + par * 8 + kt * 4)
                c = vr(V_NEGM + j2 * 4) if ks == 0 else d
                r.append(f"{MF} {d}, {vr(V_K + (kt*4+ks)*4)}, {ar(A_Q + (j2*4+ks)*4)}, {c}")
        return r

    def pv_mfmas(self, par, j, first):
        r = []
        p = vr(V_P + par * 4)
        for tp in range(8):
            d = o_reg(j, tp)
            r.append(f"{MF} {d}, {vr(V_V + tp*4)}, {p}, {'0' if first else d}")
        d = ar(A_L + j * 4)
        r.append(f"{MF} {d}, {ar(A_ONES)}, {p}, {'0' if first else d}")
        return r

    def exps(self, par):
        return [f"v_exp_f32 v{V_S + par*8 + i}, v{V_S + par*8 + i}" for i in range(8)]

    def cvts(self, par):
        return [f"v_cvt_pk_bf16_f32 v{V_P + par*4 + i}, v{V_S + par*8 + 2*i}, v{V_S + par*8 + 2*i + 1}" for i in range(4)]

    def tile(self, n):
        t = self.t
        first = (n == 0)
        last = (n == 15)
        dl = (PAIR(n + 1) - PAIR(n)) & 0xffffffff
        vdma = self.kv_dma("V", n + 3, "0") if (n + 3 <= 15 and n >= 1) else None
        kdma = self.kv_dma("K", n + 4, "0") if n + 4 <= 15 else None
        adv = [f"v_add_u32 v{V_OFFKV}, 16384, v{V_OFFKV}", f"v_add_u32 v{V_OFFKV+1}, 16384, v{V_OFFKV+1}"]
        for j in range(7):
            par = (n + j) & 1
            mf = self.pv_mfmas(par, j, first)
            has_qk = not (last and j >= 5)
            if has_qk:
                mf = mf + self.qk_mfmas(par, (j + 2) % 7)
            S = Sched(mf)
            G, PRE = S.post, S.pre
            if not (last and j == 6):
                ex = self.exps(par ^ 1); cv = self.cvts(par ^ 1)
                if has_qk:
                    for i in range(8): G[2 * i].append(ex[i])
                    for i in range(4): G[4 * i + 3].append(cv[i])
                else:
                    for i in range(8): G[i // 2].append(ex[i])
                    G[2].append(cv[0]); G[3].append(cv[1]); G[4].append(cv[2]); G[5].append(cv[3])
            nn = n + 1
            if j == 0:
                PRE[0].append(WL(f"v{n}.0", f"v{n}.1", f"v{n}.2"))
                G[1] += [self.v_read(7, 0, n), self.v_read(7, 1, n)]
                PRE[3].append(WL(f"v{n}.3", f"v{n}.4", f"v{n}.5"))
                PRE[6].append(WL(f"v{n}.6", f"v{n}.7"))
                if vdma:
                    G[9] += [vdma[0]]
                    G[13] += [vdma[1]]
            if first and j <= 3:
                q = self.q_read(j + 3)
                G[5] += q[:2]; G[9] += q[2:]
            if first and j <= 4:
                PRE[9].append(WL(f"q{j+2}"))
            if j == 1:
                if vdma: G[5] += [vdma[2]]
                if not last:
                    G[9] += [f"v_add_u32 v{V_VA+0}, {dl}, v{V_VA+0}", f"v_add_u32 v{V_VA+1}, {dl}, v{V_VA+1}"] if not first else []
                    G[13] += [f"v_add_u32 v{V_VA+2}, {dl}, v{V_VA+2}", f"v_add_u32 v{V_VA+3}, {dl}, v{V_VA+3}"]
                    if first:
                        G[1] += [f"v_add_u32 v{V_VA+0}, {dl}, v{V_VA+0}", f"v_add_u32 v{V_VA+1}, {dl}, v{V_VA+1}"]
            if j == 2:
                if vdma: G[5] += [vdma[3]]
                if not last:
                    G[1] += [f"v_add_u32 v{V_VA+4}, {dl}, v{V_VA+4}", f"v_add_u32 v{V_VA+5}, {dl}, v{V_VA+5}"]
                    G[13] += [f"v_add_u32 v{V_VA+6}, {dl}, v{V_VA+6}", f"v_add_u32 v{V_VA+7}, {dl}, v{V_VA+7}"]
            if j == 3:
                if vdma: G[5] += [vdma[4]]
                if not last:
                    G[1] += [f"v_add_u32 v{V_KA+0}, {dl}, v{V_KA+0}", f"v_add_u32 v{V_KA+1}, {dl}, v{V_KA+1}"]
                    G[13] += [f"v_add_u32 v{V_KA+2}, {dl}, v{V_KA+2}", f"v_add_u32 v{V_KA+3}, {dl}, v{V_KA+3}"]
                if kdma and not first:
                    G[16] += adv
            if j == 4:
                if first:
                    G[5] += [WL("q6")]
                if not last:
                    G[5] += [WV(f"K{nn}", f"V{nn}")]
                else:
                    G[5] += [WL("ow0", "ow1", "ow2", "ow3")]
                G[7] += ["s_barrier"]
                if not last:
                    G[9] += [self.k_read(0, 0, nn)]
                    G[11] += [self.k_read(0, 1, nn)]
                    G[13] += [self.k_read(0, 2, nn), self.k_read(0, 3, nn)]
                    G[15] += [self.k_read(1, 0, nn)]
                    G[16] += [self.k_read(1, 1, nn), self.k_read(1, 2, nn)]
                if first:
                    k3 = self.kv_dma("K", 3, "0")
                    G[9] += [k3[0]]
                    self.k3 = k3
            if j == 5 and not last:
                G[1] += [self.k_read(1, 3, nn)]
                PRE[9].append(WL(f"k{nn}.0", f"k{nn}.1"))
                if first:
                    k3 = self.k3
                    G[1] += [k3[1]]; G[3] += [k3[2]]; G[5] += [k3[3]]; G[7] += [k3[4]]
                    v3 = self.kv_dma("V", 3, "0")
                    G[9] += [v3[0], v3[1]]; G[11] += [v3[2]]; G[13] += [v3[3]]; G[15] += [v3[4]]
                    G[16] += adv
                elif kdma:
                    G[0] += [kdma[0]]
                    G[1] += [kdma[1]]; G[5] += [kdma[2]]; G[9] += [kdma[3]]; G[13] += [kdma[4]]
            if j == 6 and self.o.pfa and n <= 11:
                tc = self.kv_touch()
                G[14] += [tc[0]]; G[16] += [tc[1]]
            if j == 6 and not last:
                v = lambda a, b: self.v_read(a, b, nn)
                G[1] += [v(0, 0), v(0, 1)]
                G[3] += [v(1, 0)]
                G[5] += [v(1, 1), v(2, 0)]
                G[7] += [v(2, 1)]
                G[9] += [v(3, 0), v(3, 1)]
                G[11] += [v(4, 0)]
                G[13] += [v(4, 1), v(5, 0)]
                G[15] += [v(5, 1)]
                G[16] += [v(6, 0), v(6, 1)]
                if first:
                    PRE[0] += [kdma[0]]
                    G[0] += [kdma[1]]; G[4] += [kdma[2]]; G[8] += [kdma[3]]; G[12] += [kdma[4]]
            if last:
                if j == 1:
                    PRE[0] = ["s_barrier"] + PRE[0]
                    w = self.o_writes(0)
                    G[1] += [w[0]]; G[3] += [w[1]]; G[5] += [w[2]]; G[7] += [w[3]]; G[8] += [w[4]]
                if 1 <= j <= 4:
                    w = self.o_writes(j)
                    G[10] += [w[0]]; G[11] += [w[1]]; G[13] += [w[2], w[3]]; G[15] += [w[4]]
                if self.o.fused and j in (2, 3):
                    d = self.wo_dma(j - 2)
                    G[0] += d[:2]; G[1] += [d[2]]; G[3] += [d[3]]; G[5] += [d[4]]; G[7] += [d[5]]
                if j == 6:
                    w = self.o_writes(5)
                    G[1] += [w[0]]; G[3] += [w[1]]; G[4] += [w[2]]; G[6] += [w[3]]; G[7] += [w[4]]
                if j == 0:
                    PRE[0] = self.ox_addr() + PRE[0]
            t.c(f"tile {n} slot {j}")
            S.emit(t)

    def ox_addr(self):
        r = []
        T = V_T0
        r.append(f"v_and_b32 v{T}, 63, v{V_TID}")
        r.append(f"v_lshlrev_b32 v{T+1}, 4, v{T}")
        r.append(f"v_lshlrev_b32 v{T}, 2, v{T}")
        r.append(f"s_xor_b32 s{S_T3}, s{S_W}, 1")
        r.append(f"s_mul_i32 s{S_T0}, s{S_T3}, {RG}")
        r.append(f"v_add_u32 v{V_KA}, s{S_T0}, v{T+1}")
        r.append(f"s_add_u32 s{S_T0}, s{S_T0}, {LOFF}")
        r.append(f"v_add_u32 v{V_KA+1}, s{S_T0}, v{T}")
        r.append(f"s_mul_i32 s{S_T0}, s{S_W}, {RG}")
        r.append(f"v_add_u32 v{V_KA+2}, s{S_T0}, v{T+1}")
        r.append(f"s_add_u32 s{S_T0}, s{S_T0}, {LOFF}")
        r.append(f"v_add_u32 v{V_KA+3}, s{S_T0}, v{T}")
        r.append(f"s_mul_i32 s{S_T0}, s{S_B}, 14")
        r.append(f"s_mul_i32 s{S_T1}, s{S_QH}, 7")
        r.append(f"s_add_u32 s{S_T0}, s{S_T0}, s{S_T1}")
        r.append(f"s_mul_i32 s{S_T0}, s{S_T0}, {self.QS}")
        r.append(f"s_lshl_b32 s{S_T1}, s{S_H}, 1")
        r.append(f"s_add_u32 s{S_T1}, s{S_T1}, s{S_KH}")
        r.append(f"s_lshl_b32 s{S_T1}, s{S_T1}, 11")
        r.append(f"s_add_u32 s{S_OB}, s{S_T0}, s{S_T1}")
        return r

    def o_writes(self, j):
        r = []
        for tpp in range(4):
            i = j * 4 + tpp
            r.append(DS(f"ds_write_b128 v{V_KA}, {ar(A_OOTH + i*4)} offset:{i*1024}", f"ow{j}"))
        r.append(DS(f"ds_write_b32 v{V_KA+1}, a{A_L + 4*j} offset:{j*256}", f"ow{j}"))
        return r

    def gen(self):
        t_ = self.t
        o = self.o
        kn = f"{NAME}_kernel"
        t_.raw(f".globl {kn}\n.p2align 8\n.type {kn},@function\n{kn}:")
        t_.e("s_cmp_ge_u32 s2, 256")
        t_.e("s_cbranch_scc1 A_END")
        t_.e("s_load_dwordx8 s[4:11], s[0:1], 0")
        t_.e("s_load_dwordx2 s[12:13], s[0:1], 56")
        t_.many(self.stamp())
        if o.stamps:
            t_.e(f"s_memrealtime s[{S_ST+36}:{S_ST+37}]")
        t_.e(f"v_mov_b32 v{V_TID}, v0")
        t_.e(f"v_lshrrev_b32 v1, 6, v0")
        t_.e("s_and_b32 s3, s2, 7")
        t_.e(f"s_lshr_b32 s{S_T0}, s2, 3")
        t_.e(f"v_readfirstlane_b32 s{S_W}, v1")
        t_.e(f"s_and_b32 s{S_T1}, s3, 1")
        t_.e(f"s_lshl_b32 s{S_T1}, s{S_T1}, 2")
        t_.e(f"s_and_b32 s{S_T2}, s{S_T0}, 3")
        t_.e(f"s_add_u32 s{S_B}, s{S_T1}, s{S_T2}")
        t_.e(f"s_lshr_b32 s{S_T1}, s3, 1")
        t_.e(f"s_lshl_b32 s{S_T1}, s{S_T1}, 3")
        t_.e(f"s_lshr_b32 s{S_T2}, s{S_T0}, 2")
        t_.e(f"s_add_u32 s{S_H}, s{S_T1}, s{S_T2}")
        t_.e(f"s_lshr_b32 s{S_QH}, s{S_W}, 1")
        t_.e(f"s_and_b32 s{S_KH}, s{S_W}, 1")
        t_.e(f"s_mul_i32 s{S_W1K7}, s{S_W}, 7168")
        t_.e(f"s_lshl_b32 s{S_W4K}, s{S_W}, 12")
        L, l15, g, r4, c4, t, u = V_T0, V_T0+1, V_T0+2, V_T0+3, V_T0+4, V_T0+5, V_T0+6
        t_.e(f"v_and_b32 v{L}, 63, v{V_TID}")
        t_.e(f"v_and_b32 v{l15}, 15, v{L}")
        t_.e(f"v_lshrrev_b32 v{g}, 4, v{L}")
        t_.e(f"v_lshrrev_b32 v{t}, 3, v{L}")
        t_.e(f"v_and_b32 v{r4}, 7, v{L}")
        t_.e(f"v_xor_b32 v{u}, v{g}, v{r4}")
        t_.e(f"v_lshlrev_b32 v{u}, 4, v{u}")
        t_.e(f"s_lshl_b32 s{S_T0}, s{S_KH}, 6")
        t_.e(f"v_xor_b32 v{u}, s{S_T0}, v{u}")
        t_.e(f"v_mul_u32_u24 v{t}, 1152, v{t}")
        t_.e(f"s_mul_i32 s{S_T1}, s{S_W}, {56*1152}")
        t_.e(f"v_add_u32 v{t}, s{S_T1}, v{t}")
        t_.e(f"v_xor_b32 v{c4}, 64, v{u}")
        t_.e(f"v_add_u32 v{V_OFFX}, v{u}, v{t}")
        t_.e(f"v_add_u32 v{c4}, v{c4}, v{t}")
        for i in range(1, 7):
            src = V_OFFX if (i & 1) == 0 else c4
            k = i * 9216 - (i % 4) * 1024
            t_.e(f"v_add_u32 v{V_OFFX+i}, {k}, v{src}")
        t_.e(f"v_lshlrev_b32 v{t}, 2, v{g}")
        t_.e(f"v_xor_b32 v{t}, v{t}, v{l15}")
        t_.e(f"v_lshlrev_b32 v{t}, 4, v{t}")
        t_.e(f"v_lshlrev_b32 v{u}, 13, v{g}")
        t_.e(f"s_lshl_b32 s{S_T1}, s{S_W}, 17")
        t_.e(f"v_add_u32 v{u}, s{S_T1}, v{u}")
        t_.e(f"v_add_u32 v{V_OFFW}, v{t}, v{u}")
        for i in range(1, 4):
            t_.e(f"v_add_u32 v{V_OFFW+i}, {i*(32768-1024)}, v{V_OFFW}")
        t_.e(f"s_mul_i32 s{S_T0}, s{S_B}, 258048")
        t_.e(f"s_lshl_b32 s{S_T1}, s{S_H}, 8")
        t_.e(f"s_mov_b32 s{S_X+2}, 258048")
        t_.e(f"s_mov_b32 s{S_X+3}, 0x00020000")
        t_.e(f"s_sub_u32 s{S_WQ+2}, {576*8192}, s{S_T1}")
        t_.e(f"s_mov_b32 s{S_WQ+3}, 0x00020000")
        t_.e("s_waitcnt lgkmcnt(0)")
        t_.many(self.stamp())
        t_.e(f"s_add_u32 s{S_X}, s4, s{S_T0}")
        t_.e(f"s_addc_u32 s{S_X+1}, s5, 0")
        t_.e(f"s_add_u32 s{S_WQ}, s10, s{S_T1}")
        t_.e(f"s_addc_u32 s{S_WQ+1}, s11, 0")
        t_.many(self.x_dma(0))
        t_.many(self.x_dma(1))
        t_.e(f"s_lshl_b32 s{S_T0}, s{S_B}, 5")
        t_.e(f"s_add_u32 s{S_T0}, s{S_T0}, s{S_H}")
        t_.e(f"s_lshl_b32 s{S_T0}, s{S_T0}, 18")
        t_.e(f"s_add_u32 s{S_K}, s6, s{S_T0}")
        t_.e(f"s_addc_u32 s{S_K+1}, s7, 0")
        t_.e(f"s_mov_b32 s{S_K+2}, 262144")
        t_.e(f"s_mov_b32 s{S_K+3}, 0x00020000")
        t_.e(f"s_add_u32 s{S_V}, s8, s{S_T0}")
        t_.e(f"s_addc_u32 s{S_V+1}, s9, 0")
        t_.e(f"s_mov_b32 s{S_V+2}, 262144")
        t_.e(f"s_mov_b32 s{S_V+3}, 0x00020000")
        t_.e(f"s_mov_b32 s{S_O}, s12")
        t_.e(f"s_mov_b32 s{S_O+1}, s13")
        t_.e(f"s_mov_b32 s{S_O+2}, {112*self.QS}")
        t_.e(f"s_mov_b32 s{S_O+3}, 0x00020000")
        if o.fused:
            t_.e("s_load_dwordx4 s[4:7], s[0:1], 32")
            t_.e("s_load_dwordx2 s[8:9], s[0:1], 48")
        self.emit_kv_addr(rd=False, dma=True)
        t_.many(self.kv_dma("K", 0, "0"))
        if o.pfq:
            a0, a1 = 112, 113
            pl = V_T0
            t_.e(f"s_and_b32 s{S_T0}, s{S_H}, 7")
            t_.e(f"s_mul_i32 s{S_T0}, s{S_T0}, 32256")
            t_.e(f"s_lshl_b32 s{S_T1}, s{S_W}, 13")
            t_.e(f"s_add_u32 s{S_T0}, s{S_T0}, s{S_T1}")
            t_.e(f"v_lshlrev_b32 v{a0}, 7, v{pl}")
            t_.e(f"v_add_u32 v{a0}, s{S_T0}, v{a0}")
            t_.e(VM(f"buffer_load_dword v{V_PFD}, v{a0}, {sr(S_X)}, 0 offen", "PF"))
            t_.e(f"s_and_b32 s{S_T0}, s{S_B}, 3")
            t_.e(f"s_mul_i32 s{S_T0}, s{S_T0}, 144")
            t_.e(f"s_mul_i32 s{S_T1}, s{S_W}, 36")
            t_.e(f"s_add_u32 s{S_T0}, s{S_T0}, s{S_T1}")
            t_.e(f"s_lshl_b32 s{S_T0}, s{S_T0}, 13")
            t_.e(f"v_lshrrev_b32 v{a0}, 1, v{pl}")
            t_.e(f"v_lshlrev_b32 v{a0}, 13, v{a0}")
            t_.e(f"v_and_b32 v{a1}, 1, v{pl}")
            t_.e(f"v_lshlrev_b32 v{a1}, 7, v{a1}")
            t_.e(f"v_add_u32 v{a0}, v{a0}, v{a1}")
            t_.e(f"v_add_u32 v{a0}, s{S_T0}, v{a0}")
            t_.e(VM(f"buffer_load_dword v{V_PFD}, v{a0}, {sr(S_WQ)}, 0 offen", "PF"))
            t_.e(f"v_add_u32 v{a1}, {32*8192}, v{a0}")
            t_.e(f"v_mov_b32 v{a0}, 0x40000000")
            t_.e(f"v_cmp_gt_u32 vcc, 8, v{pl}")
            t_.e(f"v_cndmask_b32 v{a1}, v{a0}, v{a1}, vcc")
            t_.e(VM(f"buffer_load_dword v{V_PFD}, v{a1}, {sr(S_WQ)}, 0 offen", "PF"))
        if self.pf_on:
            t_.e(f"s_lshr_b32 s{S_T0}, s{S_W}, 1")
            t_.e(f"s_cmp_eq_u32 s{S_T0}, 0")
            t_.e(f"s_cselect_b32 s{S_PF}, s{S_K}, s{S_V}")
            t_.e(f"s_cselect_b32 s{S_PF+1}, s{S_K+1}, s{S_V+1}")
            t_.e(f"s_and_b32 s{S_T0}, s{S_W}, 1")
            t_.e(f"s_lshl_b32 s{S_T0}, s{S_T0}, 13")
            t_.e(f"s_add_u32 s{S_PF}, s{S_PF}, s{S_T0}")
            t_.e(f"s_addc_u32 s{S_PF+1}, s{S_PF+1}, 0")
            t_.e(f"s_sub_u32 s{S_PF+2}, 262144, s{S_T0}")
            t_.e(f"s_mov_b32 s{S_PF+3}, 0x00020000")
            t_.e(f"v_lshlrev_b32 v112, 7, v{V_T0}")
            if o.pf0: t_.e(f"v_add_u32 v112, {o.pf0*16384}, v112")
            self.pfreg = 112
            for i in range(self.pfc[0]):
                t_.e(VM(f"buffer_load_dword v{V_PFD}, v112, {sr(S_PF)}, 0 offen{o.pfpol}", "PF"))
                t_.e(f"v_add_u32 v112, 16384, v112")
        t_.many(self.stamp())
        self.emit_kv_addr(rd=True, dma=False)
        sc = f32(1.4426950408889634 / (128 ** 0.5))
        t_.e(f"s_mov_b32 s{S_SC}, {hex(sc)}")
        t_.e(f"s_mov_b32 s{S_PASS}, 0")
        t_.e(f"v_bfe_u32 v{r4}, v{L}, 2, 2")
        t_.e(f"v_and_b32 v{c4}, 3, v{L}")
        t_.e(f"v_lshrrev_b32 v{t}, 1, v{l15}")
        t_.e(f"v_xor_b32 v{t}, v{t}, v{g}")
        t_.e(f"v_lshlrev_b32 v{t}, 4, v{t}")
        t_.e(f"v_lshlrev_b32 v{u}, 7, v{l15}")
        t_.e(f"s_mul_i32 s{S_T0}, s{S_QH}, {112*128}")
        t_.e(f"v_add_u32 v{u}, s{S_T0}, v{u}")
        t_.e(f"v_add_u32 v{V_XR}, v{t}, v{u}")
        t_.e(f"v_xor_b32 v{t}, 64, v{t}")
        t_.e(f"v_add_u32 v{V_XR+1}, v{t}, v{u}")
        t_.e(f"v_add_u32 v{V_XR+2}, 90112, v{V_XR}")
        t_.e(f"v_add_u32 v{V_XR+3}, 90112, v{V_XR+1}")
        t_.e(f"s_lshl_b32 s{S_T0}, s{S_KH}, 1")
        t_.e(f"v_xor_b32 v{t}, s{S_T0}, v{r4}")
        t_.e(f"v_lshlrev_b32 v{t}, 6, v{t}")
        t_.e(f"v_lshlrev_b32 v{u}, 3, v{g}")
        t_.e(f"v_add_u32 v{u}, v{u}, v{r4}")
        t_.e(f"v_lshlrev_b32 v{u}, 8, v{u}")
        t_.e(f"v_lshlrev_b32 v{c4}, 4, v{c4}")
        t_.e(f"v_add_u32 v{u}, v{u}, v{c4}")
        t_.e(f"v_add_u32 v{u}, 28672, v{u}")
        t_.e(f"v_add_u32 v{V_WR}, v{t}, v{u}")
        t_.e(f"v_xor_b32 v{t}, 64, v{t}")
        t_.e(f"v_add_u32 v{V_WR+1}, v{t}, v{u}")
        t_.e(f"v_add_u32 v{V_WR+2}, 90112, v{V_WR}")
        t_.e(f"v_add_u32 v{V_WR+3}, 90112, v{V_WR+1}")
        t_.e(f"v_lshlrev_b32 v{t}, 4, v{L}")
        t_.e(f"s_mul_i32 s{S_T0}, s{S_QH}, 28672")
        t_.e(f"v_add_u32 v{V_QR}, s{S_T0}, v{t}")
        t_.e(f"s_mul_i32 s{S_T1}, s{S_KH}, 14336")
        t_.e(f"v_add_u32 v{V_QW}, s{S_T1}, v{V_QR}")
        for i in range(28):
            t_.e(f"v_mov_b32 v{V_NEGM+i}, 0")
        t_.e(f"v_mov_b32 v{t}, 0x3f803f80")
        for i in range(4):
            t_.e(f"v_accvgpr_write_b32 a{A_ONES+i}, v{t}")
        if self.pf_on:
            t_.e(f"v_mov_b32 v{V_PF}, v112")
        for k in range(9):
            t_.c(f"---- Q-proj period {k}")
            t_.e(WV(f"X{k}"))
            if k: t_.e(WL(f"R{k-1}"))
            t_.e("s_barrier")
            if k in (0, 1, 8):
                t_.many(self.stamp())
            rd = self.q_reads(k)
            if k <= 6:
                dm = self.x_dma(k + 2)
            elif k == 7:
                dm = self.kv_dma("V", 0, "0") + [f"s_mov_b32 s{S_SOKV}, 16384"] + self.kv_dma("K", 1, f"s{S_SOKV}") + \
                     self.kv_dma("V", 1, f"s{S_SOKV}")
            else:
                dm = [f"s_mov_b32 s{S_SOKV}, 32768"] + self.kv_dma("K", 2, f"s{S_SOKV}") + self.kv_dma("V", 2, f"s{S_SOKV}")
            for i in range(self.pfc[k + 1]): dm = dm + self.kv_touch()
            if k == 0:
                t_.many(rd); t_.many(dm)
                continue
            S = Sched(self.q_mfmas(k - 1, k == 1))
            pos = [g for g in range(56) if g % 5 != 2][:len(rd)]
            for p_, r_ in zip(pos, rd): S.post[p_].append(r_)
            nvm = sum(isinstance(x, VM) for x in dm)
            step = 56.0 / nvm
            i = 0
            pend = []
            for x in dm:
                if isinstance(x, VM):
                    gpos = int(i * step + 2 - (i * step + 2) % 1)
                    gpos = min(55, gpos)
                    if pend:
                        S.post[gpos - 1] += pend; pend = []
                    S.post[gpos].append(x); i += 1
                else:
                    pend.append(x)
            if pend: S.post[55] += pend
            if o.fused and k in (3, 4, 8):
                extra = {3: self.b_addr_s, 4: self.b_addr_v, 8: self.b_srd}[k]()
                for i, x in enumerate(extra): S.post[38 + (i * 17) // len(extra)].append(x)
            S.emit(t_)
        t_.c("---- Q-proj period 9 + finalisation")
        t_.e(WL("R8"))
        t_.e("s_barrier")
        t_.many(self.stamp())
        groups = [(jj, qt) for jj in range(2) for qt in range(7)]
        mf = []
        for (jj, qt) in groups:
            for s in range(2):
                for T in (2 * jj, 2 * jj + 1):
                    mf.append(self.q_mf(8, s, T, qt, False))
        S = Sched(mf)
        def fin(gi):
            jj, qt = groups[gi]
            tb = V_QT + (gi & 1) * 4
            r0 = ((2 * jj) * 7 + qt) * 4
            r1 = ((2 * jj + 1) * 7 + qt) * 4
            m0_ = [f"v_mul_f32 v{r0+i}, s{S_SC}, v{r0+i}" for i in range(4)]
            m1_ = [f"v_mul_f32 v{r1+i}, s{S_SC}, v{r1+i}" for i in range(4)]
            c_ = [f"v_cvt_pk_bf16_f32 v{tb}, v{r0}, v{r0+1}", f"v_cvt_pk_bf16_f32 v{tb+1}, v{r0+2}, v{r0+3}",
                  f"v_cvt_pk_bf16_f32 v{tb+2}, v{r1}, v{r1+1}", f"v_cvt_pk_bf16_f32 v{tb+3}, v{r1+2}, v{r1+3}"]
            w_ = DS(f"ds_write_b128 v{V_QW}, {vr(tb)} offset:{(jj*7+qt)*1024}", "qw")
            return m0_, m1_, c_, w_
        for gi in range(13):
            m0_, m1_, c_, w_ = fin(gi)
            b = 4 * (gi + 1) + 1
            S.post[b] += m0_; S.post[b + 1] += m1_; S.post[b + 2] += c_; S.post[b + 3] += [w_]
        kr = [self.k_read(kt, ks, 0) for kt in range(2) for ks in range(4)]
        for i, x in enumerate(kr): S.post[i].append(x)
        S.emit(t_)
        t_.e("s_nop 7")
        m0_, m1_, c_, w_ = fin(13)
        t_.many(m0_); t_.many(m1_); t_.many(c_); t_.e(w_)
        t_.e(WL("qw"))
        t_.e(WV("V0"))
        t_.e("s_barrier")
        t_.many(self.stamp())
        if o.dbgq:
            for qt in range(7): t_.many(self.q_read(qt))
            t_.e(WALL('l'))
            t_.e(f"s_lshl_b32 s{S_T0}, s2, 2")
            t_.e(f"s_add_u32 s{S_T0}, s{S_T0}, s{S_W}")
            t_.e(f"s_mul_i32 s{S_T0}, s{S_T0}, 28672")
            t_.e(f"s_add_u32 s{S_T0}, s{S_T0}, {32<<20}")
            t_.e(f"s_mov_b32 s{S_O+2}, {256<<20}")
            t_.e(f"v_and_b32 v{V_T0}, 63, v{V_TID}")
            t_.e(f"v_lshlrev_b32 v{V_T0}, 4, v{V_T0}")
            for i in range(28):
                t_.e(f"buffer_store_dwordx4 {ar(A_Q + i*4)}, v{V_T0}, {sr(S_O)}, s{S_T0} offen")
                t_.e(f"s_add_u32 s{S_T0}, s{S_T0}, 1024")
            t_.e("s_waitcnt vmcnt(0)")
            t_.e(f"s_mov_b32 s{S_O+2}, {112*self.QS}")
        t_.lab("A_ATT")
        t_.many(self.q_read(0)); t_.many(self.q_read(1))
        t_.e(f"v_add_u32 v{V_OFFKV}, {3*16384}, v{V_OFFKV}")
        t_.e(f"v_add_u32 v{V_OFFKV+1}, {3*16384}, v{V_OFFKV+1}")
        self.preamble(True)
        self.body()
        self.epilogue()
        self.slowpath()
        t_.lab("A_END")
        t_.e("s_endpgm")
        return "\n".join(t_.L)

    def preamble(self, with_q):
        t_ = self.t
        vr_ = [self.v_read(tp, hf, 0) for tp in range(7) for hf in range(2)]
        t_.e(WL("k0.0", "k0.1", "q0"))
        S = Sched(self.qk_mfmas(0, 0))
        for i, x in enumerate(vr_): S.post[i // 2].append(x)
        if with_q:
            q2 = self.q_read(2)
            S.post[7] += q2
        S.emit(t_)
        t_.e(WL("q1"))
        m1 = self.qk_mfmas(1, 1)
        ex = self.exps(0); cv = self.cvts(0)
        S = Sched(m1)
        S.post[0] += ex[0:2]; S.post[1] += ex[2:4]; S.post[2] += ex[4:6]; S.post[3] += ex[6:8]
        S.post[4] += cv[0:2]; S.post[5] += cv[2:4]
        S.emit(t_)
        t_.many(self.stamp())

    def body(self):
        t_ = self.t
        texts = []
        start = len(t_.L)
        for n in range(4):
            self.tile(n)
        i0 = len(t_.L)
        for n in range(4, 8): self.tile(n)
        i1 = len(t_.L)
        for n in range(8, 12): self.tile(n)
        i2 = len(t_.L)
        strip = lambda xs: [x for x in xs if not x.strip().startswith(";")]
        assert strip(t_.L[i0:i1]) == strip(t_.L[i1:i2]), "loop iterations differ"
        body = t_.L[i0:i1]
        t_.L = t_.L[:i0]
        t_.e(f"s_mov_b32 s{S_CNT}, 2")
        t_.lab("A_LOOP")
        t_.L += body
        t_.e(f"s_sub_u32 s{S_CNT}, s{S_CNT}, 1")
        t_.e(f"s_cmp_lg_u32 s{S_CNT}, 0")
        t_.e("s_cbranch_scc1 A_LOOP")
        t_.many(self.stamp())
        for n in range(12, 16): self.tile(n)
        t_.many(self.stamp())

    def fin_tile(self, qt, pb, tb, lt):
        r = []
        ob = V_OOWN + qt * 16
        r.append(f"v_accvgpr_read_b32 v{lt}, a{A_L + 4*qt}")
        r.append(f"v_add_f32 v{lt}, v{lt}, v{lt+1}")
        r.append(f"v_rcp_f32 v{lt}, v{lt}")
        for k in range(8):
            r.append(f"v_pk_add_f32 {vr(ob+2*k,2)}, {vr(ob+2*k,2)}, {vr(pb+2*k,2)}")
        for k in range(8):
            r.append(f"v_pk_mul_f32 {vr(ob+2*k,2)}, {vr(ob+2*k,2)}, {vr(lt,2)} op_sel:[0,0] op_sel_hi:[1,0]")
        for jj in range(2):
            s0 = ob + jj * 8
            for k in range(4):
                r.append(f"v_cvt_pk_bf16_f32 v{tb + jj*4 + k}, v{s0 + 2*k}, v{s0 + 2*k + 1}")
        pol = " sc1" if (self.o.osc1 or self.o.fused) else ""
        for jj in range(2):
            off = " offset:1024" if jj else ""
            r.append(VM(f"buffer_store_dwordx4 {vr(tb + jj*4)}, v{V_T0+1}, {sr(S_O)}, s{S_OB} offen{off}{pol}", "ost"))
        r.append(f"s_add_u32 s{S_OB}, s{S_OB}, {self.QS}")
        return r

    def p_reads(self, qt, pb, lt):
        r = []
        for tpp in range(4):
            i = qt * 4 + tpp
            r.append(DS(f"ds_read_b128 {vr(pb + tpp*4)}, v{V_KA+2} offset:{i*1024}", f"p{qt}"))
        r.append(DS(f"ds_read_b32 v{lt+1}, v{V_KA+3} offset:{qt*256}", f"p{qt}"))
        return r

    def epilogue(self):
        t_ = self.t
        o = self.o
        t_.c("---- epilogue")
        PB = [112, 128, 144, 160]
        LT = [V_NEGM + 16, V_NEGM + 18, V_NEGM + 20, V_NEGM + 22]
        TB = [V_NEGM, V_NEGM + 8]
        t_.many(self.p_reads(0, PB[0], LT[0]))
        t_.many(self.p_reads(1, PB[1], LT[1]))
        t_.e("s_nop 7")
        t_.many(self.o_writes(6))
        t_.many(self.p_reads(2, PB[2], LT[2]))
        t_.many(self.p_reads(3, PB[3], LT[3]))
        T = V_S
        lo, hi = f32(2.0 ** -24), f32(2.0 ** 30)
        t_.e(f"s_mov_b32 s{S_T0}, {hex(lo)}")
        t_.e(f"s_mov_b32 s{S_T1}, {hex(hi - lo)}")
        for qt in range(7):
            t_.e(f"v_accvgpr_read_b32 v{T+qt}, a{A_L + 4*qt}")
        t_.e(f"v_subrev_u32 v{T+8}, s{S_T0}, v{T}")
        for qt in range(1, 7):
            t_.e(f"v_subrev_u32 v{T+9}, s{S_T0}, v{T+qt}")
            t_.e(f"v_max_u32 v{T+8}, v{T+8}, v{T+9}")
        t_.e(f"v_cmp_lt_u32 vcc, s{S_T1}, v{T+8}")
        t_.e(f"s_lshl_b32 s{S_T3}, s{S_W}, 2")
        t_.e(f"s_add_u32 s{S_T3}, s{S_T3}, {FOFF}")
        t_.e(f"s_cmp_lg_u64 vcc, 0")
        t_.e(f"s_cselect_b32 s{S_T2}, 1, 0")
        t_.e(f"v_mov_b32 v{T+10}, s{S_T2}")
        t_.e(f"v_and_b32 v{T+11}, 3, v{V_TID}")
        t_.e(f"v_mul_u32_u24 v{T+11}, {RG}, v{T+11}")
        t_.e(f"v_add_u32 v{T+11}, s{S_T3}, v{T+11}")
        t_.e(DS(f"ds_write_b32 v{T+11}, v{T+10}", "fl"))
        for qt in range(4):
            t_.e(WL(f"p{qt}"))
            t_.many(self.fin_tile(qt, PB[qt], TB[qt & 1], LT[qt]))
            if o.fused: t_.many(self.wo_dma(2 + qt))
        t_.e(WL("fl", "ow4", "ow5", "ow6"))
        t_.e("s_barrier")
        t_.many(self.stamp())
        F = V_P + 4
        t_.e(f"s_mul_i32 s{S_T0}, s{S_W}, {RG}")
        t_.e(f"s_add_u32 s{S_T0}, s{S_T0}, {FOFF}")
        t_.e(f"v_mov_b32 v{T+11}, s{S_T0}")
        t_.e(DS(f"ds_read_b128 {vr(F)}, v{T+11}", "flr"))
        for qt in range(4, 7):
            t_.many(self.p_reads(qt, PB[qt - 4], LT[qt - 4]))
        t_.e(WL("flr"))
        t_.e(f"v_or_b32 v{F}, v{F}, v{F+1}")
        t_.e(f"v_or_b32 v{F+2}, v{F+2}, v{F+3}")
        t_.e(f"v_or_b32 v{F}, v{F}, v{F+2}")
        t_.e("s_nop 1")
        t_.e(f"v_readfirstlane_b32 s{S_T0}, v{F}")
        t_.e(f"s_xor_b32 s{S_T1}, s{S_PASS}, 1")
        t_.e(f"s_and_b32 s{S_T0}, s{S_T0}, s{S_T1}")
        t_.e(f"s_cmp_lg_u32 s{S_T0}, 0")
        t_.e("s_cbranch_scc1 A_SLOW")
        for qt in range(4, 7):
            t_.e(WL(f"p{qt}"))
            if o.fused:
                t_.many(self.wo_dma(2 + qt))
                if qt == 6: t_.many(self.wo_dma(9))
            t_.many(self.fin_tile(qt, PB[qt - 4], TB[qt & 1], LT[qt - 4]))
        t_.many(self.stamp())
        if o.fused: self.phase_b()
        if o.stamps:
            t_.e(f"s_memrealtime s[{S_ST+38}:{S_ST+39}]")
            t_.e("s_waitcnt lgkmcnt(0)")
            t_.e(f"s_cmp_lg_u32 s{S_W}, 0")
            t_.e("s_cbranch_scc1 A_END")
            ns = 20
            t_.e(f"s_mul_i32 s{S_T0}, s2, {ns*4*2}")
            t_.e(f"s_add_u32 s{S_T0}, s{S_T0}, {64<<20}")
            t_.e(f"s_mov_b32 s{S_O+2}, {256<<20}")
            t_.e(f"v_mov_b32 v{V_T0+1}, 0")
            for i in range(ns * 2):
                if 2 * self.nst <= i < 36:
                    t_.e(f"v_mov_b32 v{V_T0}, 0")
                else:
                    t_.e(f"v_mov_b32 v{V_T0}, s{S_ST+i}")
                t_.e(f"buffer_store_dword v{V_T0}, v{V_T0+1}, {sr(S_O)}, s{S_T0} offen offset:{i*4}")
                t_.e("s_nop 1")
        t_.e("s_endpgm")

    def b_addr_v(self):
        L, t0, t1, t2 = 184, 185, 186, 187
        r = []
        r.append(f"v_and_b32 v{L}, 63, v{V_TID}")
        r.append(f"v_lshrrev_b32 v{t0}, 3, v{L}")
        r.append(f"v_and_b32 v{t1}, 7, v{L}")
        r.append(f"v_bfe_u32 v{t2}, v{L}, 4, 2")
        r.append(f"v_lshlrev_b32 v{t2}, 1, v{t2}")
        r.append(f"v_xor_b32 v{t1}, v{t1}, v{t2}")
        r.append(f"v_lshlrev_b32 v{t1}, 4, v{t1}")
        r.append(f"v_mul_u32_u24 v{t0}, 1152, v{t0}")
        r.append(f"v_add_u32 v{V_WOF}, v{t0}, v{t1}")
        for i in range(1, 4):
            r.append(f"v_add_u32 v{V_WOF+i}, {i*(9216-1024)}, v{V_WOF}")
        r.append(f"v_lshrrev_b32 v{t0}, 2, v{L}")
        r.append(f"v_bfe_u32 v{t1}, v{L}, 3, 2")
        r.append(f"v_lshlrev_b32 v{t1}, 5, v{t1}")
        r.append(f"v_lshlrev_b32 v{t0}, 7, v{t0}")
        r.append(f"v_and_b32 v{t2}, 3, v{L}")
        r.append(f"v_lshlrev_b32 v{t2}, 3, v{t2}")
        r.append(f"v_add_u32 v{t0}, v{t0}, v{t2}")
        r.append(f"v_add_u32 v{t0}, s{S_RB}, v{t0}")
        for nt in range(4):
            r.append(f"v_xor_b32 v{V_TR+nt}, {nt*32}, v{t1}")
            r.append(f"v_add_u32 v{V_TR+nt}, v{V_TR+nt}, v{t0}")
        return r

    def b_addr_s(self):
        r = []
        r.append(f"s_mul_i32 s{S_RB}, s{S_W}, {RG}")
        r.append(f"s_and_b32 s{S_T0}, s2, 7")
        r.append(f"s_lshr_b32 s{S_T1}, s2, 3")
        r.append(f"s_and_b32 s{S_T2}, s{S_T0}, 1")
        r.append(f"s_lshl_b32 s{S_T2}, s{S_T2}, 5")
        r.append(f"s_add_u32 s{S_T1}, s{S_T1}, s{S_T2}")
        r.append(f"s_lshr_b32 s{S_T0}, s{S_T0}, 1")
        r.append(f"s_mul_i32 s{S_T0}, s{S_T0}, 7")
        if self.o.bmap == 0:
            r.append(f"s_mul_i32 s{S_NG}, s{S_T1}, 37")
            r.append(f"s_lshr_b32 s{S_NG}, s{S_NG}, 8")
            r.append(f"s_mul_i32 s{S_T2}, s{S_NG}, 7")
            r.append(f"s_sub_u32 s{S_T2}, s{S_T1}, s{S_T2}")
            r.append(f"s_add_u32 s{S_MG}, s{S_T2}, s{S_T0}")
        else:
            r.append(f"s_mul_i32 s{S_T2}, s{S_T1}, 57")
            r.append(f"s_lshr_b32 s{S_T2}, s{S_T2}, 9")
            r.append(f"s_add_u32 s{S_MG}, s{S_T2}, s{S_T0}")
            r.append(f"s_mul_i32 s{S_T2}, s{S_T2}, 9")
            r.append(f"s_sub_u32 s{S_NG}, s{S_T1}, s{S_T2}")
        r.append(f"s_cmp_ge_u32 s{S_T1}, 63")
        r.append(f"s_cselect_b32 s{S_NG}, 15, s{S_NG}")
        r.append(f"s_cselect_b32 s{S_MG}, 0, s{S_MG}")
        r.append(f"s_mul_i32 s{S_T0}, s{S_W}, {1024*1152}")
        r.append(f"s_lshl_b32 s{S_T1}, s{S_NG}, 7")
        r.append(f"s_add_u32 s{S_SW}, s{S_T0}, s{S_T1}")
        r.append(f"s_mul_i32 s{S_T0}, s{S_MG}, {4*self.QS}")
        r.append(f"s_lshl_b32 s{S_T1}, s{S_W}, 15")
        r.append(f"s_add_u32 s{S_SO}, s{S_T0}, s{S_T1}")
        r.append(f"s_lshl_b32 s{S_T0}, s{S_MG}, 2")
        r.append(f"s_mul_i32 s{S_T1}, s{S_T0}, 147")
        r.append(f"s_lshr_b32 s{S_T1}, s{S_T1}, 11")
        r.append(f"s_lshl_b32 s{S_L0}, s{S_T1}, 3")
        r.append(f"s_add_u32 s{S_T0}, s{S_T0}, 3")
        r.append(f"s_mul_i32 s{S_T1}, s{S_T0}, 147")
        r.append(f"s_lshr_b32 s{S_T1}, s{S_T1}, 11")
        r.append(f"s_lshl_b32 s{S_L1}, s{S_T1}, 3")
        return r

    def b_srd(self):
        r = []
        r.append(f"s_mov_b32 s{S_WO}, s4"); r.append(f"s_mov_b32 s{S_WO+1}, s5")
        r.append(f"s_mov_b32 s{S_WO+2}, {4096*1152}"); r.append(f"s_mov_b32 s{S_WO+3}, 0x00020000")
        r.append(f"s_mov_b32 s{S_OUT}, s6"); r.append(f"s_mov_b32 s{S_OUT+1}, s7")
        r.append(f"s_mov_b32 s{S_OUT+2}, {1792*1152}"); r.append(f"s_mov_b32 s{S_OUT+3}, 0x00020000")
        return r

    @staticmethod
    def slot(f): return (f + 8) % 10

    def wo_dma(self, f):
        r = [f"s_add_u32 s{S_SWC}, s{S_SW}, {f*32*1152}", f"s_add_u32 m0, s{S_RB}, {self.slot(f)*4096}"]
        for i in range(4):
            off = f" offset:{i*1024}" if i else ""
            r.append(VM(f"buffer_load_dwordx4 v{V_WOF+i}, {sr(S_WO)}, s{S_SWC} offen{off} lds", f"W{f}"))
        return r

    def tr_reads(self, f, unit):
        k, b = unit
        r = []
        for nt in range(4):
            for hf in range(2):
                r.append(DS(f"ds_read_b64_tr_b16 {k}[{b + nt*4 + 2*hf}:{b + nt*4 + 2*hf + 1}], v{V_TR+nt} offset:{self.slot(f)*4096 + hf*2048}", f"t{f}"))
        return r

    def phase_b(self):
        t_, o = self.t, self.o
        NR, D, NL = o.nr, o.od, 10
        units = [("a", 16*i) for i in range(16)] + [("v", 64 + 16*i) for i in range(10)]
        assert NR + 2 + D <= len(units)
        res = units[:NR]; jit = units[-(D + 2):-D]; ring = units[-D:]
        U = lambda u, off: f"{u[0]}[{u[1]+off}:{u[1]+off+3}]"
        NK = 32
        order = list(range(NR, NR + NL)) + list(range(NR)) + list(range(NR + NL, NK))
        t_.c("---- out-projection: weight prefetch + publish")
        for mi in range(1, 4):
            t_.e(f"v_add_u32 v{V_OO[mi]}, {mi*self.QS}, v{V_OO[0]}")
        def publish():
            t_.e(WV("ost"))
            t_.e("s_barrier")
            t_.e(f"s_cmp_lg_u32 s{S_W}, 0")
            t_.e("s_cbranch_scc1 B_PUB")
            t_.e(f"s_lshl_b32 s{S_T0}, s{S_B}, 5")
            t_.e(f"v_mov_b32 v{V_S}, s{S_T0}")
            t_.e(f"v_mov_b32 v{V_S+1}, 1")
            t_.e("s_mov_b64 exec, 1")
            t_.e(f"global_atomic_add v{V_S}, v{V_S+1}, s[8:9]")
            t_.e("s_mov_b64 exec, -1")
            t_.lab("B_PUB")
            t_.many(self.stamp())
            t_.e(f"s_cmp_eq_u32 s{S_NG}, 15")
            t_.e("s_cbranch_scc1 A_END")
        published = False
        nxt = NL
        for f in range(NR):
            if f == o.npre and not published:
                publish(); published = True
            t_.e(WV(f"W{f}"))
            t_.many(self.tr_reads(f, res[f]))
            if f >= 1:
                t_.e(WL(f"t{f-1}"))
                if nxt < NK: t_.many(self.wo_dma(nxt)); nxt += 1
        if not published:
            publish(); published = True
        t_.e(WL(f"t{NR-1}"))
        if nxt < NK: t_.many(self.wo_dma(nxt)); nxt += 1
        for i in range(2):
            f = order[i]
            t_.e(WV(f"W{f}"))
            t_.many(self.tr_reads(f, jit[i]))
        for i in range(2):
            t_.e(WL(f"t{order[i]}"))
            if nxt < NK: t_.many(self.wo_dma(nxt)); nxt += 1
        t_.many(self.stamp())
        P, Q = V_S, V_S + 1
        t_.e(f"s_cmp_lg_u32 s{S_W}, 0")
        t_.e("s_cbranch_scc1 B_GO")
        t_.e(f"v_and_b32 v{Q}, 63, v{V_TID}")
        t_.e(f"v_lshlrev_b32 v{Q}, 2, v{Q}")
        t_.e(f"s_mov_b32 s{S_CNT}, 200000")
        t_.lab("B_POLL")
        t_.e(f"global_load_dword v{P}, v{Q}, s[8:9] sc1")
        t_.e("s_waitcnt vmcnt(0)")
        t_.e(f"v_readlane_b32 s{S_T0}, v{P}, s{S_L0}")
        t_.e(f"v_readlane_b32 s{S_T1}, v{P}, s{S_L1}")
        t_.e(f"s_min_u32 s{S_T0}, s{S_T0}, s{S_T1}")
        t_.e(f"s_cmp_ge_u32 s{S_T0}, 32")
        t_.e("s_cbranch_scc1 B_GO")
        t_.e(f"s_sub_u32 s{S_CNT}, s{S_CNT}, 1")
        t_.e(f"s_cmp_eq_u32 s{S_CNT}, 0")
        t_.e("s_cbranch_scc1 B_GO")
        t_.e("s_sleep 1")
        t_.e("s_branch B_POLL")
        t_.lab("B_GO")
        t_.e("s_barrier")
        t_.many(self.stamp())
        def o_soff(i): return f"s_add_u32 s{S_SOC}, s{S_SO}, {order[i]*1024}"
        def o_load(i, mi):
            if o.bnold and i >= D: return "s_nop 0"
            return VM(f"buffer_load_dwordx4 {U(ring[i % D], mi*4)}, v{V_OO[mi]}, {sr(S_O)}, s{S_SOC} offen{' sc1' if o.olsc else ''}", f"O{i}.{mi}")
        if o.b2x:
            t_.e(f"s_mov_b32 s{S_CNT}, 2")
            t_.lab("B_2X")
        for i in range(D):
            t_.e(o_soff(i))
            for mi in range(4): t_.e(o_load(i, mi))
        for i in range(NK):
            f = order[i]
            inlds = f >= NR
            wu = jit[i & 1] if inlds else res[f]
            if i == NK - (NK - NR - NL) and (i & 1) != ((NL) & 1):
                pass
            mf = []
            for mi in range(4):
                for nt in range(4):
                    d = vr((mi*4 + nt)*4)
                    mf.append(f"{MF} {d}, {U(wu, nt*4)}, {U(ring[i % D], mi*4)}, {'0' if i == 0 else d}")
            if o.bnomf: mf = ["s_nop 0"] * 16
            S = Sched(mf)
            if inlds: S.pre[0].append(WL(f"t{f}"))
            if inlds: S.pre[0].append(WV(f"W{f}"))
            for mi in range(4): S.pre[4*mi].append(WV(f"O{i}.{mi}"))
            if i + D < NK:
                S.post[0].append(o_soff(i + D))
                for mi in range(4): S.post[4*mi + 3].append(o_load(i + D, mi))
            if i + 1 < NK and order[i + 1] >= NR and (i + 1) >= 2:
                fn = order[i + 1]
                rd = self.tr_reads(fn, jit[(i + 1) & 1])
                S.post[1].append(WV(f"W{fn}"))
                for k, x in enumerate(rd): S.post[1 + k].append(x)
            if inlds and i >= 2 and nxt < NK:
                d = self.wo_dma(nxt); nxt += 1
                S.post[9] += d[:2]; S.post[10].append(d[2]); S.post[12].append(d[3]); S.post[13].append(d[4]); S.post[14].append(d[5])
            S.emit(t_)
        assert nxt == NK
        if o.b2x:
            t_.e(f"s_cmp_eq_u32 s{S_CNT}, 2")
            t_.e("s_cbranch_scc0 B_2XE")
            t_.e(f"s_memtime s[{S_ST+2}:{S_ST+3}]")
            t_.e(f"s_mov_b32 s{S_CNT}, 1")
            t_.e("s_branch B_2X")
            t_.lab("B_2XE")
        t_.many(self.stamp())
        t0, t1, t2, t3, t4, L = 64, 65, 66, 67, 68, 69
        TRW = 70
        t_.e(f"v_and_b32 v{L}, 63, v{V_TID}")
        t_.e(f"v_and_b32 v{t0}, 15, v{L}")
        t_.e(f"v_lshrrev_b32 v{t1}, 4, v{L}")
        t_.e(f"v_xor_b32 v{t1}, v{t1}, v{t0}")
        t_.e(f"v_lshlrev_b32 v{t1}, 4, v{t1}")
        t_.e(f"v_lshlrev_b32 v{t0}, 8, v{t0}")
        t_.e(f"v_add_u32 v{t0}, s{S_RB}, v{t0}")
        for nt in range(4):
            t_.e(f"v_xor_b32 v{TRW+nt}, {nt*64}, v{t1}")
            t_.e(f"v_add_u32 v{TRW+nt}, v{TRW+nt}, v{t0}")
        t_.e("s_nop 7")
        for mi in range(4):
            for nt in range(4):
                t_.e(DS(f"ds_write_b128 v{TRW+nt}, {vr((mi*4+nt)*4)} offset:{mi*4096}", "rw"))
        t_.e(f"v_lshrrev_b32 v{t0}, 3, v{L}")
        t_.e(f"s_lshl_b32 s{S_T0}, s{S_W}, 4")
        t_.e(f"v_add_u32 v{t0}, s{S_T0}, v{t0}")
        t_.e(f"v_and_b32 v{t1}, 7, v{L}")
        t_.e(f"v_lshlrev_b32 v{t1}, 1, v{t1}")
        AD = 80
        for ps in range(2):
            if ps: t_.e(f"v_add_u32 v{t0}, 8, v{t0}")
            t_.e(f"v_and_b32 v{t2}, 15, v{t0}")
            t_.e(f"v_xor_b32 v{t3}, v{t1}, v{t2}")
            t_.e(f"v_lshlrev_b32 v{t3}, 4, v{t3}")
            t_.e(f"v_lshlrev_b32 v{t4}, 8, v{t0}")
            t_.e(f"v_add_u32 v{AD+ps*4}, v{t3}, v{t4}")
            t_.e(f"v_xor_b32 v{AD+ps*4+1}, 16, v{AD+ps*4}")
            t_.e(f"v_add_u32 v{AD+ps*4+2}, {2*RG}, v{AD+ps*4}")
            t_.e(f"v_add_u32 v{AD+ps*4+3}, {2*RG}, v{AD+ps*4+1}")
            t_.e(f"s_lshl_b32 s{S_T0}, s{S_MG}, 6")
            t_.e(f"v_add_u32 v{t4}, s{S_T0}, v{t0}")
            t_.e(f"v_mul_u32_u24 v{t4}, 1152, v{t4}")
            t_.e(f"v_lshlrev_b32 v{t2}, 3, v{t1}")
            t_.e(f"v_add_u32 v{88+ps}, v{t4}, v{t2}")
        t_.e(WL("rw"))
        t_.e("s_barrier")
        R = 96
        for ps in range(2):
            for wv in range(4):
                for ch in range(2):
                    a = AD + ps*4 + ch + (2 if wv >= 2 else 0)
                    off = (wv & 1) * RG
                    t_.e(DS(f"ds_read_b128 {vr(R + ps*32 + wv*8 + ch*4)}, v{a} offset:{off}", f"rr{ps}"))
        t_.e(f"s_lshl_b32 s{S_T1}, s{S_NG}, 7")
        for ps in range(2):
            t_.e(WL(f"rr{ps}"))
            B_ = R + ps*32
            for k in range(4):
                t_.e(f"v_pk_add_f32 {vr(B_+2*k,2)}, {vr(B_+2*k,2)}, {vr(B_+8+2*k,2)}")
                t_.e(f"v_pk_add_f32 {vr(B_+16+2*k,2)}, {vr(B_+16+2*k,2)}, {vr(B_+24+2*k,2)}")
            for k in range(4):
                t_.e(f"v_pk_add_f32 {vr(B_+2*k,2)}, {vr(B_+2*k,2)}, {vr(B_+16+2*k,2)}")
            for k in range(4):
                t_.e(f"v_cvt_pk_bf16_f32 v{72 + ps*4 + k}, v{B_+2*k}, v{B_+2*k+1}")
            t_.e(VM(f"buffer_store_dwordx4 {vr(72 + ps*4)}, v{88+ps}, {sr(S_OUT)}, s{S_T1} offen", "out"))
        t_.many(self.stamp())

    def slowpath(self):
        a = self.t
        a.lab("A_SLOW")
        a.c("---- fallback: true row maximum, then redo the attention loop with it")
        a.lq, a.vq = [], []
        a.e("s_waitcnt vmcnt(0) lgkmcnt(0)")
        a.e("s_barrier")
        a.e(f"s_mov_b32 s{S_PASS}, 1")
        self.emit_kv_addr()
        for qt in range(7):
            a.e(f"v_mov_b32 v{V_NEGM + 4*qt}, 0xff800000")
        KA = V_V
        for ks in range(4):
            a.e(f"v_subrev_u32 v{KA+ks}, {PAIR(0)+16384}, v{V_KA+ks}")
        a.e(f"s_mov_b32 s{S_SOKV}, 0")
        a.lab("A_MAXLOOP")
        a.many([x.t if isinstance(x, VM) else x for x in self.kv_dma("K", 0, f"s{S_SOKV}", lds=0)])
        a.e("s_waitcnt vmcnt(0)")
        a.e("s_barrier")
        for kt in range(2):
            for ks in range(4):
                off = f" offset:{kt*4096}" if kt else ""
                a.e(f"ds_read_b128 {vr(V_K + (kt*4+ks)*4)}, v{KA+ks}{off}")
        a.e("s_waitcnt lgkmcnt(0)")
        for qt in range(7):
            for kt in range(2):
                for ks in range(4):
                    d = vr(V_S + kt * 4)
                    a.e(f"{MF} {d}, {vr(V_K + (kt*4+ks)*4)}, {ar(A_Q + (qt*4+ks)*4)}, {'0' if ks == 0 else d}")
            a.e("s_nop 15")
            m = V_NEGM + 4 * qt
            for i in range(4):
                a.e(f"v_max3_f32 v{m}, v{m}, v{V_S+2*i}, v{V_S+2*i+1}")
            a.e("s_nop 3")
        a.e("s_barrier")
        a.e(f"s_add_u32 s{S_SOKV}, s{S_SOKV}, 16384")
        a.e(f"s_cmp_lt_u32 s{S_SOKV}, 262144")
        a.e("s_cbranch_scc1 A_MAXLOOP")
        L, t, u = V_T0, V_T0 + 1, V_T0 + 2
        a.e(f"v_and_b32 v{L}, 63, v{V_TID}")
        a.e(f"v_lshlrev_b32 v{t}, 2, v{L}")
        a.e(f"s_mul_i32 s{S_T0}, s{S_W}, 1792")
        a.e(f"s_add_u32 s{S_T0}, s{S_T0}, {MXX}")
        a.e(f"v_add_u32 v{t}, s{S_T0}, v{t}")
        for qt in range(7):
            a.e(f"ds_write_b32 v{t}, v{V_NEGM + 4*qt} offset:{qt*256}")
        a.e("s_waitcnt lgkmcnt(0)")
        a.e("s_barrier")
        a.e(f"v_and_b32 v{u}, 15, v{L}")
        a.e(f"v_lshlrev_b32 v{u}, 2, v{u}")
        a.e(f"s_mul_i32 s{S_T0}, s{S_QH}, 3584")
        a.e(f"s_add_u32 s{S_T0}, s{S_T0}, {MXX}")
        a.e(f"v_add_u32 v{u}, s{S_T0}, v{u}")
        for qt in range(7):
            for i in range(8):
                off = (i >> 2) * 1792 + qt * 256 + (i & 3) * 64
                a.e(f"ds_read_b32 v{V_S+i}, v{u} offset:{off}")
            a.e("s_waitcnt lgkmcnt(0)")
            m = V_NEGM + 4 * qt
            a.e(f"v_max3_f32 v{m}, v{V_S}, v{V_S+1}, v{V_S+2}")
            a.e(f"v_max3_f32 v{m}, v{m}, v{V_S+3}, v{V_S+4}")
            a.e(f"v_max3_f32 v{m}, v{m}, v{V_S+5}, v{V_S+6}")
            a.e(f"v_max_f32 v{m}, v{m}, v{V_S+7}")
            a.e(f"v_sub_f32 v{m}, 0, v{m}")
            for i in range(1, 4):
                a.e(f"v_mov_b32 v{m+i}, v{m}")
        a.e("s_barrier")
        a.e(f"v_lshlrev_b32 v{t}, 4, v{L}")
        a.e(f"s_mul_i32 s{S_T0}, s{S_QH}, 28672")
        a.e(f"v_add_u32 v{V_QR}, s{S_T0}, v{t}")
        for ks in range(4):
            for qt in range(7):
                a.e(f"ds_write_b128 v{V_QR}, {ar(A_Q + (qt*4+ks)*4)} offset:{(ks*7+qt)*1024}")
        strip = lambda xs: [x.t if isinstance(x, VM) else x for x in xs]
        a.many(strip(self.kv_dma("K", 0, "0")))
        a.many(strip(self.kv_dma("V", 0, "0")))
        a.e(f"s_mov_b32 s{S_SOKV}, 16384")
        a.many(strip(self.kv_dma("K", 1, f"s{S_SOKV}")))
        a.many(strip(self.kv_dma("V", 1, f"s{S_SOKV}")))
        a.e(f"s_mov_b32 s{S_SOKV}, 32768")
        a.many(strip(self.kv_dma("K", 2, f"s{S_SOKV}")))
        a.many(strip(self.kv_dma("V", 2, f"s{S_SOKV}")))
        if self.o.fused: a.many(self.b_addr_v())
        if self.pf_on: a.e(f"v_mov_b32 v{V_PF}, 0x40000000")
        a.e(f"s_waitcnt vmcnt(16) lgkmcnt(0)")
        a.e("s_barrier")
        for kt in range(2):
            for ks in range(4):
                a.e(self.k_read(kt, ks, 0).t)
        a.e("s_branch A_ATT")


def main():
    import gen as G1
    ap = argparse.ArgumentParser()
    ap.add_argument("-o", default="cdna_kernels/" + NAME + ".s")
    ap.add_argument("--nt", type=int, default=0)
    ap.add_argument("--stamps", type=int, default=0)
    ap.add_argument("--dbgq", type=int, default=0)
    ap.add_argument("--bw", type=int, default=8)
    ap.add_argument("--brs", type=int, default=4)
    ap.add_argument("--only", default="")
    ap.add_argument("--rts", type=int, default=0)
    ap.add_argument("--osc1", type=int, default=0)
    ap.add_argument("--probe", default="")
    ap.add_argument("--fused", type=int, default=1)
    ap.add_argument("--bmap", type=int, default=0)
    ap.add_argument("--nr", type=int, default=16)
    ap.add_argument("--od", type=int, default=8)
    ap.add_argument("--npre", type=int, default=4)
    ap.add_argument("--opad", type=int, default=0)
    ap.add_argument("--bnomf", type=int, default=0)
    ap.add_argument("--bnold", type=int, default=0)
    ap.add_argument("--b2x", type=int, default=0)
    ap.add_argument("--olsc", type=int, default=1)
    ap.add_argument("--pfq", type=int, default=0)
    ap.add_argument("--pfc", default="0,0,0,0,0,0,0,0,0,0")
    ap.add_argument("--pf0", type=int, default=0)
    ap.add_argument("--pfa", type=int, default=0)
    ap.add_argument("--pfpol", default="")
    o = ap.parse_args()
    if o.pfpol: o.pfpol = " " + o.pfpol
    ga = GenA(o); ta = ga.gen()
    if o.fused:
        hdr = G1.HDR.replace("Launch 1: one workgroup", "Phase 1: one workgroup").replace("Launch 2: out = O * wo.", "Phase 2 (same launch, after a counter hand-off): out = O * wo.")
        if o.probe:
            hdr += f"; @launch kernel={NAME}_kernel grid=(256,1,1) block=(256,1,1) lds=163840\n"
            hdr += "; @launch kernel=probe_kernel grid=(1,1,1) block=(64,1,1) lds=0\n"
        else:
            hdr += "; @launch grid=(256,1,1) block=(256,1,1) lds=163840\n"
        txt = hdr + '.amdgcn_target "amdgcn-amd-amdhsa--gfx950"\n.text\n' + G1.fix_hazards(ta) + "\n"
        if o.probe:
            txt += G1.gen_probe(o.probe) + "\n"
        txt += '.section .rodata,"a"\n.p2align 6\n' + G1.descriptor(NAME + "_kernel", 512, 256)
        if o.probe:
            txt += ".p2align 6\n" + G1.descriptor("probe_kernel", 32, 32)
        open(o.o, "w").write(txt)
        print("wrote", o.o, len(txt), "bytes; stamps", ga.nst)
        return
    gb = G1.GenB(o); tb = gb.gen()
    hdr = G1.HDR
    blds = max(o.bw * o.brs * 4096, o.bw * 16384)
    if o.only != "B":
        hdr += f"; @launch kernel={NAME}_kernel grid=(256,1,1) block=(256,1,1) lds=163840\n"
    if o.only != "A":
        hdr += f"; @launch kernel=oproj_kernel grid=(256,1,1) block=({o.bw*64},1,1) lds={blds}\n"
    if o.probe:
        hdr += "; @launch kernel=probe_kernel grid=(1,1,1) block=(64,1,1) lds=0\n"
    txt = hdr + '.amdgcn_target "amdgcn-amd-amdhsa--gfx950"\n.text\n' + G1.fix_hazards(ta) + "\n" + G1.fix_hazards(tb) + "\n"
    if o.probe:
        txt += G1.gen_probe(o.probe) + "\n"
    txt += '.section .rodata,"a"\n.p2align 6\n' + G1.descriptor(NAME + "_kernel", 512, 256)
    nvb = (gb.nv + 7) // 8 * 8
    txt += ".p2align 6\n" + G1.descriptor("oproj_kernel", nvb, (gb.nv + 3) // 4 * 4)
    if o.probe:
        txt += ".p2align 6\n" + G1.descriptor("probe_kernel", 32, 32)
    open(o.o, "w").write(txt)
    print("wrote", o.o, len(txt), "bytes; B vgprs", gb.nv, "stamps", ga.nst)

if __name__ == "__main__":
    main()
```

```python
import sys, struct, re, argparse
from collections import defaultdict
sys.path.insert(0, "tools")

NAME = "standalone__mha_block_cached__near_ridge"
MF = "v_mfma_f32_16x16x32_bf16"

def f32(x):
    return struct.unpack("<I", struct.pack("<f", x))[0]
def vr(b, n=4): return f"v[{b}:{b+n-1}]" if n > 1 else f"v{b}"
def ar(b, n=4): return f"a[{b}:{b+n-1}]" if n > 1 else f"a{b}"
def sr(b, n=4): return f"s[{b}:{b+n-1}]" if n > 1 else f"s{b}"

class DS:
    def __init__(s, t, tag): s.t, s.tag = t, tag
class VM:
    def __init__(s, t, tag): s.t, s.tag = t, tag
class WL:
    def __init__(s, *tags): s.tags = set(tags)
class WV:
    def __init__(s, *tags): s.tags = set(tags)
class WALL:
    def __init__(s, k): s.k = k

class Trace:
    def __init__(self):
        self.L = []
        self.lq = []
        self.vq = []
    def raw(self, s): self.L.append(s)
    def lab(self, s): self.L.append(s + ":")
    def c(self, s): self.L.append("    ; " + s)
    def e(self, x):
        if isinstance(x, str):
            self.L.append("    " + x)
        elif isinstance(x, DS):
            self.L.append("    " + x.t); self.lq.append(x.tag)
        elif isinstance(x, VM):
            self.L.append("    " + x.t); self.vq.append(x.tag)
        elif isinstance(x, WL):
            idx = max([i for i, t in enumerate(self.lq) if t in x.tags], default=-1)
            if idx >= 0:
                n = len(self.lq) - 1 - idx
                if n > 15:
                    n = 15
                self.L.append(f"    s_waitcnt lgkmcnt({n})")
                self.lq = self.lq[len(self.lq) - n:] if n else []
        elif isinstance(x, WV):
            idx = max([i for i, t in enumerate(self.vq) if t in x.tags], default=-1)
            if idx >= 0:
                n = len(self.vq) - 1 - idx
                if n > 63:
                    n = 63
                self.L.append(f"    s_waitcnt vmcnt({n})")
                self.vq = self.vq[len(self.vq) - n:] if n else []
        elif isinstance(x, WALL):
            w = []
            if 'v' in x.k: w.append("vmcnt(0)"); self.vq = []
            if 'l' in x.k: w.append("lgkmcnt(0)"); self.lq = []
            self.L.append("    s_waitcnt " + " ".join(w))
        else:
            raise TypeError(x)
    def many(self, xs):
        for x in xs: self.e(x)

class Sched:
    def __init__(self, mf):
        self.mf = mf
        self.pre = defaultdict(list)
        self.post = defaultdict(list)
    def emit(self, t):
        for g, m in enumerate(self.mf):
            t.many(self.pre[g])
            t.e(m)
            t.many(self.post[g])
        n = len(self.mf)
        for g in sorted(set(list(self.pre) + list(self.post))):
            if g >= n:
                t.many(self.pre[g]); t.many(self.post[g])

BUF = {0: 90112, 1: 45056, 2: 0}
def PAIR(n):
    return 32768 + ((3 - n) & 3) * 32768
QX = 0
RG = 40960
LOFF = 7 * 4096
FOFF = 7 * 4096 + 2048
MXX = 16384

V_OOWN = 0
V_K = 112
V_V = 144
V_S = 176
V_P = 192
V_NEGM = 200
V_KA = 228
V_VA = 232
V_OFFKV = 240
V_TID = 242
V_T0 = 243
V_OFFX = 144
V_OFFW = 151
V_XR = 156
V_WR = 160
V_QW = 253
V_QR = 254
V_QT = 176
V_WOF = 245
V_TR = 249
V_OO = [244, 253, 254, 255]
S_WO, S_OUT = 16, 20
S_MG, S_NG, S_SW, S_SO, S_L0, S_L1, S_RB, S_SWC, S_SOC = 57, 58, 59, 10, 11, 3, 100, 101, 42
S_PF = 12
V_PF, V_PFD = 243, 255
A_Q = 0
A_OOTH = 112
A_L = 224
A_ONES = 252
S_X, S_WQ, S_K, S_V, S_O = 16, 20, 24, 28, 32
S_W, S_QH, S_KH = 36, 37, 38
S_W1K7 = 39
S_SC = 40
S_SOX, S_SOW = 42, 43
S_W4K = 44
S_B, S_H = 45, 46
S_CNT = 47
S_PASS = 48
S_T0, S_T1, S_T2, S_T3 = 49, 50, 51, 52
S_OB = 53
S_SOKV = 56
S_ST = 60


def o_reg(j, tp):
    if tp < 4:
        return vr(V_OOWN + (j * 4 + tp) * 4)
    return ar(A_OOTH + (j * 4 + tp - 4) * 4)


class GenA:
    def __init__(self, opt):
        self.o = opt
        self.t = Trace()
        self.nst = 0
        self.npf = 0
        self.pfc = [int(z) for z in opt.pfc.split(",")]
        assert len(self.pfc) == 10
        self.pf_on = (sum(self.pfc) > 0 or opt.pfa)
        self.QS = 131072 + opt.opad

    def stamp(self):
        if not self.o.stamps:
            return []
        ins = "s_memrealtime" if self.o.rts else "s_memtime"
        s = f"{ins} s[{S_ST + 2*self.nst}:{S_ST + 2*self.nst + 1}]"
        self.nst += 1
        assert self.nst <= 18
        return [s]

    def kvpol(self):
        return " nt" if self.o.nt else ""

    def emit_kv_addr(self, rd=True, dma=True):
        t_ = self.t
        L, l15, g, r4, c4, t, u = V_T0, V_T0+1, V_T0+2, V_T0+3, V_T0+4, V_T0+5, V_T0+6
        t_.e(f"v_and_b32 v{L}, 63, v{V_TID}")
        t_.e(f"v_and_b32 v{l15}, 15, v{L}")
        t_.e(f"v_lshrrev_b32 v{g}, 4, v{L}")
        if dma:
            t_.e(f"v_lshlrev_b32 v{t}, 1, v{g}")
            t_.e(f"v_xor_b32 v{t}, v{t}, v{l15}")
            t_.e(f"v_lshlrev_b32 v{t}, 4, v{t}")
            t_.e(f"v_lshlrev_b32 v{u}, 8, v{g}")
            t_.e(f"v_add_u32 v{u}, s{S_W4K}, v{u}")
            t_.e(f"v_add_u32 v{V_OFFKV}, v{t}, v{u}")
            t_.e(f"v_xor_b32 v{t}, 128, v{t}")
            t_.e(f"v_add_u32 v{V_OFFKV+1}, v{t}, v{u}")
        if rd:
            t_.e(f"v_bfe_u32 v{r4}, v{L}, 2, 2")
            t_.e(f"v_and_b32 v{c4}, 3, v{L}")
            t_.e(f"s_lshl_b32 s{S_T0}, s{S_KH}, 13")
            t_.e(f"s_add_u32 s{S_T1}, s{S_T0}, {PAIR(0) + 16384}")
            t_.e(f"v_and_b32 v{t}, 7, v{l15}")
            t_.e(f"v_lshlrev_b32 v{t}, 1, v{t}")
            t_.e(f"v_xor_b32 v{t}, v{t}, v{g}")
            t_.e(f"v_lshlrev_b32 v{t}, 4, v{t}")
            t_.e(f"v_lshlrev_b32 v{u}, 8, v{l15}")
            t_.e(f"v_add_u32 v{u}, s{S_T1}, v{u}")
            for ks in range(4):
                t_.e(f"v_xor_b32 v{V_KA+ks}, {ks*64}, v{t}")
                t_.e(f"v_add_u32 v{V_KA+ks}, v{V_KA+ks}, v{u}")
            t_.e(f"s_add_u32 s{S_T1}, s{S_T0}, {PAIR(0)}")
            t_.e(f"v_lshlrev_b32 v{u}, 2, v{g}")
            t_.e(f"v_add_u32 v{u}, v{u}, v{r4}")
            t_.e(f"v_and_b32 v{t}, 7, v{u}")
            t_.e(f"s_lshl_b32 s{S_T2}, s{S_KH}, 2")
            t_.e(f"v_xor_b32 v{t}, s{S_T2}, v{t}")
            t_.e(f"v_lshlrev_b32 v{t}, 5, v{t}")
            t_.e(f"v_lshlrev_b32 v{u}, 8, v{u}")
            t_.e(f"v_add_u32 v{u}, s{S_T1}, v{u}")
            t_.e(f"v_lshlrev_b32 v{c4}, 3, v{c4}")
            t_.e(f"v_add_u32 v{u}, v{u}, v{c4}")
            for tp in range(8):
                t_.e(f"v_xor_b32 v{V_VA+tp}, {tp*32}, v{t}")
                t_.e(f"v_add_u32 v{V_VA+tp}, v{V_VA+tp}, v{u}")

    def kv_dma(self, which, n, soff, lds=None):
        srd = S_K if which == "K" else S_V
        if lds is None:
            lds = PAIR(n) + (16384 if which == "K" else 0)
        r = [f"s_add_u32 m0, s{S_W4K}, {lds}"]
        for i in range(4):
            off = f" offset:{i*1024}" if i else ""
            r.append(VM(f"buffer_load_dwordx4 v{V_OFFKV + (i & 1)}, {sr(srd)}, {soff} offen{off}{self.kvpol()} lds", f"{which}{n}"))
        return r

    def kv_touch(self):
        self.npf += 1
        return [VM(f"buffer_load_dword v{V_PFD}, v{V_PF}, {sr(S_PF)}, 0 offen{self.o.pfpol}", "PF"),
                f"v_add_u32 v{V_PF}, 16384, v{V_PF}"]

    def x_dma(self, st):
        buf = BUF[st % 3]
        r = []
        r.append(f"s_mov_b32 s{S_SOX}, {st*128}")
        r.append(f"s_add_u32 m0, s{S_W1K7}, {buf}")
        for i in range(7):
            if i == 4:
                r.append(f"s_add_u32 m0, s{S_W1K7}, {buf + 4096}")
            off = f" offset:{(i%4)*1024}" if i % 4 else ""
            r.append(VM(f"buffer_load_dwordx4 v{V_OFFX+i}, {sr(S_X)}, s{S_SOX} offen{off} lds", f"X{st}"))
        r.append(f"s_mov_b32 s{S_SOW}, {st*64*8192}")
        r.append(f"s_add_u32 m0, s{S_W4K}, {buf + 28672}")
        for i in range(4):
            off = f" offset:{i*1024}" if i else ""
            r.append(VM(f"buffer_load_dwordx4 v{V_OFFW+i}, {sr(S_WQ)}, s{S_SOW} offen{off} lds", f"X{st}"))
        return r

    def q_reads(self, st):
        buf = BUF[st % 3]
        sset = 1 if buf == 90112 else 0
        base = buf - (90112 if sset else 0)
        p = (st & 1) * 88
        r = []
        for s in range(2):
            for T in range(4):
                jj = T >> 1
                for hf in range(2):
                    off = base + 8192 * s + 1024 * hf + 8 * (T & 1)
                    r.append(DS(f"ds_read_b64_tr_b16 {ar(p + 56 + (s*4+T)*4 + 2*hf, 2)}, v{V_WR + sset*2 + jj} offset:{off}", f"R{st}"))
            for qt in range(7):
                off = base + qt * 2048
                r.append(DS(f"ds_read_b128 {ar(p + (s*7+qt)*4)}, v{V_XR + sset*2 + s} offset:{off}", f"R{st}"))
        return r

    def q_mf(self, st, s, T, qt, first):
        p = (st & 1) * 88
        d = vr((T * 7 + qt) * 4)
        c = "0" if (first and s == 0) else d
        return f"{MF} {d}, {ar(p + 56 + (s*4+T)*4)}, {ar(p + (s*7+qt)*4)}, {c}"

    def q_mfmas(self, st, first):
        return [self.q_mf(st, s, T, qt, first) for s in range(2) for T in range(4) for qt in range(7)]

    def k_read(self, kt, ks, n):
        off = f" offset:{kt*4096}" if kt else ""
        return DS(f"ds_read_b128 {vr(V_K + (kt*4+ks)*4)}, v{V_KA+ks}{off}", f"k{n}.{kt}")

    def v_read(self, tp, hf, n):
        off = f" offset:{hf*4096}" if hf else ""
        return DS(f"ds_read_b64_tr_b16 {vr(V_V + tp*4 + 2*hf, 2)}, v{V_VA+tp}{off}", f"v{n}.{tp}")

    def q_read(self, qt):
        return [DS(f"ds_read_b128 {ar(A_Q + (qt*4+ks)*4)}, v{V_QR} offset:{(ks*7+qt)*1024}", f"q{qt}") for ks in range(4)]

    def qk_mfmas(self, par, j2):
        r = []
        for kt in range(2):
            for ks in range(4):
                d = vr(V_S + par * 8 + kt * 4)
                c = vr(V_NEGM + j2 * 4) if ks == 0 else d
                r.append(f"{MF} {d}, {vr(V_K + (kt*4+ks)*4)}, {ar(A_Q + (j2*4+ks)*4)}, {c}")
        return r

    def pv_mfmas(self, par, j, first):
        r = []
        p = vr(V_P + par * 4)
        for tp in range(8):
            d = o_reg(j, tp)
            r.append(f"{MF} {d}, {vr(V_V + tp*4)}, {p}, {'0' if first else d}")
        d = ar(A_L + j * 4)
        r.append(f"{MF} {d}, {ar(A_ONES)}, {p}, {'0' if first else d}")
        return r

    def exps(self, par):
        return [f"v_exp_f32 v{V_S + par*8 + i}, v{V_S + par*8 + i}" for i in range(8)]

    def cvts(self, par):
        return [f"v_cvt_pk_bf16_f32 v{V_P + par*4 + i}, v{V_S + par*8 + 2*i}, v{V_S + par*8 + 2*i + 1}" for i in range(4)]

    def tile(self, n):
        t = self.t
        first = (n == 0)
        last = (n == 15)
        dl = (PAIR(n + 1) - PAIR(n)) & 0xffffffff
        vdma = self.kv_dma("V", n + 3, "0") if (n + 3 <= 15 and n >= 1) else None
        kdma = self.kv_dma("K", n + 4, "0") if n + 4 <= 15 else None
        adv = [f"v_add_u32 v{V_OFFKV}, 16384, v{V_OFFKV}", f"v_add_u32 v{V_OFFKV+1}, 16384, v{V_OFFKV+1}"]
        for j in range(7):
            par = (n + j) & 1
            mf = self.pv_mfmas(par, j, first)
            has_qk = not (last and j >= 5)
            if has_qk:
                mf = mf + self.qk_mfmas(par, (j + 2) % 7)
            S = Sched(mf)
            G, PRE = S.post, S.pre
            if not (last and j == 6):
                ex = self.exps(par ^ 1); cv = self.cvts(par ^ 1)
                if has_qk:
                    for i in range(8): G[2 * i].append(ex[i])
                    for i in range(4): G[4 * i + 3].append(cv[i])
                else:
                    for i in range(8): G[i // 2].append(ex[i])
                    G[2].append(cv[0]); G[3].append(cv[1]); G[4].append(cv[2]); G[5].append(cv[3])
            nn = n + 1
            if j == 0:
                PRE[0].append(WL(f"v{n}.0", f"v{n}.1", f"v{n}.2"))
                G[1] += [self.v_read(7, 0, n), self.v_read(7, 1, n)]
                PRE[3].append(WL(f"v{n}.3", f"v{n}.4", f"v{n}.5"))
                PRE[6].append(WL(f"v{n}.6", f"v{n}.7"))
                if vdma:
                    G[9] += [vdma[0]]
                    G[13] += [vdma[1]]
            if first and j <= 3:
                q = self.q_read(j + 3)
                G[5] += q[:2]; G[9] += q[2:]
            if first and j <= 4:
                PRE[9].append(WL(f"q{j+2}"))
            if j == 1:
                if vdma: G[5] += [vdma[2]]
                if not last:
                    G[9] += [f"v_add_u32 v{V_VA+0}, {dl}, v{V_VA+0}", f"v_add_u32 v{V_VA+1}, {dl}, v{V_VA+1}"] if not first else []
                    G[13] += [f"v_add_u32 v{V_VA+2}, {dl}, v{V_VA+2}", f"v_add_u32 v{V_VA+3}, {dl}, v{V_VA+3}"]
                    if first:
                        G[1] += [f"v_add_u32 v{V_VA+0}, {dl}, v{V_VA+0}", f"v_add_u32 v{V_VA+1}, {dl}, v{V_VA+1}"]
            if j == 2:
                if vdma: G[5] += [vdma[3]]
                if not last:
                    G[1] += [f"v_add_u32 v{V_VA+4}, {dl}, v{V_VA+4}", f"v_add_u32 v{V_VA+5}, {dl}, v{V_VA+5}"]
                    G[13] += [f"v_add_u32 v{V_VA+6}, {dl}, v{V_VA+6}", f"v_add_u32 v{V_VA+7}, {dl}, v{V_VA+7}"]
            if j == 3:
                if vdma: G[5] += [vdma[4]]
                if not last:
                    G[1] += [f"v_add_u32 v{V_KA+0}, {dl}, v{V_KA+0}", f"v_add_u32 v{V_KA+1}, {dl}, v{V_KA+1}"]
                    G[13] += [f"v_add_u32 v{V_KA+2}, {dl}, v{V_KA+2}", f"v_add_u32 v{V_KA+3}, {dl}, v{V_KA+3}"]
                if kdma and not first:
                    G[16] += adv
            if j == 4:
                if first:
                    G[5] += [WL("q6")]
                if not last:
                    G[5] += [WV(f"K{nn}", f"V{nn}")]
                else:
                    G[5] += [WL("ow0", "ow1", "ow2", "ow3")]
                G[7] += ["s_barrier"]
                if not last:
                    G[9] += [self.k_read(0, 0, nn)]
                    G[11] += [self.k_read(0, 1, nn)]
                    G[13] += [self.k_read(0, 2, nn), self.k_read(0, 3, nn)]
                    G[15] += [self.k_read(1, 0, nn)]
                    G[16] += [self.k_read(1, 1, nn), self.k_read(1, 2, nn)]
                if first:
                    k3 = self.kv_dma("K", 3, "0")
                    G[9] += [k3[0]]
                    self.k3 = k3
            if j == 5 and not last:
                G[1] += [self.k_read(1, 3, nn)]
                PRE[9].append(WL(f"k{nn}.0", f"k{nn}.1"))
                if first:
                    k3 = self.k3
                    G[1] += [k3[1]]; G[3] += [k3[2]]; G[5] += [k3[3]]; G[7] += [k3[4]]
                    v3 = self.kv_dma("V", 3, "0")
                    G[9] += [v3[0], v3[1]]; G[11] += [v3[2]]; G[13] += [v3[3]]; G[15] += [v3[4]]
                    G[16] += adv
                elif kdma:
                    G[0] += [kdma[0]]
                    G[1] += [kdma[1]]; G[5] += [kdma[2]]; G[9] += [kdma[3]]; G[13] += [kdma[4]]
            if j == 6 and self.o.pfa and n <= 11:
                tc = self.kv_touch()
                G[14] += [tc[0]]; G[16] += [tc[1]]
            if self.o.pfw and n == self.o.pfwt and j in (4, 5, 6):
                w = self.wo_touch()
                if j == 4:
                    for i, x in enumerate(w[0]): G[9 + (i * 7) // len(w[0])].append(x)
                else:
                    tch = w[1] if j == 5 else w[2]
                    nv = sum(isinstance(x, VM) for x in tch)
                    gi = 2
                    for x in tch:
                        G[gi].append(x)
                        if isinstance(x, VM): gi += max(1, 14 // max(nv, 1))
            if j == 6 and not last:
                v = lambda a, b: self.v_read(a, b, nn)
                G[1] += [v(0, 0), v(0, 1)]
                G[3] += [v(1, 0)]
                G[5] += [v(1, 1), v(2, 0)]
                G[7] += [v(2, 1)]
                G[9] += [v(3, 0), v(3, 1)]
                G[11] += [v(4, 0)]
                G[13] += [v(4, 1), v(5, 0)]
                G[15] += [v(5, 1)]
                G[16] += [v(6, 0), v(6, 1)]
                if first:
                    PRE[0] += [kdma[0]]
                    G[0] += [kdma[1]]; G[4] += [kdma[2]]; G[8] += [kdma[3]]; G[12] += [kdma[4]]
            if last:
                if j == 1:
                    PRE[0] = ["s_barrier"] + PRE[0]
                    w = self.o_writes(0)
                    G[1] += [w[0]]; G[3] += [w[1]]; G[5] += [w[2]]; G[7] += [w[3]]; G[8] += [w[4]]
                if 1 <= j <= 4:
                    w = self.o_writes(j)
                    G[10] += [w[0]]; G[11] += [w[1]]; G[13] += [w[2], w[3]]; G[15] += [w[4]]
                if self.o.fused and j in (2, 3):
                    d = self.wo_dma(j - 2)
                    G[0] += d[:2]; G[1] += [d[2]]; G[3] += [d[3]]; G[5] += [d[4]]; G[7] += [d[5]]
                if j == 6:
                    w = self.o_writes(5)
                    G[1] += [w[0]]; G[3] += [w[1]]; G[4] += [w[2]]; G[6] += [w[3]]; G[7] += [w[4]]
                if j == 0:
                    PRE[0] = self.ox_addr() + PRE[0]
            t.c(f"tile {n} slot {j}")
            S.emit(t)

    def wo_touch(self):
        a = V_PF
        su = [f"v_and_b32 v{a}, 63, v{V_TID}", f"s_lshr_b32 s{S_T0}, s2, 3"]
        pol = self.o.pfwpol
        if self.o.bmap == 0:
            su += [f"s_lshl_b32 s{S_T0}, s{S_T0}, 2", f"s_add_u32 s{S_T0}, s{S_T0}, s{S_W}",
                   f"s_mul_i32 s{S_T0}, s{S_T0}, {32*1152}",
                   f"s_and_b32 s{S_T1}, s2, 1", f"s_lshl_b32 s{S_T1}, s{S_T1}, 9", f"s_add_u32 s{S_T0}, s{S_T0}, s{S_T1}",
                   f"v_cmp_gt_u32 vcc, 32, v{a}",
                   f"v_mul_u32_u24 v{a}, 1152, v{a}", f"v_add_u32 v{a}, s{S_T0}, v{a}",
                   f"v_mov_b32 v{V_PFD}, 0x40000000",
                   f"v_cndmask_b32 v{a}, v{V_PFD}, v{a}, vcc"]
            T = [VM(f"buffer_load_dword v{V_PFD}, v{a}, {sr(S_WO)}, 0 offen" + (f" offset:{i*128}" if i else "") + pol, "PW") for i in range(5)]
            return su, T[:3], T[3:]
        su += [f"s_mul_i32 s{S_T0}, s{S_T0}, 147456", f"s_mul_i32 s{S_T1}, s{S_W}, 36864", f"s_add_u32 s{S_T0}, s{S_T0}, s{S_T1}",
               f"v_lshlrev_b32 v{a}, 7, v{a}", f"v_add_u32 v{a}, s{S_T0}, v{a}"]
        T = []
        for i in range(5):
            T.append([VM(f"buffer_load_dword v{V_PFD}, v{a}, {sr(S_WO)}, 0 offen{pol}", "PW"), f"v_add_u32 v{a}, 8192, v{a}"])
        return su, T[0] + T[1] + T[2], T[3] + T[4]

    def ox_addr(self):
        r = []
        T = V_T0
        r.append(f"v_and_b32 v{T}, 63, v{V_TID}")
        r.append(f"v_lshlrev_b32 v{T+1}, 4, v{T}")
        r.append(f"v_lshlrev_b32 v{T}, 2, v{T}")
        r.append(f"s_xor_b32 s{S_T3}, s{S_W}, 1")
        r.append(f"s_mul_i32 s{S_T0}, s{S_T3}, {RG}")
        r.append(f"v_add_u32 v{V_KA}, s{S_T0}, v{T+1}")
        r.append(f"s_add_u32 s{S_T0}, s{S_T0}, {LOFF}")
        r.append(f"v_add_u32 v{V_KA+1}, s{S_T0}, v{T}")
        r.append(f"s_mul_i32 s{S_T0}, s{S_W}, {RG}")
        r.append(f"v_add_u32 v{V_KA+2}, s{S_T0}, v{T+1}")
        r.append(f"s_add_u32 s{S_T0}, s{S_T0}, {LOFF}")
        r.append(f"v_add_u32 v{V_KA+3}, s{S_T0}, v{T}")
        r.append(f"s_mul_i32 s{S_T0}, s{S_B}, 14")
        r.append(f"s_mul_i32 s{S_T1}, s{S_QH}, 7")
        r.append(f"s_add_u32 s{S_T0}, s{S_T0}, s{S_T1}")
        r.append(f"s_mul_i32 s{S_T0}, s{S_T0}, {self.QS}")
        r.append(f"s_lshl_b32 s{S_T1}, s{S_H}, 1")
        r.append(f"s_add_u32 s{S_T1}, s{S_T1}, s{S_KH}")
        r.append(f"s_lshl_b32 s{S_T1}, s{S_T1}, 11")
        r.append(f"s_add_u32 s{S_OB}, s{S_T0}, s{S_T1}")
        return r

    def o_writes(self, j):
        r = []
        for tpp in range(4):
            i = j * 4 + tpp
            r.append(DS(f"ds_write_b128 v{V_KA}, {ar(A_OOTH + i*4)} offset:{i*1024}", f"ow{j}"))
        r.append(DS(f"ds_write_b32 v{V_KA+1}, a{A_L + 4*j} offset:{j*256}", f"ow{j}"))
        return r

    def gen(self):
        t_ = self.t
        o = self.o
        kn = f"{NAME}_kernel"
        t_.raw(f".globl {kn}\n.p2align 8\n.type {kn},@function\n{kn}:")
        t_.e("s_cmp_ge_u32 s2, 256")
        t_.e("s_cbranch_scc1 A_END")
        t_.e("s_load_dwordx8 s[4:11], s[0:1], 0")
        t_.e("s_load_dwordx2 s[12:13], s[0:1], 56")
        t_.many(self.stamp())
        if o.stamps:
            t_.e(f"s_memrealtime s[{S_ST+36}:{S_ST+37}]")
        t_.e(f"v_mov_b32 v{V_TID}, v0")
        t_.e(f"v_lshrrev_b32 v1, 6, v0")
        t_.e("s_and_b32 s3, s2, 7")
        t_.e(f"s_lshr_b32 s{S_T0}, s2, 3")
        t_.e(f"v_readfirstlane_b32 s{S_W}, v1")
        t_.e(f"s_and_b32 s{S_T1}, s3, 1")
        t_.e(f"s_lshl_b32 s{S_T1}, s{S_T1}, 2")
        t_.e(f"s_and_b32 s{S_T2}, s{S_T0}, 3")
        t_.e(f"s_add_u32 s{S_B}, s{S_T1}, s{S_T2}")
        t_.e(f"s_lshr_b32 s{S_T1}, s3, 1")
        t_.e(f"s_lshl_b32 s{S_T1}, s{S_T1}, 3")
        t_.e(f"s_lshr_b32 s{S_T2}, s{S_T0}, 2")
        t_.e(f"s_add_u32 s{S_H}, s{S_T1}, s{S_T2}")
        t_.e(f"s_lshr_b32 s{S_QH}, s{S_W}, 1")
        t_.e(f"s_and_b32 s{S_KH}, s{S_W}, 1")
        t_.e(f"s_mul_i32 s{S_W1K7}, s{S_W}, 7168")
        t_.e(f"s_lshl_b32 s{S_W4K}, s{S_W}, 12")
        L, l15, g, r4, c4, t, u = V_T0, V_T0+1, V_T0+2, V_T0+3, V_T0+4, V_T0+5, V_T0+6
        t_.e(f"v_and_b32 v{L}, 63, v{V_TID}")
        t_.e(f"v_and_b32 v{l15}, 15, v{L}")
        t_.e(f"v_lshrrev_b32 v{g}, 4, v{L}")
        t_.e(f"v_lshrrev_b32 v{t}, 3, v{L}")
        t_.e(f"v_and_b32 v{r4}, 7, v{L}")
        t_.e(f"v_xor_b32 v{u}, v{g}, v{r4}")
        t_.e(f"v_lshlrev_b32 v{u}, 4, v{u}")
        t_.e(f"s_lshl_b32 s{S_T0}, s{S_KH}, 6")
        t_.e(f"v_xor_b32 v{u}, s{S_T0}, v{u}")
        t_.e(f"v_mul_u32_u24 v{t}, 1152, v{t}")
        t_.e(f"s_mul_i32 s{S_T1}, s{S_W}, {56*1152}")
        t_.e(f"v_add_u32 v{t}, s{S_T1}, v{t}")
        t_.e(f"v_xor_b32 v{c4}, 64, v{u}")
        t_.e(f"v_add_u32 v{V_OFFX}, v{u}, v{t}")
        t_.e(f"v_add_u32 v{c4}, v{c4}, v{t}")
        for i in range(1, 7):
            src = V_OFFX if (i & 1) == 0 else c4
            k = i * 9216 - (i % 4) * 1024
            t_.e(f"v_add_u32 v{V_OFFX+i}, {k}, v{src}")
        t_.e(f"v_lshlrev_b32 v{t}, 2, v{g}")
        t_.e(f"v_xor_b32 v{t}, v{t}, v{l15}")
        t_.e(f"v_lshlrev_b32 v{t}, 4, v{t}")
        t_.e(f"v_lshlrev_b32 v{u}, 13, v{g}")
        t_.e(f"s_lshl_b32 s{S_T1}, s{S_W}, 17")
        t_.e(f"v_add_u32 v{u}, s{S_T1}, v{u}")
        t_.e(f"v_add_u32 v{V_OFFW}, v{t}, v{u}")
        for i in range(1, 4):
            t_.e(f"v_add_u32 v{V_OFFW+i}, {i*(32768-1024)}, v{V_OFFW}")
        t_.e(f"s_mul_i32 s{S_T0}, s{S_B}, 258048")
        t_.e(f"s_lshl_b32 s{S_T1}, s{S_H}, 8")
        t_.e(f"s_mov_b32 s{S_X+2}, 258048")
        t_.e(f"s_mov_b32 s{S_X+3}, 0x00020000")
        t_.e(f"s_sub_u32 s{S_WQ+2}, {576*8192}, s{S_T1}")
        t_.e(f"s_mov_b32 s{S_WQ+3}, 0x00020000")
        t_.e("s_waitcnt lgkmcnt(0)")
        t_.many(self.stamp())
        t_.e(f"s_add_u32 s{S_X}, s4, s{S_T0}")
        t_.e(f"s_addc_u32 s{S_X+1}, s5, 0")
        t_.e(f"s_add_u32 s{S_WQ}, s10, s{S_T1}")
        t_.e(f"s_addc_u32 s{S_WQ+1}, s11, 0")
        t_.many(self.x_dma(0))
        t_.many(self.x_dma(1))
        t_.e(f"s_lshl_b32 s{S_T0}, s{S_B}, 5")
        t_.e(f"s_add_u32 s{S_T0}, s{S_T0}, s{S_H}")
        t_.e(f"s_lshl_b32 s{S_T0}, s{S_T0}, 18")
        t_.e(f"s_add_u32 s{S_K}, s6, s{S_T0}")
        t_.e(f"s_addc_u32 s{S_K+1}, s7, 0")
        t_.e(f"s_mov_b32 s{S_K+2}, 262144")
        t_.e(f"s_mov_b32 s{S_K+3}, 0x00020000")
        t_.e(f"s_add_u32 s{S_V}, s8, s{S_T0}")
        t_.e(f"s_addc_u32 s{S_V+1}, s9, 0")
        t_.e(f"s_mov_b32 s{S_V+2}, 262144")
        t_.e(f"s_mov_b32 s{S_V+3}, 0x00020000")
        t_.e(f"s_mov_b32 s{S_O}, s12")
        t_.e(f"s_mov_b32 s{S_O+1}, s13")
        t_.e(f"s_mov_b32 s{S_O+2}, {112*self.QS}")
        t_.e(f"s_mov_b32 s{S_O+3}, 0x00020000")
        if o.fused:
            t_.e("s_load_dwordx4 s[4:7], s[0:1], 32")
            t_.e("s_load_dwordx2 s[8:9], s[0:1], 48")
        self.emit_kv_addr(rd=False, dma=True)
        t_.many(self.kv_dma("K", 0, "0"))
        if o.pfq:
            a0, a1 = 112, 113
            pl = V_T0
            t_.e(f"s_and_b32 s{S_T0}, s{S_H}, 7")
            t_.e(f"s_mul_i32 s{S_T0}, s{S_T0}, 32256")
            t_.e(f"s_lshl_b32 s{S_T1}, s{S_W}, 13")
            t_.e(f"s_add_u32 s{S_T0}, s{S_T0}, s{S_T1}")
            t_.e(f"v_lshlrev_b32 v{a0}, 7, v{pl}")
            t_.e(f"v_add_u32 v{a0}, s{S_T0}, v{a0}")
            t_.e(VM(f"buffer_load_dword v{V_PFD}, v{a0}, {sr(S_X)}, 0 offen", "PF"))
            t_.e(f"s_and_b32 s{S_T0}, s{S_B}, 3")
            t_.e(f"s_mul_i32 s{S_T0}, s{S_T0}, 144")
            t_.e(f"s_mul_i32 s{S_T1}, s{S_W}, 36")
            t_.e(f"s_add_u32 s{S_T0}, s{S_T0}, s{S_T1}")
            t_.e(f"s_lshl_b32 s{S_T0}, s{S_T0}, 13")
            t_.e(f"v_lshrrev_b32 v{a0}, 1, v{pl}")
            t_.e(f"v_lshlrev_b32 v{a0}, 13, v{a0}")
            t_.e(f"v_and_b32 v{a1}, 1, v{pl}")
            t_.e(f"v_lshlrev_b32 v{a1}, 7, v{a1}")
            t_.e(f"v_add_u32 v{a0}, v{a0}, v{a1}")
            t_.e(f"v_add_u32 v{a0}, s{S_T0}, v{a0}")
            t_.e(VM(f"buffer_load_dword v{V_PFD}, v{a0}, {sr(S_WQ)}, 0 offen", "PF"))
            t_.e(f"v_add_u32 v{a1}, {32*8192}, v{a0}")
            t_.e(f"v_mov_b32 v{a0}, 0x40000000")
            t_.e(f"v_cmp_gt_u32 vcc, 8, v{pl}")
            t_.e(f"v_cndmask_b32 v{a1}, v{a0}, v{a1}, vcc")
            t_.e(VM(f"buffer_load_dword v{V_PFD}, v{a1}, {sr(S_WQ)}, 0 offen", "PF"))
        if self.pf_on:
            t_.e(f"s_lshr_b32 s{S_T0}, s{S_W}, 1")
            t_.e(f"s_cmp_eq_u32 s{S_T0}, 0")
            t_.e(f"s_cselect_b32 s{S_PF}, s{S_K}, s{S_V}")
            t_.e(f"s_cselect_b32 s{S_PF+1}, s{S_K+1}, s{S_V+1}")
            t_.e(f"s_and_b32 s{S_T0}, s{S_W}, 1")
            t_.e(f"s_lshl_b32 s{S_T0}, s{S_T0}, 13")
            t_.e(f"s_add_u32 s{S_PF}, s{S_PF}, s{S_T0}")
            t_.e(f"s_addc_u32 s{S_PF+1}, s{S_PF+1}, 0")
            t_.e(f"s_sub_u32 s{S_PF+2}, 262144, s{S_T0}")
            t_.e(f"s_mov_b32 s{S_PF+3}, 0x00020000")
            t_.e(f"v_lshlrev_b32 v112, 7, v{V_T0}")
            if o.pf0: t_.e(f"v_add_u32 v112, {o.pf0*16384}, v112")
            self.pfreg = 112
            for i in range(self.pfc[0]):
                t_.e(VM(f"buffer_load_dword v{V_PFD}, v112, {sr(S_PF)}, 0 offen{o.pfpol}", "PF"))
                t_.e(f"v_add_u32 v112, 16384, v112")
        t_.many(self.stamp())
        self.emit_kv_addr(rd=True, dma=False)
        sc = f32(1.4426950408889634 / (128 ** 0.5))
        t_.e(f"s_mov_b32 s{S_SC}, {hex(sc)}")
        t_.e(f"s_mov_b32 s{S_PASS}, 0")
        t_.e(f"v_bfe_u32 v{r4}, v{L}, 2, 2")
        t_.e(f"v_and_b32 v{c4}, 3, v{L}")
        t_.e(f"v_lshrrev_b32 v{t}, 1, v{l15}")
        t_.e(f"v_xor_b32 v{t}, v{t}, v{g}")
        t_.e(f"v_lshlrev_b32 v{t}, 4, v{t}")
        t_.e(f"v_lshlrev_b32 v{u}, 7, v{l15}")
        t_.e(f"s_mul_i32 s{S_T0}, s{S_QH}, {112*128}")
        t_.e(f"v_add_u32 v{u}, s{S_T0}, v{u}")
        t_.e(f"v_add_u32 v{V_XR}, v{t}, v{u}")
        t_.e(f"v_xor_b32 v{t}, 64, v{t}")
        t_.e(f"v_add_u32 v{V_XR+1}, v{t}, v{u}")
        t_.e(f"v_add_u32 v{V_XR+2}, 90112, v{V_XR}")
        t_.e(f"v_add_u32 v{V_XR+3}, 90112, v{V_XR+1}")
        t_.e(f"s_lshl_b32 s{S_T0}, s{S_KH}, 1")
        t_.e(f"v_xor_b32 v{t}, s{S_T0}, v{r4}")
        t_.e(f"v_lshlrev_b32 v{t}, 6, v{t}")
        t_.e(f"v_lshlrev_b32 v{u}, 3, v{g}")
        t_.e(f"v_add_u32 v{u}, v{u}, v{r4}")
        t_.e(f"v_lshlrev_b32 v{u}, 8, v{u}")
        t_.e(f"v_lshlrev_b32 v{c4}, 4, v{c4}")
        t_.e(f"v_add_u32 v{u}, v{u}, v{c4}")
        t_.e(f"v_add_u32 v{u}, 28672, v{u}")
        t_.e(f"v_add_u32 v{V_WR}, v{t}, v{u}")
        t_.e(f"v_xor_b32 v{t}, 64, v{t}")
        t_.e(f"v_add_u32 v{V_WR+1}, v{t}, v{u}")
        t_.e(f"v_add_u32 v{V_WR+2}, 90112, v{V_WR}")
        t_.e(f"v_add_u32 v{V_WR+3}, 90112, v{V_WR+1}")
        t_.e(f"v_lshlrev_b32 v{t}, 4, v{L}")
        t_.e(f"s_mul_i32 s{S_T0}, s{S_QH}, 28672")
        t_.e(f"v_add_u32 v{V_QR}, s{S_T0}, v{t}")
        t_.e(f"s_mul_i32 s{S_T1}, s{S_KH}, 14336")
        t_.e(f"v_add_u32 v{V_QW}, s{S_T1}, v{V_QR}")
        for i in range(28):
            t_.e(f"v_mov_b32 v{V_NEGM+i}, 0")
        t_.e(f"v_mov_b32 v{t}, 0x3f803f80")
        for i in range(4):
            t_.e(f"v_accvgpr_write_b32 a{A_ONES+i}, v{t}")
        if self.pf_on:
            t_.e(f"v_mov_b32 v{V_PF}, v112")
        for k in range(9):
            t_.c(f"---- Q-proj period {k}")
            t_.e(WV(f"X{k}"))
            if k: t_.e(WL(f"R{k-1}"))
            t_.e("s_barrier")
            if k in (0, 1, 8):
                t_.many(self.stamp())
            rd = self.q_reads(k)
            if k <= 6:
                dm = self.x_dma(k + 2)
            elif k == 7:
                dm = self.kv_dma("V", 0, "0") + [f"s_mov_b32 s{S_SOKV}, 16384"] + self.kv_dma("K", 1, f"s{S_SOKV}") + \
                     self.kv_dma("V", 1, f"s{S_SOKV}")
            else:
                dm = [f"s_mov_b32 s{S_SOKV}, 32768"] + self.kv_dma("K", 2, f"s{S_SOKV}") + self.kv_dma("V", 2, f"s{S_SOKV}")
            for i in range(self.pfc[k + 1]): dm = dm + self.kv_touch()
            if k == 0:
                t_.many(rd); t_.many(dm)
                continue
            S = Sched(self.q_mfmas(k - 1, k == 1))
            pos = [g for g in range(56) if g % 5 != 2][:len(rd)]
            for p_, r_ in zip(pos, rd): S.post[p_].append(r_)
            nvm = sum(isinstance(x, VM) for x in dm)
            step = 56.0 / nvm
            i = 0
            pend = []
            for x in dm:
                if isinstance(x, VM):
                    gpos = int(i * step + 2 - (i * step + 2) % 1)
                    gpos = min(55, gpos)
                    if pend:
                        S.post[gpos - 1] += pend; pend = []
                    S.post[gpos].append(x); i += 1
                else:
                    pend.append(x)
            if pend: S.post[55] += pend
            if o.fused and k in (3, 4, 8):
                extra = {3: self.b_addr_s, 4: self.b_addr_v, 8: self.b_srd}[k]()
                for i, x in enumerate(extra): S.post[38 + (i * 17) // len(extra)].append(x)
            S.emit(t_)
        t_.c("---- Q-proj period 9 + finalisation")
        t_.e(WL("R8"))
        t_.e("s_barrier")
        t_.many(self.stamp())
        groups = [(jj, qt) for jj in range(2) for qt in range(7)]
        mf = []
        for (jj, qt) in groups:
            for s in range(2):
                for T in (2 * jj, 2 * jj + 1):
                    mf.append(self.q_mf(8, s, T, qt, False))
        S = Sched(mf)
        def fin(gi):
            jj, qt = groups[gi]
            tb = V_QT + (gi & 1) * 4
            r0 = ((2 * jj) * 7 + qt) * 4
            r1 = ((2 * jj + 1) * 7 + qt) * 4
            m0_ = [f"v_mul_f32 v{r0+i}, s{S_SC}, v{r0+i}" for i in range(4)]
            m1_ = [f"v_mul_f32 v{r1+i}, s{S_SC}, v{r1+i}" for i in range(4)]
            c_ = [f"v_cvt_pk_bf16_f32 v{tb}, v{r0}, v{r0+1}", f"v_cvt_pk_bf16_f32 v{tb+1}, v{r0+2}, v{r0+3}",
                  f"v_cvt_pk_bf16_f32 v{tb+2}, v{r1}, v{r1+1}", f"v_cvt_pk_bf16_f32 v{tb+3}, v{r1+2}, v{r1+3}"]
            w_ = DS(f"ds_write_b128 v{V_QW}, {vr(tb)} offset:{(jj*7+qt)*1024}", "qw")
            return m0_, m1_, c_, w_
        for gi in range(13):
            m0_, m1_, c_, w_ = fin(gi)
            b = 4 * (gi + 1) + 1
            S.post[b] += m0_; S.post[b + 1] += m1_; S.post[b + 2] += c_; S.post[b + 3] += [w_]
        kr = [self.k_read(kt, ks, 0) for kt in range(2) for ks in range(4)]
        for i, x in enumerate(kr): S.post[i].append(x)
        S.emit(t_)
        t_.e("s_nop 7")
        m0_, m1_, c_, w_ = fin(13)
        t_.many(m0_); t_.many(m1_); t_.many(c_); t_.e(w_)
        t_.e(WL("qw"))
        t_.e(WV("V0"))
        t_.e("s_barrier")
        t_.many(self.stamp())
        if o.dbgq:
            for qt in range(7): t_.many(self.q_read(qt))
            t_.e(WALL('l'))
            t_.e(f"s_lshl_b32 s{S_T0}, s2, 2")
            t_.e(f"s_add_u32 s{S_T0}, s{S_T0}, s{S_W}")
            t_.e(f"s_mul_i32 s{S_T0}, s{S_T0}, 28672")
            t_.e(f"s_add_u32 s{S_T0}, s{S_T0}, {32<<20}")
            t_.e(f"s_mov_b32 s{S_O+2}, {256<<20}")
            t_.e(f"v_and_b32 v{V_T0}, 63, v{V_TID}")
            t_.e(f"v_lshlrev_b32 v{V_T0}, 4, v{V_T0}")
            for i in range(28):
                t_.e(f"buffer_store_dwordx4 {ar(A_Q + i*4)}, v{V_T0}, {sr(S_O)}, s{S_T0} offen")
                t_.e(f"s_add_u32 s{S_T0}, s{S_T0}, 1024")
            t_.e("s_waitcnt vmcnt(0)")
            t_.e(f"s_mov_b32 s{S_O+2}, {112*self.QS}")
        t_.lab("A_ATT")
        t_.many(self.q_read(0)); t_.many(self.q_read(1))
        t_.e(f"v_add_u32 v{V_OFFKV}, {3*16384}, v{V_OFFKV}")
        t_.e(f"v_add_u32 v{V_OFFKV+1}, {3*16384}, v{V_OFFKV+1}")
        self.preamble(True)
        self.body()
        self.epilogue()
        self.slowpath()
        t_.lab("A_END")
        t_.e("s_endpgm")
        return "\n".join(t_.L)

    def preamble(self, with_q):
        t_ = self.t
        vr_ = [self.v_read(tp, hf, 0) for tp in range(7) for hf in range(2)]
        t_.e(WL("k0.0", "k0.1", "q0"))
        S = Sched(self.qk_mfmas(0, 0))
        for i, x in enumerate(vr_): S.post[i // 2].append(x)
        if with_q:
            q2 = self.q_read(2)
            S.post[7] += q2
        S.emit(t_)
        t_.e(WL("q1"))
        m1 = self.qk_mfmas(1, 1)
        ex = self.exps(0); cv = self.cvts(0)
        S = Sched(m1)
        S.post[0] += ex[0:2]; S.post[1] += ex[2:4]; S.post[2] += ex[4:6]; S.post[3] += ex[6:8]
        S.post[4] += cv[0:2]; S.post[5] += cv[2:4]
        S.emit(t_)
        t_.many(self.stamp())

    def body(self):
        t_ = self.t
        texts = []
        start = len(t_.L)
        for n in range(4):
            self.tile(n)
        i0 = len(t_.L)
        for n in range(4, 8): self.tile(n)
        i1 = len(t_.L)
        for n in range(8, 12): self.tile(n)
        i2 = len(t_.L)
        strip = lambda xs: [x for x in xs if not x.strip().startswith(";")]
        assert strip(t_.L[i0:i1]) == strip(t_.L[i1:i2]), "loop iterations differ"
        body = t_.L[i0:i1]
        t_.L = t_.L[:i0]
        t_.e(f"s_mov_b32 s{S_CNT}, 2")
        t_.lab("A_LOOP")
        t_.L += body
        t_.e(f"s_sub_u32 s{S_CNT}, s{S_CNT}, 1")
        t_.e(f"s_cmp_lg_u32 s{S_CNT}, 0")
        t_.e("s_cbranch_scc1 A_LOOP")
        t_.many(self.stamp())
        for n in range(12, 16): self.tile(n)
        t_.many(self.stamp())

    def fin_tile(self, qt, pb, tb, lt):
        r = []
        ob = V_OOWN + qt * 16
        r.append(f"v_accvgpr_read_b32 v{lt}, a{A_L + 4*qt}")
        r.append(f"v_add_f32 v{lt}, v{lt}, v{lt+1}")
        r.append(f"v_rcp_f32 v{lt}, v{lt}")
        for k in range(8):
            r.append(f"v_pk_add_f32 {vr(ob+2*k,2)}, {vr(ob+2*k,2)}, {vr(pb+2*k,2)}")
        for k in range(8):
            r.append(f"v_pk_mul_f32 {vr(ob+2*k,2)}, {vr(ob+2*k,2)}, {vr(lt,2)} op_sel:[0,0] op_sel_hi:[1,0]")
        for jj in range(2):
            s0 = ob + jj * 8
            for k in range(4):
                r.append(f"v_cvt_pk_bf16_f32 v{tb + jj*4 + k}, v{s0 + 2*k}, v{s0 + 2*k + 1}")
        pol = " sc1" if (self.o.osc1 or self.o.fused) else ""
        for jj in range(2):
            off = " offset:1024" if jj else ""
            r.append(VM(f"buffer_store_dwordx4 {vr(tb + jj*4)}, v{V_T0+1}, {sr(S_O)}, s{S_OB} offen{off}{pol}", "ost"))
        r.append(f"s_add_u32 s{S_OB}, s{S_OB}, {self.QS}")
        return r

    def p_reads(self, qt, pb, lt):
        r = []
        for tpp in range(4):
            i = qt * 4 + tpp
            r.append(DS(f"ds_read_b128 {vr(pb + tpp*4)}, v{V_KA+2} offset:{i*1024}", f"p{qt}"))
        r.append(DS(f"ds_read_b32 v{lt+1}, v{V_KA+3} offset:{qt*256}", f"p{qt}"))
        return r

    def epilogue(self):
        t_ = self.t
        o = self.o
        t_.c("---- epilogue")
        PB = [112, 128, 144, 160]
        LT = [V_NEGM + 16, V_NEGM + 18, V_NEGM + 20, V_NEGM + 22]
        TB = [V_NEGM, V_NEGM + 8]
        t_.many(self.p_reads(0, PB[0], LT[0]))
        t_.many(self.p_reads(1, PB[1], LT[1]))
        t_.e("s_nop 7")
        t_.many(self.o_writes(6))
        t_.many(self.p_reads(2, PB[2], LT[2]))
        t_.many(self.p_reads(3, PB[3], LT[3]))
        T = V_S
        lo, hi = f32(2.0 ** -24), f32(2.0 ** 30)
        t_.e(f"s_mov_b32 s{S_T0}, {hex(lo)}")
        t_.e(f"s_mov_b32 s{S_T1}, {hex(hi - lo)}")
        for qt in range(7):
            t_.e(f"v_accvgpr_read_b32 v{T+qt}, a{A_L + 4*qt}")
        t_.e(f"v_subrev_u32 v{T+8}, s{S_T0}, v{T}")
        for qt in range(1, 7):
            t_.e(f"v_subrev_u32 v{T+9}, s{S_T0}, v{T+qt}")
            t_.e(f"v_max_u32 v{T+8}, v{T+8}, v{T+9}")
        t_.e(f"v_cmp_lt_u32 vcc, s{S_T1}, v{T+8}")
        t_.e(f"s_lshl_b32 s{S_T3}, s{S_W}, 2")
        t_.e(f"s_add_u32 s{S_T3}, s{S_T3}, {FOFF}")
        t_.e(f"s_cmp_lg_u64 vcc, 0")
        t_.e(f"s_cselect_b32 s{S_T2}, 1, 0")
        t_.e(f"v_mov_b32 v{T+10}, s{S_T2}")
        t_.e(f"v_and_b32 v{T+11}, 3, v{V_TID}")
        t_.e(f"v_mul_u32_u24 v{T+11}, {RG}, v{T+11}")
        t_.e(f"v_add_u32 v{T+11}, s{S_T3}, v{T+11}")
        t_.e(DS(f"ds_write_b32 v{T+11}, v{T+10}", "fl"))
        for qt in range(4):
            t_.e(WL(f"p{qt}"))
            t_.many(self.fin_tile(qt, PB[qt], TB[qt & 1], LT[qt]))
            if o.fused: t_.many(self.wo_dma(2 + qt))
        t_.e(WL("fl", "ow4", "ow5", "ow6"))
        t_.e("s_barrier")
        t_.many(self.stamp())
        F = V_P + 4
        t_.e(f"s_mul_i32 s{S_T0}, s{S_W}, {RG}")
        t_.e(f"s_add_u32 s{S_T0}, s{S_T0}, {FOFF}")
        t_.e(f"v_mov_b32 v{T+11}, s{S_T0}")
        t_.e(DS(f"ds_read_b128 {vr(F)}, v{T+11}", "flr"))
        for qt in range(4, 7):
            t_.many(self.p_reads(qt, PB[qt - 4], LT[qt - 4]))
        t_.e(WL("flr"))
        t_.e(f"v_or_b32 v{F}, v{F}, v{F+1}")
        t_.e(f"v_or_b32 v{F+2}, v{F+2}, v{F+3}")
        t_.e(f"v_or_b32 v{F}, v{F}, v{F+2}")
        t_.e("s_nop 1")
        t_.e(f"v_readfirstlane_b32 s{S_T0}, v{F}")
        t_.e(f"s_xor_b32 s{S_T1}, s{S_PASS}, 1")
        t_.e(f"s_and_b32 s{S_T0}, s{S_T0}, s{S_T1}")
        t_.e(f"s_cmp_lg_u32 s{S_T0}, 0")
        t_.e("s_cbranch_scc1 A_SLOW")
        for qt in range(4, 7):
            t_.e(WL(f"p{qt}"))
            if o.fused:
                t_.many(self.wo_dma(2 + qt))
                if qt == 6: t_.many(self.wo_dma(9))
            t_.many(self.fin_tile(qt, PB[qt - 4], TB[qt & 1], LT[qt - 4]))
        t_.many(self.stamp())
        if o.fused: self.phase_b()
        if o.stamps:
            t_.e(f"s_memrealtime s[{S_ST+38}:{S_ST+39}]")
            t_.e("s_waitcnt lgkmcnt(0)")
            t_.e(f"s_cmp_lg_u32 s{S_W}, 0")
            t_.e("s_cbranch_scc1 A_END")
            ns = 20
            t_.e(f"s_mul_i32 s{S_T0}, s2, {ns*4*2}")
            t_.e(f"s_add_u32 s{S_T0}, s{S_T0}, {64<<20}")
            t_.e(f"s_mov_b32 s{S_O+2}, {256<<20}")
            t_.e(f"v_mov_b32 v{V_T0+1}, 0")
            for i in range(ns * 2):
                if 2 * self.nst <= i < 36:
                    t_.e(f"v_mov_b32 v{V_T0}, 0")
                else:
                    t_.e(f"v_mov_b32 v{V_T0}, s{S_ST+i}")
                t_.e(f"buffer_store_dword v{V_T0}, v{V_T0+1}, {sr(S_O)}, s{S_T0} offen offset:{i*4}")
                t_.e("s_nop 1")
        t_.e("s_endpgm")

    def b_addr_v(self):
        L, t0, t1, t2 = 184, 185, 186, 187
        r = []
        r.append(f"v_and_b32 v{L}, 63, v{V_TID}")
        r.append(f"v_lshrrev_b32 v{t0}, 3, v{L}")
        r.append(f"v_and_b32 v{t1}, 7, v{L}")
        r.append(f"v_bfe_u32 v{t2}, v{L}, 4, 2")
        r.append(f"v_lshlrev_b32 v{t2}, 1, v{t2}")
        r.append(f"v_xor_b32 v{t1}, v{t1}, v{t2}")
        r.append(f"v_lshlrev_b32 v{t1}, 4, v{t1}")
        r.append(f"v_mul_u32_u24 v{t0}, 1152, v{t0}")
        r.append(f"v_add_u32 v{V_WOF}, v{t0}, v{t1}")
        for i in range(1, 4):
            r.append(f"v_add_u32 v{V_WOF+i}, {i*(9216-1024)}, v{V_WOF}")
        r.append(f"v_lshrrev_b32 v{t0}, 2, v{L}")
        r.append(f"v_bfe_u32 v{t1}, v{L}, 3, 2")
        r.append(f"v_lshlrev_b32 v{t1}, 5, v{t1}")
        r.append(f"v_lshlrev_b32 v{t0}, 7, v{t0}")
        r.append(f"v_and_b32 v{t2}, 3, v{L}")
        r.append(f"v_lshlrev_b32 v{t2}, 3, v{t2}")
        r.append(f"v_add_u32 v{t0}, v{t0}, v{t2}")
        r.append(f"v_add_u32 v{t0}, s{S_RB}, v{t0}")
        for nt in range(4):
            r.append(f"v_xor_b32 v{V_TR+nt}, {nt*32}, v{t1}")
            r.append(f"v_add_u32 v{V_TR+nt}, v{V_TR+nt}, v{t0}")
        return r

    def b_addr_s(self):
        r = []
        r.append(f"s_mul_i32 s{S_RB}, s{S_W}, {RG}")
        r.append(f"s_and_b32 s{S_T0}, s2, 7")
        r.append(f"s_lshr_b32 s{S_T1}, s2, 3")
        r.append(f"s_and_b32 s{S_T2}, s{S_T0}, 1")
        r.append(f"s_lshl_b32 s{S_T2}, s{S_T2}, 5")
        r.append(f"s_add_u32 s{S_T1}, s{S_T1}, s{S_T2}")
        r.append(f"s_lshr_b32 s{S_T0}, s{S_T0}, 1")
        r.append(f"s_mul_i32 s{S_T0}, s{S_T0}, 7")
        if self.o.bmap == 0:
            r.append(f"s_mul_i32 s{S_NG}, s{S_T1}, 37")
            r.append(f"s_lshr_b32 s{S_NG}, s{S_NG}, 8")
            r.append(f"s_mul_i32 s{S_T2}, s{S_NG}, 7")
            r.append(f"s_sub_u32 s{S_T2}, s{S_T1}, s{S_T2}")
            r.append(f"s_add_u32 s{S_MG}, s{S_T2}, s{S_T0}")
        else:
            r.append(f"s_mul_i32 s{S_T2}, s{S_T1}, 57")
            r.append(f"s_lshr_b32 s{S_T2}, s{S_T2}, 9")
            r.append(f"s_add_u32 s{S_MG}, s{S_T2}, s{S_T0}")
            r.append(f"s_mul_i32 s{S_T2}, s{S_T2}, 9")
            r.append(f"s_sub_u32 s{S_NG}, s{S_T1}, s{S_T2}")
        r.append(f"s_cmp_ge_u32 s{S_T1}, 63")
        r.append(f"s_cselect_b32 s{S_NG}, 15, s{S_NG}")
        r.append(f"s_cselect_b32 s{S_MG}, 0, s{S_MG}")
        r.append(f"s_mul_i32 s{S_T0}, s{S_W}, {1024*1152}")
        r.append(f"s_lshl_b32 s{S_T1}, s{S_NG}, 7")
        r.append(f"s_add_u32 s{S_SW}, s{S_T0}, s{S_T1}")
        r.append(f"s_mul_i32 s{S_T0}, s{S_MG}, {4*self.QS}")
        r.append(f"s_lshl_b32 s{S_T1}, s{S_W}, 15")
        r.append(f"s_add_u32 s{S_SO}, s{S_T0}, s{S_T1}")
        r.append(f"s_lshl_b32 s{S_T0}, s{S_MG}, 2")
        r.append(f"s_mul_i32 s{S_T1}, s{S_T0}, 147")
        r.append(f"s_lshr_b32 s{S_T1}, s{S_T1}, 11")
        r.append(f"s_lshl_b32 s{S_L0}, s{S_T1}, 3")
        r.append(f"s_add_u32 s{S_T0}, s{S_T0}, 3")
        r.append(f"s_mul_i32 s{S_T1}, s{S_T0}, 147")
        r.append(f"s_lshr_b32 s{S_T1}, s{S_T1}, 11")
        r.append(f"s_lshl_b32 s{S_L1}, s{S_T1}, 3")
        return r

    def b_srd(self):
        r = []
        r.append(f"s_mov_b32 s{S_WO}, s4"); r.append(f"s_mov_b32 s{S_WO+1}, s5")
        r.append(f"s_mov_b32 s{S_WO+2}, {4096*1152}"); r.append(f"s_mov_b32 s{S_WO+3}, 0x00020000")
        r.append(f"s_mov_b32 s{S_OUT}, s6"); r.append(f"s_mov_b32 s{S_OUT+1}, s7")
        r.append(f"s_mov_b32 s{S_OUT+2}, {1792*1152}"); r.append(f"s_mov_b32 s{S_OUT+3}, 0x00020000")
        return r

    @staticmethod
    def slot(f): return (f + 8) % 10

    def wo_dma(self, f):
        r = [f"s_add_u32 s{S_SWC}, s{S_SW}, {f*32*1152}", f"s_add_u32 m0, s{S_RB}, {self.slot(f)*4096}"]
        for i in range(4):
            off = f" offset:{i*1024}" if i else ""
            r.append(VM(f"buffer_load_dwordx4 v{V_WOF+i}, {sr(S_WO)}, s{S_SWC} offen{off} lds", f"W{f}"))
        return r

    def tr_reads(self, f, unit):
        k, b = unit
        r = []
        for nt in range(4):
            for hf in range(2):
                r.append(DS(f"ds_read_b64_tr_b16 {k}[{b + nt*4 + 2*hf}:{b + nt*4 + 2*hf + 1}], v{V_TR+nt} offset:{self.slot(f)*4096 + hf*2048}", f"t{f}"))
        return r

    def phase_b(self):
        t_, o = self.t, self.o
        NR, D, NL = o.nr, o.od, 10
        units = [("a", 16*i) for i in range(16)] + [("v", 64 + 16*i) for i in range(10)]
        assert NR + 2 + D <= len(units)
        res = units[:NR]; jit = units[-(D + 2):-D]; ring = units[-D:]
        U = lambda u, off: f"{u[0]}[{u[1]+off}:{u[1]+off+3}]"
        NK = 32
        order = list(range(NR, NR + NL)) + list(range(NR)) + list(range(NR + NL, NK))
        t_.c("---- out-projection: weight prefetch + publish")
        for mi in range(1, 4):
            t_.e(f"v_add_u32 v{V_OO[mi]}, {mi*self.QS}, v{V_OO[0]}")
        def publish():
            t_.e(WV("ost"))
            t_.e("s_barrier")
            t_.e(f"s_cmp_lg_u32 s{S_W}, 0")
            t_.e("s_cbranch_scc1 B_PUB")
            t_.e(f"s_lshl_b32 s{S_T0}, s{S_B}, 5")
            t_.e(f"v_mov_b32 v{V_S}, s{S_T0}")
            t_.e(f"v_mov_b32 v{V_S+1}, 1")
            t_.e("s_mov_b64 exec, 1")
            t_.e(f"global_atomic_add v{V_S}, v{V_S+1}, s[8:9]")
            t_.e("s_mov_b64 exec, -1")
            t_.lab("B_PUB")
            t_.many(self.stamp())
            t_.e(f"s_cmp_eq_u32 s{S_NG}, 15")
            t_.e("s_cbranch_scc1 A_END")
        published = False
        nxt = NL
        for f in range(NR):
            if f == o.npre and not published:
                publish(); published = True
            t_.e(WV(f"W{f}"))
            t_.many(self.tr_reads(f, res[f]))
            if f >= 1:
                t_.e(WL(f"t{f-1}"))
                if nxt < NK: t_.many(self.wo_dma(nxt)); nxt += 1
        if not published:
            publish(); published = True
        t_.e(WL(f"t{NR-1}"))
        if nxt < NK: t_.many(self.wo_dma(nxt)); nxt += 1
        for i in range(2):
            f = order[i]
            t_.e(WV(f"W{f}"))
            t_.many(self.tr_reads(f, jit[i]))
        for i in range(2):
            t_.e(WL(f"t{order[i]}"))
            if nxt < NK: t_.many(self.wo_dma(nxt)); nxt += 1
        t_.many(self.stamp())
        P, Q = V_S, V_S + 1
        t_.e(f"s_cmp_lg_u32 s{S_W}, 0")
        t_.e("s_cbranch_scc1 B_GO")
        t_.e(f"v_and_b32 v{Q}, 63, v{V_TID}")
        t_.e(f"v_lshlrev_b32 v{Q}, 2, v{Q}")
        t_.e(f"s_mov_b32 s{S_CNT}, 200000")
        t_.lab("B_POLL")
        t_.e(f"global_load_dword v{P}, v{Q}, s[8:9] sc1")
        t_.e("s_waitcnt vmcnt(0)")
        t_.e(f"v_readlane_b32 s{S_T0}, v{P}, s{S_L0}")
        t_.e(f"v_readlane_b32 s{S_T1}, v{P}, s{S_L1}")
        t_.e(f"s_min_u32 s{S_T0}, s{S_T0}, s{S_T1}")
        t_.e(f"s_cmp_ge_u32 s{S_T0}, 32")
        t_.e("s_cbranch_scc1 B_GO")
        t_.e(f"s_sub_u32 s{S_CNT}, s{S_CNT}, 1")
        t_.e(f"s_cmp_eq_u32 s{S_CNT}, 0")
        t_.e("s_cbranch_scc1 B_GO")
        t_.e("s_sleep 1")
        t_.e("s_branch B_POLL")
        t_.lab("B_GO")
        t_.e("s_barrier")
        t_.many(self.stamp())
        def o_soff(i): return f"s_add_u32 s{S_SOC}, s{S_SO}, {order[i]*1024}"
        def o_load(i, mi):
            if o.bnold and i >= D: return "s_nop 0"
            return VM(f"buffer_load_dwordx4 {U(ring[i % D], mi*4)}, v{V_OO[mi]}, {sr(S_O)}, s{S_SOC} offen{' sc1' if o.olsc else ''}", f"O{i}.{mi}")
        if o.b2x:
            t_.e(f"s_mov_b32 s{S_CNT}, 2")
            t_.lab("B_2X")
        for i in range(D):
            t_.e(o_soff(i))
            for mi in range(4): t_.e(o_load(i, mi))
        for i in range(NK):
            f = order[i]
            inlds = f >= NR
            wu = jit[i & 1] if inlds else res[f]
            if i == NK - (NK - NR - NL) and (i & 1) != ((NL) & 1):
                pass
            mf = []
            for mi in range(4):
                for nt in range(4):
                    d = vr((mi*4 + nt)*4)
                    mf.append(f"{MF} {d}, {U(wu, nt*4)}, {U(ring[i % D], mi*4)}, {'0' if i == 0 else d}")
            if o.bnomf: mf = ["s_nop 0"] * 16
            S = Sched(mf)
            if inlds: S.pre[0].append(WL(f"t{f}"))
            if inlds: S.pre[0].append(WV(f"W{f}"))
            for mi in range(4): S.pre[4*mi].append(WV(f"O{i}.{mi}"))
            if i + D < NK:
                S.post[0].append(o_soff(i + D))
                for mi in range(4): S.post[4*mi + 3].append(o_load(i + D, mi))
            if i + 1 < NK and order[i + 1] >= NR and (i + 1) >= 2:
                fn = order[i + 1]
                rd = self.tr_reads(fn, jit[(i + 1) & 1])
                S.post[1].append(WV(f"W{fn}"))
                for k, x in enumerate(rd): S.post[1 + k].append(x)
            if inlds and i >= 2 and nxt < NK:
                d = self.wo_dma(nxt); nxt += 1
                S.post[9] += d[:2]; S.post[10].append(d[2]); S.post[12].append(d[3]); S.post[13].append(d[4]); S.post[14].append(d[5])
            S.emit(t_)
        assert nxt == NK
        if o.b2x:
            t_.e(f"s_cmp_eq_u32 s{S_CNT}, 2")
            t_.e("s_cbranch_scc0 B_2XE")
            t_.e(f"s_memtime s[{S_ST+2}:{S_ST+3}]")
            t_.e(f"s_mov_b32 s{S_CNT}, 1")
            t_.e("s_branch B_2X")
            t_.lab("B_2XE")
        t_.many(self.stamp())
        t0, t1, t2, t3, t4, L = 64, 65, 66, 67, 68, 69
        TRW = 70
        t_.e(f"v_and_b32 v{L}, 63, v{V_TID}")
        t_.e(f"v_and_b32 v{t0}, 15, v{L}")
        t_.e(f"v_lshrrev_b32 v{t1}, 4, v{L}")
        t_.e(f"v_xor_b32 v{t1}, v{t1}, v{t0}")
        t_.e(f"v_lshlrev_b32 v{t1}, 4, v{t1}")
        t_.e(f"v_lshlrev_b32 v{t0}, 8, v{t0}")
        t_.e(f"v_add_u32 v{t0}, s{S_RB}, v{t0}")
        for nt in range(4):
            t_.e(f"v_xor_b32 v{TRW+nt}, {nt*64}, v{t1}")
            t_.e(f"v_add_u32 v{TRW+nt}, v{TRW+nt}, v{t0}")
        t_.e("s_nop 7")
        for mi in range(4):
            for nt in range(4):
                t_.e(DS(f"ds_write_b128 v{TRW+nt}, {vr((mi*4+nt)*4)} offset:{mi*4096}", "rw"))
        t_.e(f"v_lshrrev_b32 v{t0}, 3, v{L}")
        t_.e(f"s_lshl_b32 s{S_T0}, s{S_W}, 4")
        t_.e(f"v_add_u32 v{t0}, s{S_T0}, v{t0}")
        t_.e(f"v_and_b32 v{t1}, 7, v{L}")
        t_.e(f"v_lshlrev_b32 v{t1}, 1, v{t1}")
        AD = 80
        for ps in range(2):
            if ps: t_.e(f"v_add_u32 v{t0}, 8, v{t0}")
            t_.e(f"v_and_b32 v{t2}, 15, v{t0}")
            t_.e(f"v_xor_b32 v{t3}, v{t1}, v{t2}")
            t_.e(f"v_lshlrev_b32 v{t3}, 4, v{t3}")
            t_.e(f"v_lshlrev_b32 v{t4}, 8, v{t0}")
            t_.e(f"v_add_u32 v{AD+ps*4}, v{t3}, v{t4}")
            t_.e(f"v_xor_b32 v{AD+ps*4+1}, 16, v{AD+ps*4}")
            t_.e(f"v_add_u32 v{AD+ps*4+2}, {2*RG}, v{AD+ps*4}")
            t_.e(f"v_add_u32 v{AD+ps*4+3}, {2*RG}, v{AD+ps*4+1}")
            t_.e(f"s_lshl_b32 s{S_T0}, s{S_MG}, 6")
            t_.e(f"v_add_u32 v{t4}, s{S_T0}, v{t0}")
            t_.e(f"v_mul_u32_u24 v{t4}, 1152, v{t4}")
            t_.e(f"v_lshlrev_b32 v{t2}, 3, v{t1}")
            t_.e(f"v_add_u32 v{88+ps}, v{t4}, v{t2}")
        t_.e(WL("rw"))
        t_.e("s_barrier")
        R = 96
        for ps in range(2):
            for wv in range(4):
                for ch in range(2):
                    a = AD + ps*4 + ch + (2 if wv >= 2 else 0)
                    off = (wv & 1) * RG
                    t_.e(DS(f"ds_read_b128 {vr(R + ps*32 + wv*8 + ch*4)}, v{a} offset:{off}", f"rr{ps}"))
        t_.e(f"s_lshl_b32 s{S_T1}, s{S_NG}, 7")
        for ps in range(2):
            t_.e(WL(f"rr{ps}"))
            B_ = R + ps*32
            for k in range(4):
                t_.e(f"v_pk_add_f32 {vr(B_+2*k,2)}, {vr(B_+2*k,2)}, {vr(B_+8+2*k,2)}")
                t_.e(f"v_pk_add_f32 {vr(B_+16+2*k,2)}, {vr(B_+16+2*k,2)}, {vr(B_+24+2*k,2)}")
            for k in range(4):
                t_.e(f"v_pk_add_f32 {vr(B_+2*k,2)}, {vr(B_+2*k,2)}, {vr(B_+16+2*k,2)}")
            for k in range(4):
                t_.e(f"v_cvt_pk_bf16_f32 v{72 + ps*4 + k}, v{B_+2*k}, v{B_+2*k+1}")
            t_.e(VM(f"buffer_store_dwordx4 {vr(72 + ps*4)}, v{88+ps}, {sr(S_OUT)}, s{S_T1} offen", "out"))
        t_.many(self.stamp())

    def slowpath(self):
        a = self.t
        a.lab("A_SLOW")
        a.c("---- fallback: true row maximum, then redo the attention loop with it")
        a.lq, a.vq = [], []
        a.e("s_waitcnt vmcnt(0) lgkmcnt(0)")
        a.e("s_barrier")
        a.e(f"s_mov_b32 s{S_PASS}, 1")
        self.emit_kv_addr()
        for qt in range(7):
            a.e(f"v_mov_b32 v{V_NEGM + 4*qt}, 0xff800000")
        KA = V_V
        for ks in range(4):
            a.e(f"v_subrev_u32 v{KA+ks}, {PAIR(0)+16384}, v{V_KA+ks}")
        a.e(f"s_mov_b32 s{S_SOKV}, 0")
        a.lab("A_MAXLOOP")
        a.many([x.t if isinstance(x, VM) else x for x in self.kv_dma("K", 0, f"s{S_SOKV}", lds=0)])
        a.e("s_waitcnt vmcnt(0)")
        a.e("s_barrier")
        for kt in range(2):
            for ks in range(4):
                off = f" offset:{kt*4096}" if kt else ""
                a.e(f"ds_read_b128 {vr(V_K + (kt*4+ks)*4)}, v{KA+ks}{off}")
        a.e("s_waitcnt lgkmcnt(0)")
        for qt in range(7):
            for kt in range(2):
                for ks in range(4):
                    d = vr(V_S + kt * 4)
                    a.e(f"{MF} {d}, {vr(V_K + (kt*4+ks)*4)}, {ar(A_Q + (qt*4+ks)*4)}, {'0' if ks == 0 else d}")
            a.e("s_nop 15")
            m = V_NEGM + 4 * qt
            for i in range(4):
                a.e(f"v_max3_f32 v{m}, v{m}, v{V_S+2*i}, v{V_S+2*i+1}")
            a.e("s_nop 3")
        a.e("s_barrier")
        a.e(f"s_add_u32 s{S_SOKV}, s{S_SOKV}, 16384")
        a.e(f"s_cmp_lt_u32 s{S_SOKV}, 262144")
        a.e("s_cbranch_scc1 A_MAXLOOP")
        L, t, u = V_T0, V_T0 + 1, V_T0 + 2
        a.e(f"v_and_b32 v{L}, 63, v{V_TID}")
        a.e(f"v_lshlrev_b32 v{t}, 2, v{L}")
        a.e(f"s_mul_i32 s{S_T0}, s{S_W}, 1792")
        a.e(f"s_add_u32 s{S_T0}, s{S_T0}, {MXX}")
        a.e(f"v_add_u32 v{t}, s{S_T0}, v{t}")
        for qt in range(7):
            a.e(f"ds_write_b32 v{t}, v{V_NEGM + 4*qt} offset:{qt*256}")
        a.e("s_waitcnt lgkmcnt(0)")
        a.e("s_barrier")
        a.e(f"v_and_b32 v{u}, 15, v{L}")
        a.e(f"v_lshlrev_b32 v{u}, 2, v{u}")
        a.e(f"s_mul_i32 s{S_T0}, s{S_QH}, 3584")
        a.e(f"s_add_u32 s{S_T0}, s{S_T0}, {MXX}")
        a.e(f"v_add_u32 v{u}, s{S_T0}, v{u}")
        for qt in range(7):
            for i in range(8):
                off = (i >> 2) * 1792 + qt * 256 + (i & 3) * 64
                a.e(f"ds_read_b32 v{V_S+i}, v{u} offset:{off}")
            a.e("s_waitcnt lgkmcnt(0)")
            m = V_NEGM + 4 * qt
            a.e(f"v_max3_f32 v{m}, v{V_S}, v{V_S+1}, v{V_S+2}")
            a.e(f"v_max3_f32 v{m}, v{m}, v{V_S+3}, v{V_S+4}")
            a.e(f"v_max3_f32 v{m}, v{m}, v{V_S+5}, v{V_S+6}")
            a.e(f"v_max_f32 v{m}, v{m}, v{V_S+7}")
            a.e(f"v_sub_f32 v{m}, 0, v{m}")
            for i in range(1, 4):
                a.e(f"v_mov_b32 v{m+i}, v{m}")
        a.e("s_barrier")
        a.e(f"v_lshlrev_b32 v{t}, 4, v{L}")
        a.e(f"s_mul_i32 s{S_T0}, s{S_QH}, 28672")
        a.e(f"v_add_u32 v{V_QR}, s{S_T0}, v{t}")
        for ks in range(4):
            for qt in range(7):
                a.e(f"ds_write_b128 v{V_QR}, {ar(A_Q + (qt*4+ks)*4)} offset:{(ks*7+qt)*1024}")
        strip = lambda xs: [x.t if isinstance(x, VM) else x for x in xs]
        a.many(strip(self.kv_dma("K", 0, "0")))
        a.many(strip(self.kv_dma("V", 0, "0")))
        a.e(f"s_mov_b32 s{S_SOKV}, 16384")
        a.many(strip(self.kv_dma("K", 1, f"s{S_SOKV}")))
        a.many(strip(self.kv_dma("V", 1, f"s{S_SOKV}")))
        a.e(f"s_mov_b32 s{S_SOKV}, 32768")
        a.many(strip(self.kv_dma("K", 2, f"s{S_SOKV}")))
        a.many(strip(self.kv_dma("V", 2, f"s{S_SOKV}")))
        if self.o.fused: a.many(self.b_addr_v())
        if self.pf_on: a.e(f"v_mov_b32 v{V_PF}, 0x40000000")
        a.e(f"s_waitcnt vmcnt(16) lgkmcnt(0)")
        a.e("s_barrier")
        for kt in range(2):
            for ks in range(4):
                a.e(self.k_read(kt, ks, 0).t)
        a.e("s_branch A_ATT")


def main():
    import gen as G1
    ap = argparse.ArgumentParser()
    ap.add_argument("-o", default="cdna_kernels/" + NAME + ".s")
    ap.add_argument("--nt", type=int, default=0)
    ap.add_argument("--stamps", type=int, default=0)
    ap.add_argument("--dbgq", type=int, default=0)
    ap.add_argument("--bw", type=int, default=8)
    ap.add_argument("--brs", type=int, default=4)
    ap.add_argument("--only", default="")
    ap.add_argument("--rts", type=int, default=0)
    ap.add_argument("--osc1", type=int, default=0)
    ap.add_argument("--probe", default="")
    ap.add_argument("--fused", type=int, default=1)
    ap.add_argument("--bmap", type=int, default=0)
    ap.add_argument("--nr", type=int, default=16)
    ap.add_argument("--od", type=int, default=8)
    ap.add_argument("--npre", type=int, default=4)
    ap.add_argument("--opad", type=int, default=0)
    ap.add_argument("--bnomf", type=int, default=0)
    ap.add_argument("--bnold", type=int, default=0)
    ap.add_argument("--b2x", type=int, default=0)
    ap.add_argument("--olsc", type=int, default=1)
    ap.add_argument("--pfq", type=int, default=0)
    ap.add_argument("--pfc", default="0,0,0,0,0,0,0,0,0,0")
    ap.add_argument("--pf0", type=int, default=0)
    ap.add_argument("--pfa", type=int, default=0)
    ap.add_argument("--pfpol", default="")
    ap.add_argument("--pfw", type=int, default=0)
    ap.add_argument("--pfwt", type=int, default=12)
    ap.add_argument("--pfwpol", default="")
    o = ap.parse_args()
    if o.pfpol: o.pfpol = " " + o.pfpol
    if o.pfwpol: o.pfwpol = " " + o.pfwpol
    ga = GenA(o); ta = ga.gen()
    if o.fused:
        hdr = G1.HDR.replace("Launch 1: one workgroup", "Phase 1: one workgroup").replace("Launch 2: out = O * wo.", "Phase 2 (same launch, after a counter hand-off): out = O * wo.")
        if o.probe:
            hdr += f"; @launch kernel={NAME}_kernel grid=(256,1,1) block=(256,1,1) lds=163840\n"
            hdr += "; @launch kernel=probe_kernel grid=(1,1,1) block=(64,1,1) lds=0\n"
        else:
            hdr += "; @launch grid=(256,1,1) block=(256,1,1) lds=163840\n"
        txt = hdr + '.amdgcn_target "amdgcn-amd-amdhsa--gfx950"\n.text\n' + G1.fix_hazards(ta) + "\n"
        if o.probe:
            txt += G1.gen_probe(o.probe) + "\n"
        txt += '.section .rodata,"a"\n.p2align 6\n' + G1.descriptor(NAME + "_kernel", 512, 256)
        if o.probe:
            txt += ".p2align 6\n" + G1.descriptor("probe_kernel", 32, 32)
        open(o.o, "w").write(txt)
        print("wrote", o.o, len(txt), "bytes; stamps", ga.nst)
        return
    gb = G1.GenB(o); tb = gb.gen()
    hdr = G1.HDR
    blds = max(o.bw * o.brs * 4096, o.bw * 16384)
    if o.only != "B":
        hdr += f"; @launch kernel={NAME}_kernel grid=(256,1,1) block=(256,1,1) lds=163840\n"
    if o.only != "A":
        hdr += f"; @launch kernel=oproj_kernel grid=(256,1,1) block=({o.bw*64},1,1) lds={blds}\n"
    if o.probe:
        hdr += "; @launch kernel=probe_kernel grid=(1,1,1) block=(64,1,1) lds=0\n"
    txt = hdr + '.amdgcn_target "amdgcn-amd-amdhsa--gfx950"\n.text\n' + G1.fix_hazards(ta) + "\n" + G1.fix_hazards(tb) + "\n"
    if o.probe:
        txt += G1.gen_probe(o.probe) + "\n"
    txt += '.section .rodata,"a"\n.p2align 6\n' + G1.descriptor(NAME + "_kernel", 512, 256)
    nvb = (gb.nv + 7) // 8 * 8
    txt += ".p2align 6\n" + G1.descriptor("oproj_kernel", nvb, (gb.nv + 3) // 4 * 4)
    if o.probe:
        txt += ".p2align 6\n" + G1.descriptor("probe_kernel", 32, 32)
    open(o.o, "w").write(txt)
    print("wrote", o.o, len(txt), "bytes; B vgprs", gb.nv, "stamps", ga.nst)

if __name__ == "__main__":
    main()
```

```python
import sys, struct, re, argparse
from collections import defaultdict
sys.path.insert(0, "tools")

NAME = "standalone__mha_block_cached__near_ridge"
MF = "v_mfma_f32_16x16x32_bf16"

def f32(x):
    return struct.unpack("<I", struct.pack("<f", x))[0]
def vr(b, n=4): return f"v[{b}:{b+n-1}]" if n > 1 else f"v{b}"
def ar(b, n=4): return f"a[{b}:{b+n-1}]" if n > 1 else f"a{b}"
def sr(b, n=4): return f"s[{b}:{b+n-1}]" if n > 1 else f"s{b}"

class DS:
    def __init__(s, t, tag): s.t, s.tag = t, tag
class VM:
    def __init__(s, t, tag): s.t, s.tag = t, tag
class WL:
    def __init__(s, *tags): s.tags = set(tags)
class WV:
    def __init__(s, *tags): s.tags = set(tags)
class WALL:
    def __init__(s, k): s.k = k

class Trace:
    def __init__(self):
        self.L = []
        self.lq = []
        self.vq = []
    def raw(self, s): self.L.append(s)
    def lab(self, s): self.L.append(s + ":")
    def c(self, s): self.L.append("    ; " + s)
    def e(self, x):
        if isinstance(x, str):
            self.L.append("    " + x)
        elif isinstance(x, DS):
            self.L.append("    " + x.t); self.lq.append(x.tag)
        elif isinstance(x, VM):
            self.L.append("    " + x.t); self.vq.append(x.tag)
        elif isinstance(x, WL):
            idx = max([i for i, t in enumerate(self.lq) if t in x.tags], default=-1)
            if idx >= 0:
                n = len(self.lq) - 1 - idx
                if n > 15:
                    n = 15
                self.L.append(f"    s_waitcnt lgkmcnt({n})")
                self.lq = self.lq[len(self.lq) - n:] if n else []
        elif isinstance(x, WV):
            idx = max([i for i, t in enumerate(self.vq) if t in x.tags], default=-1)
            if idx >= 0:
                n = len(self.vq) - 1 - idx
                if n > 63:
                    n = 63
                self.L.append(f"    s_waitcnt vmcnt({n})")
                self.vq = self.vq[len(self.vq) - n:] if n else []
        elif isinstance(x, WALL):
            w = []
            if 'v' in x.k: w.append("vmcnt(0)"); self.vq = []
            if 'l' in x.k: w.append("lgkmcnt(0)"); self.lq = []
            self.L.append("    s_waitcnt " + " ".join(w))
        else:
            raise TypeError(x)
    def many(self, xs):
        for x in xs: self.e(x)

class Sched:
    def __init__(self, mf):
        self.mf = mf
        self.pre = defaultdict(list)
        self.post = defaultdict(list)
    def emit(self, t):
        for g, m in enumerate(self.mf):
            t.many(self.pre[g])
            t.e(m)
            t.many(self.post[g])
        n = len(self.mf)
        for g in sorted(set(list(self.pre) + list(self.post))):
            if g >= n:
                t.many(self.pre[g]); t.many(self.post[g])

BUF = {0: 90112, 1: 45056, 2: 0}
def PAIR(n):
    return 32768 + ((3 - n) & 3) * 32768
QX = 0
RG = 40960
LOFF = 7 * 4096
FOFF = 7 * 4096 + 2048
MXX = 16384

V_OOWN = 0
V_K = 112
V_V = 144
V_S = 176
V_P = 192
V_NEGM = 200
V_KA = 228
V_VA = 232
V_OFFKV = 240
V_TID = 242
V_T0 = 243
V_OFFX = 144
V_OFFW = 151
V_XR = 156
V_WR = 160
V_QW = 253
V_QR = 254
V_QT = 176
V_WOF = 245
V_TR = 249
V_OO = [244, 253, 254, 255]
S_WO, S_OUT = 16, 20
S_MG, S_NG, S_SW, S_SO, S_L0, S_L1, S_RB, S_SWC, S_SOC = 57, 58, 59, 10, 11, 3, 100, 101, 42
S_PF = 12
V_PF, V_PFD = 243, 255
A_Q = 0
A_OOTH = 112
A_L = 224
A_ONES = 252
S_X, S_WQ, S_K, S_V, S_O = 16, 20, 24, 28, 32
S_W, S_QH, S_KH = 36, 37, 38
S_W1K7 = 39
S_SC = 40
S_SOX, S_SOW = 42, 43
S_W4K = 44
S_B, S_H = 45, 46
S_CNT = 47
S_PASS = 48
S_T0, S_T1, S_T2, S_T3 = 49, 50, 51, 52
S_OB = 53
S_SOKV = 56
S_ST = 60


def o_reg(j, tp):
    if tp < 4:
        return vr(V_OOWN + (j * 4 + tp) * 4)
    return ar(A_OOTH + (j * 4 + tp - 4) * 4)


class GenA:
    def __init__(self, opt):
        self.o = opt
        self.t = Trace()
        self.nst = 0
        self.npf = 0
        self.pfc = [int(z) for z in opt.pfc.split(",")]
        assert len(self.pfc) == 10
        self.pf_on = (sum(self.pfc) > 0 or opt.pfa)
        self.QS = 131072 + opt.opad

    def stamp(self):
        if not self.o.stamps:
            return []
        ins = "s_memrealtime" if self.o.rts else "s_memtime"
        s = f"{ins} s[{S_ST + 2*self.nst}:{S_ST + 2*self.nst + 1}]"
        self.nst += 1
        assert self.nst <= 18
        return [s]

    def kvpol(self):
        return " nt" if self.o.nt else ""

    def emit_kv_addr(self, rd=True, dma=True):
        t_ = self.t
        L, l15, g, r4, c4, t, u = V_T0, V_T0+1, V_T0+2, V_T0+3, V_T0+4, V_T0+5, V_T0+6
        t_.e(f"v_and_b32 v{L}, 63, v{V_TID}")
        t_.e(f"v_and_b32 v{l15}, 15, v{L}")
        t_.e(f"v_lshrrev_b32 v{g}, 4, v{L}")
        if dma:
            t_.e(f"v_lshlrev_b32 v{t}, 1, v{g}")
            t_.e(f"v_xor_b32 v{t}, v{t}, v{l15}")
            t_.e(f"v_lshlrev_b32 v{t}, 4, v{t}")
            t_.e(f"v_lshlrev_b32 v{u}, 8, v{g}")
            t_.e(f"v_add_u32 v{u}, s{S_W4K}, v{u}")
            t_.e(f"v_add_u32 v{V_OFFKV}, v{t}, v{u}")
            t_.e(f"v_xor_b32 v{t}, 128, v{t}")
            t_.e(f"v_add_u32 v{V_OFFKV+1}, v{t}, v{u}")
        if rd:
            t_.e(f"v_bfe_u32 v{r4}, v{L}, 2, 2")
            t_.e(f"v_and_b32 v{c4}, 3, v{L}")
            t_.e(f"s_lshl_b32 s{S_T0}, s{S_KH}, 13")
            t_.e(f"s_add_u32 s{S_T1}, s{S_T0}, {PAIR(0) + 16384}")
            t_.e(f"v_and_b32 v{t}, 7, v{l15}")
            t_.e(f"v_lshlrev_b32 v{t}, 1, v{t}")
            t_.e(f"v_xor_b32 v{t}, v{t}, v{g}")
            t_.e(f"v_lshlrev_b32 v{t}, 4, v{t}")
            t_.e(f"v_lshlrev_b32 v{u}, 8, v{l15}")
            t_.e(f"v_add_u32 v{u}, s{S_T1}, v{u}")
            for ks in range(4):
                t_.e(f"v_xor_b32 v{V_KA+ks}, {ks*64}, v{t}")
                t_.e(f"v_add_u32 v{V_KA+ks}, v{V_KA+ks}, v{u}")
            t_.e(f"s_add_u32 s{S_T1}, s{S_T0}, {PAIR(0)}")
            t_.e(f"v_lshlrev_b32 v{u}, 2, v{g}")
            t_.e(f"v_add_u32 v{u}, v{u}, v{r4}")
            t_.e(f"v_and_b32 v{t}, 7, v{u}")
            t_.e(f"s_lshl_b32 s{S_T2}, s{S_KH}, 2")
            t_.e(f"v_xor_b32 v{t}, s{S_T2}, v{t}")
            t_.e(f"v_lshlrev_b32 v{t}, 5, v{t}")
            t_.e(f"v_lshlrev_b32 v{u}, 8, v{u}")
            t_.e(f"v_add_u32 v{u}, s{S_T1}, v{u}")
            t_.e(f"v_lshlrev_b32 v{c4}, 3, v{c4}")
            t_.e(f"v_add_u32 v{u}, v{u}, v{c4}")
            for tp in range(8):
                t_.e(f"v_xor_b32 v{V_VA+tp}, {tp*32}, v{t}")
                t_.e(f"v_add_u32 v{V_VA+tp}, v{V_VA+tp}, v{u}")

    def kv_dma(self, which, n, soff, lds=None):
        srd = S_K if which == "K" else S_V
        if lds is None:
            lds = PAIR(n) + (16384 if which == "K" else 0)
        r = [f"s_add_u32 m0, s{S_W4K}, {lds}"]
        for i in range(4):
            off = f" offset:{i*1024}" if i else ""
            r.append(VM(f"buffer_load_dwordx4 v{V_OFFKV + (i & 1)}, {sr(srd)}, {soff} offen{off}{self.kvpol()} lds", f"{which}{n}"))
        return r

    def kv_touch(self):
        self.npf += 1
        return [VM(f"buffer_load_dword v{V_PFD}, v{V_PF}, {sr(S_PF)}, 0 offen{self.o.pfpol}", "PF"),
                f"v_add_u32 v{V_PF}, 16384, v{V_PF}"]

    def x_dma(self, st):
        buf = BUF[st % 3]
        r = []
        r.append(f"s_mov_b32 s{S_SOX}, {st*128}")
        r.append(f"s_add_u32 m0, s{S_W1K7}, {buf}")
        for i in range(7):
            if i == 4:
                r.append(f"s_add_u32 m0, s{S_W1K7}, {buf + 4096}")
            off = f" offset:{(i%4)*1024}" if i % 4 else ""
            r.append(VM(f"buffer_load_dwordx4 v{V_OFFX+i}, {sr(S_X)}, s{S_SOX} offen{off} lds", f"X{st}"))
        r.append(f"s_mov_b32 s{S_SOW}, {st*64*8192}")
        r.append(f"s_add_u32 m0, s{S_W4K}, {buf + 28672}")
        for i in range(4):
            off = f" offset:{i*1024}" if i else ""
            r.append(VM(f"buffer_load_dwordx4 v{V_OFFW+i}, {sr(S_WQ)}, s{S_SOW} offen{off} lds", f"X{st}"))
        return r

    def q_reads(self, st):
        buf = BUF[st % 3]
        sset = 1 if buf == 90112 else 0
        base = buf - (90112 if sset else 0)
        p = (st & 1) * 88
        r = []
        for s in range(2):
            for T in range(4):
                jj = T >> 1
                for hf in range(2):
                    off = base + 8192 * s + 1024 * hf + 8 * (T & 1)
                    r.append(DS(f"ds_read_b64_tr_b16 {ar(p + 56 + (s*4+T)*4 + 2*hf, 2)}, v{V_WR + sset*2 + jj} offset:{off}", f"R{st}"))
            for qt in range(7):
                off = base + qt * 2048
                r.append(DS(f"ds_read_b128 {ar(p + (s*7+qt)*4)}, v{V_XR + sset*2 + s} offset:{off}", f"R{st}"))
        return r

    def q_mf(self, st, s, T, qt, first):
        p = (st & 1) * 88
        d = vr((T * 7 + qt) * 4)
        c = "0" if (first and s == 0) else d
        return f"{MF} {d}, {ar(p + 56 + (s*4+T)*4)}, {ar(p + (s*7+qt)*4)}, {c}"

    def q_mfmas(self, st, first):
        return [self.q_mf(st, s, T, qt, first) for s in range(2) for T in range(4) for qt in range(7)]

    def k_read(self, kt, ks, n):
        off = f" offset:{kt*4096}" if kt else ""
        return DS(f"ds_read_b128 {vr(V_K + (kt*4+ks)*4)}, v{V_KA+ks}{off}", f"k{n}.{kt}")

    def v_read(self, tp, hf, n):
        off = f" offset:{hf*4096}" if hf else ""
        return DS(f"ds_read_b64_tr_b16 {vr(V_V + tp*4 + 2*hf, 2)}, v{V_VA+tp}{off}", f"v{n}.{tp}")

    def q_read(self, qt):
        return [DS(f"ds_read_b128 {ar(A_Q + (qt*4+ks)*4)}, v{V_QR} offset:{(ks*7+qt)*1024}", f"q{qt}") for ks in range(4)]

    def qk_mfmas(self, par, j2):
        r = []
        for kt in range(2):
            for ks in range(4):
                d = vr(V_S + par * 8 + kt * 4)
                c = vr(V_NEGM + j2 * 4) if ks == 0 else d
                r.append(f"{MF} {d}, {vr(V_K + (kt*4+ks)*4)}, {ar(A_Q + (j2*4+ks)*4)}, {c}")
        return r

    def pv_mfmas(self, par, j, first):
        r = []
        p = vr(V_P + par * 4)
        for tp in range(8):
            d = o_reg(j, tp)
            r.append(f"{MF} {d}, {vr(V_V + tp*4)}, {p}, {'0' if first else d}")
        d = ar(A_L + j * 4)
        r.append(f"{MF} {d}, {ar(A_ONES)}, {p}, {'0' if first else d}")
        return r

    def exps(self, par):
        return [f"v_exp_f32 v{V_S + par*8 + i}, v{V_S + par*8 + i}" for i in range(8)]

    def cvts(self, par):
        return [f"v_cvt_pk_bf16_f32 v{V_P + par*4 + i}, v{V_S + par*8 + 2*i}, v{V_S + par*8 + 2*i + 1}" for i in range(4)]

    def tile(self, n):
        t = self.t
        first = (n == 0)
        last = (n == 15)
        dl = (PAIR(n + 1) - PAIR(n)) & 0xffffffff
        vdma = self.kv_dma("V", n + 3, "0") if (n + 3 <= 15 and n >= 1) else None
        kdma = self.kv_dma("K", n + 4, "0") if n + 4 <= 15 else None
        adv = [f"v_add_u32 v{V_OFFKV}, 16384, v{V_OFFKV}", f"v_add_u32 v{V_OFFKV+1}, 16384, v{V_OFFKV+1}"]
        for j in range(7):
            par = (n + j) & 1
            mf = self.pv_mfmas(par, j, first)
            has_qk = not (last and j >= 5)
            if has_qk:
                mf = mf + self.qk_mfmas(par, (j + 2) % 7)
            S = Sched(mf)
            G, PRE = S.post, S.pre
            if not (last and j == 6):
                ex = self.exps(par ^ 1); cv = self.cvts(par ^ 1)
                if has_qk:
                    for i in range(8): G[2 * i].append(ex[i])
                    for i in range(4): G[4 * i + 3].append(cv[i])
                else:
                    for i in range(8): G[i // 2].append(ex[i])
                    G[2].append(cv[0]); G[3].append(cv[1]); G[4].append(cv[2]); G[5].append(cv[3])
            nn = n + 1
            if j == 0:
                PRE[0].append(WL(f"v{n}.0", f"v{n}.1", f"v{n}.2"))
                G[1] += [self.v_read(7, 0, n), self.v_read(7, 1, n)]
                PRE[3].append(WL(f"v{n}.3", f"v{n}.4", f"v{n}.5"))
                PRE[6].append(WL(f"v{n}.6", f"v{n}.7"))
                if vdma:
                    G[9] += [vdma[0]]
                    G[13] += [vdma[1]]
            if first and j <= 3:
                q = self.q_read(j + 3)
                G[5] += q[:2]; G[9] += q[2:]
            if first and j <= 4:
                PRE[9].append(WL(f"q{j+2}"))
            if j == 1:
                if vdma: G[5] += [vdma[2]]
                if not last:
                    G[9] += [f"v_add_u32 v{V_VA+0}, {dl}, v{V_VA+0}", f"v_add_u32 v{V_VA+1}, {dl}, v{V_VA+1}"] if not first else []
                    G[13] += [f"v_add_u32 v{V_VA+2}, {dl}, v{V_VA+2}", f"v_add_u32 v{V_VA+3}, {dl}, v{V_VA+3}"]
                    if first:
                        G[1] += [f"v_add_u32 v{V_VA+0}, {dl}, v{V_VA+0}", f"v_add_u32 v{V_VA+1}, {dl}, v{V_VA+1}"]
            if j == 2:
                if vdma: G[5] += [vdma[3]]
                if not last:
                    G[1] += [f"v_add_u32 v{V_VA+4}, {dl}, v{V_VA+4}", f"v_add_u32 v{V_VA+5}, {dl}, v{V_VA+5}"]
                    G[13] += [f"v_add_u32 v{V_VA+6}, {dl}, v{V_VA+6}", f"v_add_u32 v{V_VA+7}, {dl}, v{V_VA+7}"]
            if j == 3:
                if vdma: G[5] += [vdma[4]]
                if not last:
                    G[1] += [f"v_add_u32 v{V_KA+0}, {dl}, v{V_KA+0}", f"v_add_u32 v{V_KA+1}, {dl}, v{V_KA+1}"]
                    G[13] += [f"v_add_u32 v{V_KA+2}, {dl}, v{V_KA+2}", f"v_add_u32 v{V_KA+3}, {dl}, v{V_KA+3}"]
                if kdma and not first:
                    G[16] += adv
            if j == 4:
                if first:
                    G[5] += [WL("q6")]
                if not last:
                    G[5] += [WV(f"K{nn}", f"V{nn}")]
                else:
                    G[5] += [WL("ow0", "ow1", "ow2", "ow3")]
                G[7] += ["s_barrier"]
                if not last:
                    G[9] += [self.k_read(0, 0, nn)]
                    G[11] += [self.k_read(0, 1, nn)]
                    G[13] += [self.k_read(0, 2, nn), self.k_read(0, 3, nn)]
                    G[15] += [self.k_read(1, 0, nn)]
                    G[16] += [self.k_read(1, 1, nn), self.k_read(1, 2, nn)]
                if first:
                    k3 = self.kv_dma("K", 3, "0")
                    G[9] += [k3[0]]
                    self.k3 = k3
            if j == 5 and not last:
                G[1] += [self.k_read(1, 3, nn)]
                PRE[9].append(WL(f"k{nn}.0", f"k{nn}.1"))
                if first:
                    k3 = self.k3
                    G[1] += [k3[1]]; G[3] += [k3[2]]; G[5] += [k3[3]]; G[7] += [k3[4]]
                    v3 = self.kv_dma("V", 3, "0")
                    G[9] += [v3[0], v3[1]]; G[11] += [v3[2]]; G[13] += [v3[3]]; G[15] += [v3[4]]
                    G[16] += adv
                elif kdma:
                    G[0] += [kdma[0]]
                    G[1] += [kdma[1]]; G[5] += [kdma[2]]; G[9] += [kdma[3]]; G[13] += [kdma[4]]
            if j == self.o.pfas and self.o.pfa and n <= self.o.pfan:
                tc = self.kv_touch()
                G[14] += [tc[0]]; G[16] += [tc[1]]
            if self.o.pfw and n == self.o.pfwt and j in (4, 5, 6):
                w = self.wo_touch()
                if j == 4:
                    for i, x in enumerate(w[0]): G[9 + (i * 7) // len(w[0])].append(x)
                else:
                    tch = w[1] if j == 5 else w[2]
                    nv = sum(isinstance(x, VM) for x in tch)
                    gi = 2
                    for x in tch:
                        G[gi].append(x)
                        if isinstance(x, VM): gi += max(1, 14 // max(nv, 1))
            if j == 6 and not last:
                v = lambda a, b: self.v_read(a, b, nn)
                G[1] += [v(0, 0), v(0, 1)]
                G[3] += [v(1, 0)]
                G[5] += [v(1, 1), v(2, 0)]
                G[7] += [v(2, 1)]
                G[9] += [v(3, 0), v(3, 1)]
                G[11] += [v(4, 0)]
                G[13] += [v(4, 1), v(5, 0)]
                G[15] += [v(5, 1)]
                G[16] += [v(6, 0), v(6, 1)]
                if first:
                    PRE[0] += [kdma[0]]
                    G[0] += [kdma[1]]; G[4] += [kdma[2]]; G[8] += [kdma[3]]; G[12] += [kdma[4]]
            if last:
                if j == 1:
                    PRE[0] = ["s_barrier"] + PRE[0]
                    w = self.o_writes(0)
                    G[1] += [w[0]]; G[3] += [w[1]]; G[5] += [w[2]]; G[7] += [w[3]]; G[8] += [w[4]]
                if 1 <= j <= 4:
                    w = self.o_writes(j)
                    G[10] += [w[0]]; G[11] += [w[1]]; G[13] += [w[2], w[3]]; G[15] += [w[4]]
                if self.o.fused and j in (2, 3):
                    d = self.wo_dma(j - 2)
                    G[0] += d[:2]; G[1] += [d[2]]; G[3] += [d[3]]; G[5] += [d[4]]; G[7] += [d[5]]
                if j == 6:
                    w = self.o_writes(5)
                    G[1] += [w[0]]; G[3] += [w[1]]; G[4] += [w[2]]; G[6] += [w[3]]; G[7] += [w[4]]
                if j == 0:
                    PRE[0] = self.ox_addr() + PRE[0]
            t.c(f"tile {n} slot {j}")
            S.emit(t)

    def wo_touch(self):
        a = V_PF
        su = [f"v_and_b32 v{a}, 63, v{V_TID}", f"s_lshr_b32 s{S_T0}, s2, 3"]
        pol = self.o.pfwpol
        if self.o.bmap == 0:
            su += [f"s_lshl_b32 s{S_T0}, s{S_T0}, 2", f"s_add_u32 s{S_T0}, s{S_T0}, s{S_W}",
                   f"s_mul_i32 s{S_T0}, s{S_T0}, {32*1152}",
                   f"s_and_b32 s{S_T1}, s2, 1", f"s_lshl_b32 s{S_T1}, s{S_T1}, 9", f"s_add_u32 s{S_T0}, s{S_T0}, s{S_T1}",
                   f"v_cmp_gt_u32 vcc, 32, v{a}",
                   f"v_mul_u32_u24 v{a}, 1152, v{a}", f"v_add_u32 v{a}, s{S_T0}, v{a}",
                   f"v_mov_b32 v{V_PFD}, 0x40000000",
                   f"v_cndmask_b32 v{a}, v{V_PFD}, v{a}, vcc"]
            T = [VM(f"buffer_load_dword v{V_PFD}, v{a}, {sr(S_WO)}, 0 offen" + (f" offset:{i*128}" if i else "") + pol, "PW") for i in range(5)]
            return su, T[:3], T[3:]
        su += [f"s_mul_i32 s{S_T0}, s{S_T0}, 147456", f"s_mul_i32 s{S_T1}, s{S_W}, 36864", f"s_add_u32 s{S_T0}, s{S_T0}, s{S_T1}",
               f"v_lshlrev_b32 v{a}, 7, v{a}", f"v_add_u32 v{a}, s{S_T0}, v{a}"]
        T = []
        for i in range(5):
            T.append([VM(f"buffer_load_dword v{V_PFD}, v{a}, {sr(S_WO)}, 0 offen{pol}", "PW"), f"v_add_u32 v{a}, 8192, v{a}"])
        return su, T[0] + T[1] + T[2], T[3] + T[4]

    def ox_addr(self):
        r = []
        T = V_T0
        r.append(f"v_and_b32 v{T}, 63, v{V_TID}")
        r.append(f"v_lshlrev_b32 v{T+1}, 4, v{T}")
        r.append(f"v_lshlrev_b32 v{T}, 2, v{T}")
        r.append(f"s_xor_b32 s{S_T3}, s{S_W}, 1")
        r.append(f"s_mul_i32 s{S_T0}, s{S_T3}, {RG}")
        r.append(f"v_add_u32 v{V_KA}, s{S_T0}, v{T+1}")
        r.append(f"s_add_u32 s{S_T0}, s{S_T0}, {LOFF}")
        r.append(f"v_add_u32 v{V_KA+1}, s{S_T0}, v{T}")
        r.append(f"s_mul_i32 s{S_T0}, s{S_W}, {RG}")
        r.append(f"v_add_u32 v{V_KA+2}, s{S_T0}, v{T+1}")
        r.append(f"s_add_u32 s{S_T0}, s{S_T0}, {LOFF}")
        r.append(f"v_add_u32 v{V_KA+3}, s{S_T0}, v{T}")
        r.append(f"s_mul_i32 s{S_T0}, s{S_B}, 14")
        r.append(f"s_mul_i32 s{S_T1}, s{S_QH}, 7")
        r.append(f"s_add_u32 s{S_T0}, s{S_T0}, s{S_T1}")
        r.append(f"s_mul_i32 s{S_T0}, s{S_T0}, {self.QS}")
        r.append(f"s_lshl_b32 s{S_T1}, s{S_H}, 1")
        r.append(f"s_add_u32 s{S_T1}, s{S_T1}, s{S_KH}")
        r.append(f"s_lshl_b32 s{S_T1}, s{S_T1}, 11")
        r.append(f"s_add_u32 s{S_OB}, s{S_T0}, s{S_T1}")
        return r

    def o_writes(self, j):
        r = []
        for tpp in range(4):
            i = j * 4 + tpp
            r.append(DS(f"ds_write_b128 v{V_KA}, {ar(A_OOTH + i*4)} offset:{i*1024}", f"ow{j}"))
        r.append(DS(f"ds_write_b32 v{V_KA+1}, a{A_L + 4*j} offset:{j*256}", f"ow{j}"))
        return r

    def gen(self):
        t_ = self.t
        o = self.o
        kn = f"{NAME}_kernel"
        t_.raw(f".globl {kn}\n.p2align 8\n.type {kn},@function\n{kn}:")
        t_.e("s_cmp_ge_u32 s2, 256")
        t_.e("s_cbranch_scc1 A_END")
        t_.e("s_load_dwordx8 s[4:11], s[0:1], 0")
        t_.e("s_load_dwordx2 s[12:13], s[0:1], 56")
        t_.many(self.stamp())
        if o.stamps:
            t_.e(f"s_memrealtime s[{S_ST+36}:{S_ST+37}]")
        if o.ctouch:
            t_.e("s_getpc_b64 s[14:15]")
            t_.lab("CT_PC")
            t_.e("s_lshr_b32 s3, s2, 3")
            t_.e("s_and_b32 s3, s3, 1")
            t_.e("s_lshl_b32 s3, s3, 15")
            t_.e("v_lshlrev_b32 v1, 7, v0")
            t_.e("v_add_u32 v1, s3, v1")
            t_.e("v_min_u32 v1, CT_END-CT_PC-4, v1")
            t_.e(VM(f"global_load_dword v{V_PFD}, v1, s[14:15]", "PF"))
        t_.e(f"v_mov_b32 v{V_TID}, v0")
        t_.e(f"v_lshrrev_b32 v1, 6, v0")
        t_.e("s_and_b32 s3, s2, 7")
        t_.e(f"s_lshr_b32 s{S_T0}, s2, 3")
        t_.e(f"v_readfirstlane_b32 s{S_W}, v1")
        t_.e(f"s_and_b32 s{S_T1}, s3, 1")
        t_.e(f"s_lshl_b32 s{S_T1}, s{S_T1}, 2")
        t_.e(f"s_and_b32 s{S_T2}, s{S_T0}, 3")
        t_.e(f"s_add_u32 s{S_B}, s{S_T1}, s{S_T2}")
        t_.e(f"s_lshr_b32 s{S_T1}, s3, 1")
        t_.e(f"s_lshl_b32 s{S_T1}, s{S_T1}, 3")
        t_.e(f"s_lshr_b32 s{S_T2}, s{S_T0}, 2")
        t_.e(f"s_add_u32 s{S_H}, s{S_T1}, s{S_T2}")
        t_.e(f"s_lshr_b32 s{S_QH}, s{S_W}, 1")
        t_.e(f"s_and_b32 s{S_KH}, s{S_W}, 1")
        t_.e(f"s_mul_i32 s{S_W1K7}, s{S_W}, 7168")
        t_.e(f"s_lshl_b32 s{S_W4K}, s{S_W}, 12")
        L, l15, g, r4, c4, t, u = V_T0, V_T0+1, V_T0+2, V_T0+3, V_T0+4, V_T0+5, V_T0+6
        t_.e(f"v_and_b32 v{L}, 63, v{V_TID}")
        t_.e(f"v_and_b32 v{l15}, 15, v{L}")
        t_.e(f"v_lshrrev_b32 v{g}, 4, v{L}")
        t_.e(f"v_lshrrev_b32 v{t}, 3, v{L}")
        t_.e(f"v_and_b32 v{r4}, 7, v{L}")
        t_.e(f"v_xor_b32 v{u}, v{g}, v{r4}")
        t_.e(f"v_lshlrev_b32 v{u}, 4, v{u}")
        t_.e(f"s_lshl_b32 s{S_T0}, s{S_KH}, 6")
        t_.e(f"v_xor_b32 v{u}, s{S_T0}, v{u}")
        t_.e(f"v_mul_u32_u24 v{t}, 1152, v{t}")
        t_.e(f"s_mul_i32 s{S_T1}, s{S_W}, {56*1152}")
        t_.e(f"v_add_u32 v{t}, s{S_T1}, v{t}")
        t_.e(f"v_xor_b32 v{c4}, 64, v{u}")
        t_.e(f"v_add_u32 v{V_OFFX}, v{u}, v{t}")
        t_.e(f"v_add_u32 v{c4}, v{c4}, v{t}")
        for i in range(1, 7):
            src = V_OFFX if (i & 1) == 0 else c4
            k = i * 9216 - (i % 4) * 1024
            t_.e(f"v_add_u32 v{V_OFFX+i}, {k}, v{src}")
        t_.e(f"v_lshlrev_b32 v{t}, 2, v{g}")
        t_.e(f"v_xor_b32 v{t}, v{t}, v{l15}")
        t_.e(f"v_lshlrev_b32 v{t}, 4, v{t}")
        t_.e(f"v_lshlrev_b32 v{u}, 13, v{g}")
        t_.e(f"s_lshl_b32 s{S_T1}, s{S_W}, 17")
        t_.e(f"v_add_u32 v{u}, s{S_T1}, v{u}")
        t_.e(f"v_add_u32 v{V_OFFW}, v{t}, v{u}")
        for i in range(1, 4):
            t_.e(f"v_add_u32 v{V_OFFW+i}, {i*(32768-1024)}, v{V_OFFW}")
        t_.e(f"s_mul_i32 s{S_T0}, s{S_B}, 258048")
        t_.e(f"s_lshl_b32 s{S_T1}, s{S_H}, 8")
        t_.e(f"s_mov_b32 s{S_X+2}, 258048")
        t_.e(f"s_mov_b32 s{S_X+3}, 0x00020000")
        t_.e(f"s_sub_u32 s{S_WQ+2}, {576*8192}, s{S_T1}")
        t_.e(f"s_mov_b32 s{S_WQ+3}, 0x00020000")
        t_.e("s_waitcnt lgkmcnt(0)")
        t_.many(self.stamp())
        t_.e(f"s_add_u32 s{S_X}, s4, s{S_T0}")
        t_.e(f"s_addc_u32 s{S_X+1}, s5, 0")
        t_.e(f"s_add_u32 s{S_WQ}, s10, s{S_T1}")
        t_.e(f"s_addc_u32 s{S_WQ+1}, s11, 0")
        t_.many(self.x_dma(0))
        t_.many(self.x_dma(1))
        t_.e(f"s_lshl_b32 s{S_T0}, s{S_B}, 5")
        t_.e(f"s_add_u32 s{S_T0}, s{S_T0}, s{S_H}")
        t_.e(f"s_lshl_b32 s{S_T0}, s{S_T0}, 18")
        t_.e(f"s_add_u32 s{S_K}, s6, s{S_T0}")
        t_.e(f"s_addc_u32 s{S_K+1}, s7, 0")
        t_.e(f"s_mov_b32 s{S_K+2}, 262144")
        t_.e(f"s_mov_b32 s{S_K+3}, 0x00020000")
        t_.e(f"s_add_u32 s{S_V}, s8, s{S_T0}")
        t_.e(f"s_addc_u32 s{S_V+1}, s9, 0")
        t_.e(f"s_mov_b32 s{S_V+2}, 262144")
        t_.e(f"s_mov_b32 s{S_V+3}, 0x00020000")
        t_.e(f"s_mov_b32 s{S_O}, s12")
        t_.e(f"s_mov_b32 s{S_O+1}, s13")
        t_.e(f"s_mov_b32 s{S_O+2}, {112*self.QS}")
        t_.e(f"s_mov_b32 s{S_O+3}, 0x00020000")
        if o.fused:
            t_.e("s_load_dwordx4 s[4:7], s[0:1], 32")
            t_.e("s_load_dwordx2 s[8:9], s[0:1], 48")
        self.emit_kv_addr(rd=False, dma=True)
        t_.many(self.kv_dma("K", 0, "0"))
        if o.pfq:
            a0, a1 = 112, 113
            pl = V_T0
            t_.e(f"s_and_b32 s{S_T0}, s{S_H}, 7")
            t_.e(f"s_mul_i32 s{S_T0}, s{S_T0}, 32256")
            t_.e(f"s_lshl_b32 s{S_T1}, s{S_W}, 13")
            t_.e(f"s_add_u32 s{S_T0}, s{S_T0}, s{S_T1}")
            t_.e(f"v_lshlrev_b32 v{a0}, 7, v{pl}")
            t_.e(f"v_add_u32 v{a0}, s{S_T0}, v{a0}")
            t_.e(VM(f"buffer_load_dword v{V_PFD}, v{a0}, {sr(S_X)}, 0 offen{o.pfqpol}", "PF"))
            t_.e(f"s_and_b32 s{S_T0}, s{S_B}, 3")
            t_.e(f"s_mul_i32 s{S_T0}, s{S_T0}, 144")
            t_.e(f"s_mul_i32 s{S_T1}, s{S_W}, 36")
            t_.e(f"s_add_u32 s{S_T0}, s{S_T0}, s{S_T1}")
            t_.e(f"s_lshl_b32 s{S_T0}, s{S_T0}, 13")
            t_.e(f"v_lshrrev_b32 v{a0}, 1, v{pl}")
            t_.e(f"v_lshlrev_b32 v{a0}, 13, v{a0}")
            t_.e(f"v_and_b32 v{a1}, 1, v{pl}")
            t_.e(f"v_lshlrev_b32 v{a1}, 7, v{a1}")
            t_.e(f"v_add_u32 v{a0}, v{a0}, v{a1}")
            t_.e(f"v_add_u32 v{a0}, s{S_T0}, v{a0}")
            t_.e(VM(f"buffer_load_dword v{V_PFD}, v{a0}, {sr(S_WQ)}, 0 offen{o.pfqpol}", "PF"))
            t_.e(f"v_add_u32 v{a1}, {32*8192}, v{a0}")
            t_.e(f"v_mov_b32 v{a0}, 0x40000000")
            t_.e(f"v_cmp_gt_u32 vcc, 8, v{pl}")
            t_.e(f"v_cndmask_b32 v{a1}, v{a0}, v{a1}, vcc")
            t_.e(VM(f"buffer_load_dword v{V_PFD}, v{a1}, {sr(S_WQ)}, 0 offen{o.pfqpol}", "PF"))
        if self.pf_on:
            t_.e(f"s_lshr_b32 s{S_T0}, s{S_W}, 1")
            t_.e(f"s_cmp_eq_u32 s{S_T0}, 0")
            t_.e(f"s_cselect_b32 s{S_PF}, s{S_K}, s{S_V}")
            t_.e(f"s_cselect_b32 s{S_PF+1}, s{S_K+1}, s{S_V+1}")
            t_.e(f"s_and_b32 s{S_T0}, s{S_W}, 1")
            t_.e(f"s_lshl_b32 s{S_T0}, s{S_T0}, 13")
            t_.e(f"s_add_u32 s{S_PF}, s{S_PF}, s{S_T0}")
            t_.e(f"s_addc_u32 s{S_PF+1}, s{S_PF+1}, 0")
            t_.e(f"s_sub_u32 s{S_PF+2}, 262144, s{S_T0}")
            t_.e(f"s_mov_b32 s{S_PF+3}, 0x00020000")
            t_.e(f"v_lshlrev_b32 v112, 7, v{V_T0}")
            if o.pf0: t_.e(f"v_add_u32 v112, {o.pf0*16384}, v112")
            self.pfreg = 112
            for i in range(self.pfc[0]):
                t_.e(VM(f"buffer_load_dword v{V_PFD}, v112, {sr(S_PF)}, 0 offen{o.pfpol}", "PF"))
                t_.e(f"v_add_u32 v112, 16384, v112")
        t_.many(self.stamp())
        self.emit_kv_addr(rd=True, dma=False)
        sc = f32(1.4426950408889634 / (128 ** 0.5))
        t_.e(f"s_mov_b32 s{S_SC}, {hex(sc)}")
        t_.e(f"s_mov_b32 s{S_PASS}, 0")
        t_.e(f"v_bfe_u32 v{r4}, v{L}, 2, 2")
        t_.e(f"v_and_b32 v{c4}, 3, v{L}")
        t_.e(f"v_lshrrev_b32 v{t}, 1, v{l15}")
        t_.e(f"v_xor_b32 v{t}, v{t}, v{g}")
        t_.e(f"v_lshlrev_b32 v{t}, 4, v{t}")
        t_.e(f"v_lshlrev_b32 v{u}, 7, v{l15}")
        t_.e(f"s_mul_i32 s{S_T0}, s{S_QH}, {112*128}")
        t_.e(f"v_add_u32 v{u}, s{S_T0}, v{u}")
        t_.e(f"v_add_u32 v{V_XR}, v{t}, v{u}")
        t_.e(f"v_xor_b32 v{t}, 64, v{t}")
        t_.e(f"v_add_u32 v{V_XR+1}, v{t}, v{u}")
        t_.e(f"v_add_u32 v{V_XR+2}, 90112, v{V_XR}")
        t_.e(f"v_add_u32 v{V_XR+3}, 90112, v{V_XR+1}")
        t_.e(f"s_lshl_b32 s{S_T0}, s{S_KH}, 1")
        t_.e(f"v_xor_b32 v{t}, s{S_T0}, v{r4}")
        t_.e(f"v_lshlrev_b32 v{t}, 6, v{t}")
        t_.e(f"v_lshlrev_b32 v{u}, 3, v{g}")
        t_.e(f"v_add_u32 v{u}, v{u}, v{r4}")
        t_.e(f"v_lshlrev_b32 v{u}, 8, v{u}")
        t_.e(f"v_lshlrev_b32 v{c4}, 4, v{c4}")
        t_.e(f"v_add_u32 v{u}, v{u}, v{c4}")
        t_.e(f"v_add_u32 v{u}, 28672, v{u}")
        t_.e(f"v_add_u32 v{V_WR}, v{t}, v{u}")
        t_.e(f"v_xor_b32 v{t}, 64, v{t}")
        t_.e(f"v_add_u32 v{V_WR+1}, v{t}, v{u}")
        t_.e(f"v_add_u32 v{V_WR+2}, 90112, v{V_WR}")
        t_.e(f"v_add_u32 v{V_WR+3}, 90112, v{V_WR+1}")
        t_.e(f"v_lshlrev_b32 v{t}, 4, v{L}")
        t_.e(f"s_mul_i32 s{S_T0}, s{S_QH}, 28672")
        t_.e(f"v_add_u32 v{V_QR}, s{S_T0}, v{t}")
        t_.e(f"s_mul_i32 s{S_T1}, s{S_KH}, 14336")
        t_.e(f"v_add_u32 v{V_QW}, s{S_T1}, v{V_QR}")
        for i in range(28):
            t_.e(f"v_mov_b32 v{V_NEGM+i}, 0")
        t_.e(f"v_mov_b32 v{t}, 0x3f803f80")
        for i in range(4):
            t_.e(f"v_accvgpr_write_b32 a{A_ONES+i}, v{t}")
        if self.pf_on:
            t_.e(f"v_mov_b32 v{V_PF}, v112")
        for k in range(9):
            t_.c(f"---- Q-proj period {k}")
            t_.e(WV(f"X{k}"))
            if k: t_.e(WL(f"R{k-1}"))
            t_.e("s_barrier")
            if k in (0, 1, 8):
                t_.many(self.stamp())
            rd = self.q_reads(k)
            if k <= 6:
                dm = self.x_dma(k + 2)
            elif k == 7:
                dm = self.kv_dma("V", 0, "0") + [f"s_mov_b32 s{S_SOKV}, 16384"] + self.kv_dma("K", 1, f"s{S_SOKV}") + \
                     self.kv_dma("V", 1, f"s{S_SOKV}")
            else:
                dm = [f"s_mov_b32 s{S_SOKV}, 32768"] + self.kv_dma("K", 2, f"s{S_SOKV}") + self.kv_dma("V", 2, f"s{S_SOKV}")
            for i in range(self.pfc[k + 1]): dm = dm + self.kv_touch()
            if k == 0:
                t_.many(rd); t_.many(dm)
                continue
            S = Sched(self.q_mfmas(k - 1, k == 1))
            pos = [g for g in range(56) if g % 5 != 2][:len(rd)]
            for p_, r_ in zip(pos, rd): S.post[p_].append(r_)
            nvm = sum(isinstance(x, VM) for x in dm)
            step = 56.0 / nvm
            i = 0
            pend = []
            for x in dm:
                if isinstance(x, VM):
                    gpos = int(i * step + 2 - (i * step + 2) % 1)
                    gpos = min(55, gpos)
                    if pend:
                        S.post[gpos - 1] += pend; pend = []
                    S.post[gpos].append(x); i += 1
                else:
                    pend.append(x)
            if pend: S.post[55] += pend
            if o.fused and k in (3, 4, 8):
                extra = {3: self.b_addr_s, 4: self.b_addr_v, 8: self.b_srd}[k]()
                for i, x in enumerate(extra): S.post[38 + (i * 17) // len(extra)].append(x)
            S.emit(t_)
        t_.c("---- Q-proj period 9 + finalisation")
        t_.e(WL("R8"))
        t_.e("s_barrier")
        t_.many(self.stamp())
        groups = [(jj, qt) for jj in range(2) for qt in range(7)]
        mf = []
        for (jj, qt) in groups:
            for s in range(2):
                for T in (2 * jj, 2 * jj + 1):
                    mf.append(self.q_mf(8, s, T, qt, False))
        S = Sched(mf)
        def fin(gi):
            jj, qt = groups[gi]
            tb = V_QT + (gi & 1) * 4
            r0 = ((2 * jj) * 7 + qt) * 4
            r1 = ((2 * jj + 1) * 7 + qt) * 4
            m0_ = [f"v_mul_f32 v{r0+i}, s{S_SC}, v{r0+i}" for i in range(4)]
            m1_ = [f"v_mul_f32 v{r1+i}, s{S_SC}, v{r1+i}" for i in range(4)]
            c_ = [f"v_cvt_pk_bf16_f32 v{tb}, v{r0}, v{r0+1}", f"v_cvt_pk_bf16_f32 v{tb+1}, v{r0+2}, v{r0+3}",
                  f"v_cvt_pk_bf16_f32 v{tb+2}, v{r1}, v{r1+1}", f"v_cvt_pk_bf16_f32 v{tb+3}, v{r1+2}, v{r1+3}"]
            w_ = DS(f"ds_write_b128 v{V_QW}, {vr(tb)} offset:{(jj*7+qt)*1024}", "qw")
            return m0_, m1_, c_, w_
        for gi in range(13):
            m0_, m1_, c_, w_ = fin(gi)
            b = 4 * (gi + 1) + 1
            S.post[b] += m0_; S.post[b + 1] += m1_; S.post[b + 2] += c_; S.post[b + 3] += [w_]
        kr = [self.k_read(kt, ks, 0) for kt in range(2) for ks in range(4)]
        for i, x in enumerate(kr): S.post[i].append(x)
        S.emit(t_)
        t_.e("s_nop 7")
        m0_, m1_, c_, w_ = fin(13)
        t_.many(m0_); t_.many(m1_); t_.many(c_); t_.e(w_)
        t_.e(WL("qw"))
        t_.e(WV("V0"))
        t_.e("s_barrier")
        t_.many(self.stamp())
        if o.dbgq:
            for qt in range(7): t_.many(self.q_read(qt))
            t_.e(WALL('l'))
            t_.e(f"s_lshl_b32 s{S_T0}, s2, 2")
            t_.e(f"s_add_u32 s{S_T0}, s{S_T0}, s{S_W}")
            t_.e(f"s_mul_i32 s{S_T0}, s{S_T0}, 28672")
            t_.e(f"s_add_u32 s{S_T0}, s{S_T0}, {32<<20}")
            t_.e(f"s_mov_b32 s{S_O+2}, {256<<20}")
            t_.e(f"v_and_b32 v{V_T0}, 63, v{V_TID}")
            t_.e(f"v_lshlrev_b32 v{V_T0}, 4, v{V_T0}")
            for i in range(28):
                t_.e(f"buffer_store_dwordx4 {ar(A_Q + i*4)}, v{V_T0}, {sr(S_O)}, s{S_T0} offen")
                t_.e(f"s_add_u32 s{S_T0}, s{S_T0}, 1024")
            t_.e("s_waitcnt vmcnt(0)")
            t_.e(f"s_mov_b32 s{S_O+2}, {112*self.QS}")
        t_.lab("A_ATT")
        t_.many(self.q_read(0)); t_.many(self.q_read(1))
        t_.e(f"v_add_u32 v{V_OFFKV}, {3*16384}, v{V_OFFKV}")
        t_.e(f"v_add_u32 v{V_OFFKV+1}, {3*16384}, v{V_OFFKV+1}")
        self.preamble(True)
        self.body()
        self.epilogue()
        t_.lab("CT_END")
        self.slowpath()
        t_.lab("A_END")
        t_.e("s_endpgm")
        return "\n".join(t_.L)

    def preamble(self, with_q):
        t_ = self.t
        vr_ = [self.v_read(tp, hf, 0) for tp in range(7) for hf in range(2)]
        t_.e(WL("k0.0", "k0.1", "q0"))
        S = Sched(self.qk_mfmas(0, 0))
        for i, x in enumerate(vr_): S.post[i // 2].append(x)
        if with_q:
            q2 = self.q_read(2)
            S.post[7] += q2
        S.emit(t_)
        t_.e(WL("q1"))
        m1 = self.qk_mfmas(1, 1)
        ex = self.exps(0); cv = self.cvts(0)
        S = Sched(m1)
        S.post[0] += ex[0:2]; S.post[1] += ex[2:4]; S.post[2] += ex[4:6]; S.post[3] += ex[6:8]
        S.post[4] += cv[0:2]; S.post[5] += cv[2:4]
        S.emit(t_)
        t_.many(self.stamp())

    def body(self):
        t_ = self.t
        texts = []
        start = len(t_.L)
        for n in range(4):
            self.tile(n)
        i0 = len(t_.L)
        if self.o.unroll:
            for n in range(4, 12): self.tile(n)
            t_.many(self.stamp())
            for n in range(12, 16): self.tile(n)
            t_.many(self.stamp())
            return
        for n in range(4, 8): self.tile(n)
        i1 = len(t_.L)
        for n in range(8, 12): self.tile(n)
        i2 = len(t_.L)
        strip = lambda xs: [x for x in xs if not x.strip().startswith(";")]
        assert strip(t_.L[i0:i1]) == strip(t_.L[i1:i2]), "loop iterations differ"
        body = t_.L[i0:i1]
        t_.L = t_.L[:i0]
        t_.e(f"s_mov_b32 s{S_CNT}, 2")
        t_.lab("A_LOOP")
        t_.L += body
        t_.e(f"s_sub_u32 s{S_CNT}, s{S_CNT}, 1")
        t_.e(f"s_cmp_lg_u32 s{S_CNT}, 0")
        t_.e("s_cbranch_scc1 A_LOOP")
        t_.many(self.stamp())
        for n in range(12, 16): self.tile(n)
        t_.many(self.stamp())

    def fin_tile(self, qt, pb, tb, lt):
        r = []
        ob = V_OOWN + qt * 16
        r.append(f"v_accvgpr_read_b32 v{lt}, a{A_L + 4*qt}")
        r.append(f"v_add_f32 v{lt}, v{lt}, v{lt+1}")
        r.append(f"v_rcp_f32 v{lt}, v{lt}")
        for k in range(8):
            r.append(f"v_pk_add_f32 {vr(ob+2*k,2)}, {vr(ob+2*k,2)}, {vr(pb+2*k,2)}")
        for k in range(8):
            r.append(f"v_pk_mul_f32 {vr(ob+2*k,2)}, {vr(ob+2*k,2)}, {vr(lt,2)} op_sel:[0,0] op_sel_hi:[1,0]")
        for jj in range(2):
            s0 = ob + jj * 8
            for k in range(4):
                r.append(f"v_cvt_pk_bf16_f32 v{tb + jj*4 + k}, v{s0 + 2*k}, v{s0 + 2*k + 1}")
        pol = " sc1" if (self.o.osc1 or self.o.fused) else ""
        for jj in range(2):
            off = " offset:1024" if jj else ""
            r.append(VM(f"buffer_store_dwordx4 {vr(tb + jj*4)}, v{V_T0+1}, {sr(S_O)}, s{S_OB} offen{off}{pol}", "ost"))
        r.append(f"s_add_u32 s{S_OB}, s{S_OB}, {self.QS}")
        return r

    def p_reads(self, qt, pb, lt):
        r = []
        for tpp in range(4):
            i = qt * 4 + tpp
            r.append(DS(f"ds_read_b128 {vr(pb + tpp*4)}, v{V_KA+2} offset:{i*1024}", f"p{qt}"))
        r.append(DS(f"ds_read_b32 v{lt+1}, v{V_KA+3} offset:{qt*256}", f"p{qt}"))
        return r

    def epilogue(self):
        t_ = self.t
        o = self.o
        t_.c("---- epilogue")
        PB = [112, 128, 144, 160]
        LT = [V_NEGM + 16, V_NEGM + 18, V_NEGM + 20, V_NEGM + 22]
        TB = [V_NEGM, V_NEGM + 8]
        t_.many(self.p_reads(0, PB[0], LT[0]))
        t_.many(self.p_reads(1, PB[1], LT[1]))
        t_.e("s_nop 7")
        t_.many(self.o_writes(6))
        t_.many(self.p_reads(2, PB[2], LT[2]))
        t_.many(self.p_reads(3, PB[3], LT[3]))
        T = V_S
        lo, hi = f32(2.0 ** -24), f32(2.0 ** 30)
        t_.e(f"s_mov_b32 s{S_T0}, {hex(lo)}")
        t_.e(f"s_mov_b32 s{S_T1}, {hex(hi - lo)}")
        for qt in range(7):
            t_.e(f"v_accvgpr_read_b32 v{T+qt}, a{A_L + 4*qt}")
        t_.e(f"v_subrev_u32 v{T+8}, s{S_T0}, v{T}")
        for qt in range(1, 7):
            t_.e(f"v_subrev_u32 v{T+9}, s{S_T0}, v{T+qt}")
            t_.e(f"v_max_u32 v{T+8}, v{T+8}, v{T+9}")
        t_.e(f"v_cmp_lt_u32 vcc, s{S_T1}, v{T+8}")
        t_.e(f"s_lshl_b32 s{S_T3}, s{S_W}, 2")
        t_.e(f"s_add_u32 s{S_T3}, s{S_T3}, {FOFF}")
        t_.e(f"s_cmp_lg_u64 vcc, 0")
        t_.e(f"s_cselect_b32 s{S_T2}, 1, 0")
        t_.e(f"v_mov_b32 v{T+10}, s{S_T2}")
        t_.e(f"v_and_b32 v{T+11}, 3, v{V_TID}")
        t_.e(f"v_mul_u32_u24 v{T+11}, {RG}, v{T+11}")
        t_.e(f"v_add_u32 v{T+11}, s{S_T3}, v{T+11}")
        t_.e(DS(f"ds_write_b32 v{T+11}, v{T+10}", "fl"))
        for qt in range(4):
            t_.e(WL(f"p{qt}"))
            t_.many(self.fin_tile(qt, PB[qt], TB[qt & 1], LT[qt]))
            if o.fused: t_.many(self.wo_dma(2 + qt))
        t_.e(WL("fl", "ow4", "ow5", "ow6"))
        t_.e("s_barrier")
        t_.many(self.stamp())
        F = V_P + 4
        t_.e(f"s_mul_i32 s{S_T0}, s{S_W}, {RG}")
        t_.e(f"s_add_u32 s{S_T0}, s{S_T0}, {FOFF}")
        t_.e(f"v_mov_b32 v{T+11}, s{S_T0}")
        t_.e(DS(f"ds_read_b128 {vr(F)}, v{T+11}", "flr"))
        for qt in range(4, 7):
            t_.many(self.p_reads(qt, PB[qt - 4], LT[qt - 4]))
        t_.e(WL("flr"))
        t_.e(f"v_or_b32 v{F}, v{F}, v{F+1}")
        t_.e(f"v_or_b32 v{F+2}, v{F+2}, v{F+3}")
        t_.e(f"v_or_b32 v{F}, v{F}, v{F+2}")
        t_.e("s_nop 1")
        t_.e(f"v_readfirstlane_b32 s{S_T0}, v{F}")
        t_.e(f"s_xor_b32 s{S_T1}, s{S_PASS}, 1")
        t_.e(f"s_and_b32 s{S_T0}, s{S_T0}, s{S_T1}")
        t_.e(f"s_cmp_lg_u32 s{S_T0}, 0")
        t_.e("s_cbranch_scc1 A_SLOW")
        for qt in range(4, 7):
            t_.e(WL(f"p{qt}"))
            if o.fused:
                t_.many(self.wo_dma(2 + qt))
                if qt == 6: t_.many(self.wo_dma(9))
            t_.many(self.fin_tile(qt, PB[qt - 4], TB[qt & 1], LT[qt - 4]))
        t_.many(self.stamp())
        if o.fused: self.phase_b()
        if o.stamps:
            t_.e(f"s_memrealtime s[{S_ST+38}:{S_ST+39}]")
            t_.e("s_waitcnt lgkmcnt(0)")
            t_.e(f"s_cmp_lg_u32 s{S_W}, 0")
            t_.e("s_cbranch_scc1 A_END")
            ns = 20
            t_.e(f"s_mul_i32 s{S_T0}, s2, {ns*4*2}")
            t_.e(f"s_add_u32 s{S_T0}, s{S_T0}, {64<<20}")
            t_.e(f"s_mov_b32 s{S_O+2}, {256<<20}")
            t_.e(f"v_mov_b32 v{V_T0+1}, 0")
            for i in range(ns * 2):
                if 2 * self.nst <= i < 36:
                    t_.e(f"v_mov_b32 v{V_T0}, 0")
                else:
                    t_.e(f"v_mov_b32 v{V_T0}, s{S_ST+i}")
                t_.e(f"buffer_store_dword v{V_T0}, v{V_T0+1}, {sr(S_O)}, s{S_T0} offen offset:{i*4}")
                t_.e("s_nop 1")
        t_.e("s_endpgm")

    def b_addr_v(self):
        L, t0, t1, t2 = 184, 185, 186, 187
        r = []
        r.append(f"v_and_b32 v{L}, 63, v{V_TID}")
        r.append(f"v_lshrrev_b32 v{t0}, 3, v{L}")
        r.append(f"v_and_b32 v{t1}, 7, v{L}")
        r.append(f"v_bfe_u32 v{t2}, v{L}, 4, 2")
        r.append(f"v_lshlrev_b32 v{t2}, 1, v{t2}")
        r.append(f"v_xor_b32 v{t1}, v{t1}, v{t2}")
        r.append(f"v_lshlrev_b32 v{t1}, 4, v{t1}")
        r.append(f"v_mul_u32_u24 v{t0}, 1152, v{t0}")
        r.append(f"v_add_u32 v{V_WOF}, v{t0}, v{t1}")
        for i in range(1, 4):
            r.append(f"v_add_u32 v{V_WOF+i}, {i*(9216-1024)}, v{V_WOF}")
        r.append(f"v_lshrrev_b32 v{t0}, 2, v{L}")
        r.append(f"v_bfe_u32 v{t1}, v{L}, 3, 2")
        r.append(f"v_lshlrev_b32 v{t1}, 5, v{t1}")
        r.append(f"v_lshlrev_b32 v{t0}, 7, v{t0}")
        r.append(f"v_and_b32 v{t2}, 3, v{L}")
        r.append(f"v_lshlrev_b32 v{t2}, 3, v{t2}")
        r.append(f"v_add_u32 v{t0}, v{t0}, v{t2}")
        r.append(f"v_add_u32 v{t0}, s{S_RB}, v{t0}")
        for nt in range(4):
            r.append(f"v_xor_b32 v{V_TR+nt}, {nt*32}, v{t1}")
            r.append(f"v_add_u32 v{V_TR+nt}, v{V_TR+nt}, v{t0}")
        return r

    def b_addr_s(self):
        r = []
        r.append(f"s_mul_i32 s{S_RB}, s{S_W}, {RG}")
        r.append(f"s_and_b32 s{S_T0}, s2, 7")
        r.append(f"s_lshr_b32 s{S_T1}, s2, 3")
        r.append(f"s_and_b32 s{S_T2}, s{S_T0}, 1")
        r.append(f"s_lshl_b32 s{S_T2}, s{S_T2}, 5")
        r.append(f"s_add_u32 s{S_T1}, s{S_T1}, s{S_T2}")
        r.append(f"s_lshr_b32 s{S_T0}, s{S_T0}, 1")
        r.append(f"s_mul_i32 s{S_T0}, s{S_T0}, 7")
        if self.o.bmap == 0:
            r.append(f"s_mul_i32 s{S_NG}, s{S_T1}, 37")
            r.append(f"s_lshr_b32 s{S_NG}, s{S_NG}, 8")
            r.append(f"s_mul_i32 s{S_T2}, s{S_NG}, 7")
            r.append(f"s_sub_u32 s{S_T2}, s{S_T1}, s{S_T2}")
            r.append(f"s_add_u32 s{S_MG}, s{S_T2}, s{S_T0}")
        else:
            r.append(f"s_mul_i32 s{S_T2}, s{S_T1}, 57")
            r.append(f"s_lshr_b32 s{S_T2}, s{S_T2}, 9")
            r.append(f"s_add_u32 s{S_MG}, s{S_T2}, s{S_T0}")
            r.append(f"s_mul_i32 s{S_T2}, s{S_T2}, 9")
            r.append(f"s_sub_u32 s{S_NG}, s{S_T1}, s{S_T2}")
        r.append(f"s_cmp_ge_u32 s{S_T1}, 63")
        r.append(f"s_cselect_b32 s{S_NG}, 15, s{S_NG}")
        r.append(f"s_cselect_b32 s{S_MG}, 0, s{S_MG}")
        r.append(f"s_mul_i32 s{S_T0}, s{S_W}, {1024*1152}")
        r.append(f"s_lshl_b32 s{S_T1}, s{S_NG}, 7")
        r.append(f"s_add_u32 s{S_SW}, s{S_T0}, s{S_T1}")
        r.append(f"s_mul_i32 s{S_T0}, s{S_MG}, {4*self.QS}")
        r.append(f"s_lshl_b32 s{S_T1}, s{S_W}, 15")
        r.append(f"s_add_u32 s{S_SO}, s{S_T0}, s{S_T1}")
        r.append(f"s_lshl_b32 s{S_T0}, s{S_MG}, 2")
        r.append(f"s_mul_i32 s{S_T1}, s{S_T0}, 147")
        r.append(f"s_lshr_b32 s{S_T1}, s{S_T1}, 11")
        r.append(f"s_lshl_b32 s{S_L0}, s{S_T1}, 3")
        r.append(f"s_add_u32 s{S_T0}, s{S_T0}, 3")
        r.append(f"s_mul_i32 s{S_T1}, s{S_T0}, 147")
        r.append(f"s_lshr_b32 s{S_T1}, s{S_T1}, 11")
        r.append(f"s_lshl_b32 s{S_L1}, s{S_T1}, 3")
        return r

    def b_srd(self):
        r = []
        r.append(f"s_mov_b32 s{S_WO}, s4"); r.append(f"s_mov_b32 s{S_WO+1}, s5")
        r.append(f"s_mov_b32 s{S_WO+2}, {4096*1152}"); r.append(f"s_mov_b32 s{S_WO+3}, 0x00020000")
        r.append(f"s_mov_b32 s{S_OUT}, s6"); r.append(f"s_mov_b32 s{S_OUT+1}, s7")
        r.append(f"s_mov_b32 s{S_OUT+2}, {1792*1152}"); r.append(f"s_mov_b32 s{S_OUT+3}, 0x00020000")
        return r

    @staticmethod
    def slot(f): return (f + 8) % 10

    def wo_dma(self, f):
        r = [f"s_add_u32 s{S_SWC}, s{S_SW}, {f*32*1152}", f"s_add_u32 m0, s{S_RB}, {self.slot(f)*4096}"]
        for i in range(4):
            off = f" offset:{i*1024}" if i else ""
            r.append(VM(f"buffer_load_dwordx4 v{V_WOF+i}, {sr(S_WO)}, s{S_SWC} offen{off} lds", f"W{f}"))
        return r

    def tr_reads(self, f, unit):
        k, b = unit
        r = []
        for nt in range(4):
            for hf in range(2):
                r.append(DS(f"ds_read_b64_tr_b16 {k}[{b + nt*4 + 2*hf}:{b + nt*4 + 2*hf + 1}], v{V_TR+nt} offset:{self.slot(f)*4096 + hf*2048}", f"t{f}"))
        return r

    def phase_b(self):
        t_, o = self.t, self.o
        NR, D, NL = o.nr, o.od, 10
        units = [("a", 16*i) for i in range(16)] + [("v", 64 + 16*i) for i in range(10)]
        assert NR + 2 + D <= len(units)
        res = units[:NR]; jit = units[-(D + 2):-D]; ring = units[-D:]
        U = lambda u, off: f"{u[0]}[{u[1]+off}:{u[1]+off+3}]"
        NK = 32
        order = list(range(NR, NR + NL)) + list(range(NR)) + list(range(NR + NL, NK))
        t_.c("---- out-projection: weight prefetch + publish")
        for mi in range(1, 4):
            t_.e(f"v_add_u32 v{V_OO[mi]}, {mi*self.QS}, v{V_OO[0]}")
        def publish():
            t_.e(WV("ost"))
            t_.e("s_barrier")
            t_.e(f"s_cmp_lg_u32 s{S_W}, 0")
            t_.e("s_cbranch_scc1 B_PUB")
            t_.e(f"s_lshl_b32 s{S_T0}, s{S_B}, 5")
            t_.e(f"v_mov_b32 v{V_S}, s{S_T0}")
            t_.e(f"v_mov_b32 v{V_S+1}, 1")
            t_.e("s_mov_b64 exec, 1")
            t_.e(f"global_atomic_add v{V_S}, v{V_S+1}, s[8:9]")
            t_.e("s_mov_b64 exec, -1")
            t_.lab("B_PUB")
            t_.many(self.stamp())
            t_.e(f"s_cmp_eq_u32 s{S_NG}, 15")
            t_.e("s_cbranch_scc1 A_END")
        published = False
        nxt = NL
        for f in range(NR):
            if f == o.npre and not published:
                publish(); published = True
            t_.e(WV(f"W{f}"))
            t_.many(self.tr_reads(f, res[f]))
            if f >= 1:
                t_.e(WL(f"t{f-1}"))
                if nxt < NK: t_.many(self.wo_dma(nxt)); nxt += 1
        if not published:
            publish(); published = True
        t_.e(WL(f"t{NR-1}"))
        if nxt < NK: t_.many(self.wo_dma(nxt)); nxt += 1
        for i in range(2):
            f = order[i]
            t_.e(WV(f"W{f}"))
            t_.many(self.tr_reads(f, jit[i]))
        for i in range(2):
            t_.e(WL(f"t{order[i]}"))
            if nxt < NK: t_.many(self.wo_dma(nxt)); nxt += 1
        t_.many(self.stamp())
        P, Q = V_S, V_S + 1
        t_.e(f"s_cmp_lg_u32 s{S_W}, 0")
        t_.e("s_cbranch_scc1 B_GO")
        t_.e(f"v_and_b32 v{Q}, 63, v{V_TID}")
        t_.e(f"v_lshlrev_b32 v{Q}, 2, v{Q}")
        t_.e(f"s_mov_b32 s{S_CNT}, 200000")
        t_.lab("B_POLL")
        t_.e(f"global_load_dword v{P}, v{Q}, s[8:9] sc1")
        t_.e("s_waitcnt vmcnt(0)")
        t_.e(f"v_readlane_b32 s{S_T0}, v{P}, s{S_L0}")
        t_.e(f"v_readlane_b32 s{S_T1}, v{P}, s{S_L1}")
        t_.e(f"s_min_u32 s{S_T0}, s{S_T0}, s{S_T1}")
        t_.e(f"s_cmp_ge_u32 s{S_T0}, 32")
        t_.e("s_cbranch_scc1 B_GO")
        t_.e(f"s_sub_u32 s{S_CNT}, s{S_CNT}, 1")
        t_.e(f"s_cmp_eq_u32 s{S_CNT}, 0")
        t_.e("s_cbranch_scc1 B_GO")
        t_.e("s_sleep 1")
        t_.e("s_branch B_POLL")
        t_.lab("B_GO")
        t_.e("s_barrier")
        t_.many(self.stamp())
        def o_soff(i): return f"s_add_u32 s{S_SOC}, s{S_SO}, {order[i]*1024}"
        def o_load(i, mi):
            if o.bnold and i >= D: return "s_nop 0"
            return VM(f"buffer_load_dwordx4 {U(ring[i % D], mi*4)}, v{V_OO[mi]}, {sr(S_O)}, s{S_SOC} offen{' sc1' if o.olsc else ''}", f"O{i}.{mi}")
        if o.b2x:
            t_.e(f"s_mov_b32 s{S_CNT}, 2")
            t_.lab("B_2X")
        for i in range(D):
            t_.e(o_soff(i))
            for mi in range(4): t_.e(o_load(i, mi))
        for i in range(NK):
            f = order[i]
            inlds = f >= NR
            wu = jit[i & 1] if inlds else res[f]
            if i == NK - (NK - NR - NL) and (i & 1) != ((NL) & 1):
                pass
            mf = []
            for mi in range(4):
                for nt in range(4):
                    d = vr((mi*4 + nt)*4)
                    mf.append(f"{MF} {d}, {U(wu, nt*4)}, {U(ring[i % D], mi*4)}, {'0' if i == 0 else d}")
            if o.bnomf: mf = ["s_nop 0"] * 16
            S = Sched(mf)
            if inlds: S.pre[0].append(WL(f"t{f}"))
            if inlds: S.pre[0].append(WV(f"W{f}"))
            for mi in range(4): S.pre[4*mi].append(WV(f"O{i}.{mi}"))
            if i + D < NK:
                S.post[0].append(o_soff(i + D))
                for mi in range(4): S.post[4*mi + 3].append(o_load(i + D, mi))
            if i + 1 < NK and order[i + 1] >= NR and (i + 1) >= 2:
                fn = order[i + 1]
                rd = self.tr_reads(fn, jit[(i + 1) & 1])
                S.post[1].append(WV(f"W{fn}"))
                for k, x in enumerate(rd): S.post[1 + k].append(x)
            if inlds and i >= 2 and nxt < NK:
                d = self.wo_dma(nxt); nxt += 1
                S.post[9] += d[:2]; S.post[10].append(d[2]); S.post[12].append(d[3]); S.post[13].append(d[4]); S.post[14].append(d[5])
            S.emit(t_)
        assert nxt == NK
        if o.b2x:
            t_.e(f"s_cmp_eq_u32 s{S_CNT}, 2")
            t_.e("s_cbranch_scc0 B_2XE")
            t_.e(f"s_memtime s[{S_ST+2}:{S_ST+3}]")
            t_.e(f"s_mov_b32 s{S_CNT}, 1")
            t_.e("s_branch B_2X")
            t_.lab("B_2XE")
        t_.many(self.stamp())
        t0, t1, t2, t3, t4, L = 64, 65, 66, 67, 68, 69
        TRW = 70
        t_.e(f"v_and_b32 v{L}, 63, v{V_TID}")
        t_.e(f"v_and_b32 v{t0}, 15, v{L}")
        t_.e(f"v_lshrrev_b32 v{t1}, 4, v{L}")
        t_.e(f"v_xor_b32 v{t1}, v{t1}, v{t0}")
        t_.e(f"v_lshlrev_b32 v{t1}, 4, v{t1}")
        t_.e(f"v_lshlrev_b32 v{t0}, 8, v{t0}")
        t_.e(f"v_add_u32 v{t0}, s{S_RB}, v{t0}")
        for nt in range(4):
            t_.e(f"v_xor_b32 v{TRW+nt}, {nt*64}, v{t1}")
            t_.e(f"v_add_u32 v{TRW+nt}, v{TRW+nt}, v{t0}")
        t_.e("s_nop 7")
        for mi in range(4):
            for nt in range(4):
                t_.e(DS(f"ds_write_b128 v{TRW+nt}, {vr((mi*4+nt)*4)} offset:{mi*4096}", "rw"))
        t_.e(f"v_lshrrev_b32 v{t0}, 3, v{L}")
        t_.e(f"s_lshl_b32 s{S_T0}, s{S_W}, 4")
        t_.e(f"v_add_u32 v{t0}, s{S_T0}, v{t0}")
        t_.e(f"v_and_b32 v{t1}, 7, v{L}")
        t_.e(f"v_lshlrev_b32 v{t1}, 1, v{t1}")
        AD = 80
        for ps in range(2):
            if ps: t_.e(f"v_add_u32 v{t0}, 8, v{t0}")
            t_.e(f"v_and_b32 v{t2}, 15, v{t0}")
            t_.e(f"v_xor_b32 v{t3}, v{t1}, v{t2}")
            t_.e(f"v_lshlrev_b32 v{t3}, 4, v{t3}")
            t_.e(f"v_lshlrev_b32 v{t4}, 8, v{t0}")
            t_.e(f"v_add_u32 v{AD+ps*4}, v{t3}, v{t4}")
            t_.e(f"v_xor_b32 v{AD+ps*4+1}, 16, v{AD+ps*4}")
            t_.e(f"v_add_u32 v{AD+ps*4+2}, {2*RG}, v{AD+ps*4}")
            t_.e(f"v_add_u32 v{AD+ps*4+3}, {2*RG}, v{AD+ps*4+1}")
            t_.e(f"s_lshl_b32 s{S_T0}, s{S_MG}, 6")
            t_.e(f"v_add_u32 v{t4}, s{S_T0}, v{t0}")
            t_.e(f"v_mul_u32_u24 v{t4}, 1152, v{t4}")
            t_.e(f"v_lshlrev_b32 v{t2}, 3, v{t1}")
            t_.e(f"v_add_u32 v{88+ps}, v{t4}, v{t2}")
        t_.e(WL("rw"))
        t_.e("s_barrier")
        R = 96
        for ps in range(2):
            for wv in range(4):
                for ch in range(2):
                    a = AD + ps*4 + ch + (2 if wv >= 2 else 0)
                    off = (wv & 1) * RG
                    t_.e(DS(f"ds_read_b128 {vr(R + ps*32 + wv*8 + ch*4)}, v{a} offset:{off}", f"rr{ps}"))
        t_.e(f"s_lshl_b32 s{S_T1}, s{S_NG}, 7")
        for ps in range(2):
            t_.e(WL(f"rr{ps}"))
            B_ = R + ps*32
            for k in range(4):
                t_.e(f"v_pk_add_f32 {vr(B_+2*k,2)}, {vr(B_+2*k,2)}, {vr(B_+8+2*k,2)}")
                t_.e(f"v_pk_add_f32 {vr(B_+16+2*k,2)}, {vr(B_+16+2*k,2)}, {vr(B_+24+2*k,2)}")
            for k in range(4):
                t_.e(f"v_pk_add_f32 {vr(B_+2*k,2)}, {vr(B_+2*k,2)}, {vr(B_+16+2*k,2)}")
            for k in range(4):
                t_.e(f"v_cvt_pk_bf16_f32 v{72 + ps*4 + k}, v{B_+2*k}, v{B_+2*k+1}")
            t_.e(VM(f"buffer_store_dwordx4 {vr(72 + ps*4)}, v{88+ps}, {sr(S_OUT)}, s{S_T1} offen", "out"))
        t_.many(self.stamp())

    def slowpath(self):
        a = self.t
        a.lab("A_SLOW")
        a.c("---- fallback: true row maximum, then redo the attention loop with it")
        a.lq, a.vq = [], []
        a.e("s_waitcnt vmcnt(0) lgkmcnt(0)")
        a.e("s_barrier")
        a.e(f"s_mov_b32 s{S_PASS}, 1")
        self.emit_kv_addr()
        for qt in range(7):
            a.e(f"v_mov_b32 v{V_NEGM + 4*qt}, 0xff800000")
        KA = V_V
        for ks in range(4):
            a.e(f"v_subrev_u32 v{KA+ks}, {PAIR(0)+16384}, v{V_KA+ks}")
        a.e(f"s_mov_b32 s{S_SOKV}, 0")
        a.lab("A_MAXLOOP")
        a.many([x.t if isinstance(x, VM) else x for x in self.kv_dma("K", 0, f"s{S_SOKV}", lds=0)])
        a.e("s_waitcnt vmcnt(0)")
        a.e("s_barrier")
        for kt in range(2):
            for ks in range(4):
                off = f" offset:{kt*4096}" if kt else ""
                a.e(f"ds_read_b128 {vr(V_K + (kt*4+ks)*4)}, v{KA+ks}{off}")
        a.e("s_waitcnt lgkmcnt(0)")
        for qt in range(7):
            for kt in range(2):
                for ks in range(4):
                    d = vr(V_S + kt * 4)
                    a.e(f"{MF} {d}, {vr(V_K + (kt*4+ks)*4)}, {ar(A_Q + (qt*4+ks)*4)}, {'0' if ks == 0 else d}")
            a.e("s_nop 15")
            m = V_NEGM + 4 * qt
            for i in range(4):
                a.e(f"v_max3_f32 v{m}, v{m}, v{V_S+2*i}, v{V_S+2*i+1}")
            a.e("s_nop 3")
        a.e("s_barrier")
        a.e(f"s_add_u32 s{S_SOKV}, s{S_SOKV}, 16384")
        a.e(f"s_cmp_lt_u32 s{S_SOKV}, 262144")
        a.e("s_cbranch_scc1 A_MAXLOOP")
        L, t, u = V_T0, V_T0 + 1, V_T0 + 2
        a.e(f"v_and_b32 v{L}, 63, v{V_TID}")
        a.e(f"v_lshlrev_b32 v{t}, 2, v{L}")
        a.e(f"s_mul_i32 s{S_T0}, s{S_W}, 1792")
        a.e(f"s_add_u32 s{S_T0}, s{S_T0}, {MXX}")
        a.e(f"v_add_u32 v{t}, s{S_T0}, v{t}")
        for qt in range(7):
            a.e(f"ds_write_b32 v{t}, v{V_NEGM + 4*qt} offset:{qt*256}")
        a.e("s_waitcnt lgkmcnt(0)")
        a.e("s_barrier")
        a.e(f"v_and_b32 v{u}, 15, v{L}")
        a.e(f"v_lshlrev_b32 v{u}, 2, v{u}")
        a.e(f"s_mul_i32 s{S_T0}, s{S_QH}, 3584")
        a.e(f"s_add_u32 s{S_T0}, s{S_T0}, {MXX}")
        a.e(f"v_add_u32 v{u}, s{S_T0}, v{u}")
        for qt in range(7):
            for i in range(8):
                off = (i >> 2) * 1792 + qt * 256 + (i & 3) * 64
                a.e(f"ds_read_b32 v{V_S+i}, v{u} offset:{off}")
            a.e("s_waitcnt lgkmcnt(0)")
            m = V_NEGM + 4 * qt
            a.e(f"v_max3_f32 v{m}, v{V_S}, v{V_S+1}, v{V_S+2}")
            a.e(f"v_max3_f32 v{m}, v{m}, v{V_S+3}, v{V_S+4}")
            a.e(f"v_max3_f32 v{m}, v{m}, v{V_S+5}, v{V_S+6}")
            a.e(f"v_max_f32 v{m}, v{m}, v{V_S+7}")
            a.e(f"v_sub_f32 v{m}, 0, v{m}")
            for i in range(1, 4):
                a.e(f"v_mov_b32 v{m+i}, v{m}")
        a.e("s_barrier")
        a.e(f"v_lshlrev_b32 v{t}, 4, v{L}")
        a.e(f"s_mul_i32 s{S_T0}, s{S_QH}, 28672")
        a.e(f"v_add_u32 v{V_QR}, s{S_T0}, v{t}")
        for ks in range(4):
            for qt in range(7):
                a.e(f"ds_write_b128 v{V_QR}, {ar(A_Q + (qt*4+ks)*4)} offset:{(ks*7+qt)*1024}")
        strip = lambda xs: [x.t if isinstance(x, VM) else x for x in xs]
        a.many(strip(self.kv_dma("K", 0, "0")))
        a.many(strip(self.kv_dma("V", 0, "0")))
        a.e(f"s_mov_b32 s{S_SOKV}, 16384")
        a.many(strip(self.kv_dma("K", 1, f"s{S_SOKV}")))
        a.many(strip(self.kv_dma("V", 1, f"s{S_SOKV}")))
        a.e(f"s_mov_b32 s{S_SOKV}, 32768")
        a.many(strip(self.kv_dma("K", 2, f"s{S_SOKV}")))
        a.many(strip(self.kv_dma("V", 2, f"s{S_SOKV}")))
        if self.o.fused: a.many(self.b_addr_v())
        if self.pf_on: a.e(f"v_mov_b32 v{V_PF}, 0x40000000")
        a.e(f"s_waitcnt vmcnt(16) lgkmcnt(0)")
        a.e("s_barrier")
        for kt in range(2):
            for ks in range(4):
                a.e(self.k_read(kt, ks, 0).t)
        a.e("s_branch A_ATT")


def main():
    import gen as G1
    ap = argparse.ArgumentParser()
    ap.add_argument("-o", default="cdna_kernels/" + NAME + ".s")
    ap.add_argument("--nt", type=int, default=0)
    ap.add_argument("--stamps", type=int, default=0)
    ap.add_argument("--dbgq", type=int, default=0)
    ap.add_argument("--bw", type=int, default=8)
    ap.add_argument("--brs", type=int, default=4)
    ap.add_argument("--only", default="")
    ap.add_argument("--rts", type=int, default=0)
    ap.add_argument("--osc1", type=int, default=0)
    ap.add_argument("--probe", default="")
    ap.add_argument("--fused", type=int, default=1)
    ap.add_argument("--bmap", type=int, default=0)
    ap.add_argument("--nr", type=int, default=16)
    ap.add_argument("--od", type=int, default=8)
    ap.add_argument("--npre", type=int, default=4)
    ap.add_argument("--opad", type=int, default=0)
    ap.add_argument("--bnomf", type=int, default=0)
    ap.add_argument("--bnold", type=int, default=0)
    ap.add_argument("--b2x", type=int, default=0)
    ap.add_argument("--olsc", type=int, default=1)
    ap.add_argument("--ctouch", type=int, default=0)
    ap.add_argument("--unroll", type=int, default=0)
    ap.add_argument("--pfq", type=int, default=0)
    ap.add_argument("--pfc", default="0,0,0,0,0,0,0,0,0,0")
    ap.add_argument("--pf0", type=int, default=0)
    ap.add_argument("--pfa", type=int, default=0)
    ap.add_argument("--pfpol", default="")
    ap.add_argument("--pfqpol", default="")
    ap.add_argument("--pfas", type=int, default=6)
    ap.add_argument("--pfan", type=int, default=11)
    ap.add_argument("--pfw", type=int, default=0)
    ap.add_argument("--pfwt", type=int, default=12)
    ap.add_argument("--pfwpol", default="")
    o = ap.parse_args()
    if o.pfpol: o.pfpol = " " + o.pfpol
    if o.pfqpol: o.pfqpol = " " + o.pfqpol
    if o.pfwpol: o.pfwpol = " " + o.pfwpol
    ga = GenA(o); ta = ga.gen()
    if o.fused:
        hdr = G1.HDR.replace("Launch 1: one workgroup", "Phase 1: one workgroup").replace("Launch 2: out = O * wo.", "Phase 2 (same launch, after a counter hand-off): out = O * wo.")
        if o.probe:
            hdr += f"; @launch kernel={NAME}_kernel grid=(256,1,1) block=(256,1,1) lds=163840\n"
            hdr += "; @launch kernel=probe_kernel grid=(1,1,1) block=(64,1,1) lds=0\n"
        else:
            hdr += "; @launch grid=(256,1,1) block=(256,1,1) lds=163840\n"
        txt = hdr + '.amdgcn_target "amdgcn-amd-amdhsa--gfx950"\n.text\n' + G1.fix_hazards(ta) + "\n"
        if o.probe:
            txt += G1.gen_probe(o.probe) + "\n"
        txt += '.section .rodata,"a"\n.p2align 6\n' + G1.descriptor(NAME + "_kernel", 512, 256)
        if o.probe:
            txt += ".p2align 6\n" + G1.descriptor("probe_kernel", 32, 32)
        open(o.o, "w").write(txt)
        print("wrote", o.o, len(txt), "bytes; stamps", ga.nst)
        return
    gb = G1.GenB(o); tb = gb.gen()
    hdr = G1.HDR
    blds = max(o.bw * o.brs * 4096, o.bw * 16384)
    if o.only != "B":
        hdr += f"; @launch kernel={NAME}_kernel grid=(256,1,1) block=(256,1,1) lds=163840\n"
    if o.only != "A":
        hdr += f"; @launch kernel=oproj_kernel grid=(256,1,1) block=({o.bw*64},1,1) lds={blds}\n"
    if o.probe:
        hdr += "; @launch kernel=probe_kernel grid=(1,1,1) block=(64,1,1) lds=0\n"
    txt = hdr + '.amdgcn_target "amdgcn-amd-amdhsa--gfx950"\n.text\n' + G1.fix_hazards(ta) + "\n" + G1.fix_hazards(tb) + "\n"
    if o.probe:
        txt += G1.gen_probe(o.probe) + "\n"
    txt += '.section .rodata,"a"\n.p2align 6\n' + G1.descriptor(NAME + "_kernel", 512, 256)
    nvb = (gb.nv + 7) // 8 * 8
    txt += ".p2align 6\n" + G1.descriptor("oproj_kernel", nvb, (gb.nv + 3) // 4 * 4)
    if o.probe:
        txt += ".p2align 6\n" + G1.descriptor("probe_kernel", 32, 32)
    open(o.o, "w").write(txt)
    print("wrote", o.o, len(txt), "bytes; B vgprs", gb.nv, "stamps", ga.nst)

if __name__ == "__main__":
    main()
```

```python
import sys, struct, re, argparse
from collections import defaultdict
sys.path.insert(0, "tools")

NAME = "standalone__mha_block_cached__near_ridge"
MF = "v_mfma_f32_16x16x32_bf16"

def f32(x):
    return struct.unpack("<I", struct.pack("<f", x))[0]
def vr(b, n=4): return f"v[{b}:{b+n-1}]" if n > 1 else f"v{b}"
def ar(b, n=4): return f"a[{b}:{b+n-1}]" if n > 1 else f"a{b}"
def sr(b, n=4): return f"s[{b}:{b+n-1}]" if n > 1 else f"s{b}"

class DS:
    def __init__(s, t, tag): s.t, s.tag = t, tag
class VM:
    def __init__(s, t, tag): s.t, s.tag = t, tag
class WL:
    def __init__(s, *tags): s.tags = set(tags)
class WV:
    def __init__(s, *tags): s.tags = set(tags)
class WALL:
    def __init__(s, k): s.k = k

class Trace:
    def __init__(self):
        self.L = []
        self.lq = []
        self.vq = []
    def raw(self, s): self.L.append(s)
    def lab(self, s): self.L.append(s + ":")
    def c(self, s): self.L.append("    ; " + s)
    def e(self, x):
        if isinstance(x, str):
            self.L.append("    " + x)
        elif isinstance(x, DS):
            self.L.append("    " + x.t); self.lq.append(x.tag)
        elif isinstance(x, VM):
            self.L.append("    " + x.t); self.vq.append(x.tag)
        elif isinstance(x, WL):
            idx = max([i for i, t in enumerate(self.lq) if t in x.tags], default=-1)
            if idx >= 0:
                n = len(self.lq) - 1 - idx
                if n > 15:
                    n = 15
                self.L.append(f"    s_waitcnt lgkmcnt({n})")
                self.lq = self.lq[len(self.lq) - n:] if n else []
        elif isinstance(x, WV):
            idx = max([i for i, t in enumerate(self.vq) if t in x.tags], default=-1)
            if idx >= 0:
                n = len(self.vq) - 1 - idx
                if n > 63:
                    n = 63
                self.L.append(f"    s_waitcnt vmcnt({n})")
                self.vq = self.vq[len(self.vq) - n:] if n else []
        elif isinstance(x, WALL):
            w = []
            if 'v' in x.k: w.append("vmcnt(0)"); self.vq = []
            if 'l' in x.k: w.append("lgkmcnt(0)"); self.lq = []
            self.L.append("    s_waitcnt " + " ".join(w))
        else:
            raise TypeError(x)
    def many(self, xs):
        for x in xs: self.e(x)

class Sched:
    def __init__(self, mf):
        self.mf = mf
        self.pre = defaultdict(list)
        self.post = defaultdict(list)
    def emit(self, t):
        for g, m in enumerate(self.mf):
            t.many(self.pre[g])
            t.e(m)
            t.many(self.post[g])
        n = len(self.mf)
        for g in sorted(set(list(self.pre) + list(self.post))):
            if g >= n:
                t.many(self.pre[g]); t.many(self.post[g])

BUF = {0: 90112, 1: 45056, 2: 0}
def PAIR(n):
    return 32768 + ((3 - n) & 3) * 32768
QX = 0
RG = 40960
LOFF = 7 * 4096
FOFF = 7 * 4096 + 2048
MXX = 16384

V_OOWN = 0
V_K = 112
V_V = 144
V_S = 176
V_P = 192
V_NEGM = 200
V_KA = 228
V_VA = 232
V_OFFKV = 240
V_TID = 242
V_T0 = 243
V_OFFX = 144
V_OFFW = 151
V_XR = 156
V_WR = 160
V_QW = 253
V_QR = 254
V_QT = 176
V_WOF = 245
V_TR = 249
V_OO = [244, 253, 254, 255]
S_WO, S_OUT = 16, 20
S_MG, S_NG, S_SW, S_SO, S_L0, S_L1, S_RB, S_SWC, S_SOC = 57, 58, 59, 10, 11, 3, 100, 101, 42
S_PF = 12
V_PF, V_PFD = 243, 255
A_Q = 0
A_OOTH = 112
A_L = 224
A_ONES = 252
S_X, S_WQ, S_K, S_V, S_O = 16, 20, 24, 28, 32
S_W, S_QH, S_KH = 36, 37, 38
S_W1K7 = 39
S_SC = 40
S_SOX, S_SOW = 42, 43
S_W4K = 44
S_B, S_H = 45, 46
S_CNT = 47
S_PASS = 48
S_T0, S_T1, S_T2, S_T3 = 49, 50, 51, 52
S_OB = 53
S_SOKV = 56
S_ST = 60


def o_reg(j, tp):
    if tp < 4:
        return vr(V_OOWN + (j * 4 + tp) * 4)
    return ar(A_OOTH + (j * 4 + tp - 4) * 4)


class GenA:
    def __init__(self, opt):
        self.o = opt
        self.t = Trace()
        self.nst = 0
        self.npf = 0
        self.pfc = [int(z) for z in opt.pfc.split(",")]
        assert len(self.pfc) == 10
        self.pf_on = (sum(self.pfc) > 0 or opt.pfa)
        self.QS = 131072 + opt.opad

    def stamp(self):
        if not self.o.stamps:
            return []
        ins = "s_memrealtime" if self.o.rts else "s_memtime"
        s = f"{ins} s[{S_ST + 2*self.nst}:{S_ST + 2*self.nst + 1}]"
        self.nst += 1
        assert self.nst <= 18
        return [s]

    def kvpol(self):
        return " nt" if self.o.nt else ""

    def emit_kv_addr(self, rd=True, dma=True):
        t_ = self.t
        L, l15, g, r4, c4, t, u = V_T0, V_T0+1, V_T0+2, V_T0+3, V_T0+4, V_T0+5, V_T0+6
        t_.e(f"v_and_b32 v{L}, 63, v{V_TID}")
        t_.e(f"v_and_b32 v{l15}, 15, v{L}")
        t_.e(f"v_lshrrev_b32 v{g}, 4, v{L}")
        if dma:
            t_.e(f"v_lshlrev_b32 v{t}, 1, v{g}")
            t_.e(f"v_xor_b32 v{t}, v{t}, v{l15}")
            t_.e(f"v_lshlrev_b32 v{t}, 4, v{t}")
            t_.e(f"v_lshlrev_b32 v{u}, 8, v{g}")
            t_.e(f"v_add_u32 v{u}, s{S_W4K}, v{u}")
            t_.e(f"v_add_u32 v{V_OFFKV}, v{t}, v{u}")
            t_.e(f"v_xor_b32 v{t}, 128, v{t}")
            t_.e(f"v_add_u32 v{V_OFFKV+1}, v{t}, v{u}")
        if rd:
            t_.e(f"v_bfe_u32 v{r4}, v{L}, 2, 2")
            t_.e(f"v_and_b32 v{c4}, 3, v{L}")
            t_.e(f"s_lshl_b32 s{S_T0}, s{S_KH}, 13")
            t_.e(f"s_add_u32 s{S_T1}, s{S_T0}, {PAIR(0) + 16384}")
            t_.e(f"v_and_b32 v{t}, 7, v{l15}")
            t_.e(f"v_lshlrev_b32 v{t}, 1, v{t}")
            t_.e(f"v_xor_b32 v{t}, v{t}, v{g}")
            t_.e(f"v_lshlrev_b32 v{t}, 4, v{t}")
            t_.e(f"v_lshlrev_b32 v{u}, 8, v{l15}")
            t_.e(f"v_add_u32 v{u}, s{S_T1}, v{u}")
            for ks in range(4):
                t_.e(f"v_xor_b32 v{V_KA+ks}, {ks*64}, v{t}")
                t_.e(f"v_add_u32 v{V_KA+ks}, v{V_KA+ks}, v{u}")
            t_.e(f"s_add_u32 s{S_T1}, s{S_T0}, {PAIR(0)}")
            t_.e(f"v_lshlrev_b32 v{u}, 2, v{g}")
            t_.e(f"v_add_u32 v{u}, v{u}, v{r4}")
            t_.e(f"v_and_b32 v{t}, 7, v{u}")
            t_.e(f"s_lshl_b32 s{S_T2}, s{S_KH}, 2")
            t_.e(f"v_xor_b32 v{t}, s{S_T2}, v{t}")
            t_.e(f"v_lshlrev_b32 v{t}, 5, v{t}")
            t_.e(f"v_lshlrev_b32 v{u}, 8, v{u}")
            t_.e(f"v_add_u32 v{u}, s{S_T1}, v{u}")
            t_.e(f"v_lshlrev_b32 v{c4}, 3, v{c4}")
            t_.e(f"v_add_u32 v{u}, v{u}, v{c4}")
            for tp in range(8):
                t_.e(f"v_xor_b32 v{V_VA+tp}, {tp*32}, v{t}")
                t_.e(f"v_add_u32 v{V_VA+tp}, v{V_VA+tp}, v{u}")

    def kv_dma(self, which, n, soff, lds=None):
        srd = S_K if which == "K" else S_V
        if lds is None:
            lds = PAIR(n) + (16384 if which == "K" else 0)
        r = [f"s_add_u32 m0, s{S_W4K}, {lds}"]
        for i in range(4):
            off = f" offset:{i*1024}" if i else ""
            r.append(VM(f"buffer_load_dwordx4 v{V_OFFKV + (i & 1)}, {sr(srd)}, {soff} offen{off}{self.kvpol()} lds", f"{which}{n}"))
        return r

    def kv_touch(self):
        self.npf += 1
        return [VM(f"buffer_load_dword v{V_PFD}, v{V_PF}, {sr(S_PF)}, 0 offen{self.o.pfpol}", "PF"),
                f"v_add_u32 v{V_PF}, 16384, v{V_PF}"]

    def x_dma(self, st):
        buf = BUF[st % 3]
        r = []
        r.append(f"s_mov_b32 s{S_SOX}, {st*128}")
        r.append(f"s_add_u32 m0, s{S_W1K7}, {buf}")
        for i in range(7):
            if i == 4:
                r.append(f"s_add_u32 m0, s{S_W1K7}, {buf + 4096}")
            off = f" offset:{(i%4)*1024}" if i % 4 else ""
            r.append(VM(f"buffer_load_dwordx4 v{V_OFFX+i}, {sr(S_X)}, s{S_SOX} offen{off} lds", f"X{st}"))
        r.append(f"s_mov_b32 s{S_SOW}, {st*64*8192}")
        r.append(f"s_add_u32 m0, s{S_W4K}, {buf + 28672}")
        for i in range(4):
            off = f" offset:{i*1024}" if i else ""
            r.append(VM(f"buffer_load_dwordx4 v{V_OFFW+i}, {sr(S_WQ)}, s{S_SOW} offen{off} lds", f"X{st}"))
        return r

    def q_reads(self, st):
        buf = BUF[st % 3]
        sset = 1 if buf == 90112 else 0
        base = buf - (90112 if sset else 0)
        p = (st & 1) * 88
        r = []
        for s in range(2):
            for T in range(4):
                jj = T >> 1
                for hf in range(2):
                    off = base + 8192 * s + 1024 * hf + 8 * (T & 1)
                    r.append(DS(f"ds_read_b64_tr_b16 {ar(p + 56 + (s*4+T)*4 + 2*hf, 2)}, v{V_WR + sset*2 + jj} offset:{off}", f"R{st}"))
            for qt in range(7):
                off = base + qt * 2048
                r.append(DS(f"ds_read_b128 {ar(p + (s*7+qt)*4)}, v{V_XR + sset*2 + s} offset:{off}", f"R{st}"))
        return r

    def q_mf(self, st, s, T, qt, first):
        p = (st & 1) * 88
        d = vr((T * 7 + qt) * 4)
        c = "0" if (first and s == 0) else d
        return f"{MF} {d}, {ar(p + 56 + (s*4+T)*4)}, {ar(p + (s*7+qt)*4)}, {c}"

    def q_mfmas(self, st, first):
        return [self.q_mf(st, s, T, qt, first) for s in range(2) for T in range(4) for qt in range(7)]

    def k_read(self, kt, ks, n):
        off = f" offset:{kt*4096}" if kt else ""
        return DS(f"ds_read_b128 {vr(V_K + (kt*4+ks)*4)}, v{V_KA+ks}{off}", f"k{n}.{kt}")

    def v_read(self, tp, hf, n):
        off = f" offset:{hf*4096}" if hf else ""
        return DS(f"ds_read_b64_tr_b16 {vr(V_V + tp*4 + 2*hf, 2)}, v{V_VA+tp}{off}", f"v{n}.{tp}")

    def q_read(self, qt):
        return [DS(f"ds_read_b128 {ar(A_Q + (qt*4+ks)*4)}, v{V_QR} offset:{(ks*7+qt)*1024}", f"q{qt}") for ks in range(4)]

    def qk_mfmas(self, par, j2):
        r = []
        for kt in range(2):
            for ks in range(4):
                d = vr(V_S + par * 8 + kt * 4)
                c = vr(V_NEGM + j2 * 4) if ks == 0 else d
                r.append(f"{MF} {d}, {vr(V_K + (kt*4+ks)*4)}, {ar(A_Q + (j2*4+ks)*4)}, {c}")
        return r

    def pv_mfmas(self, par, j, first):
        r = []
        p = vr(V_P + par * 4)
        for tp in range(8):
            d = o_reg(j, tp)
            r.append(f"{MF} {d}, {vr(V_V + tp*4)}, {p}, {'0' if first else d}")
        d = ar(A_L + j * 4)
        r.append(f"{MF} {d}, {ar(A_ONES)}, {p}, {'0' if first else d}")
        return r

    def exps(self, par):
        return [f"v_exp_f32 v{V_S + par*8 + i}, v{V_S + par*8 + i}" for i in range(8)]

    def cvts(self, par):
        return [f"v_cvt_pk_bf16_f32 v{V_P + par*4 + i}, v{V_S + par*8 + 2*i}, v{V_S + par*8 + 2*i + 1}" for i in range(4)]

    def tile(self, n):
        t = self.t
        first = (n == 0)
        last = (n == 15)
        dl = (PAIR(n + 1) - PAIR(n)) & 0xffffffff
        vdma = self.kv_dma("V", n + 3, "0") if (n + 3 <= 15 and n >= 1) else None
        kdma = self.kv_dma("K", n + 4, "0") if n + 4 <= 15 else None
        adv = [f"v_add_u32 v{V_OFFKV}, 16384, v{V_OFFKV}", f"v_add_u32 v{V_OFFKV+1}, 16384, v{V_OFFKV+1}"]
        for j in range(7):
            par = (n + j) & 1
            mf = self.pv_mfmas(par, j, first)
            has_qk = not (last and j >= 5)
            if has_qk:
                mf = mf + self.qk_mfmas(par, (j + 2) % 7)
            S = Sched(mf)
            G, PRE = S.post, S.pre
            if not (last and j == 6):
                ex = self.exps(par ^ 1); cv = self.cvts(par ^ 1)
                if has_qk:
                    for i in range(8): G[2 * i].append(ex[i])
                    for i in range(4): G[4 * i + 3].append(cv[i])
                else:
                    for i in range(8): G[i // 2].append(ex[i])
                    G[2].append(cv[0]); G[3].append(cv[1]); G[4].append(cv[2]); G[5].append(cv[3])
            nn = n + 1
            if j == 0:
                PRE[0].append(WL(f"v{n}.0", f"v{n}.1", f"v{n}.2"))
                G[1] += [self.v_read(7, 0, n), self.v_read(7, 1, n)]
                PRE[3].append(WL(f"v{n}.3", f"v{n}.4", f"v{n}.5"))
                PRE[6].append(WL(f"v{n}.6", f"v{n}.7"))
                if vdma:
                    G[9] += [vdma[0]]
                    G[13] += [vdma[1]]
            if first and j <= 3:
                q = self.q_read(j + 3)
                G[5] += q[:2]; G[9] += q[2:]
            if first and j <= 4:
                PRE[9].append(WL(f"q{j+2}"))
            if j == 1:
                if vdma: G[5] += [vdma[2]]
                if not last:
                    G[9] += [f"v_add_u32 v{V_VA+0}, {dl}, v{V_VA+0}", f"v_add_u32 v{V_VA+1}, {dl}, v{V_VA+1}"] if not first else []
                    G[13] += [f"v_add_u32 v{V_VA+2}, {dl}, v{V_VA+2}", f"v_add_u32 v{V_VA+3}, {dl}, v{V_VA+3}"]
                    if first:
                        G[1] += [f"v_add_u32 v{V_VA+0}, {dl}, v{V_VA+0}", f"v_add_u32 v{V_VA+1}, {dl}, v{V_VA+1}"]
            if j == 2:
                if vdma: G[5] += [vdma[3]]
                if not last:
                    G[1] += [f"v_add_u32 v{V_VA+4}, {dl}, v{V_VA+4}", f"v_add_u32 v{V_VA+5}, {dl}, v{V_VA+5}"]
                    G[13] += [f"v_add_u32 v{V_VA+6}, {dl}, v{V_VA+6}", f"v_add_u32 v{V_VA+7}, {dl}, v{V_VA+7}"]
            if j == 3:
                if vdma: G[5] += [vdma[4]]
                if not last:
                    G[1] += [f"v_add_u32 v{V_KA+0}, {dl}, v{V_KA+0}", f"v_add_u32 v{V_KA+1}, {dl}, v{V_KA+1}"]
                    G[13] += [f"v_add_u32 v{V_KA+2}, {dl}, v{V_KA+2}", f"v_add_u32 v{V_KA+3}, {dl}, v{V_KA+3}"]
                if kdma and not first:
                    G[16] += adv
            if j == 4:
                if first:
                    G[5] += [WL("q6")]
                if not last:
                    G[5] += [WV(f"K{nn}", f"V{nn}")]
                else:
                    G[5] += [WL("ow0", "ow1", "ow2", "ow3")]
                G[7] += ["s_barrier"]
                if not last:
                    G[9] += [self.k_read(0, 0, nn)]
                    G[11] += [self.k_read(0, 1, nn)]
                    G[13] += [self.k_read(0, 2, nn), self.k_read(0, 3, nn)]
                    G[15] += [self.k_read(1, 0, nn)]
                    G[16] += [self.k_read(1, 1, nn), self.k_read(1, 2, nn)]
                if first:
                    k3 = self.kv_dma("K", 3, "0")
                    G[9] += [k3[0]]
                    self.k3 = k3
            if j == 5 and not last:
                G[1] += [self.k_read(1, 3, nn)]
                PRE[9].append(WL(f"k{nn}.0", f"k{nn}.1"))
                if first:
                    k3 = self.k3
                    G[1] += [k3[1]]; G[3] += [k3[2]]; G[5] += [k3[3]]; G[7] += [k3[4]]
                    v3 = self.kv_dma("V", 3, "0")
                    G[9] += [v3[0], v3[1]]; G[11] += [v3[2]]; G[13] += [v3[3]]; G[15] += [v3[4]]
                    G[16] += adv
                elif kdma:
                    G[0] += [kdma[0]]
                    G[1] += [kdma[1]]; G[5] += [kdma[2]]; G[9] += [kdma[3]]; G[13] += [kdma[4]]
            if j == self.o.pfas and self.o.pfa and n <= self.o.pfan:
                tc = self.kv_touch()
                G[14] += [tc[0]]; G[16] += [tc[1]]
            if self.o.pfw and n == self.o.pfwt and j in (4, 5, 6):
                w = self.wo_touch()
                if j == 4:
                    for i, x in enumerate(w[0]): G[9 + (i * 7) // len(w[0])].append(x)
                else:
                    tch = w[1] if j == 5 else w[2]
                    nv = sum(isinstance(x, VM) for x in tch)
                    gi = 2
                    for x in tch:
                        G[gi].append(x)
                        if isinstance(x, VM): gi += max(1, 14 // max(nv, 1))
            if j == 6 and not last:
                v = lambda a, b: self.v_read(a, b, nn)
                G[1] += [v(0, 0), v(0, 1)]
                G[3] += [v(1, 0)]
                G[5] += [v(1, 1), v(2, 0)]
                G[7] += [v(2, 1)]
                G[9] += [v(3, 0), v(3, 1)]
                G[11] += [v(4, 0)]
                G[13] += [v(4, 1), v(5, 0)]
                G[15] += [v(5, 1)]
                G[16] += [v(6, 0), v(6, 1)]
                if first:
                    PRE[0] += [kdma[0]]
                    G[0] += [kdma[1]]; G[4] += [kdma[2]]; G[8] += [kdma[3]]; G[12] += [kdma[4]]
            if last:
                if j == 1:
                    PRE[0] = ["s_barrier"] + PRE[0]
                    w = self.o_writes(0)
                    G[1] += [w[0]]; G[3] += [w[1]]; G[5] += [w[2]]; G[7] += [w[3]]; G[8] += [w[4]]
                if 1 <= j <= 4:
                    w = self.o_writes(j)
                    G[10] += [w[0]]; G[11] += [w[1]]; G[13] += [w[2], w[3]]; G[15] += [w[4]]
                if self.o.fused and j in (2, 3):
                    d = self.wo_dma(j - 2)
                    G[0] += d[:2]; G[1] += [d[2]]; G[3] += [d[3]]; G[5] += [d[4]]; G[7] += [d[5]]
                if j == 6:
                    w = self.o_writes(5)
                    G[1] += [w[0]]; G[3] += [w[1]]; G[4] += [w[2]]; G[6] += [w[3]]; G[7] += [w[4]]
                if j == 0:
                    PRE[0] = self.ox_addr() + PRE[0]
            t.c(f"tile {n} slot {j}")
            S.emit(t)

    def wo_touch(self):
        a = V_PF
        su = [f"v_and_b32 v{a}, 63, v{V_TID}", f"s_lshr_b32 s{S_T0}, s2, 3"]
        pol = self.o.pfwpol
        if self.o.bmap == 0:
            su += [f"s_lshl_b32 s{S_T0}, s{S_T0}, 2", f"s_add_u32 s{S_T0}, s{S_T0}, s{S_W}",
                   f"s_mul_i32 s{S_T0}, s{S_T0}, {32*1152}",
                   f"s_and_b32 s{S_T1}, s2, 1", f"s_lshl_b32 s{S_T1}, s{S_T1}, 9", f"s_add_u32 s{S_T0}, s{S_T0}, s{S_T1}",
                   f"v_cmp_gt_u32 vcc, 32, v{a}",
                   f"v_mul_u32_u24 v{a}, 1152, v{a}", f"v_add_u32 v{a}, s{S_T0}, v{a}",
                   f"v_mov_b32 v{V_PFD}, 0x40000000",
                   f"v_cndmask_b32 v{a}, v{V_PFD}, v{a}, vcc"]
            T = [VM(f"buffer_load_dword v{V_PFD}, v{a}, {sr(S_WO)}, 0 offen" + (f" offset:{i*128}" if i else "") + pol, "PW") for i in range(5)]
            return su, T[:3], T[3:]
        su += [f"s_mul_i32 s{S_T0}, s{S_T0}, 147456", f"s_mul_i32 s{S_T1}, s{S_W}, 36864", f"s_add_u32 s{S_T0}, s{S_T0}, s{S_T1}",
               f"v_lshlrev_b32 v{a}, 7, v{a}", f"v_add_u32 v{a}, s{S_T0}, v{a}"]
        T = []
        for i in range(5):
            T.append([VM(f"buffer_load_dword v{V_PFD}, v{a}, {sr(S_WO)}, 0 offen{pol}", "PW"), f"v_add_u32 v{a}, 8192, v{a}"])
        return su, T[0] + T[1] + T[2], T[3] + T[4]

    def ox_addr(self):
        r = []
        T = V_T0
        r.append(f"v_and_b32 v{T}, 63, v{V_TID}")
        r.append(f"v_lshlrev_b32 v{T+1}, 4, v{T}")
        r.append(f"v_lshlrev_b32 v{T}, 2, v{T}")
        r.append(f"s_xor_b32 s{S_T3}, s{S_W}, 1")
        r.append(f"s_mul_i32 s{S_T0}, s{S_T3}, {RG}")
        r.append(f"v_add_u32 v{V_KA}, s{S_T0}, v{T+1}")
        r.append(f"s_add_u32 s{S_T0}, s{S_T0}, {LOFF}")
        r.append(f"v_add_u32 v{V_KA+1}, s{S_T0}, v{T}")
        r.append(f"s_mul_i32 s{S_T0}, s{S_W}, {RG}")
        r.append(f"v_add_u32 v{V_KA+2}, s{S_T0}, v{T+1}")
        r.append(f"s_add_u32 s{S_T0}, s{S_T0}, {LOFF}")
        r.append(f"v_add_u32 v{V_KA+3}, s{S_T0}, v{T}")
        r.append(f"s_mul_i32 s{S_T0}, s{S_B}, 14")
        r.append(f"s_mul_i32 s{S_T1}, s{S_QH}, 7")
        r.append(f"s_add_u32 s{S_T0}, s{S_T0}, s{S_T1}")
        r.append(f"s_mul_i32 s{S_T0}, s{S_T0}, {self.QS}")
        r.append(f"s_lshl_b32 s{S_T1}, s{S_H}, 1")
        r.append(f"s_add_u32 s{S_T1}, s{S_T1}, s{S_KH}")
        r.append(f"s_lshl_b32 s{S_T1}, s{S_T1}, 11")
        r.append(f"s_add_u32 s{S_OB}, s{S_T0}, s{S_T1}")
        return r

    def o_writes(self, j):
        r = []
        for tpp in range(4):
            i = j * 4 + tpp
            r.append(DS(f"ds_write_b128 v{V_KA}, {ar(A_OOTH + i*4)} offset:{i*1024}", f"ow{j}"))
        r.append(DS(f"ds_write_b32 v{V_KA+1}, a{A_L + 4*j} offset:{j*256}", f"ow{j}"))
        return r

    def gen(self):
        t_ = self.t
        o = self.o
        kn = f"{NAME}_kernel"
        t_.raw(f".globl {kn}\n.p2align 8\n.type {kn},@function\n{kn}:")
        t_.e("s_cmp_ge_u32 s2, 256")
        t_.e("s_cbranch_scc1 A_END")
        t_.e("s_load_dwordx8 s[4:11], s[0:1], 0")
        t_.e("s_load_dwordx2 s[12:13], s[0:1], 56")
        t_.many(self.stamp())
        if o.stamps:
            t_.e(f"s_memrealtime s[{S_ST+36}:{S_ST+37}]")
        t_.e(f"v_mov_b32 v{V_TID}, v0")
        t_.e(f"v_lshrrev_b32 v1, 6, v0")
        t_.e("s_and_b32 s3, s2, 7")
        t_.e(f"s_lshr_b32 s{S_T0}, s2, 3")
        t_.e(f"v_readfirstlane_b32 s{S_W}, v1")
        t_.e(f"s_and_b32 s{S_T1}, s3, 1")
        t_.e(f"s_lshl_b32 s{S_T1}, s{S_T1}, 2")
        t_.e(f"s_and_b32 s{S_T2}, s{S_T0}, 3")
        t_.e(f"s_add_u32 s{S_B}, s{S_T1}, s{S_T2}")
        t_.e(f"s_lshr_b32 s{S_T1}, s3, 1")
        t_.e(f"s_lshl_b32 s{S_T1}, s{S_T1}, 3")
        t_.e(f"s_lshr_b32 s{S_T2}, s{S_T0}, 2")
        t_.e(f"s_add_u32 s{S_H}, s{S_T1}, s{S_T2}")
        t_.e(f"s_lshr_b32 s{S_QH}, s{S_W}, 1")
        t_.e(f"s_and_b32 s{S_KH}, s{S_W}, 1")
        t_.e(f"s_mul_i32 s{S_W1K7}, s{S_W}, 7168")
        t_.e(f"s_lshl_b32 s{S_W4K}, s{S_W}, 12")
        L, l15, g, r4, c4, t, u = V_T0, V_T0+1, V_T0+2, V_T0+3, V_T0+4, V_T0+5, V_T0+6
        t_.e(f"v_and_b32 v{L}, 63, v{V_TID}")
        t_.e(f"v_and_b32 v{l15}, 15, v{L}")
        t_.e(f"v_lshrrev_b32 v{g}, 4, v{L}")
        t_.e(f"v_lshrrev_b32 v{t}, 3, v{L}")
        t_.e(f"v_and_b32 v{r4}, 7, v{L}")
        t_.e(f"v_xor_b32 v{u}, v{g}, v{r4}")
        t_.e(f"v_lshlrev_b32 v{u}, 4, v{u}")
        t_.e(f"s_lshl_b32 s{S_T0}, s{S_KH}, 6")
        t_.e(f"v_xor_b32 v{u}, s{S_T0}, v{u}")
        t_.e(f"v_mul_u32_u24 v{t}, 1152, v{t}")
        t_.e(f"s_mul_i32 s{S_T1}, s{S_W}, {56*1152}")
        t_.e(f"v_add_u32 v{t}, s{S_T1}, v{t}")
        t_.e(f"v_xor_b32 v{c4}, 64, v{u}")
        t_.e(f"v_add_u32 v{V_OFFX}, v{u}, v{t}")
        t_.e(f"v_add_u32 v{c4}, v{c4}, v{t}")
        for i in range(1, 7):
            src = V_OFFX if (i & 1) == 0 else c4
            k = i * 9216 - (i % 4) * 1024
            t_.e(f"v_add_u32 v{V_OFFX+i}, {k}, v{src}")
        t_.e(f"v_lshlrev_b32 v{t}, 2, v{g}")
        t_.e(f"v_xor_b32 v{t}, v{t}, v{l15}")
        t_.e(f"v_lshlrev_b32 v{t}, 4, v{t}")
        t_.e(f"v_lshlrev_b32 v{u}, 13, v{g}")
        t_.e(f"s_lshl_b32 s{S_T1}, s{S_W}, 17")
        t_.e(f"v_add_u32 v{u}, s{S_T1}, v{u}")
        t_.e(f"v_add_u32 v{V_OFFW}, v{t}, v{u}")
        for i in range(1, 4):
            t_.e(f"v_add_u32 v{V_OFFW+i}, {i*(32768-1024)}, v{V_OFFW}")
        t_.e(f"s_mul_i32 s{S_T0}, s{S_B}, 258048")
        t_.e(f"s_lshl_b32 s{S_T1}, s{S_H}, 8")
        t_.e(f"s_mov_b32 s{S_X+2}, 258048")
        t_.e(f"s_mov_b32 s{S_X+3}, 0x00020000")
        t_.e(f"s_sub_u32 s{S_WQ+2}, {576*8192}, s{S_T1}")
        t_.e(f"s_mov_b32 s{S_WQ+3}, 0x00020000")
        t_.e("s_waitcnt lgkmcnt(0)")
        t_.many(self.stamp())
        t_.e(f"s_add_u32 s{S_X}, s4, s{S_T0}")
        t_.e(f"s_addc_u32 s{S_X+1}, s5, 0")
        t_.e(f"s_add_u32 s{S_WQ}, s10, s{S_T1}")
        t_.e(f"s_addc_u32 s{S_WQ+1}, s11, 0")
        t_.many(self.x_dma(0))
        t_.many(self.x_dma(1))
        t_.e(f"s_lshl_b32 s{S_T0}, s{S_B}, 5")
        t_.e(f"s_add_u32 s{S_T0}, s{S_T0}, s{S_H}")
        t_.e(f"s_lshl_b32 s{S_T0}, s{S_T0}, 18")
        t_.e(f"s_add_u32 s{S_K}, s6, s{S_T0}")
        t_.e(f"s_addc_u32 s{S_K+1}, s7, 0")
        t_.e(f"s_mov_b32 s{S_K+2}, 262144")
        t_.e(f"s_mov_b32 s{S_K+3}, 0x00020000")
        t_.e(f"s_add_u32 s{S_V}, s8, s{S_T0}")
        t_.e(f"s_addc_u32 s{S_V+1}, s9, 0")
        t_.e(f"s_mov_b32 s{S_V+2}, 262144")
        t_.e(f"s_mov_b32 s{S_V+3}, 0x00020000")
        t_.e(f"s_mov_b32 s{S_O}, s12")
        t_.e(f"s_mov_b32 s{S_O+1}, s13")
        t_.e(f"s_mov_b32 s{S_O+2}, {112*self.QS}")
        t_.e(f"s_mov_b32 s{S_O+3}, 0x00020000")
        if o.fused:
            t_.e("s_load_dwordx4 s[4:7], s[0:1], 32")
            t_.e("s_load_dwordx2 s[8:9], s[0:1], 48")
        self.emit_kv_addr(rd=False, dma=True)
        t_.many(self.kv_dma("K", 0, "0"))
        if o.pfq:
            a0, a1 = 112, 113
            pl = V_T0
            t_.e(f"s_and_b32 s{S_T0}, s{S_H}, 7")
            t_.e(f"s_mul_i32 s{S_T0}, s{S_T0}, 32256")
            t_.e(f"s_lshl_b32 s{S_T1}, s{S_W}, 13")
            t_.e(f"s_add_u32 s{S_T0}, s{S_T0}, s{S_T1}")
            t_.e(f"v_lshlrev_b32 v{a0}, 7, v{pl}")
            t_.e(f"v_add_u32 v{a0}, s{S_T0}, v{a0}")
            t_.e(VM(f"buffer_load_dword v{V_PFD}, v{a0}, {sr(S_X)}, 0 offen{o.pfqpol}", "PF"))
            t_.e(f"s_and_b32 s{S_T0}, s{S_B}, 3")
            t_.e(f"s_mul_i32 s{S_T0}, s{S_T0}, 144")
            t_.e(f"s_mul_i32 s{S_T1}, s{S_W}, 36")
            t_.e(f"s_add_u32 s{S_T0}, s{S_T0}, s{S_T1}")
            t_.e(f"s_lshl_b32 s{S_T0}, s{S_T0}, 13")
            t_.e(f"v_lshrrev_b32 v{a0}, 1, v{pl}")
            t_.e(f"v_lshlrev_b32 v{a0}, 13, v{a0}")
            t_.e(f"v_and_b32 v{a1}, 1, v{pl}")
            t_.e(f"v_lshlrev_b32 v{a1}, 7, v{a1}")
            t_.e(f"v_add_u32 v{a0}, v{a0}, v{a1}")
            t_.e(f"v_add_u32 v{a0}, s{S_T0}, v{a0}")
            t_.e(VM(f"buffer_load_dword v{V_PFD}, v{a0}, {sr(S_WQ)}, 0 offen{o.pfqpol}", "PF"))
            t_.e(f"v_add_u32 v{a1}, {32*8192}, v{a0}")
            t_.e(f"v_mov_b32 v{a0}, 0x40000000")
            t_.e(f"v_cmp_gt_u32 vcc, 8, v{pl}")
            t_.e(f"v_cndmask_b32 v{a1}, v{a0}, v{a1}, vcc")
            t_.e(VM(f"buffer_load_dword v{V_PFD}, v{a1}, {sr(S_WQ)}, 0 offen{o.pfqpol}", "PF"))
        if self.pf_on:
            t_.e(f"s_lshr_b32 s{S_T0}, s{S_W}, 1")
            t_.e(f"s_cmp_eq_u32 s{S_T0}, 0")
            t_.e(f"s_cselect_b32 s{S_PF}, s{S_K}, s{S_V}")
            t_.e(f"s_cselect_b32 s{S_PF+1}, s{S_K+1}, s{S_V+1}")
            t_.e(f"s_and_b32 s{S_T0}, s{S_W}, 1")
            t_.e(f"s_lshl_b32 s{S_T0}, s{S_T0}, 13")
            t_.e(f"s_add_u32 s{S_PF}, s{S_PF}, s{S_T0}")
            t_.e(f"s_addc_u32 s{S_PF+1}, s{S_PF+1}, 0")
            t_.e(f"s_sub_u32 s{S_PF+2}, 262144, s{S_T0}")
            t_.e(f"s_mov_b32 s{S_PF+3}, 0x00020000")
            t_.e(f"v_lshlrev_b32 v112, 7, v{V_T0}")
            if o.pf0: t_.e(f"v_add_u32 v112, {o.pf0*16384}, v112")
            self.pfreg = 112
            for i in range(self.pfc[0]):
                t_.e(VM(f"buffer_load_dword v{V_PFD}, v112, {sr(S_PF)}, 0 offen{o.pfpol}", "PF"))
                t_.e(f"v_add_u32 v112, 16384, v112")
        t_.many(self.stamp())
        self.emit_kv_addr(rd=True, dma=False)
        sc = f32(1.4426950408889634 / (128 ** 0.5))
        t_.e(f"s_mov_b32 s{S_SC}, {hex(sc)}")
        t_.e(f"s_mov_b32 s{S_PASS}, 0")
        t_.e(f"v_bfe_u32 v{r4}, v{L}, 2, 2")
        t_.e(f"v_and_b32 v{c4}, 3, v{L}")
        t_.e(f"v_lshrrev_b32 v{t}, 1, v{l15}")
        t_.e(f"v_xor_b32 v{t}, v{t}, v{g}")
        t_.e(f"v_lshlrev_b32 v{t}, 4, v{t}")
        t_.e(f"v_lshlrev_b32 v{u}, 7, v{l15}")
        t_.e(f"s_mul_i32 s{S_T0}, s{S_QH}, {112*128}")
        t_.e(f"v_add_u32 v{u}, s{S_T0}, v{u}")
        t_.e(f"v_add_u32 v{V_XR}, v{t}, v{u}")
        t_.e(f"v_xor_b32 v{t}, 64, v{t}")
        t_.e(f"v_add_u32 v{V_XR+1}, v{t}, v{u}")
        t_.e(f"v_add_u32 v{V_XR+2}, 90112, v{V_XR}")
        t_.e(f"v_add_u32 v{V_XR+3}, 90112, v{V_XR+1}")
        t_.e(f"s_lshl_b32 s{S_T0}, s{S_KH}, 1")
        t_.e(f"v_xor_b32 v{t}, s{S_T0}, v{r4}")
        t_.e(f"v_lshlrev_b32 v{t}, 6, v{t}")
        t_.e(f"v_lshlrev_b32 v{u}, 3, v{g}")
        t_.e(f"v_add_u32 v{u}, v{u}, v{r4}")
        t_.e(f"v_lshlrev_b32 v{u}, 8, v{u}")
        t_.e(f"v_lshlrev_b32 v{c4}, 4, v{c4}")
        t_.e(f"v_add_u32 v{u}, v{u}, v{c4}")
        t_.e(f"v_add_u32 v{u}, 28672, v{u}")
        t_.e(f"v_add_u32 v{V_WR}, v{t}, v{u}")
        t_.e(f"v_xor_b32 v{t}, 64, v{t}")
        t_.e(f"v_add_u32 v{V_WR+1}, v{t}, v{u}")
        t_.e(f"v_add_u32 v{V_WR+2}, 90112, v{V_WR}")
        t_.e(f"v_add_u32 v{V_WR+3}, 90112, v{V_WR+1}")
        t_.e(f"v_lshlrev_b32 v{t}, 4, v{L}")
        t_.e(f"s_mul_i32 s{S_T0}, s{S_QH}, 28672")
        t_.e(f"v_add_u32 v{V_QR}, s{S_T0}, v{t}")
        t_.e(f"s_mul_i32 s{S_T1}, s{S_KH}, 14336")
        t_.e(f"v_add_u32 v{V_QW}, s{S_T1}, v{V_QR}")
        for i in range(28):
            t_.e(f"v_mov_b32 v{V_NEGM+i}, 0")
        t_.e(f"v_mov_b32 v{t}, 0x3f803f80")
        for i in range(4):
            t_.e(f"v_accvgpr_write_b32 a{A_ONES+i}, v{t}")
        if self.pf_on:
            t_.e(f"v_mov_b32 v{V_PF}, v112")
        for k in range(9):
            t_.c(f"---- Q-proj period {k}")
            t_.e(WV(f"X{k}"))
            if k: t_.e(WL(f"R{k-1}"))
            t_.e("s_barrier")
            if k in (0, 1, 8):
                t_.many(self.stamp())
            rd = self.q_reads(k)
            if k <= 6:
                dm = self.x_dma(k + 2)
            elif k == 7:
                dm = self.kv_dma("V", 0, "0") + [f"s_mov_b32 s{S_SOKV}, 16384"] + self.kv_dma("K", 1, f"s{S_SOKV}") + \
                     self.kv_dma("V", 1, f"s{S_SOKV}")
            else:
                dm = [f"s_mov_b32 s{S_SOKV}, 32768"] + self.kv_dma("K", 2, f"s{S_SOKV}") + self.kv_dma("V", 2, f"s{S_SOKV}")
            for i in range(self.pfc[k + 1]): dm = dm + self.kv_touch()
            if k == 0:
                t_.many(rd); t_.many(dm)
                continue
            S = Sched(self.q_mfmas(k - 1, k == 1))
            pos = [g for g in range(56) if g % 5 != 2][:len(rd)]
            for p_, r_ in zip(pos, rd): S.post[p_].append(r_)
            nvm = sum(isinstance(x, VM) for x in dm)
            step = 56.0 / nvm
            i = 0
            pend = []
            for x in dm:
                if isinstance(x, VM):
                    gpos = int(i * step + 2 - (i * step + 2) % 1)
                    gpos = min(55, gpos)
                    if pend:
                        S.post[gpos - 1] += pend; pend = []
                    S.post[gpos].append(x); i += 1
                else:
                    pend.append(x)
            if pend: S.post[55] += pend
            if o.fused and k in (3, 4, 8):
                extra = {3: self.b_addr_s, 4: self.b_addr_v, 8: self.b_srd}[k]()
                for i, x in enumerate(extra): S.post[38 + (i * 17) // len(extra)].append(x)
            S.emit(t_)
        t_.c("---- Q-proj period 9 + finalisation")
        t_.e(WL("R8"))
        t_.e("s_barrier")
        t_.many(self.stamp())
        groups = [(jj, qt) for jj in range(2) for qt in range(7)]
        mf = []
        for (jj, qt) in groups:
            for s in range(2):
                for T in (2 * jj, 2 * jj + 1):
                    mf.append(self.q_mf(8, s, T, qt, False))
        S = Sched(mf)
        def fin(gi):
            jj, qt = groups[gi]
            tb = V_QT + (gi & 1) * 4
            r0 = ((2 * jj) * 7 + qt) * 4
            r1 = ((2 * jj + 1) * 7 + qt) * 4
            m0_ = [f"v_mul_f32 v{r0+i}, s{S_SC}, v{r0+i}" for i in range(4)]
            m1_ = [f"v_mul_f32 v{r1+i}, s{S_SC}, v{r1+i}" for i in range(4)]
            c_ = [f"v_cvt_pk_bf16_f32 v{tb}, v{r0}, v{r0+1}", f"v_cvt_pk_bf16_f32 v{tb+1}, v{r0+2}, v{r0+3}",
                  f"v_cvt_pk_bf16_f32 v{tb+2}, v{r1}, v{r1+1}", f"v_cvt_pk_bf16_f32 v{tb+3}, v{r1+2}, v{r1+3}"]
            w_ = DS(f"ds_write_b128 v{V_QW}, {vr(tb)} offset:{(jj*7+qt)*1024}", "qw")
            return m0_, m1_, c_, w_
        for gi in range(13):
            m0_, m1_, c_, w_ = fin(gi)
            b = 4 * (gi + 1) + 1
            S.post[b] += m0_; S.post[b + 1] += m1_; S.post[b + 2] += c_; S.post[b + 3] += [w_]
        kr = [self.k_read(kt, ks, 0) for kt in range(2) for ks in range(4)]
        for i, x in enumerate(kr): S.post[i].append(x)
        S.emit(t_)
        t_.e("s_nop 7")
        m0_, m1_, c_, w_ = fin(13)
        t_.many(m0_); t_.many(m1_); t_.many(c_); t_.e(w_)
        t_.e(WL("qw"))
        t_.e(WV("V0"))
        t_.e("s_barrier")
        t_.many(self.stamp())
        if o.dbgq:
            for qt in range(7): t_.many(self.q_read(qt))
            t_.e(WALL('l'))
            t_.e(f"s_lshl_b32 s{S_T0}, s2, 2")
            t_.e(f"s_add_u32 s{S_T0}, s{S_T0}, s{S_W}")
            t_.e(f"s_mul_i32 s{S_T0}, s{S_T0}, 28672")
            t_.e(f"s_add_u32 s{S_T0}, s{S_T0}, {32<<20}")
            t_.e(f"s_mov_b32 s{S_O+2}, {256<<20}")
            t_.e(f"v_and_b32 v{V_T0}, 63, v{V_TID}")
            t_.e(f"v_lshlrev_b32 v{V_T0}, 4, v{V_T0}")
            for i in range(28):
                t_.e(f"buffer_store_dwordx4 {ar(A_Q + i*4)}, v{V_T0}, {sr(S_O)}, s{S_T0} offen")
                t_.e(f"s_add_u32 s{S_T0}, s{S_T0}, 1024")
            t_.e("s_waitcnt vmcnt(0)")
            t_.e(f"s_mov_b32 s{S_O+2}, {112*self.QS}")
        t_.lab("A_ATT")
        t_.many(self.q_read(0)); t_.many(self.q_read(1))
        t_.e(f"v_add_u32 v{V_OFFKV}, {3*16384}, v{V_OFFKV}")
        t_.e(f"v_add_u32 v{V_OFFKV+1}, {3*16384}, v{V_OFFKV+1}")
        self.preamble(True)
        self.body()
        self.epilogue()
        self.slowpath()
        t_.lab("A_END")
        t_.e("s_endpgm")
        return "\n".join(t_.L)

    def preamble(self, with_q):
        t_ = self.t
        vr_ = [self.v_read(tp, hf, 0) for tp in range(7) for hf in range(2)]
        t_.e(WL("k0.0", "k0.1", "q0"))
        S = Sched(self.qk_mfmas(0, 0))
        for i, x in enumerate(vr_): S.post[i // 2].append(x)
        if with_q:
            q2 = self.q_read(2)
            S.post[7] += q2
        S.emit(t_)
        t_.e(WL("q1"))
        m1 = self.qk_mfmas(1, 1)
        ex = self.exps(0); cv = self.cvts(0)
        S = Sched(m1)
        S.post[0] += ex[0:2]; S.post[1] += ex[2:4]; S.post[2] += ex[4:6]; S.post[3] += ex[6:8]
        S.post[4] += cv[0:2]; S.post[5] += cv[2:4]
        S.emit(t_)
        t_.many(self.stamp())

    def body(self):
        t_ = self.t
        texts = []
        start = len(t_.L)
        for n in range(4):
            self.tile(n)
        i0 = len(t_.L)
        for n in range(4, 8): self.tile(n)
        i1 = len(t_.L)
        for n in range(8, 12): self.tile(n)
        i2 = len(t_.L)
        strip = lambda xs: [x for x in xs if not x.strip().startswith(";")]
        assert strip(t_.L[i0:i1]) == strip(t_.L[i1:i2]), "loop iterations differ"
        body = t_.L[i0:i1]
        t_.L = t_.L[:i0]
        t_.e(f"s_mov_b32 s{S_CNT}, 2")
        t_.lab("A_LOOP")
        t_.L += body
        t_.e(f"s_sub_u32 s{S_CNT}, s{S_CNT}, 1")
        t_.e(f"s_cmp_lg_u32 s{S_CNT}, 0")
        t_.e("s_cbranch_scc1 A_LOOP")
        t_.many(self.stamp())
        for n in range(12, 16): self.tile(n)
        t_.many(self.stamp())

    def fin_tile(self, qt, pb, tb, lt):
        r = []
        ob = V_OOWN + qt * 16
        r.append(f"v_accvgpr_read_b32 v{lt}, a{A_L + 4*qt}")
        r.append(f"v_add_f32 v{lt}, v{lt}, v{lt+1}")
        r.append(f"v_rcp_f32 v{lt}, v{lt}")
        for k in range(8):
            r.append(f"v_pk_add_f32 {vr(ob+2*k,2)}, {vr(ob+2*k,2)}, {vr(pb+2*k,2)}")
        for k in range(8):
            r.append(f"v_pk_mul_f32 {vr(ob+2*k,2)}, {vr(ob+2*k,2)}, {vr(lt,2)} op_sel:[0,0] op_sel_hi:[1,0]")
        for jj in range(2):
            s0 = ob + jj * 8
            for k in range(4):
                r.append(f"v_cvt_pk_bf16_f32 v{tb + jj*4 + k}, v{s0 + 2*k}, v{s0 + 2*k + 1}")
        pol = " sc1" if (self.o.osc1 or self.o.fused) else ""
        for jj in range(2):
            off = " offset:1024" if jj else ""
            r.append(VM(f"buffer_store_dwordx4 {vr(tb + jj*4)}, v{V_T0+1}, {sr(S_O)}, s{S_OB} offen{off}{pol}", "ost"))
        r.append(f"s_add_u32 s{S_OB}, s{S_OB}, {self.QS}")
        return r

    def p_reads(self, qt, pb, lt):
        r = []
        for tpp in range(4):
            i = qt * 4 + tpp
            r.append(DS(f"ds_read_b128 {vr(pb + tpp*4)}, v{V_KA+2} offset:{i*1024}", f"p{qt}"))
        r.append(DS(f"ds_read_b32 v{lt+1}, v{V_KA+3} offset:{qt*256}", f"p{qt}"))
        return r

    def epilogue(self):
        t_ = self.t
        o = self.o
        t_.c("---- epilogue")
        PB = [112, 128, 144, 160]
        LT = [V_NEGM + 16, V_NEGM + 18, V_NEGM + 20, V_NEGM + 22]
        TB = [V_NEGM, V_NEGM + 8]
        t_.many(self.p_reads(0, PB[0], LT[0]))
        t_.many(self.p_reads(1, PB[1], LT[1]))
        t_.e("s_nop 7")
        t_.many(self.o_writes(6))
        t_.many(self.p_reads(2, PB[2], LT[2]))
        t_.many(self.p_reads(3, PB[3], LT[3]))
        T = V_S
        lo, hi = f32(2.0 ** -24), f32(2.0 ** 30)
        t_.e(f"s_mov_b32 s{S_T0}, {hex(lo)}")
        t_.e(f"s_mov_b32 s{S_T1}, {hex(hi - lo)}")
        for qt in range(7):
            t_.e(f"v_accvgpr_read_b32 v{T+qt}, a{A_L + 4*qt}")
        t_.e(f"v_subrev_u32 v{T+8}, s{S_T0}, v{T}")
        for qt in range(1, 7):
            t_.e(f"v_subrev_u32 v{T+9}, s{S_T0}, v{T+qt}")
            t_.e(f"v_max_u32 v{T+8}, v{T+8}, v{T+9}")
        t_.e(f"v_cmp_lt_u32 vcc, s{S_T1}, v{T+8}")
        t_.e(f"s_lshl_b32 s{S_T3}, s{S_W}, 2")
        t_.e(f"s_add_u32 s{S_T3}, s{S_T3}, {FOFF}")
        t_.e(f"s_cmp_lg_u64 vcc, 0")
        t_.e(f"s_cselect_b32 s{S_T2}, 1, 0")
        t_.e(f"v_mov_b32 v{T+10}, s{S_T2}")
        t_.e(f"v_and_b32 v{T+11}, 3, v{V_TID}")
        t_.e(f"v_mul_u32_u24 v{T+11}, {RG}, v{T+11}")
        t_.e(f"v_add_u32 v{T+11}, s{S_T3}, v{T+11}")
        t_.e(DS(f"ds_write_b32 v{T+11}, v{T+10}", "fl"))
        for qt in range(4):
            t_.e(WL(f"p{qt}"))
            t_.many(self.fin_tile(qt, PB[qt], TB[qt & 1], LT[qt]))
            if o.fused: t_.many(self.wo_dma(2 + qt))
        t_.e(WL("fl", "ow4", "ow5", "ow6"))
        t_.e("s_barrier")
        t_.many(self.stamp())
        F = V_P + 4
        t_.e(f"s_mul_i32 s{S_T0}, s{S_W}, {RG}")
        t_.e(f"s_add_u32 s{S_T0}, s{S_T0}, {FOFF}")
        t_.e(f"v_mov_b32 v{T+11}, s{S_T0}")
        t_.e(DS(f"ds_read_b128 {vr(F)}, v{T+11}", "flr"))
        for qt in range(4, 7):
            t_.many(self.p_reads(qt, PB[qt - 4], LT[qt - 4]))
        t_.e(WL("flr"))
        t_.e(f"v_or_b32 v{F}, v{F}, v{F+1}")
        t_.e(f"v_or_b32 v{F+2}, v{F+2}, v{F+3}")
        t_.e(f"v_or_b32 v{F}, v{F}, v{F+2}")
        t_.e("s_nop 1")
        t_.e(f"v_readfirstlane_b32 s{S_T0}, v{F}")
        t_.e(f"s_xor_b32 s{S_T1}, s{S_PASS}, 1")
        t_.e(f"s_and_b32 s{S_T0}, s{S_T0}, s{S_T1}")
        t_.e(f"s_cmp_lg_u32 s{S_T0}, 0")
        t_.e("s_cbranch_scc1 A_SLOW")
        for qt in range(4, 7):
            t_.e(WL(f"p{qt}"))
            if o.fused:
                t_.many(self.wo_dma(2 + qt))
                if qt == 6: t_.many(self.wo_dma(9))
            t_.many(self.fin_tile(qt, PB[qt - 4], TB[qt & 1], LT[qt - 4]))
        t_.many(self.stamp())
        if o.fused: self.phase_b()
        if o.stamps:
            t_.e(f"s_memrealtime s[{S_ST+38}:{S_ST+39}]")
            t_.e("s_waitcnt lgkmcnt(0)")
            t_.e(f"s_cmp_lg_u32 s{S_W}, 0")
            t_.e("s_cbranch_scc1 A_END")
            ns = 20
            t_.e(f"s_mul_i32 s{S_T0}, s2, {ns*4*2}")
            t_.e(f"s_add_u32 s{S_T0}, s{S_T0}, {64<<20}")
            t_.e(f"s_mov_b32 s{S_O+2}, {256<<20}")
            t_.e(f"v_mov_b32 v{V_T0+1}, 0")
            for i in range(ns * 2):
                if 2 * self.nst <= i < 36:
                    t_.e(f"v_mov_b32 v{V_T0}, 0")
                else:
                    t_.e(f"v_mov_b32 v{V_T0}, s{S_ST+i}")
                t_.e(f"buffer_store_dword v{V_T0}, v{V_T0+1}, {sr(S_O)}, s{S_T0} offen offset:{i*4}")
                t_.e("s_nop 1")
        t_.e("s_endpgm")

    def b_addr_v(self):
        L, t0, t1, t2 = 184, 185, 186, 187
        r = []
        r.append(f"v_and_b32 v{L}, 63, v{V_TID}")
        r.append(f"v_lshrrev_b32 v{t0}, 3, v{L}")
        r.append(f"v_and_b32 v{t1}, 7, v{L}")
        r.append(f"v_bfe_u32 v{t2}, v{L}, 4, 2")
        r.append(f"v_lshlrev_b32 v{t2}, 1, v{t2}")
        r.append(f"v_xor_b32 v{t1}, v{t1}, v{t2}")
        r.append(f"v_lshlrev_b32 v{t1}, 4, v{t1}")
        r.append(f"v_mul_u32_u24 v{t0}, 1152, v{t0}")
        r.append(f"v_add_u32 v{V_WOF}, v{t0}, v{t1}")
        for i in range(1, 4):
            r.append(f"v_add_u32 v{V_WOF+i}, {i*(9216-1024)}, v{V_WOF}")
        r.append(f"v_lshrrev_b32 v{t0}, 2, v{L}")
        r.append(f"v_bfe_u32 v{t1}, v{L}, 3, 2")
        r.append(f"v_lshlrev_b32 v{t1}, 5, v{t1}")
        r.append(f"v_lshlrev_b32 v{t0}, 7, v{t0}")
        r.append(f"v_and_b32 v{t2}, 3, v{L}")
        r.append(f"v_lshlrev_b32 v{t2}, 3, v{t2}")
        r.append(f"v_add_u32 v{t0}, v{t0}, v{t2}")
        r.append(f"v_add_u32 v{t0}, s{S_RB}, v{t0}")
        for nt in range(4):
            r.append(f"v_xor_b32 v{V_TR+nt}, {nt*32}, v{t1}")
            r.append(f"v_add_u32 v{V_TR+nt}, v{V_TR+nt}, v{t0}")
        return r

    def b_addr_s(self):
        r = []
        r.append(f"s_mul_i32 s{S_RB}, s{S_W}, {RG}")
        r.append(f"s_and_b32 s{S_T0}, s2, 7")
        r.append(f"s_lshr_b32 s{S_T1}, s2, 3")
        r.append(f"s_and_b32 s{S_T2}, s{S_T0}, 1")
        r.append(f"s_lshl_b32 s{S_T2}, s{S_T2}, 5")
        r.append(f"s_add_u32 s{S_T1}, s{S_T1}, s{S_T2}")
        r.append(f"s_lshr_b32 s{S_T0}, s{S_T0}, 1")
        r.append(f"s_mul_i32 s{S_T0}, s{S_T0}, 7")
        if self.o.bmap == 0:
            r.append(f"s_mul_i32 s{S_NG}, s{S_T1}, 37")
            r.append(f"s_lshr_b32 s{S_NG}, s{S_NG}, 8")
            r.append(f"s_mul_i32 s{S_T2}, s{S_NG}, 7")
            r.append(f"s_sub_u32 s{S_T2}, s{S_T1}, s{S_T2}")
            r.append(f"s_add_u32 s{S_MG}, s{S_T2}, s{S_T0}")
        else:
            r.append(f"s_mul_i32 s{S_T2}, s{S_T1}, 57")
            r.append(f"s_lshr_b32 s{S_T2}, s{S_T2}, 9")
            r.append(f"s_add_u32 s{S_MG}, s{S_T2}, s{S_T0}")
            r.append(f"s_mul_i32 s{S_T2}, s{S_T2}, 9")
            r.append(f"s_sub_u32 s{S_NG}, s{S_T1}, s{S_T2}")
        r.append(f"s_cmp_ge_u32 s{S_T1}, 63")
        r.append(f"s_cselect_b32 s{S_NG}, 15, s{S_NG}")
        r.append(f"s_cselect_b32 s{S_MG}, 0, s{S_MG}")
        r.append(f"s_mul_i32 s{S_T0}, s{S_W}, {1024*1152}")
        r.append(f"s_lshl_b32 s{S_T1}, s{S_NG}, 7")
        r.append(f"s_add_u32 s{S_SW}, s{S_T0}, s{S_T1}")
        r.append(f"s_mul_i32 s{S_T0}, s{S_MG}, {4*self.QS}")
        r.append(f"s_lshl_b32 s{S_T1}, s{S_W}, 15")
        r.append(f"s_add_u32 s{S_SO}, s{S_T0}, s{S_T1}")
        r.append(f"s_lshl_b32 s{S_T0}, s{S_MG}, 2")
        r.append(f"s_mul_i32 s{S_T1}, s{S_T0}, 147")
        r.append(f"s_lshr_b32 s{S_T1}, s{S_T1}, 11")
        r.append(f"s_lshl_b32 s{S_L0}, s{S_T1}, 3")
        r.append(f"s_add_u32 s{S_T0}, s{S_T0}, 3")
        r.append(f"s_mul_i32 s{S_T1}, s{S_T0}, 147")
        r.append(f"s_lshr_b32 s{S_T1}, s{S_T1}, 11")
        r.append(f"s_lshl_b32 s{S_L1}, s{S_T1}, 3")
        return r

    def b_srd(self):
        r = []
        r.append(f"s_mov_b32 s{S_WO}, s4"); r.append(f"s_mov_b32 s{S_WO+1}, s5")
        r.append(f"s_mov_b32 s{S_WO+2}, {4096*1152}"); r.append(f"s_mov_b32 s{S_WO+3}, 0x00020000")
        r.append(f"s_mov_b32 s{S_OUT}, s6"); r.append(f"s_mov_b32 s{S_OUT+1}, s7")
        r.append(f"s_mov_b32 s{S_OUT+2}, {1792*1152}"); r.append(f"s_mov_b32 s{S_OUT+3}, 0x00020000")
        return r

    @staticmethod
    def slot(f): return (f + 8) % 10

    def wo_dma(self, f):
        r = [f"s_add_u32 s{S_SWC}, s{S_SW}, {f*32*1152}", f"s_add_u32 m0, s{S_RB}, {self.slot(f)*4096}"]
        for i in range(4):
            off = f" offset:{i*1024}" if i else ""
            r.append(VM(f"buffer_load_dwordx4 v{V_WOF+i}, {sr(S_WO)}, s{S_SWC} offen{off} lds", f"W{f}"))
        return r

    def tr_reads(self, f, unit):
        k, b = unit
        r = []
        for nt in range(4):
            for hf in range(2):
                r.append(DS(f"ds_read_b64_tr_b16 {k}[{b + nt*4 + 2*hf}:{b + nt*4 + 2*hf + 1}], v{V_TR+nt} offset:{self.slot(f)*4096 + hf*2048}", f"t{f}"))
        return r

    def phase_b(self):
        t_, o = self.t, self.o
        NR, D, NL = o.nr, o.od, 10
        units = [("a", 16*i) for i in range(16)] + [("v", 64 + 16*i) for i in range(10)]
        assert NR + 2 + D <= len(units)
        res = units[:NR]; jit = units[-(D + 2):-D]; ring = units[-D:]
        U = lambda u, off: f"{u[0]}[{u[1]+off}:{u[1]+off+3}]"
        NK = 32
        order = list(range(NR, NR + NL)) + list(range(NR)) + list(range(NR + NL, NK))
        t_.c("---- out-projection: weight prefetch + publish")
        for mi in range(1, 4):
            t_.e(f"v_add_u32 v{V_OO[mi]}, {mi*self.QS}, v{V_OO[0]}")
        def publish():
            t_.e(WV("ost"))
            t_.e("s_barrier")
            t_.e(f"s_cmp_lg_u32 s{S_W}, 0")
            t_.e("s_cbranch_scc1 B_PUB")
            t_.e(f"s_lshl_b32 s{S_T0}, s{S_B}, 5")
            t_.e(f"v_mov_b32 v{V_S}, s{S_T0}")
            t_.e(f"v_mov_b32 v{V_S+1}, 1")
            t_.e("s_mov_b64 exec, 1")
            t_.e(f"global_atomic_add v{V_S}, v{V_S+1}, s[8:9]")
            t_.e("s_mov_b64 exec, -1")
            t_.lab("B_PUB")
            t_.many(self.stamp())
            t_.e(f"s_cmp_eq_u32 s{S_NG}, 15")
            t_.e("s_cbranch_scc1 A_END")
        published = False
        nxt = NL
        for f in range(NR):
            if f == o.npre and not published:
                publish(); published = True
            t_.e(WV(f"W{f}"))
            t_.many(self.tr_reads(f, res[f]))
            if f >= 1:
                t_.e(WL(f"t{f-1}"))
                if nxt < NK: t_.many(self.wo_dma(nxt)); nxt += 1
        if not published:
            publish(); published = True
        t_.e(WL(f"t{NR-1}"))
        if nxt < NK: t_.many(self.wo_dma(nxt)); nxt += 1
        for i in range(2):
            f = order[i]
            t_.e(WV(f"W{f}"))
            t_.many(self.tr_reads(f, jit[i]))
        for i in range(2):
            t_.e(WL(f"t{order[i]}"))
            if nxt < NK: t_.many(self.wo_dma(nxt)); nxt += 1
        t_.many(self.stamp())
        P, Q = V_S, V_S + 1
        t_.e(f"s_cmp_lg_u32 s{S_W}, 0")
        t_.e("s_cbranch_scc1 B_GO")
        t_.e(f"v_and_b32 v{Q}, 63, v{V_TID}")
        t_.e(f"v_lshlrev_b32 v{Q}, 2, v{Q}")
        t_.e(f"s_mov_b32 s{S_CNT}, 200000")
        t_.lab("B_POLL")
        t_.e(f"global_load_dword v{P}, v{Q}, s[8:9] sc1")
        t_.e("s_waitcnt vmcnt(0)")
        t_.e(f"v_readlane_b32 s{S_T0}, v{P}, s{S_L0}")
        t_.e(f"v_readlane_b32 s{S_T1}, v{P}, s{S_L1}")
        t_.e(f"s_min_u32 s{S_T0}, s{S_T0}, s{S_T1}")
        t_.e(f"s_cmp_ge_u32 s{S_T0}, 32")
        t_.e("s_cbranch_scc1 B_GO")
        t_.e(f"s_sub_u32 s{S_CNT}, s{S_CNT}, 1")
        t_.e(f"s_cmp_eq_u32 s{S_CNT}, 0")
        t_.e("s_cbranch_scc1 B_GO")
        t_.e("s_sleep 1")
        t_.e("s_branch B_POLL")
        t_.lab("B_GO")
        t_.e("s_barrier")
        t_.many(self.stamp())
        def o_soff(i): return f"s_add_u32 s{S_SOC}, s{S_SO}, {order[i]*1024}"
        def o_load(i, mi):
            if o.bnold and i >= D: return "s_nop 0"
            return VM(f"buffer_load_dwordx4 {U(ring[i % D], mi*4)}, v{V_OO[mi]}, {sr(S_O)}, s{S_SOC} offen{' sc1' if o.olsc else ''}", f"O{i}.{mi}")
        if o.b2x:
            t_.e(f"s_mov_b32 s{S_CNT}, 2")
            t_.lab("B_2X")
        for i in range(D):
            t_.e(o_soff(i))
            for mi in range(4): t_.e(o_load(i, mi))
        for i in range(NK):
            f = order[i]
            inlds = f >= NR
            wu = jit[i & 1] if inlds else res[f]
            if i == NK - (NK - NR - NL) and (i & 1) != ((NL) & 1):
                pass
            mf = []
            for mi in range(4):
                for nt in range(4):
                    d = vr((mi*4 + nt)*4)
                    mf.append(f"{MF} {d}, {U(wu, nt*4)}, {U(ring[i % D], mi*4)}, {'0' if i == 0 else d}")
            if o.bnomf: mf = ["s_nop 0"] * 16
            S = Sched(mf)
            if inlds: S.pre[0].append(WL(f"t{f}"))
            if inlds: S.pre[0].append(WV(f"W{f}"))
            for mi in range(4): S.pre[4*mi].append(WV(f"O{i}.{mi}"))
            if i + D < NK:
                S.post[0].append(o_soff(i + D))
                for mi in range(4): S.post[4*mi + 3].append(o_load(i + D, mi))
            if i + 1 < NK and order[i + 1] >= NR and (i + 1) >= 2:
                fn = order[i + 1]
                rd = self.tr_reads(fn, jit[(i + 1) & 1])
                S.post[1].append(WV(f"W{fn}"))
                for k, x in enumerate(rd): S.post[1 + k].append(x)
            if inlds and i >= 2 and nxt < NK:
                d = self.wo_dma(nxt); nxt += 1
                S.post[9] += d[:2]; S.post[10].append(d[2]); S.post[12].append(d[3]); S.post[13].append(d[4]); S.post[14].append(d[5])
            S.emit(t_)
        assert nxt == NK
        if o.b2x:
            t_.e(f"s_cmp_eq_u32 s{S_CNT}, 2")
            t_.e("s_cbranch_scc0 B_2XE")
            t_.e(f"s_memtime s[{S_ST+2}:{S_ST+3}]")
            t_.e(f"s_mov_b32 s{S_CNT}, 1")
            t_.e("s_branch B_2X")
            t_.lab("B_2XE")
        t_.many(self.stamp())
        t0, t1, t2, t3, t4, L = 64, 65, 66, 67, 68, 69
        TRW = 70
        t_.e(f"v_and_b32 v{L}, 63, v{V_TID}")
        t_.e(f"v_and_b32 v{t0}, 15, v{L}")
        t_.e(f"v_lshrrev_b32 v{t1}, 4, v{L}")
        t_.e(f"v_xor_b32 v{t1}, v{t1}, v{t0}")
        t_.e(f"v_lshlrev_b32 v{t1}, 4, v{t1}")
        t_.e(f"v_lshlrev_b32 v{t0}, 8, v{t0}")
        t_.e(f"v_add_u32 v{t0}, s{S_RB}, v{t0}")
        for nt in range(4):
            t_.e(f"v_xor_b32 v{TRW+nt}, {nt*64}, v{t1}")
            t_.e(f"v_add_u32 v{TRW+nt}, v{TRW+nt}, v{t0}")
        t_.e("s_nop 7")
        for mi in range(4):
            for nt in range(4):
                t_.e(DS(f"ds_write_b128 v{TRW+nt}, {vr((mi*4+nt)*4)} offset:{mi*4096}", "rw"))
        t_.e(f"v_lshrrev_b32 v{t0}, 3, v{L}")
        t_.e(f"s_lshl_b32 s{S_T0}, s{S_W}, 4")
        t_.e(f"v_add_u32 v{t0}, s{S_T0}, v{t0}")
        t_.e(f"v_and_b32 v{t1}, 7, v{L}")
        t_.e(f"v_lshlrev_b32 v{t1}, 1, v{t1}")
        AD = 80
        for ps in range(2):
            if ps: t_.e(f"v_add_u32 v{t0}, 8, v{t0}")
            t_.e(f"v_and_b32 v{t2}, 15, v{t0}")
            t_.e(f"v_xor_b32 v{t3}, v{t1}, v{t2}")
            t_.e(f"v_lshlrev_b32 v{t3}, 4, v{t3}")
            t_.e(f"v_lshlrev_b32 v{t4}, 8, v{t0}")
            t_.e(f"v_add_u32 v{AD+ps*4}, v{t3}, v{t4}")
            t_.e(f"v_xor_b32 v{AD+ps*4+1}, 16, v{AD+ps*4}")
            t_.e(f"v_add_u32 v{AD+ps*4+2}, {2*RG}, v{AD+ps*4}")
            t_.e(f"v_add_u32 v{AD+ps*4+3}, {2*RG}, v{AD+ps*4+1}")
            t_.e(f"s_lshl_b32 s{S_T0}, s{S_MG}, 6")
            t_.e(f"v_add_u32 v{t4}, s{S_T0}, v{t0}")
            t_.e(f"v_mul_u32_u24 v{t4}, 1152, v{t4}")
            t_.e(f"v_lshlrev_b32 v{t2}, 3, v{t1}")
            t_.e(f"v_add_u32 v{88+ps}, v{t4}, v{t2}")
        t_.e(WL("rw"))
        t_.e("s_barrier")
        R = 96
        for ps in range(2):
            for wv in range(4):
                for ch in range(2):
                    a = AD + ps*4 + ch + (2 if wv >= 2 else 0)
                    off = (wv & 1) * RG
                    t_.e(DS(f"ds_read_b128 {vr(R + ps*32 + wv*8 + ch*4)}, v{a} offset:{off}", f"rr{ps}"))
        t_.e(f"s_lshl_b32 s{S_T1}, s{S_NG}, 7")
        for ps in range(2):
            t_.e(WL(f"rr{ps}"))
            B_ = R + ps*32
            for k in range(4):
                t_.e(f"v_pk_add_f32 {vr(B_+2*k,2)}, {vr(B_+2*k,2)}, {vr(B_+8+2*k,2)}")
                t_.e(f"v_pk_add_f32 {vr(B_+16+2*k,2)}, {vr(B_+16+2*k,2)}, {vr(B_+24+2*k,2)}")
            for k in range(4):
                t_.e(f"v_pk_add_f32 {vr(B_+2*k,2)}, {vr(B_+2*k,2)}, {vr(B_+16+2*k,2)}")
            for k in range(4):
                t_.e(f"v_cvt_pk_bf16_f32 v{72 + ps*4 + k}, v{B_+2*k}, v{B_+2*k+1}")
            t_.e(VM(f"buffer_store_dwordx4 {vr(72 + ps*4)}, v{88+ps}, {sr(S_OUT)}, s{S_T1} offen", "out"))
        t_.many(self.stamp())

    def slowpath(self):
        a = self.t
        a.lab("A_SLOW")
        a.c("---- fallback: true row maximum, then redo the attention loop with it")
        a.lq, a.vq = [], []
        a.e("s_waitcnt vmcnt(0) lgkmcnt(0)")
        a.e("s_barrier")
        a.e(f"s_mov_b32 s{S_PASS}, 1")
        self.emit_kv_addr()
        for qt in range(7):
            a.e(f"v_mov_b32 v{V_NEGM + 4*qt}, 0xff800000")
        KA = V_V
        for ks in range(4):
            a.e(f"v_subrev_u32 v{KA+ks}, {PAIR(0)+16384}, v{V_KA+ks}")
        a.e(f"s_mov_b32 s{S_SOKV}, 0")
        a.lab("A_MAXLOOP")
        a.many([x.t if isinstance(x, VM) else x for x in self.kv_dma("K", 0, f"s{S_SOKV}", lds=0)])
        a.e("s_waitcnt vmcnt(0)")
        a.e("s_barrier")
        for kt in range(2):
            for ks in range(4):
                off = f" offset:{kt*4096}" if kt else ""
                a.e(f"ds_read_b128 {vr(V_K + (kt*4+ks)*4)}, v{KA+ks}{off}")
        a.e("s_waitcnt lgkmcnt(0)")
        for qt in range(7):
            for kt in range(2):
                for ks in range(4):
                    d = vr(V_S + kt * 4)
                    a.e(f"{MF} {d}, {vr(V_K + (kt*4+ks)*4)}, {ar(A_Q + (qt*4+ks)*4)}, {'0' if ks == 0 else d}")
            a.e("s_nop 15")
            m = V_NEGM + 4 * qt
            for i in range(4):
                a.e(f"v_max3_f32 v{m}, v{m}, v{V_S+2*i}, v{V_S+2*i+1}")
            a.e("s_nop 3")
        a.e("s_barrier")
        a.e(f"s_add_u32 s{S_SOKV}, s{S_SOKV}, 16384")
        a.e(f"s_cmp_lt_u32 s{S_SOKV}, 262144")
        a.e("s_cbranch_scc1 A_MAXLOOP")
        L, t, u = V_T0, V_T0 + 1, V_T0 + 2
        a.e(f"v_and_b32 v{L}, 63, v{V_TID}")
        a.e(f"v_lshlrev_b32 v{t}, 2, v{L}")
        a.e(f"s_mul_i32 s{S_T0}, s{S_W}, 1792")
        a.e(f"s_add_u32 s{S_T0}, s{S_T0}, {MXX}")
        a.e(f"v_add_u32 v{t}, s{S_T0}, v{t}")
        for qt in range(7):
            a.e(f"ds_write_b32 v{t}, v{V_NEGM + 4*qt} offset:{qt*256}")
        a.e("s_waitcnt lgkmcnt(0)")
        a.e("s_barrier")
        a.e(f"v_and_b32 v{u}, 15, v{L}")
        a.e(f"v_lshlrev_b32 v{u}, 2, v{u}")
        a.e(f"s_mul_i32 s{S_T0}, s{S_QH}, 3584")
        a.e(f"s_add_u32 s{S_T0}, s{S_T0}, {MXX}")
        a.e(f"v_add_u32 v{u}, s{S_T0}, v{u}")
        for qt in range(7):
            for i in range(8):
                off = (i >> 2) * 1792 + qt * 256 + (i & 3) * 64
                a.e(f"ds_read_b32 v{V_S+i}, v{u} offset:{off}")
            a.e("s_waitcnt lgkmcnt(0)")
            m = V_NEGM + 4 * qt
            a.e(f"v_max3_f32 v{m}, v{V_S}, v{V_S+1}, v{V_S+2}")
            a.e(f"v_max3_f32 v{m}, v{m}, v{V_S+3}, v{V_S+4}")
            a.e(f"v_max3_f32 v{m}, v{m}, v{V_S+5}, v{V_S+6}")
            a.e(f"v_max_f32 v{m}, v{m}, v{V_S+7}")
            a.e(f"v_sub_f32 v{m}, 0, v{m}")
            for i in range(1, 4):
                a.e(f"v_mov_b32 v{m+i}, v{m}")
        a.e("s_barrier")
        a.e(f"v_lshlrev_b32 v{t}, 4, v{L}")
        a.e(f"s_mul_i32 s{S_T0}, s{S_QH}, 28672")
        a.e(f"v_add_u32 v{V_QR}, s{S_T0}, v{t}")
        for ks in range(4):
            for qt in range(7):
                a.e(f"ds_write_b128 v{V_QR}, {ar(A_Q + (qt*4+ks)*4)} offset:{(ks*7+qt)*1024}")
        strip = lambda xs: [x.t if isinstance(x, VM) else x for x in xs]
        a.many(strip(self.kv_dma("K", 0, "0")))
        a.many(strip(self.kv_dma("V", 0, "0")))
        a.e(f"s_mov_b32 s{S_SOKV}, 16384")
        a.many(strip(self.kv_dma("K", 1, f"s{S_SOKV}")))
        a.many(strip(self.kv_dma("V", 1, f"s{S_SOKV}")))
        a.e(f"s_mov_b32 s{S_SOKV}, 32768")
        a.many(strip(self.kv_dma("K", 2, f"s{S_SOKV}")))
        a.many(strip(self.kv_dma("V", 2, f"s{S_SOKV}")))
        if self.o.fused: a.many(self.b_addr_v())
        if self.pf_on: a.e(f"v_mov_b32 v{V_PF}, 0x40000000")
        a.e(f"s_waitcnt vmcnt(16) lgkmcnt(0)")
        a.e("s_barrier")
        for kt in range(2):
            for ks in range(4):
                a.e(self.k_read(kt, ks, 0).t)
        a.e("s_branch A_ATT")


def main():
    import gen as G1
    ap = argparse.ArgumentParser()
    ap.add_argument("-o", default="cdna_kernels/" + NAME + ".s")
    ap.add_argument("--nt", type=int, default=0)
    ap.add_argument("--stamps", type=int, default=0)
    ap.add_argument("--dbgq", type=int, default=0)
    ap.add_argument("--bw", type=int, default=8)
    ap.add_argument("--brs", type=int, default=4)
    ap.add_argument("--only", default="")
    ap.add_argument("--rts", type=int, default=0)
    ap.add_argument("--osc1", type=int, default=0)
    ap.add_argument("--probe", default="")
    ap.add_argument("--fused", type=int, default=1)
    ap.add_argument("--bmap", type=int, default=0)
    ap.add_argument("--nr", type=int, default=16)
    ap.add_argument("--od", type=int, default=8)
    ap.add_argument("--npre", type=int, default=4)
    ap.add_argument("--opad", type=int, default=0)
    ap.add_argument("--bnomf", type=int, default=0)
    ap.add_argument("--bnold", type=int, default=0)
    ap.add_argument("--b2x", type=int, default=0)
    ap.add_argument("--olsc", type=int, default=1)
    ap.add_argument("--pfq", type=int, default=0)
    ap.add_argument("--pfc", default="0,0,0,0,0,0,0,0,0,0")
    ap.add_argument("--pf0", type=int, default=0)
    ap.add_argument("--pfa", type=int, default=0)
    ap.add_argument("--pfpol", default="")
    ap.add_argument("--pfqpol", default="")
    ap.add_argument("--pfas", type=int, default=6)
    ap.add_argument("--pfan", type=int, default=11)
    ap.add_argument("--pfw", type=int, default=0)
    ap.add_argument("--pfwt", type=int, default=12)
    ap.add_argument("--pfwpol", default="")
    o = ap.parse_args()
    if o.pfpol: o.pfpol = " " + o.pfpol
    if o.pfqpol: o.pfqpol = " " + o.pfqpol
    if o.pfwpol: o.pfwpol = " " + o.pfwpol
    ga = GenA(o); ta = ga.gen()
    if o.fused:
        hdr = G1.HDR.replace("Launch 1: one workgroup", "Phase 1: one workgroup").replace("Launch 2: out = O * wo.", "Phase 2 (same launch, after a counter hand-off): out = O * wo.")
        if o.probe:
            hdr += f"; @launch kernel={NAME}_kernel grid=(256,1,1) block=(256,1,1) lds=163840\n"
            hdr += "; @launch kernel=probe_kernel grid=(1,1,1) block=(64,1,1) lds=0\n"
        else:
            hdr += "; @launch grid=(256,1,1) block=(256,1,1) lds=163840\n"
        txt = hdr + '.amdgcn_target "amdgcn-amd-amdhsa--gfx950"\n.text\n' + G1.fix_hazards(ta) + "\n"
        if o.probe:
            txt += G1.gen_probe(o.probe) + "\n"
        txt += '.section .rodata,"a"\n.p2align 6\n' + G1.descriptor(NAME + "_kernel", 512, 256)
        if o.probe:
            txt += ".p2align 6\n" + G1.descriptor("probe_kernel", 32, 32)
        open(o.o, "w").write(txt)
        print("wrote", o.o, len(txt), "bytes; stamps", ga.nst)
        return
    gb = G1.GenB(o); tb = gb.gen()
    hdr = G1.HDR
    blds = max(o.bw * o.brs * 4096, o.bw * 16384)
    if o.only != "B":
        hdr += f"; @launch kernel={NAME}_kernel grid=(256,1,1) block=(256,1,1) lds=163840\n"
    if o.only != "A":
        hdr += f"; @launch kernel=oproj_kernel grid=(256,1,1) block=({o.bw*64},1,1) lds={blds}\n"
    if o.probe:
        hdr += "; @launch kernel=probe_kernel grid=(1,1,1) block=(64,1,1) lds=0\n"
    txt = hdr + '.amdgcn_target "amdgcn-amd-amdhsa--gfx950"\n.text\n' + G1.fix_hazards(ta) + "\n" + G1.fix_hazards(tb) + "\n"
    if o.probe:
        txt += G1.gen_probe(o.probe) + "\n"
    txt += '.section .rodata,"a"\n.p2align 6\n' + G1.descriptor(NAME + "_kernel", 512, 256)
    nvb = (gb.nv + 7) // 8 * 8
    txt += ".p2align 6\n" + G1.descriptor("oproj_kernel", nvb, (gb.nv + 3) // 4 * 4)
    if o.probe:
        txt += ".p2align 6\n" + G1.descriptor("probe_kernel", 32, 32)
    open(o.o, "w").write(txt)
    print("wrote", o.o, len(txt), "bytes; B vgprs", gb.nv, "stamps", ga.nst)

if __name__ == "__main__":
    main()
```

```python
import sys, struct, re, argparse
from collections import defaultdict
sys.path.insert(0, "tools")

NAME = "standalone__mha_block_cached__near_ridge"
MF = "v_mfma_f32_16x16x32_bf16"

def f32(x):
    return struct.unpack("<I", struct.pack("<f", x))[0]
def vr(b, n=4): return f"v[{b}:{b+n-1}]" if n > 1 else f"v{b}"
def ar(b, n=4): return f"a[{b}:{b+n-1}]" if n > 1 else f"a{b}"
def sr(b, n=4): return f"s[{b}:{b+n-1}]" if n > 1 else f"s{b}"

class DS:
    def __init__(s, t, tag): s.t, s.tag = t, tag
class VM:
    def __init__(s, t, tag): s.t, s.tag = t, tag
class WL:
    def __init__(s, *tags): s.tags = set(tags)
class WV:
    def __init__(s, *tags): s.tags = set(tags)
class WALL:
    def __init__(s, k): s.k = k

class Trace:
    def __init__(self):
        self.L = []
        self.lq = []
        self.vq = []
    def raw(self, s): self.L.append(s)
    def lab(self, s): self.L.append(s + ":")
    def c(self, s): self.L.append("    ; " + s)
    def e(self, x):
        if isinstance(x, str):
            self.L.append("    " + x)
        elif isinstance(x, DS):
            self.L.append("    " + x.t); self.lq.append(x.tag)
        elif isinstance(x, VM):
            self.L.append("    " + x.t); self.vq.append(x.tag)
        elif isinstance(x, WL):
            idx = max([i for i, t in enumerate(self.lq) if t in x.tags], default=-1)
            if idx >= 0:
                n = len(self.lq) - 1 - idx
                if n > 15:
                    n = 15
                self.L.append(f"    s_waitcnt lgkmcnt({n})")
                self.lq = self.lq[len(self.lq) - n:] if n else []
        elif isinstance(x, WV):
            idx = max([i for i, t in enumerate(self.vq) if t in x.tags], default=-1)
            if idx >= 0:
                n = len(self.vq) - 1 - idx
                if n > 63:
                    n = 63
                self.L.append(f"    s_waitcnt vmcnt({n})")
                self.vq = self.vq[len(self.vq) - n:] if n else []
        elif isinstance(x, WALL):
            w = []
            if 'v' in x.k: w.append("vmcnt(0)"); self.vq = []
            if 'l' in x.k: w.append("lgkmcnt(0)"); self.lq = []
            self.L.append("    s_waitcnt " + " ".join(w))
        else:
            raise TypeError(x)
    def many(self, xs):
        for x in xs: self.e(x)

class Sched:
    def __init__(self, mf):
        self.mf = mf
        self.pre = defaultdict(list)
        self.post = defaultdict(list)
    def emit(self, t):
        for g, m in enumerate(self.mf):
            t.many(self.pre[g])
            t.e(m)
            t.many(self.post[g])
        n = len(self.mf)
        for g in sorted(set(list(self.pre) + list(self.post))):
            if g >= n:
                t.many(self.pre[g]); t.many(self.post[g])

BUF = {0: 90112, 1: 45056, 2: 0}
def PAIR(n):
    return 32768 + ((3 - n) & 3) * 32768
QX = 0
RG = 40960
LOFF = 7 * 4096
FOFF = 7 * 4096 + 2048
MXX = 16384

V_OOWN = 0
V_K = 112
V_V = 144
V_S = 176
V_P = 192
V_NEGM = 200
V_KA = 228
V_VA = 232
V_OFFKV = 240
V_TID = 242
V_T0 = 243
V_OFFX = 144
V_OFFW = 151
V_XR = 156
V_WR = 160
V_QW = 253
V_QR = 254
V_QT = 176
V_WOF = 245
V_TR = 249
V_OO = [244, 253, 254, 255]
S_WO, S_OUT = 16, 20
S_MG, S_NG, S_SW, S_SO, S_L0, S_L1, S_RB, S_SWC, S_SOC = 57, 58, 59, 10, 11, 3, 100, 101, 42
S_ROT, S_RT = 54, 43
S_PF = 12
V_PF, V_PFD = 243, 255
A_Q = 0
A_OOTH = 112
A_L = 224
A_ONES = 252
S_X, S_WQ, S_K, S_V, S_O = 16, 20, 24, 28, 32
S_W, S_QH, S_KH = 36, 37, 38
S_W1K7 = 39
S_SC = 40
S_SOX, S_SOW = 42, 43
S_W4K = 44
S_B, S_H = 45, 46
S_CNT = 47
S_PASS = 48
S_T0, S_T1, S_T2, S_T3 = 49, 50, 51, 52
S_OB = 53
S_SOKV = 56
S_ST = 60


def o_reg(j, tp):
    if tp < 4:
        return vr(V_OOWN + (j * 4 + tp) * 4)
    return ar(A_OOTH + (j * 4 + tp - 4) * 4)


class GenA:
    def __init__(self, opt):
        self.o = opt
        self.t = Trace()
        self.nst = 0
        self.npf = 0
        self.pfc = [int(z) for z in opt.pfc.split(",")]
        assert len(self.pfc) == 10
        self.pf_on = (sum(self.pfc) > 0 or opt.pfa)
        self.QS = 131072 + opt.opad

    def stamp(self, name):
        if not self.o.stamps or name not in self.o.stsel.split(","):
            return []
        ins = "s_memrealtime" if self.o.rts else "s_memtime"
        s = f"{ins} s[{S_ST + 2*self.nst}:{S_ST + 2*self.nst + 1}]"
        self.nst += 1
        assert self.nst <= 18
        return [s]

    def kvpol(self):
        return " nt" if self.o.nt else ""

    def emit_kv_addr(self, rd=True, dma=True):
        t_ = self.t
        L, l15, g, r4, c4, t, u = V_T0, V_T0+1, V_T0+2, V_T0+3, V_T0+4, V_T0+5, V_T0+6
        t_.e(f"v_and_b32 v{L}, 63, v{V_TID}")
        t_.e(f"v_and_b32 v{l15}, 15, v{L}")
        t_.e(f"v_lshrrev_b32 v{g}, 4, v{L}")
        if dma:
            t_.e(f"v_lshlrev_b32 v{t}, 1, v{g}")
            t_.e(f"v_xor_b32 v{t}, v{t}, v{l15}")
            t_.e(f"v_lshlrev_b32 v{t}, 4, v{t}")
            t_.e(f"v_lshlrev_b32 v{u}, 8, v{g}")
            t_.e(f"v_add_u32 v{u}, s{S_W4K}, v{u}")
            t_.e(f"v_add_u32 v{V_OFFKV}, v{t}, v{u}")
            t_.e(f"v_xor_b32 v{t}, 128, v{t}")
            t_.e(f"v_add_u32 v{V_OFFKV+1}, v{t}, v{u}")
        if rd:
            t_.e(f"v_bfe_u32 v{r4}, v{L}, 2, 2")
            t_.e(f"v_and_b32 v{c4}, 3, v{L}")
            t_.e(f"s_lshl_b32 s{S_T0}, s{S_KH}, 13")
            t_.e(f"s_add_u32 s{S_T1}, s{S_T0}, {PAIR(0) + 16384}")
            t_.e(f"v_and_b32 v{t}, 7, v{l15}")
            t_.e(f"v_lshlrev_b32 v{t}, 1, v{t}")
            t_.e(f"v_xor_b32 v{t}, v{t}, v{g}")
            t_.e(f"v_lshlrev_b32 v{t}, 4, v{t}")
            t_.e(f"v_lshlrev_b32 v{u}, 8, v{l15}")
            t_.e(f"v_add_u32 v{u}, s{S_T1}, v{u}")
            for ks in range(4):
                t_.e(f"v_xor_b32 v{V_KA+ks}, {ks*64}, v{t}")
                t_.e(f"v_add_u32 v{V_KA+ks}, v{V_KA+ks}, v{u}")
            t_.e(f"s_add_u32 s{S_T1}, s{S_T0}, {PAIR(0)}")
            t_.e(f"v_lshlrev_b32 v{u}, 2, v{g}")
            t_.e(f"v_add_u32 v{u}, v{u}, v{r4}")
            t_.e(f"v_and_b32 v{t}, 7, v{u}")
            t_.e(f"s_lshl_b32 s{S_T2}, s{S_KH}, 2")
            t_.e(f"v_xor_b32 v{t}, s{S_T2}, v{t}")
            t_.e(f"v_lshlrev_b32 v{t}, 5, v{t}")
            t_.e(f"v_lshlrev_b32 v{u}, 8, v{u}")
            t_.e(f"v_add_u32 v{u}, s{S_T1}, v{u}")
            t_.e(f"v_lshlrev_b32 v{c4}, 3, v{c4}")
            t_.e(f"v_add_u32 v{u}, v{u}, v{c4}")
            for tp in range(8):
                t_.e(f"v_xor_b32 v{V_VA+tp}, {tp*32}, v{t}")
                t_.e(f"v_add_u32 v{V_VA+tp}, v{V_VA+tp}, v{u}")

    def kv_dma(self, which, n, soff, lds=None):
        srd = S_K if which == "K" else S_V
        if lds is None:
            lds = PAIR(n) + (16384 if which == "K" else 0)
        r = [f"s_add_u32 m0, s{S_W4K}, {lds}"]
        for i in range(4):
            off = f" offset:{i*1024}" if i else ""
            r.append(VM(f"buffer_load_dwordx4 v{V_OFFKV + (i & 1)}, {sr(srd)}, {soff} offen{off}{self.kvpol()} lds", f"{which}{n}"))
        return r

    def kv_touch(self):
        self.npf += 1
        return [VM(f"buffer_load_dword v{V_PFD}, v{V_PF}, {sr(S_PF)}, 0 offen{self.o.pfpol}", "PF"),
                f"v_add_u32 v{V_PF}, 16384, v{V_PF}"]

    def x_dma(self, st):
        buf = BUF[st % 3]
        r = []
        if self.o.qrot:
            if st:
                r += [f"s_add_u32 s{S_SOX}, s{S_SOX}, 128", f"s_cmp_eq_u32 s{S_SOX}, 1152", f"s_cselect_b32 s{S_SOX}, 0, s{S_SOX}"]
        else:
            r.append(f"s_mov_b32 s{S_SOX}, {st*128}")
        r.append(f"s_add_u32 m0, s{S_W1K7}, {buf}")
        for i in range(7):
            if i == 4:
                r.append(f"s_add_u32 m0, s{S_W1K7}, {buf + 4096}")
            off = f" offset:{(i%4)*1024}" if i % 4 else ""
            r.append(VM(f"buffer_load_dwordx4 v{V_OFFX+i}, {sr(S_X)}, s{S_SOX} offen{off}{self.o.xpol} lds", f"X{st}"))
        if self.o.qrot:
            r.append(f"s_lshl_b32 s{S_SOW}, s{S_SOX}, 12")
        else:
            r.append(f"s_mov_b32 s{S_SOW}, {st*64*8192}")
        r.append(f"s_add_u32 m0, s{S_W4K}, {buf + 28672}")
        for i in range(4):
            off = f" offset:{i*1024}" if i else ""
            r.append(VM(f"buffer_load_dwordx4 v{V_OFFW+i}, {sr(S_WQ)}, s{S_SOW} offen{off}{self.o.wqpol} lds", f"X{st}"))
        return r

    def q_reads(self, st):
        buf = BUF[st % 3]
        sset = 1 if buf == 90112 else 0
        base = buf - (90112 if sset else 0)
        p = (st & 1) * 88
        r = []
        for s in range(2):
            for T in range(4):
                jj = T >> 1
                for hf in range(2):
                    off = base + 8192 * s + 1024 * hf + 8 * (T & 1)
                    r.append(DS(f"ds_read_b64_tr_b16 {ar(p + 56 + (s*4+T)*4 + 2*hf, 2)}, v{V_WR + sset*2 + jj} offset:{off}", f"R{st}"))
            for qt in range(7):
                off = base + qt * 2048
                r.append(DS(f"ds_read_b128 {ar(p + (s*7+qt)*4)}, v{V_XR + sset*2 + s} offset:{off}", f"R{st}"))
        return r

    def q_mf(self, st, s, T, qt, first):
        p = (st & 1) * 88
        d = vr((T * 7 + qt) * 4)
        c = "0" if (first and s == 0) else d
        return f"{MF} {d}, {ar(p + 56 + (s*4+T)*4)}, {ar(p + (s*7+qt)*4)}, {c}"

    def q_mfmas(self, st, first):
        return [self.q_mf(st, s, T, qt, first) for s in range(2) for T in range(4) for qt in range(7)]

    def k_read(self, kt, ks, n):
        off = f" offset:{kt*4096}" if kt else ""
        return DS(f"ds_read_b128 {vr(V_K + (kt*4+ks)*4)}, v{V_KA+ks}{off}", f"k{n}.{kt}")

    def v_read(self, tp, hf, n):
        off = f" offset:{hf*4096}" if hf else ""
        return DS(f"ds_read_b64_tr_b16 {vr(V_V + tp*4 + 2*hf, 2)}, v{V_VA+tp}{off}", f"v{n}.{tp}")

    def q_read(self, qt):
        return [DS(f"ds_read_b128 {ar(A_Q + (qt*4+ks)*4)}, v{V_QR} offset:{(ks*7+qt)*1024}", f"q{qt}") for ks in range(4)]

    def qk_mfmas(self, par, j2):
        r = []
        for kt in range(2):
            for ks in range(4):
                d = vr(V_S + par * 8 + kt * 4)
                c = vr(V_NEGM + j2 * 4) if ks == 0 else d
                r.append(f"{MF} {d}, {vr(V_K + (kt*4+ks)*4)}, {ar(A_Q + (j2*4+ks)*4)}, {c}")
        return r

    def pv_mfmas(self, par, j, first):
        r = []
        p = vr(V_P + par * 4)
        for tp in range(8):
            d = o_reg(j, tp)
            r.append(f"{MF} {d}, {vr(V_V + tp*4)}, {p}, {'0' if first else d}")
        d = ar(A_L + j * 4)
        r.append(f"{MF} {d}, {ar(A_ONES)}, {p}, {'0' if first else d}")
        return r

    def exps(self, par):
        return [f"v_exp_f32 v{V_S + par*8 + i}, v{V_S + par*8 + i}" for i in range(8)]

    def cvts(self, par):
        return [f"v_cvt_pk_bf16_f32 v{V_P + par*4 + i}, v{V_S + par*8 + 2*i}, v{V_S + par*8 + 2*i + 1}" for i in range(4)]

    def tile(self, n):
        t = self.t
        first = (n == 0)
        last = (n == 15)
        dl = (PAIR(n + 1) - PAIR(n)) & 0xffffffff
        vdma = self.kv_dma("V", n + 3, "0") if (n + 3 <= 15 and n >= 1) else None
        kdma = self.kv_dma("K", n + 4, "0") if n + 4 <= 15 else None
        adv = [f"v_add_u32 v{V_OFFKV}, 16384, v{V_OFFKV}", f"v_add_u32 v{V_OFFKV+1}, 16384, v{V_OFFKV+1}"]
        for j in range(7):
            par = (n + j) & 1
            mf = self.pv_mfmas(par, j, first)
            has_qk = not (last and j >= 5)
            if has_qk:
                mf = mf + self.qk_mfmas(par, (j + 2) % 7)
            S = Sched(mf)
            G, PRE = S.post, S.pre
            if not (last and j == 6):
                ex = self.exps(par ^ 1); cv = self.cvts(par ^ 1)
                if has_qk:
                    for i in range(8): G[2 * i].append(ex[i])
                    for i in range(4): G[4 * i + 3].append(cv[i])
                else:
                    for i in range(8): G[i // 2].append(ex[i])
                    G[2].append(cv[0]); G[3].append(cv[1]); G[4].append(cv[2]); G[5].append(cv[3])
            nn = n + 1
            if j == 0:
                PRE[0].append(WL(f"v{n}.0", f"v{n}.1", f"v{n}.2"))
                G[1] += [self.v_read(7, 0, n), self.v_read(7, 1, n)]
                PRE[3].append(WL(f"v{n}.3", f"v{n}.4", f"v{n}.5"))
                PRE[6].append(WL(f"v{n}.6", f"v{n}.7"))
                if vdma:
                    G[9] += [vdma[0]]
                    G[13] += [vdma[1]]
            if first and j <= 3:
                q = self.q_read(j + 3)
                G[5] += q[:2]; G[9] += q[2:]
            if first and j <= 4:
                PRE[9].append(WL(f"q{j+2}"))
            if j == 1:
                if vdma: G[5] += [vdma[2]]
                if not last:
                    G[9] += [f"v_add_u32 v{V_VA+0}, {dl}, v{V_VA+0}", f"v_add_u32 v{V_VA+1}, {dl}, v{V_VA+1}"] if not first else []
                    G[13] += [f"v_add_u32 v{V_VA+2}, {dl}, v{V_VA+2}", f"v_add_u32 v{V_VA+3}, {dl}, v{V_VA+3}"]
                    if first:
                        G[1] += [f"v_add_u32 v{V_VA+0}, {dl}, v{V_VA+0}", f"v_add_u32 v{V_VA+1}, {dl}, v{V_VA+1}"]
            if j == 2:
                if vdma: G[5] += [vdma[3]]
                if not last:
                    G[1] += [f"v_add_u32 v{V_VA+4}, {dl}, v{V_VA+4}", f"v_add_u32 v{V_VA+5}, {dl}, v{V_VA+5}"]
                    G[13] += [f"v_add_u32 v{V_VA+6}, {dl}, v{V_VA+6}", f"v_add_u32 v{V_VA+7}, {dl}, v{V_VA+7}"]
            if j == 3:
                if vdma: G[5] += [vdma[4]]
                if not last:
                    G[1] += [f"v_add_u32 v{V_KA+0}, {dl}, v{V_KA+0}", f"v_add_u32 v{V_KA+1}, {dl}, v{V_KA+1}"]
                    G[13] += [f"v_add_u32 v{V_KA+2}, {dl}, v{V_KA+2}", f"v_add_u32 v{V_KA+3}, {dl}, v{V_KA+3}"]
                if kdma and not first:
                    G[16] += adv
            if j == 4:
                if first:
                    G[5] += [WL("q6")]
                if not last:
                    G[5] += [WV(f"K{nn}", f"V{nn}")]
                else:
                    G[5] += [WL("ow0", "ow1", "ow2", "ow3")]
                G[7] += ["s_barrier"]
                if not last:
                    G[9] += [self.k_read(0, 0, nn)]
                    G[11] += [self.k_read(0, 1, nn)]
                    G[13] += [self.k_read(0, 2, nn), self.k_read(0, 3, nn)]
                    G[15] += [self.k_read(1, 0, nn)]
                    G[16] += [self.k_read(1, 1, nn), self.k_read(1, 2, nn)]
                if first:
                    k3 = self.kv_dma("K", 3, "0")
                    G[9] += [k3[0]]
                    self.k3 = k3
            if j == 5 and not last:
                G[1] += [self.k_read(1, 3, nn)]
                PRE[9].append(WL(f"k{nn}.0", f"k{nn}.1"))
                if first:
                    k3 = self.k3
                    G[1] += [k3[1]]; G[3] += [k3[2]]; G[5] += [k3[3]]; G[7] += [k3[4]]
                    v3 = self.kv_dma("V", 3, "0")
                    G[9] += [v3[0], v3[1]]; G[11] += [v3[2]]; G[13] += [v3[3]]; G[15] += [v3[4]]
                    G[16] += adv
                elif kdma:
                    G[0] += [kdma[0]]
                    G[1] += [kdma[1]]; G[5] += [kdma[2]]; G[9] += [kdma[3]]; G[13] += [kdma[4]]
            if j == self.o.pfas and self.o.pfa and n <= self.o.pfan:
                tc = self.kv_touch()
                G[14] += [tc[0]]; G[16] += [tc[1]]
            if self.o.pfw and n == self.o.pfwt and j in (4, 5, 6):
                w = self.wo_touch()
                if j == 4:
                    for i, x in enumerate(w[0]): G[9 + (i * 7) // len(w[0])].append(x)
                else:
                    tch = w[1] if j == 5 else w[2]
                    nv = sum(isinstance(x, VM) for x in tch)
                    gi = 2
                    for x in tch:
                        G[gi].append(x)
                        if isinstance(x, VM): gi += max(1, 14 // max(nv, 1))
            if j == 6 and not last:
                v = lambda a, b: self.v_read(a, b, nn)
                G[1] += [v(0, 0), v(0, 1)]
                G[3] += [v(1, 0)]
                G[5] += [v(1, 1), v(2, 0)]
                G[7] += [v(2, 1)]
                G[9] += [v(3, 0), v(3, 1)]
                G[11] += [v(4, 0)]
                G[13] += [v(4, 1), v(5, 0)]
                G[15] += [v(5, 1)]
                G[16] += [v(6, 0), v(6, 1)]
                if first:
                    PRE[0] += [kdma[0]]
                    G[0] += [kdma[1]]; G[4] += [kdma[2]]; G[8] += [kdma[3]]; G[12] += [kdma[4]]
            if last:
                if j == 1:
                    PRE[0] = ["s_barrier"] + PRE[0]
                    w = self.o_writes(0)
                    G[1] += [w[0]]; G[3] += [w[1]]; G[5] += [w[2]]; G[7] += [w[3]]; G[8] += [w[4]]
                if 1 <= j <= 4:
                    w = self.o_writes(j)
                    G[10] += [w[0]]; G[11] += [w[1]]; G[13] += [w[2], w[3]]; G[15] += [w[4]]
                if self.o.fused and j in (2, 3):
                    d = self.wo_dma(j - 2)
                    ns = len(d) - 4
                    G[0] += d[:ns]; G[1] += [d[ns]]; G[3] += [d[ns+1]]; G[5] += [d[ns+2]]; G[7] += [d[ns+3]]
                if j == 6:
                    w = self.o_writes(5)
                    G[1] += [w[0]]; G[3] += [w[1]]; G[4] += [w[2]]; G[6] += [w[3]]; G[7] += [w[4]]
                if j == 0:
                    PRE[0] = self.ox_addr() + PRE[0]
            t.c(f"tile {n} slot {j}")
            S.emit(t)

    def wo_touch(self):
        a = V_PF
        su = [f"v_and_b32 v{a}, 63, v{V_TID}", f"s_lshr_b32 s{S_T0}, s2, 3"]
        pol = self.o.pfwpol
        if self.o.bmap == 0:
            su += [f"s_lshl_b32 s{S_T0}, s{S_T0}, 2", f"s_add_u32 s{S_T0}, s{S_T0}, s{S_W}",
                   f"s_mul_i32 s{S_T0}, s{S_T0}, {32*1152}",
                   f"s_and_b32 s{S_T1}, s2, 1", f"s_lshl_b32 s{S_T1}, s{S_T1}, 9", f"s_add_u32 s{S_T0}, s{S_T0}, s{S_T1}",
                   f"v_cmp_gt_u32 vcc, 32, v{a}",
                   f"v_mul_u32_u24 v{a}, 1152, v{a}", f"v_add_u32 v{a}, s{S_T0}, v{a}",
                   f"v_mov_b32 v{V_PFD}, 0x40000000",
                   f"v_cndmask_b32 v{a}, v{V_PFD}, v{a}, vcc"]
            T = [VM(f"buffer_load_dword v{V_PFD}, v{a}, {sr(S_WO)}, 0 offen" + (f" offset:{i*128}" if i else "") + pol, "PW") for i in range(5)]
            return su, T[:3], T[3:]
        su += [f"s_mul_i32 s{S_T0}, s{S_T0}, 147456", f"s_mul_i32 s{S_T1}, s{S_W}, 36864", f"s_add_u32 s{S_T0}, s{S_T0}, s{S_T1}",
               f"v_lshlrev_b32 v{a}, 7, v{a}", f"v_add_u32 v{a}, s{S_T0}, v{a}"]
        T = []
        for i in range(5):
            T.append([VM(f"buffer_load_dword v{V_PFD}, v{a}, {sr(S_WO)}, 0 offen{pol}", "PW"), f"v_add_u32 v{a}, 8192, v{a}"])
        return su, T[0] + T[1] + T[2], T[3] + T[4]

    def ox_addr(self):
        r = []
        T = V_T0
        r.append(f"v_and_b32 v{T}, 63, v{V_TID}")
        r.append(f"v_lshlrev_b32 v{T+1}, 4, v{T}")
        r.append(f"v_lshlrev_b32 v{T}, 2, v{T}")
        r.append(f"s_xor_b32 s{S_T3}, s{S_W}, 1")
        r.append(f"s_mul_i32 s{S_T0}, s{S_T3}, {RG}")
        r.append(f"v_add_u32 v{V_KA}, s{S_T0}, v{T+1}")
        r.append(f"s_add_u32 s{S_T0}, s{S_T0}, {LOFF}")
        r.append(f"v_add_u32 v{V_KA+1}, s{S_T0}, v{T}")
        r.append(f"s_mul_i32 s{S_T0}, s{S_W}, {RG}")
        r.append(f"v_add_u32 v{V_KA+2}, s{S_T0}, v{T+1}")
        r.append(f"s_add_u32 s{S_T0}, s{S_T0}, {LOFF}")
        r.append(f"v_add_u32 v{V_KA+3}, s{S_T0}, v{T}")
        r.append(f"s_mul_i32 s{S_T0}, s{S_B}, 14")
        r.append(f"s_mul_i32 s{S_T1}, s{S_QH}, 7")
        r.append(f"s_add_u32 s{S_T0}, s{S_T0}, s{S_T1}")
        r.append(f"s_mul_i32 s{S_T0}, s{S_T0}, {self.QS}")
        r.append(f"s_lshl_b32 s{S_T1}, s{S_H}, 1")
        r.append(f"s_add_u32 s{S_T1}, s{S_T1}, s{S_KH}")
        r.append(f"s_lshl_b32 s{S_T1}, s{S_T1}, 11")
        r.append(f"s_add_u32 s{S_OB}, s{S_T0}, s{S_T1}")
        return r

    def o_writes(self, j):
        r = []
        for tpp in range(4):
            i = j * 4 + tpp
            r.append(DS(f"ds_write_b128 v{V_KA}, {ar(A_OOTH + i*4)} offset:{i*1024}", f"ow{j}"))
        r.append(DS(f"ds_write_b32 v{V_KA+1}, a{A_L + 4*j} offset:{j*256}", f"ow{j}"))
        return r

    def gen(self):
        t_ = self.t
        o = self.o
        kn = f"{NAME}_kernel"
        t_.raw(f".globl {kn}\n.p2align 8\n.type {kn},@function\n{kn}:")
        t_.e("s_cmp_ge_u32 s2, 256")
        t_.e("s_cbranch_scc1 A_END")
        t_.e("s_load_dwordx8 s[4:11], s[0:1], 0")
        t_.e("s_load_dwordx2 s[12:13], s[0:1], 56")
        t_.many(self.stamp("start"))
        if o.stamps:
            t_.e(f"s_memrealtime s[{S_ST+36}:{S_ST+37}]")
        if o.ctouch:
            t_.e("s_getpc_b64 s[14:15]")
            t_.lab("CT_PC")
            t_.e("s_lshr_b32 s3, s2, 3")
            t_.e("s_and_b32 s3, s3, 1")
            t_.e("s_lshl_b32 s3, s3, 15")
            t_.e("v_lshlrev_b32 v1, 7, v0")
            t_.e("v_add_u32 v1, s3, v1")
            t_.e("v_min_u32 v1, CT_END-CT_PC-4, v1")
            t_.e(VM(f"global_load_dword v{V_PFD}, v1, s[14:15]", "PF"))
        t_.e(f"v_mov_b32 v{V_TID}, v0")
        t_.e(f"v_lshrrev_b32 v1, 6, v0")
        t_.e("s_and_b32 s3, s2, 7")
        t_.e(f"s_lshr_b32 s{S_T0}, s2, 3")
        t_.e(f"v_readfirstlane_b32 s{S_W}, v1")
        t_.e(f"s_and_b32 s{S_T1}, s3, 1")
        t_.e(f"s_lshl_b32 s{S_T1}, s{S_T1}, 2")
        t_.e(f"s_and_b32 s{S_T2}, s{S_T0}, 3")
        t_.e(f"s_add_u32 s{S_B}, s{S_T1}, s{S_T2}")
        t_.e(f"s_lshr_b32 s{S_T1}, s3, 1")
        t_.e(f"s_lshl_b32 s{S_T1}, s{S_T1}, 3")
        t_.e(f"s_lshr_b32 s{S_T2}, s{S_T0}, 2")
        t_.e(f"s_add_u32 s{S_H}, s{S_T1}, s{S_T2}")
        t_.e(f"s_lshr_b32 s{S_QH}, s{S_W}, 1")
        t_.e(f"s_and_b32 s{S_KH}, s{S_W}, 1")
        t_.e(f"s_mul_i32 s{S_W1K7}, s{S_W}, 7168")
        t_.e(f"s_lshl_b32 s{S_W4K}, s{S_W}, 12")
        L, l15, g, r4, c4, t, u = V_T0, V_T0+1, V_T0+2, V_T0+3, V_T0+4, V_T0+5, V_T0+6
        t_.e(f"v_and_b32 v{L}, 63, v{V_TID}")
        t_.e(f"v_and_b32 v{l15}, 15, v{L}")
        t_.e(f"v_lshrrev_b32 v{g}, 4, v{L}")
        t_.e(f"v_lshrrev_b32 v{t}, 3, v{L}")
        t_.e(f"v_and_b32 v{r4}, 7, v{L}")
        t_.e(f"v_xor_b32 v{u}, v{g}, v{r4}")
        t_.e(f"v_lshlrev_b32 v{u}, 4, v{u}")
        t_.e(f"s_lshl_b32 s{S_T0}, s{S_KH}, 6")
        t_.e(f"v_xor_b32 v{u}, s{S_T0}, v{u}")
        t_.e(f"v_mul_u32_u24 v{t}, 1152, v{t}")
        t_.e(f"s_mul_i32 s{S_T1}, s{S_W}, {56*1152}")
        t_.e(f"v_add_u32 v{t}, s{S_T1}, v{t}")
        t_.e(f"v_xor_b32 v{c4}, 64, v{u}")
        t_.e(f"v_add_u32 v{V_OFFX}, v{u}, v{t}")
        t_.e(f"v_add_u32 v{c4}, v{c4}, v{t}")
        for i in range(1, 7):
            src = V_OFFX if (i & 1) == 0 else c4
            k = i * 9216 - (i % 4) * 1024
            t_.e(f"v_add_u32 v{V_OFFX+i}, {k}, v{src}")
        t_.e(f"v_lshlrev_b32 v{t}, 2, v{g}")
        t_.e(f"v_xor_b32 v{t}, v{t}, v{l15}")
        t_.e(f"v_lshlrev_b32 v{t}, 4, v{t}")
        t_.e(f"v_lshlrev_b32 v{u}, 13, v{g}")
        t_.e(f"s_lshl_b32 s{S_T1}, s{S_W}, 17")
        t_.e(f"v_add_u32 v{u}, s{S_T1}, v{u}")
        t_.e(f"v_add_u32 v{V_OFFW}, v{t}, v{u}")
        for i in range(1, 4):
            t_.e(f"v_add_u32 v{V_OFFW+i}, {i*(32768-1024)}, v{V_OFFW}")
        t_.e(f"s_mul_i32 s{S_T0}, s{S_B}, 258048")
        t_.e(f"s_lshl_b32 s{S_T1}, s{S_H}, 8")
        t_.e(f"s_mov_b32 s{S_X+2}, 258048")
        t_.e(f"s_mov_b32 s{S_X+3}, 0x00020000")
        t_.e(f"s_sub_u32 s{S_WQ+2}, {576*8192}, s{S_T1}")
        t_.e(f"s_mov_b32 s{S_WQ+3}, 0x00020000")
        if o.qrot:
            al, be, sh = [int(z) for z in o.qrot.split(",")]
            t_.e(f"s_lshr_b32 s{S_T0}, s2, 5")
            t_.e(f"s_mul_i32 s{S_T0}, s{S_T0}, {al}")
            t_.e(f"s_bfe_u32 s{S_T1}, s2, {(2 << 16) | 3}")
            t_.e(f"s_mul_i32 s{S_T1}, s{S_T1}, {be}")
            t_.e(f"s_add_u32 s{S_T0}, s{S_T0}, s{S_T1}")
            t_.e(f"s_lshr_b32 s{S_T0}, s{S_T0}, {sh}")
            for _ in range(((7 * al + 3 * be) >> sh) // 9):
                t_.e(f"s_sub_u32 s{S_T1}, s{S_T0}, 9")
                t_.e(f"s_cmp_ge_u32 s{S_T0}, 9")
                t_.e(f"s_cselect_b32 s{S_T0}, s{S_T1}, s{S_T0}")
            t_.e(f"s_lshl_b32 s{S_SOX}, s{S_T0}, 7")
            t_.e(f"s_mul_i32 s{S_T0}, s{S_B}, 258048")
            t_.e(f"s_lshl_b32 s{S_T1}, s{S_H}, 8")
        t_.e("s_waitcnt lgkmcnt(0)")
        t_.many(self.stamp("karg"))
        t_.e(f"s_add_u32 s{S_X}, s4, s{S_T0}")
        t_.e(f"s_addc_u32 s{S_X+1}, s5, 0")
        t_.e(f"s_add_u32 s{S_WQ}, s10, s{S_T1}")
        t_.e(f"s_addc_u32 s{S_WQ+1}, s11, 0")
        t_.many(self.x_dma(0))
        t_.many(self.stamp("x0"))
        t_.many(self.x_dma(1))
        t_.many(self.stamp("x1"))
        t_.e(f"s_lshl_b32 s{S_T0}, s{S_B}, 5")
        t_.e(f"s_add_u32 s{S_T0}, s{S_T0}, s{S_H}")
        t_.e(f"s_lshl_b32 s{S_T0}, s{S_T0}, 18")
        t_.e(f"s_add_u32 s{S_K}, s6, s{S_T0}")
        t_.e(f"s_addc_u32 s{S_K+1}, s7, 0")
        t_.e(f"s_mov_b32 s{S_K+2}, 262144")
        t_.e(f"s_mov_b32 s{S_K+3}, 0x00020000")
        t_.e(f"s_add_u32 s{S_V}, s8, s{S_T0}")
        t_.e(f"s_addc_u32 s{S_V+1}, s9, 0")
        t_.e(f"s_mov_b32 s{S_V+2}, 262144")
        t_.e(f"s_mov_b32 s{S_V+3}, 0x00020000")
        t_.e(f"s_mov_b32 s{S_O}, s12")
        t_.e(f"s_mov_b32 s{S_O+1}, s13")
        t_.e(f"s_mov_b32 s{S_O+2}, {112*self.QS}")
        t_.e(f"s_mov_b32 s{S_O+3}, 0x00020000")
        if o.fused:
            t_.e("s_load_dwordx4 s[4:7], s[0:1], 32")
            t_.e("s_load_dwordx2 s[8:9], s[0:1], 48")
        self.emit_kv_addr(rd=False, dma=True)
        t_.many(self.kv_dma("K", 0, "0"))
        t_.many(self.stamp("k0i"))
        if o.pfq:
            a0, a1 = 112, 113
            pl = V_T0
            t_.e(f"s_and_b32 s{S_T0}, s{S_H}, 7")
            t_.e(f"s_mul_i32 s{S_T0}, s{S_T0}, 32256")
            t_.e(f"s_lshl_b32 s{S_T1}, s{S_W}, 13")
            t_.e(f"s_add_u32 s{S_T0}, s{S_T0}, s{S_T1}")
            t_.e(f"v_lshlrev_b32 v{a0}, 7, v{pl}")
            t_.e(f"v_add_u32 v{a0}, s{S_T0}, v{a0}")
            t_.e(VM(f"buffer_load_dword v{V_PFD}, v{a0}, {sr(S_X)}, 0 offen{o.pfqpol}", "PF"))
            t_.e(f"s_and_b32 s{S_T0}, s{S_B}, 3")
            t_.e(f"s_mul_i32 s{S_T0}, s{S_T0}, 144")
            t_.e(f"s_mul_i32 s{S_T1}, s{S_W}, 36")
            t_.e(f"s_add_u32 s{S_T0}, s{S_T0}, s{S_T1}")
            t_.e(f"s_lshl_b32 s{S_T0}, s{S_T0}, 13")
            t_.e(f"v_lshrrev_b32 v{a0}, 1, v{pl}")
            t_.e(f"v_lshlrev_b32 v{a0}, 13, v{a0}")
            t_.e(f"v_and_b32 v{a1}, 1, v{pl}")
            t_.e(f"v_lshlrev_b32 v{a1}, 7, v{a1}")
            t_.e(f"v_add_u32 v{a0}, v{a0}, v{a1}")
            t_.e(f"v_add_u32 v{a0}, s{S_T0}, v{a0}")
            t_.e(VM(f"buffer_load_dword v{V_PFD}, v{a0}, {sr(S_WQ)}, 0 offen{o.pfqpol}", "PF"))
            t_.e(f"v_add_u32 v{a1}, {32*8192}, v{a0}")
            t_.e(f"v_mov_b32 v{a0}, 0x40000000")
            t_.e(f"v_cmp_gt_u32 vcc, 8, v{pl}")
            t_.e(f"v_cndmask_b32 v{a1}, v{a0}, v{a1}, vcc")
            t_.e(VM(f"buffer_load_dword v{V_PFD}, v{a1}, {sr(S_WQ)}, 0 offen{o.pfqpol}", "PF"))
        if self.pf_on:
            t_.e(f"s_lshr_b32 s{S_T0}, s{S_W}, 1")
            t_.e(f"s_cmp_eq_u32 s{S_T0}, 0")
            t_.e(f"s_cselect_b32 s{S_PF}, s{S_K}, s{S_V}")
            t_.e(f"s_cselect_b32 s{S_PF+1}, s{S_K+1}, s{S_V+1}")
            t_.e(f"s_and_b32 s{S_T0}, s{S_W}, 1")
            t_.e(f"s_lshl_b32 s{S_T0}, s{S_T0}, 13")
            t_.e(f"s_add_u32 s{S_PF}, s{S_PF}, s{S_T0}")
            t_.e(f"s_addc_u32 s{S_PF+1}, s{S_PF+1}, 0")
            t_.e(f"s_sub_u32 s{S_PF+2}, 262144, s{S_T0}")
            t_.e(f"s_mov_b32 s{S_PF+3}, 0x00020000")
            t_.e(f"v_lshlrev_b32 v112, 7, v{V_T0}")
            if o.pf0: t_.e(f"v_add_u32 v112, {o.pf0*16384}, v112")
            self.pfreg = 112
            for i in range(self.pfc[0]):
                t_.e(VM(f"buffer_load_dword v{V_PFD}, v112, {sr(S_PF)}, 0 offen{o.pfpol}", "PF"))
                t_.e(f"v_add_u32 v112, 16384, v112")
        t_.many(self.stamp("k0"))
        self.emit_kv_addr(rd=True, dma=False)
        sc = f32(1.4426950408889634 / (128 ** 0.5))
        t_.e(f"s_mov_b32 s{S_SC}, {hex(sc)}")
        t_.e(f"s_mov_b32 s{S_PASS}, 0")
        t_.e(f"v_bfe_u32 v{r4}, v{L}, 2, 2")
        t_.e(f"v_and_b32 v{c4}, 3, v{L}")
        t_.e(f"v_lshrrev_b32 v{t}, 1, v{l15}")
        t_.e(f"v_xor_b32 v{t}, v{t}, v{g}")
        t_.e(f"v_lshlrev_b32 v{t}, 4, v{t}")
        t_.e(f"v_lshlrev_b32 v{u}, 7, v{l15}")
        t_.e(f"s_mul_i32 s{S_T0}, s{S_QH}, {112*128}")
        t_.e(f"v_add_u32 v{u}, s{S_T0}, v{u}")
        t_.e(f"v_add_u32 v{V_XR}, v{t}, v{u}")
        t_.e(f"v_xor_b32 v{t}, 64, v{t}")
        t_.e(f"v_add_u32 v{V_XR+1}, v{t}, v{u}")
        t_.e(f"v_add_u32 v{V_XR+2}, 90112, v{V_XR}")
        t_.e(f"v_add_u32 v{V_XR+3}, 90112, v{V_XR+1}")
        t_.e(f"s_lshl_b32 s{S_T0}, s{S_KH}, 1")
        t_.e(f"v_xor_b32 v{t}, s{S_T0}, v{r4}")
        t_.e(f"v_lshlrev_b32 v{t}, 6, v{t}")
        t_.e(f"v_lshlrev_b32 v{u}, 3, v{g}")
        t_.e(f"v_add_u32 v{u}, v{u}, v{r4}")
        t_.e(f"v_lshlrev_b32 v{u}, 8, v{u}")
        t_.e(f"v_lshlrev_b32 v{c4}, 4, v{c4}")
        t_.e(f"v_add_u32 v{u}, v{u}, v{c4}")
        t_.e(f"v_add_u32 v{u}, 28672, v{u}")
        t_.e(f"v_add_u32 v{V_WR}, v{t}, v{u}")
        t_.e(f"v_xor_b32 v{t}, 64, v{t}")
        t_.e(f"v_add_u32 v{V_WR+1}, v{t}, v{u}")
        t_.e(f"v_add_u32 v{V_WR+2}, 90112, v{V_WR}")
        t_.e(f"v_add_u32 v{V_WR+3}, 90112, v{V_WR+1}")
        t_.e(f"v_lshlrev_b32 v{t}, 4, v{L}")
        t_.e(f"s_mul_i32 s{S_T0}, s{S_QH}, 28672")
        t_.e(f"v_add_u32 v{V_QR}, s{S_T0}, v{t}")
        t_.e(f"s_mul_i32 s{S_T1}, s{S_KH}, 14336")
        t_.e(f"v_add_u32 v{V_QW}, s{S_T1}, v{V_QR}")
        for i in range(28):
            t_.e(f"v_mov_b32 v{V_NEGM+i}, 0")
        t_.e(f"v_mov_b32 v{t}, 0x3f803f80")
        for i in range(4):
            t_.e(f"v_accvgpr_write_b32 a{A_ONES+i}, v{t}")
        if self.pf_on:
            t_.e(f"v_mov_b32 v{V_PF}, v112")
        for k in range(9):
            t_.c(f"---- Q-proj period {k}")
            t_.many(self.stamp(f"a{k}"))
            t_.e(WV(f"X{k}"))
            t_.many(self.stamp(f"w{k}"))
            if k: t_.e(WL(f"R{k-1}"))
            t_.e("s_barrier")
            t_.many(self.stamp(f"p{k}"))
            rd = self.q_reads(k)
            if k <= 6:
                dm = self.x_dma(k + 2)
            elif k == 7:
                dm = self.kv_dma("V", 0, "0") + [f"s_mov_b32 s{S_SOKV}, 16384"] + self.kv_dma("K", 1, f"s{S_SOKV}") + \
                     self.kv_dma("V", 1, f"s{S_SOKV}")
            else:
                dm = [f"s_mov_b32 s{S_SOKV}, 32768"] + self.kv_dma("K", 2, f"s{S_SOKV}") + self.kv_dma("V", 2, f"s{S_SOKV}")
            for i in range(self.pfc[k + 1]): dm = dm + self.kv_touch()
            if k == 0:
                t_.many(rd); t_.many(self.stamp("r0")); t_.many(dm)
                continue
            S = Sched(self.q_mfmas(k - 1, k == 1))
            pos = [g for g in range(56) if g % 5 != 2][:len(rd)]
            for p_, r_ in zip(pos, rd): S.post[p_].append(r_)
            nvm = sum(isinstance(x, VM) for x in dm)
            step = 56.0 / nvm
            i = 0
            pend = []
            for x in dm:
                if isinstance(x, VM):
                    gpos = int(i * step + 2 - (i * step + 2) % 1)
                    gpos = min(55, gpos)
                    if pend:
                        S.post[gpos - 1] += pend; pend = []
                    S.post[gpos].append(x); i += 1
                else:
                    pend.append(x)
            if pend: S.post[55] += pend
            if o.fused and k in (3, 4, 8):
                extra = {3: self.b_addr_s, 4: self.b_addr_v, 8: self.b_srd}[k]()
                for i, x in enumerate(extra): S.post[38 + (i * 17) // len(extra)].append(x)
            S.emit(t_)
        t_.c("---- Q-proj period 9 + finalisation")
        t_.e(WL("R8"))
        t_.e("s_barrier")
        t_.many(self.stamp("p9"))
        groups = [(jj, qt) for jj in range(2) for qt in range(7)]
        mf = []
        for (jj, qt) in groups:
            for s in range(2):
                for T in (2 * jj, 2 * jj + 1):
                    mf.append(self.q_mf(8, s, T, qt, False))
        S = Sched(mf)
        def fin(gi):
            jj, qt = groups[gi]
            tb = V_QT + (gi & 1) * 4
            r0 = ((2 * jj) * 7 + qt) * 4
            r1 = ((2 * jj + 1) * 7 + qt) * 4
            m0_ = [f"v_mul_f32 v{r0+i}, s{S_SC}, v{r0+i}" for i in range(4)]
            m1_ = [f"v_mul_f32 v{r1+i}, s{S_SC}, v{r1+i}" for i in range(4)]
            c_ = [f"v_cvt_pk_bf16_f32 v{tb}, v{r0}, v{r0+1}", f"v_cvt_pk_bf16_f32 v{tb+1}, v{r0+2}, v{r0+3}",
                  f"v_cvt_pk_bf16_f32 v{tb+2}, v{r1}, v{r1+1}", f"v_cvt_pk_bf16_f32 v{tb+3}, v{r1+2}, v{r1+3}"]
            w_ = DS(f"ds_write_b128 v{V_QW}, {vr(tb)} offset:{(jj*7+qt)*1024}", "qw")
            return m0_, m1_, c_, w_
        for gi in range(13):
            m0_, m1_, c_, w_ = fin(gi)
            b = 4 * (gi + 1) + 1
            S.post[b] += m0_; S.post[b + 1] += m1_; S.post[b + 2] += c_; S.post[b + 3] += [w_]
        kr = [self.k_read(kt, ks, 0) for kt in range(2) for ks in range(4)]
        for i, x in enumerate(kr): S.post[i].append(x)
        S.emit(t_)
        t_.e("s_nop 7")
        m0_, m1_, c_, w_ = fin(13)
        t_.many(m0_); t_.many(m1_); t_.many(c_); t_.e(w_)
        t_.e(WL("qw"))
        t_.e(WV("V0"))
        t_.e("s_barrier")
        t_.many(self.stamp("qx"))
        if o.dbgq:
            for qt in range(7): t_.many(self.q_read(qt))
            t_.e(WALL('l'))
            t_.e(f"s_lshl_b32 s{S_T0}, s2, 2")
            t_.e(f"s_add_u32 s{S_T0}, s{S_T0}, s{S_W}")
            t_.e(f"s_mul_i32 s{S_T0}, s{S_T0}, 28672")
            t_.e(f"s_add_u32 s{S_T0}, s{S_T0}, {32<<20}")
            t_.e(f"s_mov_b32 s{S_O+2}, {256<<20}")
            t_.e(f"v_and_b32 v{V_T0}, 63, v{V_TID}")
            t_.e(f"v_lshlrev_b32 v{V_T0}, 4, v{V_T0}")
            for i in range(28):
                t_.e(f"buffer_store_dwordx4 {ar(A_Q + i*4)}, v{V_T0}, {sr(S_O)}, s{S_T0} offen")
                t_.e(f"s_add_u32 s{S_T0}, s{S_T0}, 1024")
            t_.e("s_waitcnt vmcnt(0)")
            t_.e(f"s_mov_b32 s{S_O+2}, {112*self.QS}")
        t_.lab("A_ATT")
        t_.many(self.q_read(0)); t_.many(self.q_read(1))
        t_.e(f"v_add_u32 v{V_OFFKV}, {3*16384}, v{V_OFFKV}")
        t_.e(f"v_add_u32 v{V_OFFKV+1}, {3*16384}, v{V_OFFKV+1}")
        self.preamble(True)
        self.body()
        self.epilogue()
        t_.lab("CT_END")
        self.slowpath()
        t_.lab("A_END")
        t_.e("s_endpgm")
        return "\n".join(t_.L)

    def preamble(self, with_q):
        t_ = self.t
        vr_ = [self.v_read(tp, hf, 0) for tp in range(7) for hf in range(2)]
        t_.e(WL("k0.0", "k0.1", "q0"))
        S = Sched(self.qk_mfmas(0, 0))
        for i, x in enumerate(vr_): S.post[i // 2].append(x)
        if with_q:
            q2 = self.q_read(2)
            S.post[7] += q2
        S.emit(t_)
        t_.e(WL("q1"))
        m1 = self.qk_mfmas(1, 1)
        ex = self.exps(0); cv = self.cvts(0)
        S = Sched(m1)
        S.post[0] += ex[0:2]; S.post[1] += ex[2:4]; S.post[2] += ex[4:6]; S.post[3] += ex[6:8]
        S.post[4] += cv[0:2]; S.post[5] += cv[2:4]
        S.emit(t_)
        t_.many(self.stamp("pre"))

    def body(self):
        t_ = self.t
        texts = []
        start = len(t_.L)
        for n in range(4):
            self.tile(n)
        i0 = len(t_.L)
        if self.o.unroll:
            for n in range(4, 12): self.tile(n)
            t_.many(self.stamp("t11"))
            for n in range(12, 16): self.tile(n)
            t_.many(self.stamp("t15"))
            return
        for n in range(4, 8): self.tile(n)
        i1 = len(t_.L)
        for n in range(8, 12): self.tile(n)
        i2 = len(t_.L)
        strip = lambda xs: [x for x in xs if not x.strip().startswith(";")]
        assert strip(t_.L[i0:i1]) == strip(t_.L[i1:i2]), "loop iterations differ"
        body = t_.L[i0:i1]
        t_.L = t_.L[:i0]
        t_.e(f"s_mov_b32 s{S_CNT}, 2")
        t_.lab("A_LOOP")
        t_.L += body
        t_.e(f"s_sub_u32 s{S_CNT}, s{S_CNT}, 1")
        t_.e(f"s_cmp_lg_u32 s{S_CNT}, 0")
        t_.e("s_cbranch_scc1 A_LOOP")
        t_.many(self.stamp("t11"))
        for n in range(12, 16): self.tile(n)
        t_.many(self.stamp("t15"))

    def fin_tile(self, qt, pb, tb, lt):
        r = []
        ob = V_OOWN + qt * 16
        r.append(f"v_accvgpr_read_b32 v{lt}, a{A_L + 4*qt}")
        r.append(f"v_add_f32 v{lt}, v{lt}, v{lt+1}")
        r.append(f"v_rcp_f32 v{lt}, v{lt}")
        for k in range(8):
            r.append(f"v_pk_add_f32 {vr(ob+2*k,2)}, {vr(ob+2*k,2)}, {vr(pb+2*k,2)}")
        for k in range(8):
            r.append(f"v_pk_mul_f32 {vr(ob+2*k,2)}, {vr(ob+2*k,2)}, {vr(lt,2)} op_sel:[0,0] op_sel_hi:[1,0]")
        for jj in range(2):
            s0 = ob + jj * 8
            for k in range(4):
                r.append(f"v_cvt_pk_bf16_f32 v{tb + jj*4 + k}, v{s0 + 2*k}, v{s0 + 2*k + 1}")
        pol = " sc1" if (self.o.osc1 or self.o.fused) else ""
        for jj in range(2):
            off = " offset:1024" if jj else ""
            r.append(VM(f"buffer_store_dwordx4 {vr(tb + jj*4)}, v{V_T0+1}, {sr(S_O)}, s{S_OB} offen{off}{pol}", "ost"))
        r.append(f"s_add_u32 s{S_OB}, s{S_OB}, {self.QS}")
        return r

    def p_reads(self, qt, pb, lt):
        r = []
        for tpp in range(4):
            i = qt * 4 + tpp
            r.append(DS(f"ds_read_b128 {vr(pb + tpp*4)}, v{V_KA+2} offset:{i*1024}", f"p{qt}"))
        r.append(DS(f"ds_read_b32 v{lt+1}, v{V_KA+3} offset:{qt*256}", f"p{qt}"))
        return r

    def epilogue(self):
        t_ = self.t
        o = self.o
        t_.c("---- epilogue")
        PB = [112, 128, 144, 160]
        LT = [V_NEGM + 16, V_NEGM + 18, V_NEGM + 20, V_NEGM + 22]
        TB = [V_NEGM, V_NEGM + 8]
        t_.many(self.p_reads(0, PB[0], LT[0]))
        t_.many(self.p_reads(1, PB[1], LT[1]))
        t_.e("s_nop 7")
        t_.many(self.o_writes(6))
        t_.many(self.p_reads(2, PB[2], LT[2]))
        t_.many(self.p_reads(3, PB[3], LT[3]))
        T = V_S
        lo, hi = f32(2.0 ** -24), f32(2.0 ** 30)
        t_.e(f"s_mov_b32 s{S_T0}, {hex(lo)}")
        t_.e(f"s_mov_b32 s{S_T1}, {hex(hi - lo)}")
        for qt in range(7):
            t_.e(f"v_accvgpr_read_b32 v{T+qt}, a{A_L + 4*qt}")
        t_.e(f"v_subrev_u32 v{T+8}, s{S_T0}, v{T}")
        for qt in range(1, 7):
            t_.e(f"v_subrev_u32 v{T+9}, s{S_T0}, v{T+qt}")
            t_.e(f"v_max_u32 v{T+8}, v{T+8}, v{T+9}")
        t_.e(f"v_cmp_lt_u32 vcc, s{S_T1}, v{T+8}")
        t_.e(f"s_lshl_b32 s{S_T3}, s{S_W}, 2")
        t_.e(f"s_add_u32 s{S_T3}, s{S_T3}, {FOFF}")
        t_.e(f"s_cmp_lg_u64 vcc, 0")
        t_.e(f"s_cselect_b32 s{S_T2}, 1, 0")
        t_.e(f"v_mov_b32 v{T+10}, s{S_T2}")
        t_.e(f"v_and_b32 v{T+11}, 3, v{V_TID}")
        t_.e(f"v_mul_u32_u24 v{T+11}, {RG}, v{T+11}")
        t_.e(f"v_add_u32 v{T+11}, s{S_T3}, v{T+11}")
        t_.e(DS(f"ds_write_b32 v{T+11}, v{T+10}", "fl"))
        for qt in range(4):
            t_.e(WL(f"p{qt}"))
            t_.many(self.fin_tile(qt, PB[qt], TB[qt & 1], LT[qt]))
            if o.fused: t_.many(self.wo_dma(2 + qt))
        t_.e(WL("fl", "ow4", "ow5", "ow6"))
        t_.e("s_barrier")
        t_.many(self.stamp("e1"))
        F = V_P + 4
        t_.e(f"s_mul_i32 s{S_T0}, s{S_W}, {RG}")
        t_.e(f"s_add_u32 s{S_T0}, s{S_T0}, {FOFF}")
        t_.e(f"v_mov_b32 v{T+11}, s{S_T0}")
        t_.e(DS(f"ds_read_b128 {vr(F)}, v{T+11}", "flr"))
        for qt in range(4, 7):
            t_.many(self.p_reads(qt, PB[qt - 4], LT[qt - 4]))
        t_.e(WL("flr"))
        t_.e(f"v_or_b32 v{F}, v{F}, v{F+1}")
        t_.e(f"v_or_b32 v{F+2}, v{F+2}, v{F+3}")
        t_.e(f"v_or_b32 v{F}, v{F}, v{F+2}")
        t_.e("s_nop 1")
        t_.e(f"v_readfirstlane_b32 s{S_T0}, v{F}")
        t_.e(f"s_xor_b32 s{S_T1}, s{S_PASS}, 1")
        t_.e(f"s_and_b32 s{S_T0}, s{S_T0}, s{S_T1}")
        t_.e(f"s_cmp_lg_u32 s{S_T0}, 0")
        t_.e("s_cbranch_scc1 A_SLOW")
        for qt in range(4, 7):
            t_.e(WL(f"p{qt}"))
            if o.fused:
                t_.many(self.wo_dma(2 + qt))
                if qt == 6: t_.many(self.wo_dma(9))
            t_.many(self.fin_tile(qt, PB[qt - 4], TB[qt & 1], LT[qt - 4]))
        t_.many(self.stamp("e2"))
        if o.fused: self.phase_b()
        if o.stamps:
            t_.e(f"s_memrealtime s[{S_ST+38}:{S_ST+39}]")
            t_.e("s_waitcnt lgkmcnt(0)")
            t_.e(f"s_cmp_lg_u32 s{S_W}, 0")
            t_.e("s_cbranch_scc1 A_END")
            ns = 20
            t_.e(f"s_mul_i32 s{S_T0}, s2, {ns*4*2}")
            t_.e(f"s_add_u32 s{S_T0}, s{S_T0}, {64<<20}")
            t_.e(f"s_mov_b32 s{S_O+2}, {256<<20}")
            t_.e(f"v_mov_b32 v{V_T0+1}, 0")
            for i in range(ns * 2):
                if 2 * self.nst <= i < 36:
                    t_.e(f"v_mov_b32 v{V_T0}, 0")
                else:
                    t_.e(f"v_mov_b32 v{V_T0}, s{S_ST+i}")
                t_.e(f"buffer_store_dword v{V_T0}, v{V_T0+1}, {sr(S_O)}, s{S_T0} offen offset:{i*4}")
                t_.e("s_nop 1")
        t_.e("s_endpgm")

    def b_addr_v(self):
        L, t0, t1, t2 = 184, 185, 186, 187
        r = []
        r.append(f"v_and_b32 v{L}, 63, v{V_TID}")
        r.append(f"v_lshrrev_b32 v{t0}, 3, v{L}")
        r.append(f"v_and_b32 v{t1}, 7, v{L}")
        r.append(f"v_bfe_u32 v{t2}, v{L}, 4, 2")
        r.append(f"v_lshlrev_b32 v{t2}, 1, v{t2}")
        r.append(f"v_xor_b32 v{t1}, v{t1}, v{t2}")
        r.append(f"v_lshlrev_b32 v{t1}, 4, v{t1}")
        r.append(f"v_mul_u32_u24 v{t0}, 1152, v{t0}")
        r.append(f"v_add_u32 v{V_WOF}, v{t0}, v{t1}")
        for i in range(1, 4):
            r.append(f"v_add_u32 v{V_WOF+i}, {i*(9216-1024)}, v{V_WOF}")
        r.append(f"v_lshrrev_b32 v{t0}, 2, v{L}")
        r.append(f"v_bfe_u32 v{t1}, v{L}, 3, 2")
        r.append(f"v_lshlrev_b32 v{t1}, 5, v{t1}")
        r.append(f"v_lshlrev_b32 v{t0}, 7, v{t0}")
        r.append(f"v_and_b32 v{t2}, 3, v{L}")
        r.append(f"v_lshlrev_b32 v{t2}, 3, v{t2}")
        r.append(f"v_add_u32 v{t0}, v{t0}, v{t2}")
        r.append(f"v_add_u32 v{t0}, s{S_RB}, v{t0}")
        for nt in range(4):
            r.append(f"v_xor_b32 v{V_TR+nt}, {nt*32}, v{t1}")
            r.append(f"v_add_u32 v{V_TR+nt}, v{V_TR+nt}, v{t0}")
        return r

    def b_addr_s(self):
        r = []
        r.append(f"s_mul_i32 s{S_RB}, s{S_W}, {RG}")
        r.append(f"s_and_b32 s{S_T0}, s2, 7")
        r.append(f"s_lshr_b32 s{S_T1}, s2, 3")
        r.append(f"s_and_b32 s{S_T2}, s{S_T0}, 1")
        r.append(f"s_lshl_b32 s{S_T2}, s{S_T2}, 5")
        r.append(f"s_add_u32 s{S_T1}, s{S_T1}, s{S_T2}")
        r.append(f"s_lshr_b32 s{S_T0}, s{S_T0}, 1")
        r.append(f"s_mul_i32 s{S_T0}, s{S_T0}, 7")
        if self.o.bmap == 0:
            r.append(f"s_mul_i32 s{S_NG}, s{S_T1}, 37")
            r.append(f"s_lshr_b32 s{S_NG}, s{S_NG}, 8")
            r.append(f"s_mul_i32 s{S_T2}, s{S_NG}, 7")
            r.append(f"s_sub_u32 s{S_T2}, s{S_T1}, s{S_T2}")
            r.append(f"s_add_u32 s{S_MG}, s{S_T2}, s{S_T0}")
        else:
            r.append(f"s_mul_i32 s{S_T2}, s{S_T1}, 57")
            r.append(f"s_lshr_b32 s{S_T2}, s{S_T2}, 9")
            r.append(f"s_add_u32 s{S_MG}, s{S_T2}, s{S_T0}")
            r.append(f"s_mul_i32 s{S_T2}, s{S_T2}, 9")
            r.append(f"s_sub_u32 s{S_NG}, s{S_T1}, s{S_T2}")
        r.append(f"s_cmp_ge_u32 s{S_T1}, 63")
        r.append(f"s_cselect_b32 s{S_NG}, 15, s{S_NG}")
        r.append(f"s_cselect_b32 s{S_MG}, 0, s{S_MG}")
        if self.o.brot:
            r.append(f"s_mul_i32 s{S_ROT}, s{S_NG}, {self.o.brot * 1024}")
        r.append(f"s_mul_i32 s{S_T0}, s{S_W}, {1024*1152}")
        r.append(f"s_lshl_b32 s{S_T1}, s{S_NG}, 7")
        r.append(f"s_add_u32 s{S_SW}, s{S_T0}, s{S_T1}")
        r.append(f"s_mul_i32 s{S_T0}, s{S_MG}, {4*self.QS}")
        r.append(f"s_lshl_b32 s{S_T1}, s{S_W}, 15")
        r.append(f"s_add_u32 s{S_SO}, s{S_T0}, s{S_T1}")
        r.append(f"s_lshl_b32 s{S_T0}, s{S_MG}, 2")
        r.append(f"s_mul_i32 s{S_T1}, s{S_T0}, 147")
        r.append(f"s_lshr_b32 s{S_T1}, s{S_T1}, 11")
        r.append(f"s_lshl_b32 s{S_L0}, s{S_T1}, 3")
        r.append(f"s_add_u32 s{S_T0}, s{S_T0}, 3")
        r.append(f"s_mul_i32 s{S_T1}, s{S_T0}, 147")
        r.append(f"s_lshr_b32 s{S_T1}, s{S_T1}, 11")
        r.append(f"s_lshl_b32 s{S_L1}, s{S_T1}, 3")
        return r

    def b_srd(self):
        r = []
        r.append(f"s_mov_b32 s{S_WO}, s4"); r.append(f"s_mov_b32 s{S_WO+1}, s5")
        r.append(f"s_mov_b32 s{S_WO+2}, {4096*1152}"); r.append(f"s_mov_b32 s{S_WO+3}, 0x00020000")
        r.append(f"s_mov_b32 s{S_OUT}, s6"); r.append(f"s_mov_b32 s{S_OUT+1}, s7")
        r.append(f"s_mov_b32 s{S_OUT+2}, {1792*1152}"); r.append(f"s_mov_b32 s{S_OUT+3}, 0x00020000")
        return r

    @staticmethod
    def slot(f): return (f + 8) % 10

    def btime(self, f):
        NR, NL = self.o.nr, 10
        order = list(range(NR, NR + NL)) + list(range(NR)) + list(range(NR + NL, 32))
        return order.index(f)

    def wo_dma(self, f):
        if self.o.brot:
            r = [f"s_add_u32 s{S_RT}, s{S_ROT}, {self.btime(f)*1024}", f"s_and_b32 s{S_RT}, s{S_RT}, 0x7fff",
                 f"s_mul_i32 s{S_RT}, s{S_RT}, 36", f"s_add_u32 s{S_SWC}, s{S_SW}, s{S_RT}",
                 f"s_add_u32 m0, s{S_RB}, {self.slot(f)*4096}"]
            for i in range(4):
                off = f" offset:{i*1024}" if i else ""
                r.append(VM(f"buffer_load_dwordx4 v{V_WOF+i}, {sr(S_WO)}, s{S_SWC} offen{off} lds", f"W{f}"))
            return r
        r = [f"s_add_u32 s{S_SWC}, s{S_SW}, {f*32*1152}", f"s_add_u32 m0, s{S_RB}, {self.slot(f)*4096}"]
        for i in range(4):
            off = f" offset:{i*1024}" if i else ""
            r.append(VM(f"buffer_load_dwordx4 v{V_WOF+i}, {sr(S_WO)}, s{S_SWC} offen{off} lds", f"W{f}"))
        return r

    def tr_reads(self, f, unit):
        k, b = unit
        r = []
        for nt in range(4):
            for hf in range(2):
                r.append(DS(f"ds_read_b64_tr_b16 {k}[{b + nt*4 + 2*hf}:{b + nt*4 + 2*hf + 1}], v{V_TR+nt} offset:{self.slot(f)*4096 + hf*2048}", f"t{f}"))
        return r

    def phase_b(self):
        t_, o = self.t, self.o
        NR, D, NL = o.nr, o.od, 10
        units = [("a", 16*i) for i in range(16)] + [("v", 64 + 16*i) for i in range(10)]
        assert NR + 2 + D <= len(units)
        res = units[:NR]; jit = units[-(D + 2):-D]; ring = units[-D:]
        U = lambda u, off: f"{u[0]}[{u[1]+off}:{u[1]+off+3}]"
        NK = 32
        order = list(range(NR, NR + NL)) + list(range(NR)) + list(range(NR + NL, NK))
        t_.c("---- out-projection: weight prefetch + publish")
        for mi in range(1, 4):
            t_.e(f"v_add_u32 v{V_OO[mi]}, {mi*self.QS}, v{V_OO[0]}")
        def publish():
            t_.e(WV("ost"))
            t_.e("s_barrier")
            t_.e(f"s_cmp_lg_u32 s{S_W}, 0")
            t_.e("s_cbranch_scc1 B_PUB")
            t_.e(f"s_lshl_b32 s{S_T0}, s{S_B}, 5")
            t_.e(f"v_mov_b32 v{V_S}, s{S_T0}")
            t_.e(f"v_mov_b32 v{V_S+1}, 1")
            t_.e("s_mov_b64 exec, 1")
            t_.e(f"global_atomic_add v{V_S}, v{V_S+1}, s[8:9]")
            t_.e("s_mov_b64 exec, -1")
            t_.lab("B_PUB")
            t_.many(self.stamp("pub"))
            t_.e(f"s_cmp_eq_u32 s{S_NG}, 15")
            t_.e("s_cbranch_scc1 A_END")
        published = False
        nxt = NL
        for f in range(NR):
            if f == o.npre and not published:
                publish(); published = True
            t_.e(WV(f"W{f}"))
            t_.many(self.tr_reads(f, res[f]))
            if f >= 1:
                t_.e(WL(f"t{f-1}"))
                if nxt < NK: t_.many(self.wo_dma(nxt)); nxt += 1
        if not published:
            publish(); published = True
        t_.e(WL(f"t{NR-1}"))
        if nxt < NK: t_.many(self.wo_dma(nxt)); nxt += 1
        for i in range(2):
            f = order[i]
            t_.e(WV(f"W{f}"))
            t_.many(self.tr_reads(f, jit[i]))
        for i in range(2):
            t_.e(WL(f"t{order[i]}"))
            if nxt < NK: t_.many(self.wo_dma(nxt)); nxt += 1
        t_.many(self.stamp("wpf"))
        P, Q = V_S, V_S + 1
        t_.e(f"s_cmp_lg_u32 s{S_W}, 0")
        t_.e("s_cbranch_scc1 B_GO")
        t_.e(f"v_and_b32 v{Q}, 63, v{V_TID}")
        t_.e(f"v_lshlrev_b32 v{Q}, 2, v{Q}")
        t_.e(f"s_mov_b32 s{S_CNT}, 200000")
        t_.lab("B_POLL")
        t_.e(f"global_load_dword v{P}, v{Q}, s[8:9] sc1")
        t_.e("s_waitcnt vmcnt(0)")
        t_.e(f"v_readlane_b32 s{S_T0}, v{P}, s{S_L0}")
        t_.e(f"v_readlane_b32 s{S_T1}, v{P}, s{S_L1}")
        t_.e(f"s_min_u32 s{S_T0}, s{S_T0}, s{S_T1}")
        t_.e(f"s_cmp_ge_u32 s{S_T0}, 32")
        t_.e("s_cbranch_scc1 B_GO")
        t_.e(f"s_sub_u32 s{S_CNT}, s{S_CNT}, 1")
        t_.e(f"s_cmp_eq_u32 s{S_CNT}, 0")
        t_.e("s_cbranch_scc1 B_GO")
        t_.e("s_sleep 1")
        t_.e("s_branch B_POLL")
        t_.lab("B_GO")
        t_.e("s_barrier")
        t_.many(self.stamp("poll"))
        def o_soff(i):
            if o.brot:
                return [f"s_add_u32 s{S_RT}, s{S_ROT}, {i*1024}", f"s_and_b32 s{S_RT}, s{S_RT}, 0x7fff", f"s_add_u32 s{S_SOC}, s{S_SO}, s{S_RT}"]
            return [f"s_add_u32 s{S_SOC}, s{S_SO}, {order[i]*1024}"]
        def o_load(i, mi):
            if o.bnold and i >= D: return "s_nop 0"
            return VM(f"buffer_load_dwordx4 {U(ring[i % D], mi*4)}, v{V_OO[mi]}, {sr(S_O)}, s{S_SOC} offen{' sc1' if o.olsc else ''}", f"O{i}.{mi}")
        if o.b2x:
            t_.e(f"s_mov_b32 s{S_CNT}, 2")
            t_.lab("B_2X")
        for i in range(D):
            t_.many(o_soff(i))
            for mi in range(4): t_.e(o_load(i, mi))
        for i in range(NK):
            f = order[i]
            inlds = f >= NR
            wu = jit[i & 1] if inlds else res[f]
            if i == NK - (NK - NR - NL) and (i & 1) != ((NL) & 1):
                pass
            mf = []
            for mi in range(4):
                for nt in range(4):
                    d = vr((mi*4 + nt)*4)
                    mf.append(f"{MF} {d}, {U(wu, nt*4)}, {U(ring[i % D], mi*4)}, {'0' if i == 0 else d}")
            if o.bnomf: mf = ["s_nop 0"] * 16
            S = Sched(mf)
            if inlds: S.pre[0].append(WL(f"t{f}"))
            if inlds: S.pre[0].append(WV(f"W{f}"))
            for mi in range(4): S.pre[4*mi].append(WV(f"O{i}.{mi}"))
            if i + D < NK:
                S.post[0] += o_soff(i + D)
                for mi in range(4): S.post[4*mi + 3].append(o_load(i + D, mi))
            if i + 1 < NK and order[i + 1] >= NR and (i + 1) >= 2:
                fn = order[i + 1]
                rd = self.tr_reads(fn, jit[(i + 1) & 1])
                S.post[1].append(WV(f"W{fn}"))
                for k, x in enumerate(rd): S.post[1 + k].append(x)
            if inlds and i >= 2 and nxt < NK:
                d = self.wo_dma(nxt); nxt += 1
                ns = len(d) - 4
                S.post[9] += d[:ns]; S.post[10].append(d[ns]); S.post[12].append(d[ns+1]); S.post[13].append(d[ns+2]); S.post[14].append(d[ns+3])
            S.emit(t_)
        assert nxt == NK
        if o.b2x:
            t_.e(f"s_cmp_eq_u32 s{S_CNT}, 2")
            t_.e("s_cbranch_scc0 B_2XE")
            t_.e(f"s_memtime s[{S_ST+2}:{S_ST+3}]")
            t_.e(f"s_mov_b32 s{S_CNT}, 1")
            t_.e("s_branch B_2X")
            t_.lab("B_2XE")
        t_.many(self.stamp("main"))
        t0, t1, t2, t3, t4, L = 64, 65, 66, 67, 68, 69
        TRW = 70
        t_.e(f"v_and_b32 v{L}, 63, v{V_TID}")
        t_.e(f"v_and_b32 v{t0}, 15, v{L}")
        t_.e(f"v_lshrrev_b32 v{t1}, 4, v{L}")
        t_.e(f"v_xor_b32 v{t1}, v{t1}, v{t0}")
        t_.e(f"v_lshlrev_b32 v{t1}, 4, v{t1}")
        t_.e(f"v_lshlrev_b32 v{t0}, 8, v{t0}")
        t_.e(f"v_add_u32 v{t0}, s{S_RB}, v{t0}")
        for nt in range(4):
            t_.e(f"v_xor_b32 v{TRW+nt}, {nt*64}, v{t1}")
            t_.e(f"v_add_u32 v{TRW+nt}, v{TRW+nt}, v{t0}")
        t_.e("s_nop 7")
        for mi in range(4):
            for nt in range(4):
                t_.e(DS(f"ds_write_b128 v{TRW+nt}, {vr((mi*4+nt)*4)} offset:{mi*4096}", "rw"))
        t_.e(f"v_lshrrev_b32 v{t0}, 3, v{L}")
        t_.e(f"s_lshl_b32 s{S_T0}, s{S_W}, 4")
        t_.e(f"v_add_u32 v{t0}, s{S_T0}, v{t0}")
        t_.e(f"v_and_b32 v{t1}, 7, v{L}")
        t_.e(f"v_lshlrev_b32 v{t1}, 1, v{t1}")
        AD = 80
        for ps in range(2):
            if ps: t_.e(f"v_add_u32 v{t0}, 8, v{t0}")
            t_.e(f"v_and_b32 v{t2}, 15, v{t0}")
            t_.e(f"v_xor_b32 v{t3}, v{t1}, v{t2}")
            t_.e(f"v_lshlrev_b32 v{t3}, 4, v{t3}")
            t_.e(f"v_lshlrev_b32 v{t4}, 8, v{t0}")
            t_.e(f"v_add_u32 v{AD+ps*4}, v{t3}, v{t4}")
            t_.e(f"v_xor_b32 v{AD+ps*4+1}, 16, v{AD+ps*4}")
            t_.e(f"v_add_u32 v{AD+ps*4+2}, {2*RG}, v{AD+ps*4}")
            t_.e(f"v_add_u32 v{AD+ps*4+3}, {2*RG}, v{AD+ps*4+1}")
            t_.e(f"s_lshl_b32 s{S_T0}, s{S_MG}, 6")
            t_.e(f"v_add_u32 v{t4}, s{S_T0}, v{t0}")
            t_.e(f"v_mul_u32_u24 v{t4}, 1152, v{t4}")
            t_.e(f"v_lshlrev_b32 v{t2}, 3, v{t1}")
            t_.e(f"v_add_u32 v{88+ps}, v{t4}, v{t2}")
        t_.e(WL("rw"))
        t_.e("s_barrier")
        R = 96
        for ps in range(2):
            for wv in range(4):
                for ch in range(2):
                    a = AD + ps*4 + ch + (2 if wv >= 2 else 0)
                    off = (wv & 1) * RG
                    t_.e(DS(f"ds_read_b128 {vr(R + ps*32 + wv*8 + ch*4)}, v{a} offset:{off}", f"rr{ps}"))
        t_.e(f"s_lshl_b32 s{S_T1}, s{S_NG}, 7")
        for ps in range(2):
            t_.e(WL(f"rr{ps}"))
            B_ = R + ps*32
            for k in range(4):
                t_.e(f"v_pk_add_f32 {vr(B_+2*k,2)}, {vr(B_+2*k,2)}, {vr(B_+8+2*k,2)}")
                t_.e(f"v_pk_add_f32 {vr(B_+16+2*k,2)}, {vr(B_+16+2*k,2)}, {vr(B_+24+2*k,2)}")
            for k in range(4):
                t_.e(f"v_pk_add_f32 {vr(B_+2*k,2)}, {vr(B_+2*k,2)}, {vr(B_+16+2*k,2)}")
            for k in range(4):
                t_.e(f"v_cvt_pk_bf16_f32 v{72 + ps*4 + k}, v{B_+2*k}, v{B_+2*k+1}")
            t_.e(VM(f"buffer_store_dwordx4 {vr(72 + ps*4)}, v{88+ps}, {sr(S_OUT)}, s{S_T1} offen", "out"))
        t_.many(self.stamp("end"))

    def slowpath(self):
        a = self.t
        a.lab("A_SLOW")
        a.c("---- fallback: true row maximum, then redo the attention loop with it")
        a.lq, a.vq = [], []
        a.e("s_waitcnt vmcnt(0) lgkmcnt(0)")
        a.e("s_barrier")
        a.e(f"s_mov_b32 s{S_PASS}, 1")
        self.emit_kv_addr()
        for qt in range(7):
            a.e(f"v_mov_b32 v{V_NEGM + 4*qt}, 0xff800000")
        KA = V_V
        for ks in range(4):
            a.e(f"v_subrev_u32 v{KA+ks}, {PAIR(0)+16384}, v{V_KA+ks}")
        a.e(f"s_mov_b32 s{S_SOKV}, 0")
        a.lab("A_MAXLOOP")
        a.many([x.t if isinstance(x, VM) else x for x in self.kv_dma("K", 0, f"s{S_SOKV}", lds=0)])
        a.e("s_waitcnt vmcnt(0)")
        a.e("s_barrier")
        for kt in range(2):
            for ks in range(4):
                off = f" offset:{kt*4096}" if kt else ""
                a.e(f"ds_read_b128 {vr(V_K + (kt*4+ks)*4)}, v{KA+ks}{off}")
        a.e("s_waitcnt lgkmcnt(0)")
        for qt in range(7):
            for kt in range(2):
                for ks in range(4):
                    d = vr(V_S + kt * 4)
                    a.e(f"{MF} {d}, {vr(V_K + (kt*4+ks)*4)}, {ar(A_Q + (qt*4+ks)*4)}, {'0' if ks == 0 else d}")
            a.e("s_nop 15")
            m = V_NEGM + 4 * qt
            for i in range(4):
                a.e(f"v_max3_f32 v{m}, v{m}, v{V_S+2*i}, v{V_S+2*i+1}")
            a.e("s_nop 3")
        a.e("s_barrier")
        a.e(f"s_add_u32 s{S_SOKV}, s{S_SOKV}, 16384")
        a.e(f"s_cmp_lt_u32 s{S_SOKV}, 262144")
        a.e("s_cbranch_scc1 A_MAXLOOP")
        L, t, u = V_T0, V_T0 + 1, V_T0 + 2
        a.e(f"v_and_b32 v{L}, 63, v{V_TID}")
        a.e(f"v_lshlrev_b32 v{t}, 2, v{L}")
        a.e(f"s_mul_i32 s{S_T0}, s{S_W}, 1792")
        a.e(f"s_add_u32 s{S_T0}, s{S_T0}, {MXX}")
        a.e(f"v_add_u32 v{t}, s{S_T0}, v{t}")
        for qt in range(7):
            a.e(f"ds_write_b32 v{t}, v{V_NEGM + 4*qt} offset:{qt*256}")
        a.e("s_waitcnt lgkmcnt(0)")
        a.e("s_barrier")
        a.e(f"v_and_b32 v{u}, 15, v{L}")
        a.e(f"v_lshlrev_b32 v{u}, 2, v{u}")
        a.e(f"s_mul_i32 s{S_T0}, s{S_QH}, 3584")
        a.e(f"s_add_u32 s{S_T0}, s{S_T0}, {MXX}")
        a.e(f"v_add_u32 v{u}, s{S_T0}, v{u}")
        for qt in range(7):
            for i in range(8):
                off = (i >> 2) * 1792 + qt * 256 + (i & 3) * 64
                a.e(f"ds_read_b32 v{V_S+i}, v{u} offset:{off}")
            a.e("s_waitcnt lgkmcnt(0)")
            m = V_NEGM + 4 * qt
            a.e(f"v_max3_f32 v{m}, v{V_S}, v{V_S+1}, v{V_S+2}")
            a.e(f"v_max3_f32 v{m}, v{m}, v{V_S+3}, v{V_S+4}")
            a.e(f"v_max3_f32 v{m}, v{m}, v{V_S+5}, v{V_S+6}")
            a.e(f"v_max_f32 v{m}, v{m}, v{V_S+7}")
            a.e(f"v_sub_f32 v{m}, 0, v{m}")
            for i in range(1, 4):
                a.e(f"v_mov_b32 v{m+i}, v{m}")
        a.e("s_barrier")
        a.e(f"v_lshlrev_b32 v{t}, 4, v{L}")
        a.e(f"s_mul_i32 s{S_T0}, s{S_QH}, 28672")
        a.e(f"v_add_u32 v{V_QR}, s{S_T0}, v{t}")
        for ks in range(4):
            for qt in range(7):
                a.e(f"ds_write_b128 v{V_QR}, {ar(A_Q + (qt*4+ks)*4)} offset:{(ks*7+qt)*1024}")
        strip = lambda xs: [x.t if isinstance(x, VM) else x for x in xs]
        a.many(strip(self.kv_dma("K", 0, "0")))
        a.many(strip(self.kv_dma("V", 0, "0")))
        a.e(f"s_mov_b32 s{S_SOKV}, 16384")
        a.many(strip(self.kv_dma("K", 1, f"s{S_SOKV}")))
        a.many(strip(self.kv_dma("V", 1, f"s{S_SOKV}")))
        a.e(f"s_mov_b32 s{S_SOKV}, 32768")
        a.many(strip(self.kv_dma("K", 2, f"s{S_SOKV}")))
        a.many(strip(self.kv_dma("V", 2, f"s{S_SOKV}")))
        if self.o.fused: a.many(self.b_addr_v())
        if self.pf_on: a.e(f"v_mov_b32 v{V_PF}, 0x40000000")
        a.e(f"s_waitcnt vmcnt(16) lgkmcnt(0)")
        a.e("s_barrier")
        for kt in range(2):
            for ks in range(4):
                a.e(self.k_read(kt, ks, 0).t)
        a.e("s_branch A_ATT")


def main():
    import gen as G1
    ap = argparse.ArgumentParser()
    ap.add_argument("-o", default="cdna_kernels/" + NAME + ".s")
    ap.add_argument("--nt", type=int, default=0)
    ap.add_argument("--stamps", type=int, default=0)
    ap.add_argument("--dbgq", type=int, default=0)
    ap.add_argument("--bw", type=int, default=8)
    ap.add_argument("--brs", type=int, default=4)
    ap.add_argument("--only", default="")
    ap.add_argument("--rts", type=int, default=0)
    ap.add_argument("--osc1", type=int, default=0)
    ap.add_argument("--probe", default="")
    ap.add_argument("--fused", type=int, default=1)
    ap.add_argument("--bmap", type=int, default=0)
    ap.add_argument("--nr", type=int, default=16)
    ap.add_argument("--od", type=int, default=8)
    ap.add_argument("--npre", type=int, default=4)
    ap.add_argument("--opad", type=int, default=0)
    ap.add_argument("--bnomf", type=int, default=0)
    ap.add_argument("--bnold", type=int, default=0)
    ap.add_argument("--b2x", type=int, default=0)
    ap.add_argument("--olsc", type=int, default=1)
    ap.add_argument("--ctouch", type=int, default=0)
    ap.add_argument("--unroll", type=int, default=0)
    ap.add_argument("--xpol", default="")
    ap.add_argument("--wqpol", default="")
    ap.add_argument("--stsel", default="start,karg,k0,p0,p1,p8,p9,qx,pre,t11,t15,e1,e2,pub,wpf,poll,main,end")
    ap.add_argument("--qrot", default="", help="alpha,beta,shift: r = ((alpha*h' + beta*b') >> shift) mod 9")
    ap.add_argument("--brot", type=int, default=0)
    ap.add_argument("--pfq", type=int, default=0)
    ap.add_argument("--pfc", default="0,0,0,0,0,0,0,0,0,0")
    ap.add_argument("--pf0", type=int, default=0)
    ap.add_argument("--pfa", type=int, default=0)
    ap.add_argument("--pfpol", default="")
    ap.add_argument("--pfqpol", default="")
    ap.add_argument("--pfas", type=int, default=6)
    ap.add_argument("--pfan", type=int, default=11)
    ap.add_argument("--pfw", type=int, default=0)
    ap.add_argument("--pfwt", type=int, default=12)
    ap.add_argument("--pfwpol", default="")
    o = ap.parse_args()
    if o.xpol: o.xpol = " " + o.xpol.replace("+", " ")
    if o.wqpol: o.wqpol = " " + o.wqpol.replace("+", " ")
    if o.pfpol: o.pfpol = " " + o.pfpol
    if o.pfqpol: o.pfqpol = " " + o.pfqpol
    if o.pfwpol: o.pfwpol = " " + o.pfwpol
    ga = GenA(o); ta = ga.gen()
    if o.fused:
        hdr = G1.HDR.replace("Launch 1: one workgroup", "Phase 1: one workgroup").replace("Launch 2: out = O * wo.", "Phase 2 (same launch, after a counter hand-off): out = O * wo.")
        if o.probe:
            hdr += f"; @launch kernel={NAME}_kernel grid=(256,1,1) block=(256,1,1) lds=163840\n"
            hdr += "; @launch kernel=probe_kernel grid=(1,1,1) block=(64,1,1) lds=0\n"
        else:
            hdr += "; @launch grid=(256,1,1) block=(256,1,1) lds=163840\n"
        txt = hdr + '.amdgcn_target "amdgcn-amd-amdhsa--gfx950"\n.text\n' + G1.fix_hazards(ta) + "\n"
        if o.probe:
            txt += G1.gen_probe(o.probe) + "\n"
        txt += '.section .rodata,"a"\n.p2align 6\n' + G1.descriptor(NAME + "_kernel", 512, 256)
        if o.probe:
            txt += ".p2align 6\n" + G1.descriptor("probe_kernel", 32, 32)
        open(o.o, "w").write(txt)
        print("wrote", o.o, len(txt), "bytes; stamps", ga.nst)
        return
    gb = G1.GenB(o); tb = gb.gen()
    hdr = G1.HDR
    blds = max(o.bw * o.brs * 4096, o.bw * 16384)
    if o.only != "B":
        hdr += f"; @launch kernel={NAME}_kernel grid=(256,1,1) block=(256,1,1) lds=163840\n"
    if o.only != "A":
        hdr += f"; @launch kernel=oproj_kernel grid=(256,1,1) block=({o.bw*64},1,1) lds={blds}\n"
    if o.probe:
        hdr += "; @launch kernel=probe_kernel grid=(1,1,1) block=(64,1,1) lds=0\n"
    txt = hdr + '.amdgcn_target "amdgcn-amd-amdhsa--gfx950"\n.text\n' + G1.fix_hazards(ta) + "\n" + G1.fix_hazards(tb) + "\n"
    if o.probe:
        txt += G1.gen_probe(o.probe) + "\n"
    txt += '.section .rodata,"a"\n.p2align 6\n' + G1.descriptor(NAME + "_kernel", 512, 256)
    nvb = (gb.nv + 7) // 8 * 8
    txt += ".p2align 6\n" + G1.descriptor("oproj_kernel", nvb, (gb.nv + 3) // 4 * 4)
    if o.probe:
        txt += ".p2align 6\n" + G1.descriptor("probe_kernel", 32, 32)
    open(o.o, "w").write(txt)
    print("wrote", o.o, len(txt), "bytes; B vgprs", gb.nv, "stamps", ga.nst)

if __name__ == "__main__":
    main()
```

```python
import sys, struct, re, argparse
from collections import defaultdict
sys.path.insert(0, "tools")

NAME = "standalone__mha_block_cached__near_ridge"
MF = "v_mfma_f32_16x16x32_bf16"

def f32(x):
    return struct.unpack("<I", struct.pack("<f", x))[0]
def vr(b, n=4): return f"v[{b}:{b+n-1}]" if n > 1 else f"v{b}"
def ar(b, n=4): return f"a[{b}:{b+n-1}]" if n > 1 else f"a{b}"
def sr(b, n=4): return f"s[{b}:{b+n-1}]" if n > 1 else f"s{b}"

class DS:
    def __init__(s, t, tag): s.t, s.tag = t, tag
class VM:
    def __init__(s, t, tag): s.t, s.tag = t, tag
class WL:
    def __init__(s, *tags): s.tags = set(tags)
class WV:
    def __init__(s, *tags): s.tags = set(tags)
class WALL:
    def __init__(s, k): s.k = k

class Trace:
    def __init__(self):
        self.L = []
        self.lq = []
        self.vq = []
    def raw(self, s): self.L.append(s)
    def lab(self, s): self.L.append(s + ":")
    def c(self, s): self.L.append("    ; " + s)
    def e(self, x):
        if isinstance(x, str):
            self.L.append("    " + x)
        elif isinstance(x, DS):
            self.L.append("    " + x.t); self.lq.append(x.tag)
        elif isinstance(x, VM):
            self.L.append("    " + x.t); self.vq.append(x.tag)
        elif isinstance(x, WL):
            idx = max([i for i, t in enumerate(self.lq) if t in x.tags], default=-1)
            if idx >= 0:
                n = len(self.lq) - 1 - idx
                if n > 15:
                    n = 15
                self.L.append(f"    s_waitcnt lgkmcnt({n})")
                self.lq = self.lq[len(self.lq) - n:] if n else []
        elif isinstance(x, WV):
            idx = max([i for i, t in enumerate(self.vq) if t in x.tags], default=-1)
            if idx >= 0:
                n = len(self.vq) - 1 - idx
                if n > 63:
                    n = 63
                self.L.append(f"    s_waitcnt vmcnt({n})")
                self.vq = self.vq[len(self.vq) - n:] if n else []
        elif isinstance(x, WALL):
            w = []
            if 'v' in x.k: w.append("vmcnt(0)"); self.vq = []
            if 'l' in x.k: w.append("lgkmcnt(0)"); self.lq = []
            self.L.append("    s_waitcnt " + " ".join(w))
        else:
            raise TypeError(x)
    def many(self, xs):
        for x in xs: self.e(x)

class Sched:
    def __init__(self, mf):
        self.mf = mf
        self.pre = defaultdict(list)
        self.post = defaultdict(list)
    def emit(self, t):
        for g, m in enumerate(self.mf):
            t.many(self.pre[g])
            t.e(m)
            t.many(self.post[g])
        n = len(self.mf)
        for g in sorted(set(list(self.pre) + list(self.post))):
            if g >= n:
                t.many(self.pre[g]); t.many(self.post[g])

BUF = {0: 90112, 1: 45056, 2: 0}
def PAIR(n):
    return 32768 + ((3 - n) & 3) * 32768
QX = 0
RG = 40960
LOFF = 7 * 4096
FOFF = 7 * 4096 + 2048
MXX = 16384

V_OOWN = 0
V_K = 112
V_V = 144
V_S = 176
V_P = 192
V_NEGM = 200
V_KA = 228
V_VA = 232
V_OFFKV = 240
V_TID = 242
V_T0 = 243
V_OFFX = 144
V_OFFW = 151
V_XR = 156
V_WR = 160
V_QW = 253
V_QR = 254
V_QT = 176
V_WOF = 245
V_TR = 249
V_OO = [244, 253, 254, 255]
S_WO, S_OUT = 16, 20
S_MG, S_NG, S_SW, S_SO, S_L0, S_L1, S_RB, S_SWC, S_SOC = 57, 58, 59, 10, 11, 3, 100, 101, 42
S_ROT, S_RT = 54, 43
S_PF = 12
V_PF, V_PFD = 243, 255
A_Q = 0
A_OOTH = 112
A_L = 224
A_ONES = 252
S_X, S_WQ, S_K, S_V, S_O = 16, 20, 24, 28, 32
S_W, S_QH, S_KH = 36, 37, 38
S_W1K7 = 39
S_SC = 40
S_SOX, S_SOW = 42, 43
S_W4K = 44
S_B, S_H = 45, 46
S_CNT = 47
S_PASS = 48
S_T0, S_T1, S_T2, S_T3 = 49, 50, 51, 52
S_OB = 53
S_SOKV = 56
S_ST = 60


def o_reg(j, tp):
    if tp < 4:
        return vr(V_OOWN + (j * 4 + tp) * 4)
    return ar(A_OOTH + (j * 4 + tp - 4) * 4)


class GenA:
    def __init__(self, opt):
        self.o = opt
        self.t = Trace()
        self.nst = 0
        self.npf = 0
        self.pfc = [int(z) for z in opt.pfc.split(",")]
        assert len(self.pfc) == 10
        self.pf_on = (sum(self.pfc) > 0 or opt.pfa)
        self.QS = 131072 + opt.opad

    def stamp(self, name):
        if not self.o.stamps: return []
        sel = self.o.stsel.split(",")
        r = []
        for nm, ins in ((name, "s_memrealtime" if self.o.rts else "s_memtime"), (name + "@", "s_memrealtime")):
            if nm in sel:
                r.append(f"{ins} s[{S_ST + 2*self.nst}:{S_ST + 2*self.nst + 1}]")
                self.nst += 1
                assert self.nst <= 18
        return r

    def kvpol(self):
        return " nt" if self.o.nt else ""

    def emit_kv_addr(self, rd=True, dma=True):
        t_ = self.t
        L, l15, g, r4, c4, t, u = V_T0, V_T0+1, V_T0+2, V_T0+3, V_T0+4, V_T0+5, V_T0+6
        t_.e(f"v_and_b32 v{L}, 63, v{V_TID}")
        t_.e(f"v_and_b32 v{l15}, 15, v{L}")
        t_.e(f"v_lshrrev_b32 v{g}, 4, v{L}")
        if dma:
            t_.e(f"v_lshlrev_b32 v{t}, 1, v{g}")
            t_.e(f"v_xor_b32 v{t}, v{t}, v{l15}")
            t_.e(f"v_lshlrev_b32 v{t}, 4, v{t}")
            t_.e(f"v_lshlrev_b32 v{u}, 8, v{g}")
            t_.e(f"v_add_u32 v{u}, s{S_W4K}, v{u}")
            t_.e(f"v_add_u32 v{V_OFFKV}, v{t}, v{u}")
            t_.e(f"v_xor_b32 v{t}, 128, v{t}")
            t_.e(f"v_add_u32 v{V_OFFKV+1}, v{t}, v{u}")
        if rd:
            t_.e(f"v_bfe_u32 v{r4}, v{L}, 2, 2")
            t_.e(f"v_and_b32 v{c4}, 3, v{L}")
            t_.e(f"s_lshl_b32 s{S_T0}, s{S_KH}, 13")
            t_.e(f"s_add_u32 s{S_T1}, s{S_T0}, {PAIR(0) + 16384}")
            t_.e(f"v_and_b32 v{t}, 7, v{l15}")
            t_.e(f"v_lshlrev_b32 v{t}, 1, v{t}")
            t_.e(f"v_xor_b32 v{t}, v{t}, v{g}")
            t_.e(f"v_lshlrev_b32 v{t}, 4, v{t}")
            t_.e(f"v_lshlrev_b32 v{u}, 8, v{l15}")
            t_.e(f"v_add_u32 v{u}, s{S_T1}, v{u}")
            for ks in range(4):
                t_.e(f"v_xor_b32 v{V_KA+ks}, {ks*64}, v{t}")
                t_.e(f"v_add_u32 v{V_KA+ks}, v{V_KA+ks}, v{u}")
            t_.e(f"s_add_u32 s{S_T1}, s{S_T0}, {PAIR(0)}")
            t_.e(f"v_lshlrev_b32 v{u}, 2, v{g}")
            t_.e(f"v_add_u32 v{u}, v{u}, v{r4}")
            t_.e(f"v_and_b32 v{t}, 7, v{u}")
            t_.e(f"s_lshl_b32 s{S_T2}, s{S_KH}, 2")
            t_.e(f"v_xor_b32 v{t}, s{S_T2}, v{t}")
            t_.e(f"v_lshlrev_b32 v{t}, 5, v{t}")
            t_.e(f"v_lshlrev_b32 v{u}, 8, v{u}")
            t_.e(f"v_add_u32 v{u}, s{S_T1}, v{u}")
            t_.e(f"v_lshlrev_b32 v{c4}, 3, v{c4}")
            t_.e(f"v_add_u32 v{u}, v{u}, v{c4}")
            for tp in range(8):
                t_.e(f"v_xor_b32 v{V_VA+tp}, {tp*32}, v{t}")
                t_.e(f"v_add_u32 v{V_VA+tp}, v{V_VA+tp}, v{u}")

    def kv_dma(self, which, n, soff, lds=None):
        srd = S_K if which == "K" else S_V
        if lds is None:
            lds = PAIR(n) + (16384 if which == "K" else 0)
        r = [f"s_add_u32 m0, s{S_W4K}, {lds}"]
        for i in range(4):
            off = f" offset:{i*1024}" if i else ""
            r.append(VM(f"buffer_load_dwordx4 v{V_OFFKV + (i & 1)}, {sr(srd)}, {soff} offen{off}{self.kvpol()} lds", f"{which}{n}"))
        return r

    def kv_touch(self):
        self.npf += 1
        return [VM(f"buffer_load_dword v{V_PFD}, v{V_PF}, {sr(S_PF)}, 0 offen{self.o.pfpol}", "PF"),
                f"v_add_u32 v{V_PF}, 16384, v{V_PF}"]

    def x_dma(self, st):
        buf = BUF[st % 3]
        r = []
        if self.o.qrot:
            if st:
                r += [f"s_add_u32 s{S_SOX}, s{S_SOX}, 128", f"s_cmp_eq_u32 s{S_SOX}, 1152", f"s_cselect_b32 s{S_SOX}, 0, s{S_SOX}"]
        else:
            r.append(f"s_mov_b32 s{S_SOX}, {st*128}")
        r.append(f"s_add_u32 m0, s{S_W1K7}, {buf}")
        for i in range(7):
            if i == 4:
                r.append(f"s_add_u32 m0, s{S_W1K7}, {buf + 4096}")
            off = f" offset:{(i%4)*1024}" if i % 4 else ""
            r.append(VM(f"buffer_load_dwordx4 v{V_OFFX+i}, {sr(S_X)}, s{S_SOX} offen{off}{self.o.xpol} lds", f"X{st}"))
        if self.o.qrot:
            r.append(f"s_lshl_b32 s{S_SOW}, s{S_SOX}, 12")
        else:
            r.append(f"s_mov_b32 s{S_SOW}, {st*64*8192}")
        r.append(f"s_add_u32 m0, s{S_W4K}, {buf + 28672}")
        for i in range(4):
            off = f" offset:{i*1024}" if i else ""
            r.append(VM(f"buffer_load_dwordx4 v{V_OFFW+i}, {sr(S_WQ)}, s{S_SOW} offen{off}{self.o.wqpol} lds", f"X{st}"))
        return r

    def q_reads(self, st):
        buf = BUF[st % 3]
        sset = 1 if buf == 90112 else 0
        base = buf - (90112 if sset else 0)
        p = (st & 1) * 88
        r = []
        for s in range(2):
            for T in range(4):
                jj = T >> 1
                for hf in range(2):
                    off = base + 8192 * s + 1024 * hf + 8 * (T & 1)
                    r.append(DS(f"ds_read_b64_tr_b16 {ar(p + 56 + (s*4+T)*4 + 2*hf, 2)}, v{V_WR + sset*2 + jj} offset:{off}", f"R{st}"))
            for qt in range(7):
                off = base + qt * 2048
                r.append(DS(f"ds_read_b128 {ar(p + (s*7+qt)*4)}, v{V_XR + sset*2 + s} offset:{off}", f"R{st}"))
        return r

    def q_mf(self, st, s, T, qt, first):
        p = (st & 1) * 88
        d = vr((T * 7 + qt) * 4)
        c = "0" if (first and s == 0) else d
        return f"{MF} {d}, {ar(p + 56 + (s*4+T)*4)}, {ar(p + (s*7+qt)*4)}, {c}"

    def q_mfmas(self, st, first):
        return [self.q_mf(st, s, T, qt, first) for s in range(2) for T in range(4) for qt in range(7)]

    def k_read(self, kt, ks, n):
        off = f" offset:{kt*4096}" if kt else ""
        return DS(f"ds_read_b128 {vr(V_K + (kt*4+ks)*4)}, v{V_KA+ks}{off}", f"k{n}.{kt}")

    def v_read(self, tp, hf, n):
        off = f" offset:{hf*4096}" if hf else ""
        return DS(f"ds_read_b64_tr_b16 {vr(V_V + tp*4 + 2*hf, 2)}, v{V_VA+tp}{off}", f"v{n}.{tp}")

    def q_read(self, qt):
        return [DS(f"ds_read_b128 {ar(A_Q + (qt*4+ks)*4)}, v{V_QR} offset:{(ks*7+qt)*1024}", f"q{qt}") for ks in range(4)]

    def qk_mfmas(self, par, j2):
        r = []
        for kt in range(2):
            for ks in range(4):
                d = vr(V_S + par * 8 + kt * 4)
                c = vr(V_NEGM + j2 * 4) if ks == 0 else d
                r.append(f"{MF} {d}, {vr(V_K + (kt*4+ks)*4)}, {ar(A_Q + (j2*4+ks)*4)}, {c}")
        return r

    def pv_mfmas(self, par, j, first):
        r = []
        p = vr(V_P + par * 4)
        for tp in range(8):
            d = o_reg(j, tp)
            r.append(f"{MF} {d}, {vr(V_V + tp*4)}, {p}, {'0' if first else d}")
        d = ar(A_L + j * 4)
        r.append(f"{MF} {d}, {ar(A_ONES)}, {p}, {'0' if first else d}")
        return r

    def exps(self, par):
        return [f"v_exp_f32 v{V_S + par*8 + i}, v{V_S + par*8 + i}" for i in range(8)]

    def cvts(self, par):
        return [f"v_cvt_pk_bf16_f32 v{V_P + par*4 + i}, v{V_S + par*8 + 2*i}, v{V_S + par*8 + 2*i + 1}" for i in range(4)]

    def tile(self, n):
        t = self.t
        first = (n == 0)
        last = (n == 15)
        dl = (PAIR(n + 1) - PAIR(n)) & 0xffffffff
        vdma = self.kv_dma("V", n + 3, "0") if (n + 3 <= 15 and n >= 1) else None
        kdma = self.kv_dma("K", n + 4, "0") if n + 4 <= 15 else None
        adv = [f"v_add_u32 v{V_OFFKV}, 16384, v{V_OFFKV}", f"v_add_u32 v{V_OFFKV+1}, 16384, v{V_OFFKV+1}"]
        for j in range(7):
            par = (n + j) & 1
            mf = self.pv_mfmas(par, j, first)
            has_qk = not (last and j >= 5)
            if has_qk:
                mf = mf + self.qk_mfmas(par, (j + 2) % 7)
            S = Sched(mf)
            G, PRE = S.post, S.pre
            if not (last and j == 6):
                ex = self.exps(par ^ 1); cv = self.cvts(par ^ 1)
                if has_qk:
                    for i in range(8): G[2 * i].append(ex[i])
                    for i in range(4): G[4 * i + 3].append(cv[i])
                else:
                    for i in range(8): G[i // 2].append(ex[i])
                    G[2].append(cv[0]); G[3].append(cv[1]); G[4].append(cv[2]); G[5].append(cv[3])
            nn = n + 1
            if j == 0:
                PRE[0].append(WL(f"v{n}.0", f"v{n}.1", f"v{n}.2"))
                G[1] += [self.v_read(7, 0, n), self.v_read(7, 1, n)]
                PRE[3].append(WL(f"v{n}.3", f"v{n}.4", f"v{n}.5"))
                PRE[6].append(WL(f"v{n}.6", f"v{n}.7"))
                if vdma:
                    G[9] += [vdma[0]]
                    G[13] += [vdma[1]]
            if first and j <= 3:
                q = self.q_read(j + 3)
                G[5] += q[:2]; G[9] += q[2:]
            if first and j <= 4:
                PRE[9].append(WL(f"q{j+2}"))
            if j == 1:
                if vdma: G[5] += [vdma[2]]
                if not last:
                    G[9] += [f"v_add_u32 v{V_VA+0}, {dl}, v{V_VA+0}", f"v_add_u32 v{V_VA+1}, {dl}, v{V_VA+1}"] if not first else []
                    G[13] += [f"v_add_u32 v{V_VA+2}, {dl}, v{V_VA+2}", f"v_add_u32 v{V_VA+3}, {dl}, v{V_VA+3}"]
                    if first:
                        G[1] += [f"v_add_u32 v{V_VA+0}, {dl}, v{V_VA+0}", f"v_add_u32 v{V_VA+1}, {dl}, v{V_VA+1}"]
            if j == 2:
                if vdma: G[5] += [vdma[3]]
                if not last:
                    G[1] += [f"v_add_u32 v{V_VA+4}, {dl}, v{V_VA+4}", f"v_add_u32 v{V_VA+5}, {dl}, v{V_VA+5}"]
                    G[13] += [f"v_add_u32 v{V_VA+6}, {dl}, v{V_VA+6}", f"v_add_u32 v{V_VA+7}, {dl}, v{V_VA+7}"]
            if j == 3:
                if vdma: G[5] += [vdma[4]]
                if not last:
                    G[1] += [f"v_add_u32 v{V_KA+0}, {dl}, v{V_KA+0}", f"v_add_u32 v{V_KA+1}, {dl}, v{V_KA+1}"]
                    G[13] += [f"v_add_u32 v{V_KA+2}, {dl}, v{V_KA+2}", f"v_add_u32 v{V_KA+3}, {dl}, v{V_KA+3}"]
                if kdma and not first:
                    G[16] += adv
            if j == 4:
                if first:
                    G[5] += [WL("q6")]
                if not last:
                    G[5] += [WV(f"K{nn}", f"V{nn}")]
                else:
                    G[5] += [WL("ow0", "ow1", "ow2", "ow3")]
                G[7] += ["s_barrier"]
                if not last:
                    G[9] += [self.k_read(0, 0, nn)]
                    G[11] += [self.k_read(0, 1, nn)]
                    G[13] += [self.k_read(0, 2, nn), self.k_read(0, 3, nn)]
                    G[15] += [self.k_read(1, 0, nn)]
                    G[16] += [self.k_read(1, 1, nn), self.k_read(1, 2, nn)]
                if first:
                    k3 = self.kv_dma("K", 3, "0")
                    G[9] += [k3[0]]
                    self.k3 = k3
            if j == 5 and not last:
                G[1] += [self.k_read(1, 3, nn)]
                PRE[9].append(WL(f"k{nn}.0", f"k{nn}.1"))
                if first:
                    k3 = self.k3
                    G[1] += [k3[1]]; G[3] += [k3[2]]; G[5] += [k3[3]]; G[7] += [k3[4]]
                    v3 = self.kv_dma("V", 3, "0")
                    G[9] += [v3[0], v3[1]]; G[11] += [v3[2]]; G[13] += [v3[3]]; G[15] += [v3[4]]
                    G[16] += adv
                elif kdma:
                    G[0] += [kdma[0]]
                    G[1] += [kdma[1]]; G[5] += [kdma[2]]; G[9] += [kdma[3]]; G[13] += [kdma[4]]
            if j == self.o.pfas and self.o.pfa and n <= self.o.pfan:
                tc = self.kv_touch()
                G[14] += [tc[0]]; G[16] += [tc[1]]
            if self.o.pfw and n == self.o.pfwt and j in (4, 5, 6):
                w = self.wo_touch()
                if j == 4:
                    for i, x in enumerate(w[0]): G[9 + (i * 7) // len(w[0])].append(x)
                else:
                    tch = w[1] if j == 5 else w[2]
                    nv = sum(isinstance(x, VM) for x in tch)
                    gi = 2
                    for x in tch:
                        G[gi].append(x)
                        if isinstance(x, VM): gi += max(1, 14 // max(nv, 1))
            if j == 6 and not last:
                v = lambda a, b: self.v_read(a, b, nn)
                G[1] += [v(0, 0), v(0, 1)]
                G[3] += [v(1, 0)]
                G[5] += [v(1, 1), v(2, 0)]
                G[7] += [v(2, 1)]
                G[9] += [v(3, 0), v(3, 1)]
                G[11] += [v(4, 0)]
                G[13] += [v(4, 1), v(5, 0)]
                G[15] += [v(5, 1)]
                G[16] += [v(6, 0), v(6, 1)]
                if first:
                    PRE[0] += [kdma[0]]
                    G[0] += [kdma[1]]; G[4] += [kdma[2]]; G[8] += [kdma[3]]; G[12] += [kdma[4]]
            if last:
                if j == 1:
                    PRE[0] = ["s_barrier"] + PRE[0]
                    w = self.o_writes(0)
                    G[1] += [w[0]]; G[3] += [w[1]]; G[5] += [w[2]]; G[7] += [w[3]]; G[8] += [w[4]]
                if 1 <= j <= 4:
                    w = self.o_writes(j)
                    G[10] += [w[0]]; G[11] += [w[1]]; G[13] += [w[2], w[3]]; G[15] += [w[4]]
                if self.o.fused and j in (2, 3):
                    d = self.wo_dma(j - 2)
                    ns = len(d) - 4
                    G[0] += d[:ns]; G[1] += [d[ns]]; G[3] += [d[ns+1]]; G[5] += [d[ns+2]]; G[7] += [d[ns+3]]
                if j == 6:
                    w = self.o_writes(5)
                    G[1] += [w[0]]; G[3] += [w[1]]; G[4] += [w[2]]; G[6] += [w[3]]; G[7] += [w[4]]
                if j == 0:
                    PRE[0] = self.ox_addr() + PRE[0]
            t.c(f"tile {n} slot {j}")
            S.emit(t)

    def wo_touch(self):
        a = V_PF
        su = [f"v_and_b32 v{a}, 63, v{V_TID}", f"s_lshr_b32 s{S_T0}, s2, 3"]
        pol = self.o.pfwpol
        if self.o.bmap == 0:
            su += [f"s_lshl_b32 s{S_T0}, s{S_T0}, 2", f"s_add_u32 s{S_T0}, s{S_T0}, s{S_W}",
                   f"s_mul_i32 s{S_T0}, s{S_T0}, {32*1152}",
                   f"s_and_b32 s{S_T1}, s2, 1", f"s_lshl_b32 s{S_T1}, s{S_T1}, 9", f"s_add_u32 s{S_T0}, s{S_T0}, s{S_T1}",
                   f"v_cmp_gt_u32 vcc, 32, v{a}",
                   f"v_mul_u32_u24 v{a}, 1152, v{a}", f"v_add_u32 v{a}, s{S_T0}, v{a}",
                   f"v_mov_b32 v{V_PFD}, 0x40000000",
                   f"v_cndmask_b32 v{a}, v{V_PFD}, v{a}, vcc"]
            T = [VM(f"buffer_load_dword v{V_PFD}, v{a}, {sr(S_WO)}, 0 offen" + (f" offset:{i*128}" if i else "") + pol, "PW") for i in range(5)]
            return su, T[:3], T[3:]
        su += [f"s_mul_i32 s{S_T0}, s{S_T0}, 147456", f"s_mul_i32 s{S_T1}, s{S_W}, 36864", f"s_add_u32 s{S_T0}, s{S_T0}, s{S_T1}",
               f"v_lshlrev_b32 v{a}, 7, v{a}", f"v_add_u32 v{a}, s{S_T0}, v{a}"]
        T = []
        for i in range(5):
            T.append([VM(f"buffer_load_dword v{V_PFD}, v{a}, {sr(S_WO)}, 0 offen{pol}", "PW"), f"v_add_u32 v{a}, 8192, v{a}"])
        return su, T[0] + T[1] + T[2], T[3] + T[4]

    def ox_addr(self):
        r = []
        T = V_T0
        r.append(f"v_and_b32 v{T}, 63, v{V_TID}")
        r.append(f"v_lshlrev_b32 v{T+1}, 4, v{T}")
        r.append(f"v_lshlrev_b32 v{T}, 2, v{T}")
        r.append(f"s_xor_b32 s{S_T3}, s{S_W}, 1")
        r.append(f"s_mul_i32 s{S_T0}, s{S_T3}, {RG}")
        r.append(f"v_add_u32 v{V_KA}, s{S_T0}, v{T+1}")
        r.append(f"s_add_u32 s{S_T0}, s{S_T0}, {LOFF}")
        r.append(f"v_add_u32 v{V_KA+1}, s{S_T0}, v{T}")
        r.append(f"s_mul_i32 s{S_T0}, s{S_W}, {RG}")
        r.append(f"v_add_u32 v{V_KA+2}, s{S_T0}, v{T+1}")
        r.append(f"s_add_u32 s{S_T0}, s{S_T0}, {LOFF}")
        r.append(f"v_add_u32 v{V_KA+3}, s{S_T0}, v{T}")
        r.append(f"s_mul_i32 s{S_T0}, s{S_B}, 14")
        r.append(f"s_mul_i32 s{S_T1}, s{S_QH}, 7")
        r.append(f"s_add_u32 s{S_T0}, s{S_T0}, s{S_T1}")
        r.append(f"s_mul_i32 s{S_T0}, s{S_T0}, {self.QS}")
        r.append(f"s_lshl_b32 s{S_T1}, s{S_H}, 1")
        r.append(f"s_add_u32 s{S_T1}, s{S_T1}, s{S_KH}")
        r.append(f"s_lshl_b32 s{S_T1}, s{S_T1}, 11")
        r.append(f"s_add_u32 s{S_OB}, s{S_T0}, s{S_T1}")
        return r

    def o_writes(self, j):
        r = []
        for tpp in range(4):
            i = j * 4 + tpp
            r.append(DS(f"ds_write_b128 v{V_KA}, {ar(A_OOTH + i*4)} offset:{i*1024}", f"ow{j}"))
        r.append(DS(f"ds_write_b32 v{V_KA+1}, a{A_L + 4*j} offset:{j*256}", f"ow{j}"))
        return r

    def gen(self):
        t_ = self.t
        o = self.o
        kn = f"{NAME}_kernel"
        t_.raw(f".globl {kn}\n.p2align 8\n.type {kn},@function\n{kn}:")
        t_.e("s_cmp_ge_u32 s2, 256")
        t_.e("s_cbranch_scc1 A_END")
        t_.e("s_load_dwordx8 s[4:11], s[0:1], 0")
        t_.e("s_load_dwordx2 s[12:13], s[0:1], 56")
        t_.many(self.stamp("start"))
        if o.stamps:
            t_.e(f"s_memrealtime s[{S_ST+36}:{S_ST+37}]")
        if o.ctouch:
            t_.e("s_getpc_b64 s[14:15]")
            t_.lab("CT_PC")
            t_.e("s_lshr_b32 s3, s2, 3")
            t_.e("s_and_b32 s3, s3, 1")
            t_.e("s_lshl_b32 s3, s3, 15")
            t_.e("v_lshlrev_b32 v1, 7, v0")
            t_.e("v_add_u32 v1, s3, v1")
            t_.e("v_min_u32 v1, CT_END-CT_PC-4, v1")
            t_.e(VM(f"global_load_dword v{V_PFD}, v1, s[14:15]", "PF"))
        t_.e(f"v_mov_b32 v{V_TID}, v0")
        t_.e(f"v_lshrrev_b32 v1, 6, v0")
        t_.e("s_and_b32 s3, s2, 7")
        t_.e(f"s_lshr_b32 s{S_T0}, s2, 3")
        t_.e(f"v_readfirstlane_b32 s{S_W}, v1")
        t_.e(f"s_and_b32 s{S_T1}, s3, 1")
        t_.e(f"s_lshl_b32 s{S_T1}, s{S_T1}, 2")
        t_.e(f"s_and_b32 s{S_T2}, s{S_T0}, 3")
        t_.e(f"s_add_u32 s{S_B}, s{S_T1}, s{S_T2}")
        t_.e(f"s_lshr_b32 s{S_T1}, s3, 1")
        t_.e(f"s_lshl_b32 s{S_T1}, s{S_T1}, 3")
        t_.e(f"s_lshr_b32 s{S_T2}, s{S_T0}, 2")
        t_.e(f"s_add_u32 s{S_H}, s{S_T1}, s{S_T2}")
        t_.e(f"s_lshr_b32 s{S_QH}, s{S_W}, 1")
        t_.e(f"s_and_b32 s{S_KH}, s{S_W}, 1")
        t_.e(f"s_mul_i32 s{S_W1K7}, s{S_W}, 7168")
        t_.e(f"s_lshl_b32 s{S_W4K}, s{S_W}, 12")
        L, l15, g, r4, c4, t, u = V_T0, V_T0+1, V_T0+2, V_T0+3, V_T0+4, V_T0+5, V_T0+6
        t_.e(f"v_and_b32 v{L}, 63, v{V_TID}")
        t_.e(f"v_and_b32 v{l15}, 15, v{L}")
        t_.e(f"v_lshrrev_b32 v{g}, 4, v{L}")
        t_.e(f"v_lshrrev_b32 v{t}, 3, v{L}")
        t_.e(f"v_and_b32 v{r4}, 7, v{L}")
        t_.e(f"v_xor_b32 v{u}, v{g}, v{r4}")
        t_.e(f"v_lshlrev_b32 v{u}, 4, v{u}")
        t_.e(f"s_lshl_b32 s{S_T0}, s{S_KH}, 6")
        t_.e(f"v_xor_b32 v{u}, s{S_T0}, v{u}")
        t_.e(f"v_mul_u32_u24 v{t}, 1152, v{t}")
        t_.e(f"s_mul_i32 s{S_T1}, s{S_W}, {56*1152}")
        t_.e(f"v_add_u32 v{t}, s{S_T1}, v{t}")
        t_.e(f"v_xor_b32 v{c4}, 64, v{u}")
        t_.e(f"v_add_u32 v{V_OFFX}, v{u}, v{t}")
        t_.e(f"v_add_u32 v{c4}, v{c4}, v{t}")
        for i in range(1, 7):
            src = V_OFFX if (i & 1) == 0 else c4
            k = i * 9216 - (i % 4) * 1024
            t_.e(f"v_add_u32 v{V_OFFX+i}, {k}, v{src}")
        t_.e(f"v_lshlrev_b32 v{t}, 2, v{g}")
        t_.e(f"v_xor_b32 v{t}, v{t}, v{l15}")
        t_.e(f"v_lshlrev_b32 v{t}, 4, v{t}")
        t_.e(f"v_lshlrev_b32 v{u}, 13, v{g}")
        t_.e(f"s_lshl_b32 s{S_T1}, s{S_W}, 17")
        t_.e(f"v_add_u32 v{u}, s{S_T1}, v{u}")
        t_.e(f"v_add_u32 v{V_OFFW}, v{t}, v{u}")
        for i in range(1, 4):
            t_.e(f"v_add_u32 v{V_OFFW+i}, {i*(32768-1024)}, v{V_OFFW}")
        t_.e(f"s_mul_i32 s{S_T0}, s{S_B}, 258048")
        t_.e(f"s_lshl_b32 s{S_T1}, s{S_H}, 8")
        t_.e(f"s_mov_b32 s{S_X+2}, 258048")
        t_.e(f"s_mov_b32 s{S_X+3}, 0x00020000")
        t_.e(f"s_sub_u32 s{S_WQ+2}, {576*8192}, s{S_T1}")
        t_.e(f"s_mov_b32 s{S_WQ+3}, 0x00020000")
        if o.qrot:
            al, be, sh = [int(z) for z in o.qrot.split(",")]
            t_.e(f"s_lshr_b32 s{S_T0}, s2, 5")
            t_.e(f"s_mul_i32 s{S_T0}, s{S_T0}, {al}")
            t_.e(f"s_bfe_u32 s{S_T1}, s2, {(2 << 16) | 3}")
            t_.e(f"s_mul_i32 s{S_T1}, s{S_T1}, {be}")
            t_.e(f"s_add_u32 s{S_T0}, s{S_T0}, s{S_T1}")
            t_.e(f"s_lshr_b32 s{S_T0}, s{S_T0}, {sh}")
            for _ in range(((7 * al + 3 * be) >> sh) // 9):
                t_.e(f"s_sub_u32 s{S_T1}, s{S_T0}, 9")
                t_.e(f"s_cmp_ge_u32 s{S_T0}, 9")
                t_.e(f"s_cselect_b32 s{S_T0}, s{S_T1}, s{S_T0}")
            t_.e(f"s_lshl_b32 s{S_SOX}, s{S_T0}, 7")
            t_.e(f"s_mul_i32 s{S_T0}, s{S_B}, 258048")
            t_.e(f"s_lshl_b32 s{S_T1}, s{S_H}, 8")
        t_.e("s_waitcnt lgkmcnt(0)")
        t_.many(self.stamp("karg"))
        t_.e(f"s_add_u32 s{S_X}, s4, s{S_T0}")
        t_.e(f"s_addc_u32 s{S_X+1}, s5, 0")
        t_.e(f"s_add_u32 s{S_WQ}, s10, s{S_T1}")
        t_.e(f"s_addc_u32 s{S_WQ+1}, s11, 0")
        t_.many(self.x_dma(0))
        t_.many(self.stamp("x0"))
        t_.many(self.x_dma(1))
        t_.many(self.stamp("x1"))
        t_.e(f"s_lshl_b32 s{S_T0}, s{S_B}, 5")
        t_.e(f"s_add_u32 s{S_T0}, s{S_T0}, s{S_H}")
        t_.e(f"s_lshl_b32 s{S_T0}, s{S_T0}, 18")
        t_.e(f"s_add_u32 s{S_K}, s6, s{S_T0}")
        t_.e(f"s_addc_u32 s{S_K+1}, s7, 0")
        t_.e(f"s_mov_b32 s{S_K+2}, 262144")
        t_.e(f"s_mov_b32 s{S_K+3}, 0x00020000")
        t_.e(f"s_add_u32 s{S_V}, s8, s{S_T0}")
        t_.e(f"s_addc_u32 s{S_V+1}, s9, 0")
        t_.e(f"s_mov_b32 s{S_V+2}, 262144")
        t_.e(f"s_mov_b32 s{S_V+3}, 0x00020000")
        t_.e(f"s_mov_b32 s{S_O}, s12")
        t_.e(f"s_mov_b32 s{S_O+1}, s13")
        t_.e(f"s_mov_b32 s{S_O+2}, {112*self.QS}")
        t_.e(f"s_mov_b32 s{S_O+3}, 0x00020000")
        if o.fused:
            t_.e("s_load_dwordx4 s[4:7], s[0:1], 32")
            t_.e("s_load_dwordx2 s[8:9], s[0:1], 48")
        self.emit_kv_addr(rd=False, dma=True)
        t_.many(self.kv_dma("K", 0, "0"))
        t_.many(self.stamp("k0i"))
        if o.pfq:
            a0, a1 = 112, 113
            pl = V_T0
            t_.e(f"s_and_b32 s{S_T0}, s{S_H}, 7")
            t_.e(f"s_mul_i32 s{S_T0}, s{S_T0}, 32256")
            t_.e(f"s_lshl_b32 s{S_T1}, s{S_W}, 13")
            t_.e(f"s_add_u32 s{S_T0}, s{S_T0}, s{S_T1}")
            t_.e(f"v_lshlrev_b32 v{a0}, 7, v{pl}")
            t_.e(f"v_add_u32 v{a0}, s{S_T0}, v{a0}")
            t_.e(VM(f"buffer_load_dword v{V_PFD}, v{a0}, {sr(S_X)}, 0 offen{o.pfqpol}", "PF"))
            t_.e(f"s_and_b32 s{S_T0}, s{S_B}, 3")
            t_.e(f"s_mul_i32 s{S_T0}, s{S_T0}, 144")
            t_.e(f"s_mul_i32 s{S_T1}, s{S_W}, 36")
            t_.e(f"s_add_u32 s{S_T0}, s{S_T0}, s{S_T1}")
            t_.e(f"s_lshl_b32 s{S_T0}, s{S_T0}, 13")
            t_.e(f"v_lshrrev_b32 v{a0}, 1, v{pl}")
            t_.e(f"v_lshlrev_b32 v{a0}, 13, v{a0}")
            t_.e(f"v_and_b32 v{a1}, 1, v{pl}")
            t_.e(f"v_lshlrev_b32 v{a1}, 7, v{a1}")
            t_.e(f"v_add_u32 v{a0}, v{a0}, v{a1}")
            t_.e(f"v_add_u32 v{a0}, s{S_T0}, v{a0}")
            t_.e(VM(f"buffer_load_dword v{V_PFD}, v{a0}, {sr(S_WQ)}, 0 offen{o.pfqpol}", "PF"))
            t_.e(f"v_add_u32 v{a1}, {32*8192}, v{a0}")
            t_.e(f"v_mov_b32 v{a0}, 0x40000000")
            t_.e(f"v_cmp_gt_u32 vcc, 8, v{pl}")
            t_.e(f"v_cndmask_b32 v{a1}, v{a0}, v{a1}, vcc")
            t_.e(VM(f"buffer_load_dword v{V_PFD}, v{a1}, {sr(S_WQ)}, 0 offen{o.pfqpol}", "PF"))
        if self.pf_on:
            t_.e(f"s_lshr_b32 s{S_T0}, s{S_W}, 1")
            t_.e(f"s_cmp_eq_u32 s{S_T0}, 0")
            t_.e(f"s_cselect_b32 s{S_PF}, s{S_K}, s{S_V}")
            t_.e(f"s_cselect_b32 s{S_PF+1}, s{S_K+1}, s{S_V+1}")
            t_.e(f"s_and_b32 s{S_T0}, s{S_W}, 1")
            t_.e(f"s_lshl_b32 s{S_T0}, s{S_T0}, 13")
            t_.e(f"s_add_u32 s{S_PF}, s{S_PF}, s{S_T0}")
            t_.e(f"s_addc_u32 s{S_PF+1}, s{S_PF+1}, 0")
            t_.e(f"s_sub_u32 s{S_PF+2}, 262144, s{S_T0}")
            t_.e(f"s_mov_b32 s{S_PF+3}, 0x00020000")
            t_.e(f"v_lshlrev_b32 v112, 7, v{V_T0}")
            if o.pf0: t_.e(f"v_add_u32 v112, {o.pf0*16384}, v112")
            self.pfreg = 112
            for i in range(self.pfc[0]):
                t_.e(VM(f"buffer_load_dword v{V_PFD}, v112, {sr(S_PF)}, 0 offen{o.pfpol}", "PF"))
                t_.e(f"v_add_u32 v112, 16384, v112")
        t_.many(self.stamp("k0"))
        self.emit_kv_addr(rd=True, dma=False)
        sc = f32(1.4426950408889634 / (128 ** 0.5))
        t_.e(f"s_mov_b32 s{S_SC}, {hex(sc)}")
        t_.e(f"s_mov_b32 s{S_PASS}, 0")
        t_.e(f"v_bfe_u32 v{r4}, v{L}, 2, 2")
        t_.e(f"v_and_b32 v{c4}, 3, v{L}")
        t_.e(f"v_lshrrev_b32 v{t}, 1, v{l15}")
        t_.e(f"v_xor_b32 v{t}, v{t}, v{g}")
        t_.e(f"v_lshlrev_b32 v{t}, 4, v{t}")
        t_.e(f"v_lshlrev_b32 v{u}, 7, v{l15}")
        t_.e(f"s_mul_i32 s{S_T0}, s{S_QH}, {112*128}")
        t_.e(f"v_add_u32 v{u}, s{S_T0}, v{u}")
        t_.e(f"v_add_u32 v{V_XR}, v{t}, v{u}")
        t_.e(f"v_xor_b32 v{t}, 64, v{t}")
        t_.e(f"v_add_u32 v{V_XR+1}, v{t}, v{u}")
        t_.e(f"v_add_u32 v{V_XR+2}, 90112, v{V_XR}")
        t_.e(f"v_add_u32 v{V_XR+3}, 90112, v{V_XR+1}")
        t_.e(f"s_lshl_b32 s{S_T0}, s{S_KH}, 1")
        t_.e(f"v_xor_b32 v{t}, s{S_T0}, v{r4}")
        t_.e(f"v_lshlrev_b32 v{t}, 6, v{t}")
        t_.e(f"v_lshlrev_b32 v{u}, 3, v{g}")
        t_.e(f"v_add_u32 v{u}, v{u}, v{r4}")
        t_.e(f"v_lshlrev_b32 v{u}, 8, v{u}")
        t_.e(f"v_lshlrev_b32 v{c4}, 4, v{c4}")
        t_.e(f"v_add_u32 v{u}, v{u}, v{c4}")
        t_.e(f"v_add_u32 v{u}, 28672, v{u}")
        t_.e(f"v_add_u32 v{V_WR}, v{t}, v{u}")
        t_.e(f"v_xor_b32 v{t}, 64, v{t}")
        t_.e(f"v_add_u32 v{V_WR+1}, v{t}, v{u}")
        t_.e(f"v_add_u32 v{V_WR+2}, 90112, v{V_WR}")
        t_.e(f"v_add_u32 v{V_WR+3}, 90112, v{V_WR+1}")
        t_.e(f"v_lshlrev_b32 v{t}, 4, v{L}")
        t_.e(f"s_mul_i32 s{S_T0}, s{S_QH}, 28672")
        t_.e(f"v_add_u32 v{V_QR}, s{S_T0}, v{t}")
        t_.e(f"s_mul_i32 s{S_T1}, s{S_KH}, 14336")
        t_.e(f"v_add_u32 v{V_QW}, s{S_T1}, v{V_QR}")
        for i in range(28):
            t_.e(f"v_mov_b32 v{V_NEGM+i}, 0")
        t_.e(f"v_mov_b32 v{t}, 0x3f803f80")
        for i in range(4):
            t_.e(f"v_accvgpr_write_b32 a{A_ONES+i}, v{t}")
        if self.pf_on:
            t_.e(f"v_mov_b32 v{V_PF}, v112")
        for k in range(9):
            t_.c(f"---- Q-proj period {k}")
            t_.many(self.stamp(f"a{k}"))
            t_.e(WV(f"X{k}"))
            t_.many(self.stamp(f"w{k}"))
            if k: t_.e(WL(f"R{k-1}"))
            t_.e("s_barrier")
            t_.many(self.stamp(f"p{k}"))
            rd = self.q_reads(k)
            if k <= 6:
                dm = self.x_dma(k + 2)
            elif k == 7:
                dm = self.kv_dma("V", 0, "0") + [f"s_mov_b32 s{S_SOKV}, 16384"] + self.kv_dma("K", 1, f"s{S_SOKV}") + \
                     self.kv_dma("V", 1, f"s{S_SOKV}")
            else:
                dm = [f"s_mov_b32 s{S_SOKV}, 32768"] + self.kv_dma("K", 2, f"s{S_SOKV}") + self.kv_dma("V", 2, f"s{S_SOKV}")
            for i in range(self.pfc[k + 1]): dm = dm + self.kv_touch()
            if k == 0:
                t_.many(rd); t_.many(self.stamp("r0")); t_.many(dm)
                continue
            S = Sched(self.q_mfmas(k - 1, k == 1))
            pos = [g for g in range(56) if g % 5 != 2][:len(rd)]
            for p_, r_ in zip(pos, rd): S.post[p_].append(r_)
            nvm = sum(isinstance(x, VM) for x in dm)
            step = 56.0 / nvm
            i = 0
            pend = []
            for x in dm:
                if isinstance(x, VM):
                    gpos = int(i * step + 2 - (i * step + 2) % 1)
                    gpos = min(55, gpos)
                    if pend:
                        S.post[gpos - 1] += pend; pend = []
                    S.post[gpos].append(x); i += 1
                else:
                    pend.append(x)
            if pend: S.post[55] += pend
            if o.fused and k in (3, 4, 8):
                extra = {3: self.b_addr_s, 4: self.b_addr_v, 8: self.b_srd}[k]()
                for i, x in enumerate(extra): S.post[38 + (i * 17) // len(extra)].append(x)
            S.emit(t_)
        t_.c("---- Q-proj period 9 + finalisation")
        t_.e(WL("R8"))
        t_.e("s_barrier")
        t_.many(self.stamp("p9"))
        groups = [(jj, qt) for jj in range(2) for qt in range(7)]
        mf = []
        for (jj, qt) in groups:
            for s in range(2):
                for T in (2 * jj, 2 * jj + 1):
                    mf.append(self.q_mf(8, s, T, qt, False))
        S = Sched(mf)
        def fin(gi):
            jj, qt = groups[gi]
            tb = V_QT + (gi & 1) * 4
            r0 = ((2 * jj) * 7 + qt) * 4
            r1 = ((2 * jj + 1) * 7 + qt) * 4
            m0_ = [f"v_mul_f32 v{r0+i}, s{S_SC}, v{r0+i}" for i in range(4)]
            m1_ = [f"v_mul_f32 v{r1+i}, s{S_SC}, v{r1+i}" for i in range(4)]
            c_ = [f"v_cvt_pk_bf16_f32 v{tb}, v{r0}, v{r0+1}", f"v_cvt_pk_bf16_f32 v{tb+1}, v{r0+2}, v{r0+3}",
                  f"v_cvt_pk_bf16_f32 v{tb+2}, v{r1}, v{r1+1}", f"v_cvt_pk_bf16_f32 v{tb+3}, v{r1+2}, v{r1+3}"]
            w_ = DS(f"ds_write_b128 v{V_QW}, {vr(tb)} offset:{(jj*7+qt)*1024}", "qw")
            return m0_, m1_, c_, w_
        for gi in range(13):
            m0_, m1_, c_, w_ = fin(gi)
            b = 4 * (gi + 1) + 1
            S.post[b] += m0_; S.post[b + 1] += m1_; S.post[b + 2] += c_; S.post[b + 3] += [w_]
        kr = [self.k_read(kt, ks, 0) for kt in range(2) for ks in range(4)]
        for i, x in enumerate(kr): S.post[i].append(x)
        S.emit(t_)
        t_.e("s_nop 7")
        m0_, m1_, c_, w_ = fin(13)
        t_.many(m0_); t_.many(m1_); t_.many(c_); t_.e(w_)
        t_.e(WL("qw"))
        t_.e(WV("V0"))
        t_.e("s_barrier")
        t_.many(self.stamp("qx"))
        if o.dbgq:
            for qt in range(7): t_.many(self.q_read(qt))
            t_.e(WALL('l'))
            t_.e(f"s_lshl_b32 s{S_T0}, s2, 2")
            t_.e(f"s_add_u32 s{S_T0}, s{S_T0}, s{S_W}")
            t_.e(f"s_mul_i32 s{S_T0}, s{S_T0}, 28672")
            t_.e(f"s_add_u32 s{S_T0}, s{S_T0}, {32<<20}")
            t_.e(f"s_mov_b32 s{S_O+2}, {256<<20}")
            t_.e(f"v_and_b32 v{V_T0}, 63, v{V_TID}")
            t_.e(f"v_lshlrev_b32 v{V_T0}, 4, v{V_T0}")
            for i in range(28):
                t_.e(f"buffer_store_dwordx4 {ar(A_Q + i*4)}, v{V_T0}, {sr(S_O)}, s{S_T0} offen")
                t_.e(f"s_add_u32 s{S_T0}, s{S_T0}, 1024")
            t_.e("s_waitcnt vmcnt(0)")
            t_.e(f"s_mov_b32 s{S_O+2}, {112*self.QS}")
        t_.lab("A_ATT")
        t_.many(self.q_read(0)); t_.many(self.q_read(1))
        t_.e(f"v_add_u32 v{V_OFFKV}, {3*16384}, v{V_OFFKV}")
        t_.e(f"v_add_u32 v{V_OFFKV+1}, {3*16384}, v{V_OFFKV+1}")
        self.preamble(True)
        self.body()
        self.epilogue()
        t_.lab("CT_END")
        self.slowpath()
        t_.lab("A_END")
        t_.e("s_endpgm")
        return "\n".join(t_.L)

    def preamble(self, with_q):
        t_ = self.t
        vr_ = [self.v_read(tp, hf, 0) for tp in range(7) for hf in range(2)]
        t_.e(WL("k0.0", "k0.1", "q0"))
        S = Sched(self.qk_mfmas(0, 0))
        for i, x in enumerate(vr_): S.post[i // 2].append(x)
        if with_q:
            q2 = self.q_read(2)
            S.post[7] += q2
        S.emit(t_)
        t_.e(WL("q1"))
        m1 = self.qk_mfmas(1, 1)
        ex = self.exps(0); cv = self.cvts(0)
        S = Sched(m1)
        S.post[0] += ex[0:2]; S.post[1] += ex[2:4]; S.post[2] += ex[4:6]; S.post[3] += ex[6:8]
        S.post[4] += cv[0:2]; S.post[5] += cv[2:4]
        S.emit(t_)
        t_.many(self.stamp("pre"))

    def body(self):
        t_ = self.t
        texts = []
        start = len(t_.L)
        for n in range(4):
            self.tile(n)
        i0 = len(t_.L)
        if self.o.unroll:
            for n in range(4, 12): self.tile(n)
            t_.many(self.stamp("t11"))
            for n in range(12, 16): self.tile(n)
            t_.many(self.stamp("t15"))
            return
        for n in range(4, 8): self.tile(n)
        i1 = len(t_.L)
        for n in range(8, 12): self.tile(n)
        i2 = len(t_.L)
        strip = lambda xs: [x for x in xs if not x.strip().startswith(";")]
        assert strip(t_.L[i0:i1]) == strip(t_.L[i1:i2]), "loop iterations differ"
        body = t_.L[i0:i1]
        t_.L = t_.L[:i0]
        t_.e(f"s_mov_b32 s{S_CNT}, 2")
        t_.lab("A_LOOP")
        t_.L += body
        t_.e(f"s_sub_u32 s{S_CNT}, s{S_CNT}, 1")
        t_.e(f"s_cmp_lg_u32 s{S_CNT}, 0")
        t_.e("s_cbranch_scc1 A_LOOP")
        t_.many(self.stamp("t11"))
        for n in range(12, 16): self.tile(n)
        t_.many(self.stamp("t15"))

    def fin_tile(self, qt, pb, tb, lt):
        r = []
        ob = V_OOWN + qt * 16
        r.append(f"v_accvgpr_read_b32 v{lt}, a{A_L + 4*qt}")
        r.append(f"v_add_f32 v{lt}, v{lt}, v{lt+1}")
        r.append(f"v_rcp_f32 v{lt}, v{lt}")
        for k in range(8):
            r.append(f"v_pk_add_f32 {vr(ob+2*k,2)}, {vr(ob+2*k,2)}, {vr(pb+2*k,2)}")
        for k in range(8):
            r.append(f"v_pk_mul_f32 {vr(ob+2*k,2)}, {vr(ob+2*k,2)}, {vr(lt,2)} op_sel:[0,0] op_sel_hi:[1,0]")
        for jj in range(2):
            s0 = ob + jj * 8
            for k in range(4):
                r.append(f"v_cvt_pk_bf16_f32 v{tb + jj*4 + k}, v{s0 + 2*k}, v{s0 + 2*k + 1}")
        pol = " sc1" if (self.o.osc1 or self.o.fused) else ""
        for jj in range(2):
            off = " offset:1024" if jj else ""
            r.append(VM(f"buffer_store_dwordx4 {vr(tb + jj*4)}, v{V_T0+1}, {sr(S_O)}, s{S_OB} offen{off}{pol}", "ost"))
        r.append(f"s_add_u32 s{S_OB}, s{S_OB}, {self.QS}")
        return r

    def p_reads(self, qt, pb, lt):
        r = []
        for tpp in range(4):
            i = qt * 4 + tpp
            r.append(DS(f"ds_read_b128 {vr(pb + tpp*4)}, v{V_KA+2} offset:{i*1024}", f"p{qt}"))
        r.append(DS(f"ds_read_b32 v{lt+1}, v{V_KA+3} offset:{qt*256}", f"p{qt}"))
        return r

    def epilogue(self):
        t_ = self.t
        o = self.o
        t_.c("---- epilogue")
        PB = [112, 128, 144, 160]
        LT = [V_NEGM + 16, V_NEGM + 18, V_NEGM + 20, V_NEGM + 22]
        TB = [V_NEGM, V_NEGM + 8]
        t_.many(self.p_reads(0, PB[0], LT[0]))
        t_.many(self.p_reads(1, PB[1], LT[1]))
        t_.e("s_nop 7")
        t_.many(self.o_writes(6))
        t_.many(self.p_reads(2, PB[2], LT[2]))
        t_.many(self.p_reads(3, PB[3], LT[3]))
        T = V_S
        lo, hi = f32(2.0 ** -24), f32(2.0 ** 30)
        t_.e(f"s_mov_b32 s{S_T0}, {hex(lo)}")
        t_.e(f"s_mov_b32 s{S_T1}, {hex(hi - lo)}")
        for qt in range(7):
            t_.e(f"v_accvgpr_read_b32 v{T+qt}, a{A_L + 4*qt}")
        t_.e(f"v_subrev_u32 v{T+8}, s{S_T0}, v{T}")
        for qt in range(1, 7):
            t_.e(f"v_subrev_u32 v{T+9}, s{S_T0}, v{T+qt}")
            t_.e(f"v_max_u32 v{T+8}, v{T+8}, v{T+9}")
        t_.e(f"v_cmp_lt_u32 vcc, s{S_T1}, v{T+8}")
        t_.e(f"s_lshl_b32 s{S_T3}, s{S_W}, 2")
        t_.e(f"s_add_u32 s{S_T3}, s{S_T3}, {FOFF}")
        t_.e(f"s_cmp_lg_u64 vcc, 0")
        t_.e(f"s_cselect_b32 s{S_T2}, 1, 0")
        t_.e(f"v_mov_b32 v{T+10}, s{S_T2}")
        t_.e(f"v_and_b32 v{T+11}, 3, v{V_TID}")
        t_.e(f"v_mul_u32_u24 v{T+11}, {RG}, v{T+11}")
        t_.e(f"v_add_u32 v{T+11}, s{S_T3}, v{T+11}")
        t_.e(DS(f"ds_write_b32 v{T+11}, v{T+10}", "fl"))
        for qt in range(4):
            t_.e(WL(f"p{qt}"))
            t_.many(self.fin_tile(qt, PB[qt], TB[qt & 1], LT[qt]))
            if o.fused: t_.many(self.wo_dma(2 + qt))
        t_.e(WL("fl", "ow4", "ow5", "ow6"))
        t_.e("s_barrier")
        t_.many(self.stamp("e1"))
        F = V_P + 4
        t_.e(f"s_mul_i32 s{S_T0}, s{S_W}, {RG}")
        t_.e(f"s_add_u32 s{S_T0}, s{S_T0}, {FOFF}")
        t_.e(f"v_mov_b32 v{T+11}, s{S_T0}")
        t_.e(DS(f"ds_read_b128 {vr(F)}, v{T+11}", "flr"))
        for qt in range(4, 7):
            t_.many(self.p_reads(qt, PB[qt - 4], LT[qt - 4]))
        t_.e(WL("flr"))
        t_.e(f"v_or_b32 v{F}, v{F}, v{F+1}")
        t_.e(f"v_or_b32 v{F+2}, v{F+2}, v{F+3}")
        t_.e(f"v_or_b32 v{F}, v{F}, v{F+2}")
        t_.e("s_nop 1")
        t_.e(f"v_readfirstlane_b32 s{S_T0}, v{F}")
        t_.e(f"s_xor_b32 s{S_T1}, s{S_PASS}, 1")
        t_.e(f"s_and_b32 s{S_T0}, s{S_T0}, s{S_T1}")
        t_.e(f"s_cmp_lg_u32 s{S_T0}, 0")
        t_.e("s_cbranch_scc1 A_SLOW")
        for qt in range(4, 7):
            t_.e(WL(f"p{qt}"))
            if o.fused:
                t_.many(self.wo_dma(2 + qt))
                if qt == 6: t_.many(self.wo_dma(9))
            t_.many(self.fin_tile(qt, PB[qt - 4], TB[qt & 1], LT[qt - 4]))
        t_.many(self.stamp("e2"))
        if o.fused: self.phase_b()
        if o.stamps:
            t_.e(f"s_memrealtime s[{S_ST+38}:{S_ST+39}]")
            t_.e("s_waitcnt lgkmcnt(0)")
            t_.e(f"s_cmp_lg_u32 s{S_W}, 0")
            t_.e("s_cbranch_scc1 A_END")
            ns = 20
            t_.e(f"s_mul_i32 s{S_T0}, s2, {ns*4*2}")
            t_.e(f"s_add_u32 s{S_T0}, s{S_T0}, {64<<20}")
            t_.e(f"s_mov_b32 s{S_O+2}, {256<<20}")
            t_.e(f"v_mov_b32 v{V_T0+1}, 0")
            for i in range(ns * 2):
                if 2 * self.nst <= i < 36:
                    t_.e(f"v_mov_b32 v{V_T0}, 0")
                else:
                    t_.e(f"v_mov_b32 v{V_T0}, s{S_ST+i}")
                t_.e(f"buffer_store_dword v{V_T0}, v{V_T0+1}, {sr(S_O)}, s{S_T0} offen offset:{i*4}")
                t_.e("s_nop 1")
        t_.e("s_endpgm")

    def b_addr_v(self):
        L, t0, t1, t2 = 184, 185, 186, 187
        r = []
        r.append(f"v_and_b32 v{L}, 63, v{V_TID}")
        r.append(f"v_lshrrev_b32 v{t0}, 3, v{L}")
        r.append(f"v_and_b32 v{t1}, 7, v{L}")
        r.append(f"v_bfe_u32 v{t2}, v{L}, 4, 2")
        r.append(f"v_lshlrev_b32 v{t2}, 1, v{t2}")
        r.append(f"v_xor_b32 v{t1}, v{t1}, v{t2}")
        r.append(f"v_lshlrev_b32 v{t1}, 4, v{t1}")
        r.append(f"v_mul_u32_u24 v{t0}, 1152, v{t0}")
        r.append(f"v_add_u32 v{V_WOF}, v{t0}, v{t1}")
        for i in range(1, 4):
            r.append(f"v_add_u32 v{V_WOF+i}, {i*(9216-1024)}, v{V_WOF}")
        r.append(f"v_lshrrev_b32 v{t0}, 2, v{L}")
        r.append(f"v_bfe_u32 v{t1}, v{L}, 3, 2")
        r.append(f"v_lshlrev_b32 v{t1}, 5, v{t1}")
        r.append(f"v_lshlrev_b32 v{t0}, 7, v{t0}")
        r.append(f"v_and_b32 v{t2}, 3, v{L}")
        r.append(f"v_lshlrev_b32 v{t2}, 3, v{t2}")
        r.append(f"v_add_u32 v{t0}, v{t0}, v{t2}")
        r.append(f"v_add_u32 v{t0}, s{S_RB}, v{t0}")
        for nt in range(4):
            r.append(f"v_xor_b32 v{V_TR+nt}, {nt*32}, v{t1}")
            r.append(f"v_add_u32 v{V_TR+nt}, v{V_TR+nt}, v{t0}")
        return r

    def b_addr_s(self):
        r = []
        r.append(f"s_mul_i32 s{S_RB}, s{S_W}, {RG}")
        r.append(f"s_and_b32 s{S_T0}, s2, 7")
        r.append(f"s_lshr_b32 s{S_T1}, s2, 3")
        r.append(f"s_and_b32 s{S_T2}, s{S_T0}, 1")
        r.append(f"s_lshl_b32 s{S_T2}, s{S_T2}, 5")
        r.append(f"s_add_u32 s{S_T1}, s{S_T1}, s{S_T2}")
        r.append(f"s_lshr_b32 s{S_T0}, s{S_T0}, 1")
        r.append(f"s_mul_i32 s{S_T0}, s{S_T0}, 7")
        if self.o.bmap == 0:
            r.append(f"s_mul_i32 s{S_NG}, s{S_T1}, 37")
            r.append(f"s_lshr_b32 s{S_NG}, s{S_NG}, 8")
            r.append(f"s_mul_i32 s{S_T2}, s{S_NG}, 7")
            r.append(f"s_sub_u32 s{S_T2}, s{S_T1}, s{S_T2}")
            r.append(f"s_add_u32 s{S_MG}, s{S_T2}, s{S_T0}")
        else:
            r.append(f"s_mul_i32 s{S_T2}, s{S_T1}, 57")
            r.append(f"s_lshr_b32 s{S_T2}, s{S_T2}, 9")
            r.append(f"s_add_u32 s{S_MG}, s{S_T2}, s{S_T0}")
            r.append(f"s_mul_i32 s{S_T2}, s{S_T2}, 9")
            r.append(f"s_sub_u32 s{S_NG}, s{S_T1}, s{S_T2}")
        r.append(f"s_cmp_ge_u32 s{S_T1}, 63")
        r.append(f"s_cselect_b32 s{S_NG}, 15, s{S_NG}")
        r.append(f"s_cselect_b32 s{S_MG}, 0, s{S_MG}")
        if self.o.brot:
            r.append(f"s_mul_i32 s{S_ROT}, s{S_NG}, {self.o.brot * 1024}")
        r.append(f"s_mul_i32 s{S_T0}, s{S_W}, {1024*1152}")
        r.append(f"s_lshl_b32 s{S_T1}, s{S_NG}, 7")
        r.append(f"s_add_u32 s{S_SW}, s{S_T0}, s{S_T1}")
        r.append(f"s_mul_i32 s{S_T0}, s{S_MG}, {4*self.QS}")
        r.append(f"s_lshl_b32 s{S_T1}, s{S_W}, 15")
        r.append(f"s_add_u32 s{S_SO}, s{S_T0}, s{S_T1}")
        r.append(f"s_lshl_b32 s{S_T0}, s{S_MG}, 2")
        r.append(f"s_mul_i32 s{S_T1}, s{S_T0}, 147")
        r.append(f"s_lshr_b32 s{S_T1}, s{S_T1}, 11")
        r.append(f"s_lshl_b32 s{S_L0}, s{S_T1}, 3")
        r.append(f"s_add_u32 s{S_T0}, s{S_T0}, 3")
        r.append(f"s_mul_i32 s{S_T1}, s{S_T0}, 147")
        r.append(f"s_lshr_b32 s{S_T1}, s{S_T1}, 11")
        r.append(f"s_lshl_b32 s{S_L1}, s{S_T1}, 3")
        return r

    def b_srd(self):
        r = []
        r.append(f"s_mov_b32 s{S_WO}, s4"); r.append(f"s_mov_b32 s{S_WO+1}, s5")
        r.append(f"s_mov_b32 s{S_WO+2}, {4096*1152}"); r.append(f"s_mov_b32 s{S_WO+3}, 0x00020000")
        r.append(f"s_mov_b32 s{S_OUT}, s6"); r.append(f"s_mov_b32 s{S_OUT+1}, s7")
        r.append(f"s_mov_b32 s{S_OUT+2}, {1792*1152}"); r.append(f"s_mov_b32 s{S_OUT+3}, 0x00020000")
        return r

    @staticmethod
    def slot(f): return (f + 8) % 10

    def btime(self, f):
        NR, NL = self.o.nr, 10
        order = list(range(NR, NR + NL)) + list(range(NR)) + list(range(NR + NL, 32))
        return order.index(f)

    def wo_dma(self, f):
        if self.o.brot:
            r = [f"s_add_u32 s{S_RT}, s{S_ROT}, {self.btime(f)*1024}", f"s_and_b32 s{S_RT}, s{S_RT}, 0x7fff",
                 f"s_mul_i32 s{S_RT}, s{S_RT}, 36", f"s_add_u32 s{S_SWC}, s{S_SW}, s{S_RT}",
                 f"s_add_u32 m0, s{S_RB}, {self.slot(f)*4096}"]
            for i in range(4):
                off = f" offset:{i*1024}" if i else ""
                r.append(VM(f"buffer_load_dwordx4 v{V_WOF+i}, {sr(S_WO)}, s{S_SWC} offen{off} lds", f"W{f}"))
            return r
        fa = f % self.o.wsm if self.o.wsm else f
        r = [f"s_add_u32 s{S_SWC}, s{S_SW}, {fa*32*1152}", f"s_add_u32 m0, s{S_RB}, {self.slot(f)*4096}"]
        for i in range(4):
            off = f" offset:{i*1024}" if i else ""
            r.append(VM(f"buffer_load_dwordx4 v{V_WOF+i}, {sr(S_WO)}, s{S_SWC} offen{off} lds", f"W{f}"))
        return r

    def tr_reads(self, f, unit):
        k, b = unit
        r = []
        for nt in range(4):
            for hf in range(2):
                r.append(DS(f"ds_read_b64_tr_b16 {k}[{b + nt*4 + 2*hf}:{b + nt*4 + 2*hf + 1}], v{V_TR+nt} offset:{self.slot(f)*4096 + hf*2048}", f"t{f}"))
        return r

    def phase_b(self):
        t_, o = self.t, self.o
        NR, D, NL = o.nr, o.od, 10
        units = [("a", 16*i) for i in range(16)] + [("v", 64 + 16*i) for i in range(10)]
        assert NR + 2 + D <= len(units)
        res = units[:NR]; jit = units[-(D + 2):-D]; ring = units[-D:]
        U = lambda u, off: f"{u[0]}[{u[1]+off}:{u[1]+off+3}]"
        NK = 32
        order = list(range(NR, NR + NL)) + list(range(NR)) + list(range(NR + NL, NK))
        t_.c("---- out-projection: weight prefetch + publish")
        for mi in range(1, 4):
            t_.e(f"v_add_u32 v{V_OO[mi]}, {mi*self.QS}, v{V_OO[0]}")
        def publish():
            t_.e(WV("ost"))
            t_.e("s_barrier")
            t_.e(f"s_cmp_lg_u32 s{S_W}, {o.pubw}")
            t_.e("s_cbranch_scc1 B_PUB")
            if o.pubmode == 0:
                t_.e(f"s_lshl_b32 s{S_T0}, s{S_B}, 5")
                t_.e(f"v_mov_b32 v{V_S}, s{S_T0}")
                t_.e(f"v_mov_b32 v{V_S+1}, 1")
                t_.e("s_mov_b64 exec, 1")
                t_.e(f"global_atomic_add v{V_S}, v{V_S+1}, s[8:9]")
                t_.e("s_mov_b64 exec, -1")
            else:
                t_.e(f"s_lshl_b32 s{S_T0}, s{S_B}, 5")
                t_.e(f"s_add_u32 s{S_T0}, s{S_T0}, s{S_H}")
                t_.e(f"v_mov_b32 v{V_S}, s{S_T0}")
                t_.e(f"v_mov_b32 v{V_S+1}, 1")
                t_.e("s_mov_b64 exec, 1")
                t_.e(f"global_store_byte v{V_S}, v{V_S+1}, s[8:9] sc1")
                t_.e("s_mov_b64 exec, -1")
            t_.lab("B_PUB")
            t_.many(self.stamp("pub"))
            t_.e(f"s_cmp_eq_u32 s{S_NG}, 15")
            t_.e("s_cbranch_scc1 A_END")
        published = False
        nxt = NL
        for f in range(NR):
            if f == o.npre and not published:
                publish(); published = True
            t_.e(WV(f"W{f}"))
            t_.many(self.stamp(f"wf{f}"))
            if not (o.wdiag & 1): t_.many(self.tr_reads(f, res[f]))
            if f >= 1:
                t_.e(WL(f"t{f-1}"))
                if nxt < NK:
                    if not (o.wdiag & 2): t_.many(self.wo_dma(nxt))
                    nxt += 1
        if not published:
            publish(); published = True
        t_.e(WL(f"t{NR-1}"))
        if nxt < NK: t_.many(self.wo_dma(nxt)); nxt += 1
        for i in range(2):
            f = order[i]
            t_.e(WV(f"W{f}"))
            t_.many(self.tr_reads(f, jit[i]))
        for i in range(2):
            t_.e(WL(f"t{order[i]}"))
            if nxt < NK: t_.many(self.wo_dma(nxt)); nxt += 1
        t_.many(self.stamp("wpf"))
        P, Q = V_S, V_S + 1
        t_.e(f"s_cmp_lg_u32 s{S_W}, {o.pollw}")
        t_.e("s_cbranch_scc1 B_GO")
        if o.pubmode == 0:
            t_.e(f"v_and_b32 v{Q}, 63, v{V_TID}")
            t_.e(f"v_lshlrev_b32 v{Q}, 2, v{Q}")
            t_.e(f"s_mov_b32 s{S_CNT}, 200000")
            t_.lab("B_POLL")
            t_.e(f"global_load_dword v{P}, v{Q}, s[8:9] sc1")
            t_.e("s_waitcnt vmcnt(0)")
            t_.e(f"v_readlane_b32 s{S_T0}, v{P}, s{S_L0}")
            t_.e(f"v_readlane_b32 s{S_T1}, v{P}, s{S_L1}")
            t_.e(f"s_min_u32 s{S_T0}, s{S_T0}, s{S_T1}")
            t_.e(f"s_cmp_ge_u32 s{S_T0}, 32")
            t_.e("s_cbranch_scc1 B_GO")
        else:
            t_.e(f"v_and_b32 v{Q}, 63, v{V_TID}")
            t_.e(f"v_mov_b32 v{P}, s{S_L0}")
            t_.e(f"v_mov_b32 v{P+2}, s{S_L1}")
            t_.e(f"v_cmp_gt_u32 vcc, 8, v{Q}")
            t_.e(f"v_cndmask_b32 v{P}, v{P+2}, v{P}, vcc")
            t_.e(f"v_and_b32 v{Q}, 7, v{Q}")
            t_.e(f"v_add_u32 v{Q}, v{Q}, v{P}")
            t_.e(f"v_lshlrev_b32 v{Q}, 2, v{Q}")
            t_.e(f"s_mov_b32 s{S_CNT}, 200000")
            t_.e(f"s_mov_b32 s{S_T1}, 0x01010101")
            t_.e("s_mov_b64 exec, 0xffff")
            t_.lab("B_POLL")
            t_.e(f"global_load_dword v{P}, v{Q}, s[8:9] sc1")
            t_.e("s_waitcnt vmcnt(0)")
            t_.e(f"v_cmp_ne_u32 vcc, s{S_T1}, v{P}")
            t_.e("s_nop 4")
            t_.e("s_cbranch_vccz B_PD")
        t_.e(f"s_sub_u32 s{S_CNT}, s{S_CNT}, 1")
        t_.e(f"s_cmp_eq_u32 s{S_CNT}, 0")
        t_.e(f"s_cbranch_scc1 {'B_PD' if o.pubmode else 'B_GO'}")
        t_.e(f"s_sleep {o.psleep}")
        t_.e("s_branch B_POLL")
        if o.pubmode:
            t_.lab("B_PD")
            t_.e("s_mov_b64 exec, -1")
        t_.lab("B_GO")
        t_.e("s_barrier")
        t_.many(self.stamp("poll"))
        def o_soff(i):
            if o.brot:
                return [f"s_add_u32 s{S_RT}, s{S_ROT}, {i*1024}", f"s_and_b32 s{S_RT}, s{S_RT}, 0x7fff", f"s_add_u32 s{S_SOC}, s{S_SO}, s{S_RT}"]
            return [f"s_add_u32 s{S_SOC}, s{S_SO}, {order[i]*1024}"]
        def o_load(i, mi):
            if o.bnold and i >= D: return "s_nop 0"
            return VM(f"buffer_load_dwordx4 {U(ring[i % D], mi*4)}, v{V_OO[mi]}, {sr(S_O)}, s{S_SOC} offen{' sc1' if o.olsc else ''}", f"O{i}.{mi}")
        if o.b2x:
            t_.e(f"s_mov_b32 s{S_CNT}, 2")
            t_.lab("B_2X")
        for i in range(D):
            t_.many(o_soff(i))
            for mi in range(4): t_.e(o_load(i, mi))
        for i in range(NK):
            f = order[i]
            inlds = f >= NR
            wu = jit[i & 1] if inlds else res[f]
            if i == NK - (NK - NR - NL) and (i & 1) != ((NL) & 1):
                pass
            mf = []
            for mi in range(4):
                for nt in range(4):
                    d = vr((mi*4 + nt)*4)
                    mf.append(f"{MF} {d}, {U(wu, nt*4)}, {U(ring[i % D], mi*4)}, {'0' if i == 0 else d}")
            if o.bnomf: mf = ["s_nop 0"] * 16
            S = Sched(mf)
            if inlds: S.pre[0].append(WL(f"t{f}"))
            if inlds: S.pre[0].append(WV(f"W{f}"))
            for mi in range(4): S.pre[4*mi].append(WV(f"O{i}.{mi}"))
            if i + D < NK:
                S.post[0] += o_soff(i + D)
                for mi in range(4): S.post[4*mi + 3].append(o_load(i + D, mi))
            if i + 1 < NK and order[i + 1] >= NR and (i + 1) >= 2:
                fn = order[i + 1]
                rd = self.tr_reads(fn, jit[(i + 1) & 1])
                S.post[1].append(WV(f"W{fn}"))
                for k, x in enumerate(rd): S.post[1 + k].append(x)
            if inlds and i >= 2 and nxt < NK:
                d = self.wo_dma(nxt); nxt += 1
                ns = len(d) - 4
                S.post[9] += d[:ns]; S.post[10].append(d[ns]); S.post[12].append(d[ns+1]); S.post[13].append(d[ns+2]); S.post[14].append(d[ns+3])
            S.emit(t_)
        assert nxt == NK
        if o.b2x:
            t_.e(f"s_cmp_eq_u32 s{S_CNT}, 2")
            t_.e("s_cbranch_scc0 B_2XE")
            t_.e(f"s_memtime s[{S_ST+2}:{S_ST+3}]")
            t_.e(f"s_mov_b32 s{S_CNT}, 1")
            t_.e("s_branch B_2X")
            t_.lab("B_2XE")
        t_.many(self.stamp("main"))
        t0, t1, t2, t3, t4, L = 64, 65, 66, 67, 68, 69
        TRW = 70
        t_.e(f"v_and_b32 v{L}, 63, v{V_TID}")
        t_.e(f"v_and_b32 v{t0}, 15, v{L}")
        t_.e(f"v_lshrrev_b32 v{t1}, 4, v{L}")
        t_.e(f"v_xor_b32 v{t1}, v{t1}, v{t0}")
        t_.e(f"v_lshlrev_b32 v{t1}, 4, v{t1}")
        t_.e(f"v_lshlrev_b32 v{t0}, 8, v{t0}")
        t_.e(f"v_add_u32 v{t0}, s{S_RB}, v{t0}")
        for nt in range(4):
            t_.e(f"v_xor_b32 v{TRW+nt}, {nt*64}, v{t1}")
            t_.e(f"v_add_u32 v{TRW+nt}, v{TRW+nt}, v{t0}")
        t_.e("s_nop 7")
        for mi in range(4):
            for nt in range(4):
                t_.e(DS(f"ds_write_b128 v{TRW+nt}, {vr((mi*4+nt)*4)} offset:{mi*4096}", "rw"))
        t_.e(f"v_lshrrev_b32 v{t0}, 3, v{L}")
        t_.e(f"s_lshl_b32 s{S_T0}, s{S_W}, 4")
        t_.e(f"v_add_u32 v{t0}, s{S_T0}, v{t0}")
        t_.e(f"v_and_b32 v{t1}, 7, v{L}")
        t_.e(f"v_lshlrev_b32 v{t1}, 1, v{t1}")
        AD = 80
        for ps in range(2):
            if ps: t_.e(f"v_add_u32 v{t0}, 8, v{t0}")
            t_.e(f"v_and_b32 v{t2}, 15, v{t0}")
            t_.e(f"v_xor_b32 v{t3}, v{t1}, v{t2}")
            t_.e(f"v_lshlrev_b32 v{t3}, 4, v{t3}")
            t_.e(f"v_lshlrev_b32 v{t4}, 8, v{t0}")
            t_.e(f"v_add_u32 v{AD+ps*4}, v{t3}, v{t4}")
            t_.e(f"v_xor_b32 v{AD+ps*4+1}, 16, v{AD+ps*4}")
            t_.e(f"v_add_u32 v{AD+ps*4+2}, {2*RG}, v{AD+ps*4}")
            t_.e(f"v_add_u32 v{AD+ps*4+3}, {2*RG}, v{AD+ps*4+1}")
            t_.e(f"s_lshl_b32 s{S_T0}, s{S_MG}, 6")
            t_.e(f"v_add_u32 v{t4}, s{S_T0}, v{t0}")
            t_.e(f"v_mul_u32_u24 v{t4}, 1152, v{t4}")
            t_.e(f"v_lshlrev_b32 v{t2}, 3, v{t1}")
            t_.e(f"v_add_u32 v{88+ps}, v{t4}, v{t2}")
        t_.e(WL("rw"))
        t_.e("s_barrier")
        R = 96
        for ps in range(2):
            for wv in range(4):
                for ch in range(2):
                    a = AD + ps*4 + ch + (2 if wv >= 2 else 0)
                    off = (wv & 1) * RG
                    t_.e(DS(f"ds_read_b128 {vr(R + ps*32 + wv*8 + ch*4)}, v{a} offset:{off}", f"rr{ps}"))
        t_.e(f"s_lshl_b32 s{S_T1}, s{S_NG}, 7")
        for ps in range(2):
            t_.e(WL(f"rr{ps}"))
            B_ = R + ps*32
            for k in range(4):
                t_.e(f"v_pk_add_f32 {vr(B_+2*k,2)}, {vr(B_+2*k,2)}, {vr(B_+8+2*k,2)}")
                t_.e(f"v_pk_add_f32 {vr(B_+16+2*k,2)}, {vr(B_+16+2*k,2)}, {vr(B_+24+2*k,2)}")
            for k in range(4):
                t_.e(f"v_pk_add_f32 {vr(B_+2*k,2)}, {vr(B_+2*k,2)}, {vr(B_+16+2*k,2)}")
            for k in range(4):
                t_.e(f"v_cvt_pk_bf16_f32 v{72 + ps*4 + k}, v{B_+2*k}, v{B_+2*k+1}")
            t_.e(VM(f"buffer_store_dwordx4 {vr(72 + ps*4)}, v{88+ps}, {sr(S_OUT)}, s{S_T1} offen", "out"))
        t_.many(self.stamp("end"))

    def slowpath(self):
        a = self.t
        a.lab("A_SLOW")
        a.c("---- fallback: true row maximum, then redo the attention loop with it")
        a.lq, a.vq = [], []
        a.e("s_waitcnt vmcnt(0) lgkmcnt(0)")
        a.e("s_barrier")
        a.e(f"s_mov_b32 s{S_PASS}, 1")
        self.emit_kv_addr()
        for qt in range(7):
            a.e(f"v_mov_b32 v{V_NEGM + 4*qt}, 0xff800000")
        KA = V_V
        for ks in range(4):
            a.e(f"v_subrev_u32 v{KA+ks}, {PAIR(0)+16384}, v{V_KA+ks}")
        a.e(f"s_mov_b32 s{S_SOKV}, 0")
        a.lab("A_MAXLOOP")
        a.many([x.t if isinstance(x, VM) else x for x in self.kv_dma("K", 0, f"s{S_SOKV}", lds=0)])
        a.e("s_waitcnt vmcnt(0)")
        a.e("s_barrier")
        for kt in range(2):
            for ks in range(4):
                off = f" offset:{kt*4096}" if kt else ""
                a.e(f"ds_read_b128 {vr(V_K + (kt*4+ks)*4)}, v{KA+ks}{off}")
        a.e("s_waitcnt lgkmcnt(0)")
        for qt in range(7):
            for kt in range(2):
                for ks in range(4):
                    d = vr(V_S + kt * 4)
                    a.e(f"{MF} {d}, {vr(V_K + (kt*4+ks)*4)}, {ar(A_Q + (qt*4+ks)*4)}, {'0' if ks == 0 else d}")
            a.e("s_nop 15")
            m = V_NEGM + 4 * qt
            for i in range(4):
                a.e(f"v_max3_f32 v{m}, v{m}, v{V_S+2*i}, v{V_S+2*i+1}")
            a.e("s_nop 3")
        a.e("s_barrier")
        a.e(f"s_add_u32 s{S_SOKV}, s{S_SOKV}, 16384")
        a.e(f"s_cmp_lt_u32 s{S_SOKV}, 262144")
        a.e("s_cbranch_scc1 A_MAXLOOP")
        L, t, u = V_T0, V_T0 + 1, V_T0 + 2
        a.e(f"v_and_b32 v{L}, 63, v{V_TID}")
        a.e(f"v_lshlrev_b32 v{t}, 2, v{L}")
        a.e(f"s_mul_i32 s{S_T0}, s{S_W}, 1792")
        a.e(f"s_add_u32 s{S_T0}, s{S_T0}, {MXX}")
        a.e(f"v_add_u32 v{t}, s{S_T0}, v{t}")
        for qt in range(7):
            a.e(f"ds_write_b32 v{t}, v{V_NEGM + 4*qt} offset:{qt*256}")
        a.e("s_waitcnt lgkmcnt(0)")
        a.e("s_barrier")
        a.e(f"v_and_b32 v{u}, 15, v{L}")
        a.e(f"v_lshlrev_b32 v{u}, 2, v{u}")
        a.e(f"s_mul_i32 s{S_T0}, s{S_QH}, 3584")
        a.e(f"s_add_u32 s{S_T0}, s{S_T0}, {MXX}")
        a.e(f"v_add_u32 v{u}, s{S_T0}, v{u}")
        for qt in range(7):
            for i in range(8):
                off = (i >> 2) * 1792 + qt * 256 + (i & 3) * 64
                a.e(f"ds_read_b32 v{V_S+i}, v{u} offset:{off}")
            a.e("s_waitcnt lgkmcnt(0)")
            m = V_NEGM + 4 * qt
            a.e(f"v_max3_f32 v{m}, v{V_S}, v{V_S+1}, v{V_S+2}")
            a.e(f"v_max3_f32 v{m}, v{m}, v{V_S+3}, v{V_S+4}")
            a.e(f"v_max3_f32 v{m}, v{m}, v{V_S+5}, v{V_S+6}")
            a.e(f"v_max_f32 v{m}, v{m}, v{V_S+7}")
            a.e(f"v_sub_f32 v{m}, 0, v{m}")
            for i in range(1, 4):
                a.e(f"v_mov_b32 v{m+i}, v{m}")
        a.e("s_barrier")
        a.e(f"v_lshlrev_b32 v{t}, 4, v{L}")
        a.e(f"s_mul_i32 s{S_T0}, s{S_QH}, 28672")
        a.e(f"v_add_u32 v{V_QR}, s{S_T0}, v{t}")
        for ks in range(4):
            for qt in range(7):
                a.e(f"ds_write_b128 v{V_QR}, {ar(A_Q + (qt*4+ks)*4)} offset:{(ks*7+qt)*1024}")
        strip = lambda xs: [x.t if isinstance(x, VM) else x for x in xs]
        a.many(strip(self.kv_dma("K", 0, "0")))
        a.many(strip(self.kv_dma("V", 0, "0")))
        a.e(f"s_mov_b32 s{S_SOKV}, 16384")
        a.many(strip(self.kv_dma("K", 1, f"s{S_SOKV}")))
        a.many(strip(self.kv_dma("V", 1, f"s{S_SOKV}")))
        a.e(f"s_mov_b32 s{S_SOKV}, 32768")
        a.many(strip(self.kv_dma("K", 2, f"s{S_SOKV}")))
        a.many(strip(self.kv_dma("V", 2, f"s{S_SOKV}")))
        if self.o.fused: a.many(self.b_addr_v())
        if self.pf_on: a.e(f"v_mov_b32 v{V_PF}, 0x40000000")
        a.e(f"s_waitcnt vmcnt(16) lgkmcnt(0)")
        a.e("s_barrier")
        for kt in range(2):
            for ks in range(4):
                a.e(self.k_read(kt, ks, 0).t)
        a.e("s_branch A_ATT")


def main():
    import gen as G1
    ap = argparse.ArgumentParser()
    ap.add_argument("-o", default="cdna_kernels/" + NAME + ".s")
    ap.add_argument("--nt", type=int, default=0)
    ap.add_argument("--stamps", type=int, default=0)
    ap.add_argument("--dbgq", type=int, default=0)
    ap.add_argument("--bw", type=int, default=8)
    ap.add_argument("--brs", type=int, default=4)
    ap.add_argument("--only", default="")
    ap.add_argument("--rts", type=int, default=0)
    ap.add_argument("--osc1", type=int, default=0)
    ap.add_argument("--probe", default="")
    ap.add_argument("--fused", type=int, default=1)
    ap.add_argument("--bmap", type=int, default=0)
    ap.add_argument("--nr", type=int, default=16)
    ap.add_argument("--od", type=int, default=8)
    ap.add_argument("--npre", type=int, default=4)
    ap.add_argument("--opad", type=int, default=0)
    ap.add_argument("--bnomf", type=int, default=0)
    ap.add_argument("--bnold", type=int, default=0)
    ap.add_argument("--b2x", type=int, default=0)
    ap.add_argument("--olsc", type=int, default=1)
    ap.add_argument("--ctouch", type=int, default=0)
    ap.add_argument("--unroll", type=int, default=0)
    ap.add_argument("--xpol", default="")
    ap.add_argument("--wqpol", default="")
    ap.add_argument("--stsel", default="start,karg,k0,p0,p1,p8,p9,qx,pre,t11,t15,e1,e2,pub,wpf,poll,main,end")
    ap.add_argument("--qrot", default="", help="alpha,beta,shift: r = ((alpha*h' + beta*b') >> shift) mod 9")
    ap.add_argument("--brot", type=int, default=0)
    ap.add_argument("--pubmode", type=int, default=0)
    ap.add_argument("--wsm", type=int, default=0)
    ap.add_argument("--wdiag", type=int, default=0)
    ap.add_argument("--pubw", type=int, default=0)
    ap.add_argument("--pollw", type=int, default=0)
    ap.add_argument("--psleep", type=int, default=1)
    ap.add_argument("--pfq", type=int, default=0)
    ap.add_argument("--pfc", default="0,0,0,0,0,0,0,0,0,0")
    ap.add_argument("--pf0", type=int, default=0)
    ap.add_argument("--pfa", type=int, default=0)
    ap.add_argument("--pfpol", default="")
    ap.add_argument("--pfqpol", default="")
    ap.add_argument("--pfas", type=int, default=6)
    ap.add_argument("--pfan", type=int, default=11)
    ap.add_argument("--pfw", type=int, default=0)
    ap.add_argument("--pfwt", type=int, default=12)
    ap.add_argument("--pfwpol", default="")
    o = ap.parse_args()
    if o.xpol: o.xpol = " " + o.xpol.replace("+", " ")
    if o.wqpol: o.wqpol = " " + o.wqpol.replace("+", " ")
    if o.pfpol: o.pfpol = " " + o.pfpol
    if o.pfqpol: o.pfqpol = " " + o.pfqpol
    if o.pfwpol: o.pfwpol = " " + o.pfwpol
    ga = GenA(o); ta = ga.gen()
    if o.fused:
        hdr = G1.HDR.replace("Launch 1: one workgroup", "Phase 1: one workgroup").replace("Launch 2: out = O * wo.", "Phase 2 (same launch, after a counter hand-off): out = O * wo.")
        if o.probe:
            hdr += f"; @launch kernel={NAME}_kernel grid=(256,1,1) block=(256,1,1) lds=163840\n"
            hdr += "; @launch kernel=probe_kernel grid=(1,1,1) block=(64,1,1) lds=0\n"
        else:
            hdr += "; @launch grid=(256,1,1) block=(256,1,1) lds=163840\n"
        txt = hdr + '.amdgcn_target "amdgcn-amd-amdhsa--gfx950"\n.text\n' + G1.fix_hazards(ta) + "\n"
        if o.probe:
            txt += G1.gen_probe(o.probe) + "\n"
        txt += '.section .rodata,"a"\n.p2align 6\n' + G1.descriptor(NAME + "_kernel", 512, 256)
        if o.probe:
            txt += ".p2align 6\n" + G1.descriptor("probe_kernel", 32, 32)
        open(o.o, "w").write(txt)
        print("wrote", o.o, len(txt), "bytes; stamps", ga.nst)
        return
    gb = G1.GenB(o); tb = gb.gen()
    hdr = G1.HDR
    blds = max(o.bw * o.brs * 4096, o.bw * 16384)
    if o.only != "B":
        hdr += f"; @launch kernel={NAME}_kernel grid=(256,1,1) block=(256,1,1) lds=163840\n"
    if o.only != "A":
        hdr += f"; @launch kernel=oproj_kernel grid=(256,1,1) block=({o.bw*64},1,1) lds={blds}\n"
    if o.probe:
        hdr += "; @launch kernel=probe_kernel grid=(1,1,1) block=(64,1,1) lds=0\n"
    txt = hdr + '.amdgcn_target "amdgcn-amd-amdhsa--gfx950"\n.text\n' + G1.fix_hazards(ta) + "\n" + G1.fix_hazards(tb) + "\n"
    if o.probe:
        txt += G1.gen_probe(o.probe) + "\n"
    txt += '.section .rodata,"a"\n.p2align 6\n' + G1.descriptor(NAME + "_kernel", 512, 256)
    nvb = (gb.nv + 7) // 8 * 8
    txt += ".p2align 6\n" + G1.descriptor("oproj_kernel", nvb, (gb.nv + 3) // 4 * 4)
    if o.probe:
        txt += ".p2align 6\n" + G1.descriptor("probe_kernel", 32, 32)
    open(o.o, "w").write(txt)
    print("wrote", o.o, len(txt), "bytes; B vgprs", gb.nv, "stamps", ga.nst)

if __name__ == "__main__":
    main()
```

```python
import sys, struct, re, argparse
from collections import defaultdict
sys.path.insert(0, "tools")

NAME = "standalone__mha_block_cached__near_ridge"
MF = "v_mfma_f32_16x16x32_bf16"

def f32(x):
    return struct.unpack("<I", struct.pack("<f", x))[0]
def vr(b, n=4): return f"v[{b}:{b+n-1}]" if n > 1 else f"v{b}"
def ar(b, n=4): return f"a[{b}:{b+n-1}]" if n > 1 else f"a{b}"
def sr(b, n=4): return f"s[{b}:{b+n-1}]" if n > 1 else f"s{b}"

class DS:
    def __init__(s, t, tag): s.t, s.tag = t, tag
class VM:
    def __init__(s, t, tag): s.t, s.tag = t, tag
class WL:
    def __init__(s, *tags): s.tags = set(tags)
class WV:
    def __init__(s, *tags): s.tags = set(tags)
class WALL:
    def __init__(s, k): s.k = k

class Trace:
    def __init__(self):
        self.L = []
        self.lq = []
        self.vq = []
    def raw(self, s): self.L.append(s)
    def lab(self, s): self.L.append(s + ":")
    def c(self, s): self.L.append("    ; " + s)
    def e(self, x):
        if isinstance(x, str):
            self.L.append("    " + x)
        elif isinstance(x, DS):
            self.L.append("    " + x.t); self.lq.append(x.tag)
        elif isinstance(x, VM):
            self.L.append("    " + x.t); self.vq.append(x.tag)
        elif isinstance(x, WL):
            idx = max([i for i, t in enumerate(self.lq) if t in x.tags], default=-1)
            if idx >= 0:
                n = len(self.lq) - 1 - idx
                if n > 15:
                    n = 15
                self.L.append(f"    s_waitcnt lgkmcnt({n})")
                self.lq = self.lq[len(self.lq) - n:] if n else []
        elif isinstance(x, WV):
            idx = max([i for i, t in enumerate(self.vq) if t in x.tags], default=-1)
            if idx >= 0:
                n = len(self.vq) - 1 - idx
                if n > 63:
                    n = 63
                self.L.append(f"    s_waitcnt vmcnt({n})")
                self.vq = self.vq[len(self.vq) - n:] if n else []
        elif isinstance(x, WALL):
            w = []
            if 'v' in x.k: w.append("vmcnt(0)"); self.vq = []
            if 'l' in x.k: w.append("lgkmcnt(0)"); self.lq = []
            self.L.append("    s_waitcnt " + " ".join(w))
        else:
            raise TypeError(x)
    def many(self, xs):
        for x in xs: self.e(x)

class Sched:
    def __init__(self, mf):
        self.mf = mf
        self.pre = defaultdict(list)
        self.post = defaultdict(list)
    def emit(self, t):
        for g, m in enumerate(self.mf):
            t.many(self.pre[g])
            t.e(m)
            t.many(self.post[g])
        n = len(self.mf)
        for g in sorted(set(list(self.pre) + list(self.post))):
            if g >= n:
                t.many(self.pre[g]); t.many(self.post[g])

BUF = {0: 90112, 1: 45056, 2: 0}
def PAIR(n):
    return 32768 + ((3 - n) & 3) * 32768
QX = 0
RG = 40960
LOFF = 7 * 4096
FOFF = 7 * 4096 + 2048
MXX = 16384

V_OOWN = 0
V_K = 112
V_V = 144
V_S = 176
V_P = 192
V_NEGM = 200
V_KA = 228
V_VA = 232
V_OFFKV = 240
V_TID = 242
V_T0 = 243
V_OFFX = 144
V_OFFW = 151
V_XR = 156
V_WR = 160
V_QW = 253
V_QR = 254
V_QT = 176
V_WOF = 245
V_TR = 249
V_OO = [244, 253, 254, 255]
S_WO, S_OUT = 16, 20
S_MG, S_NG, S_SW, S_SO, S_L0, S_L1, S_RB, S_SWC, S_SOC = 57, 58, 59, 10, 11, 3, 100, 101, 42
S_ROT, S_RT = 54, 43
S_PF = 12
V_PF, V_PFD = 243, 255
A_Q = 0
A_OOTH = 112
A_L = 224
A_ONES = 252
S_X, S_WQ, S_K, S_V, S_O = 16, 20, 24, 28, 32
S_W, S_QH, S_KH = 36, 37, 38
S_W1K7 = 39
S_SC = 40
S_SOX, S_SOW = 42, 43
S_W4K = 44
S_B, S_H = 45, 46
S_CNT = 47
S_PASS = 48
S_T0, S_T1, S_T2, S_T3 = 49, 50, 51, 52
S_OB = 53
S_SOKV = 56
S_ST = 60


def o_reg(j, tp):
    if tp < 4:
        return vr(V_OOWN + (j * 4 + tp) * 4)
    return ar(A_OOTH + (j * 4 + tp - 4) * 4)


class GenA:
    def __init__(self, opt):
        self.o = opt
        self.t = Trace()
        self.nst = 0
        self.npf = 0
        self.pfc = [int(z) for z in opt.pfc.split(",")]
        assert len(self.pfc) == 10
        self.pf_on = (sum(self.pfc) > 0 or opt.pfa)
        self.QS = 131072 + opt.opad

    def stamp(self, name):
        if not self.o.stamps: return []
        sel = self.o.stsel.split(",")
        r = []
        for nm, ins in ((name, "s_memrealtime" if self.o.rts else "s_memtime"), (name + "@", "s_memrealtime")):
            if nm in sel:
                r.append(f"{ins} s[{S_ST + 2*self.nst}:{S_ST + 2*self.nst + 1}]")
                self.nst += 1
                assert self.nst <= 18
        return r

    def kvpol(self):
        return " nt" if self.o.nt else ""

    def emit_kv_addr(self, rd=True, dma=True):
        t_ = self.t
        L, l15, g, r4, c4, t, u = V_T0, V_T0+1, V_T0+2, V_T0+3, V_T0+4, V_T0+5, V_T0+6
        t_.e(f"v_and_b32 v{L}, 63, v{V_TID}")
        t_.e(f"v_and_b32 v{l15}, 15, v{L}")
        t_.e(f"v_lshrrev_b32 v{g}, 4, v{L}")
        if dma:
            t_.e(f"v_lshlrev_b32 v{t}, 1, v{g}")
            t_.e(f"v_xor_b32 v{t}, v{t}, v{l15}")
            t_.e(f"v_lshlrev_b32 v{t}, 4, v{t}")
            t_.e(f"v_lshlrev_b32 v{u}, 8, v{g}")
            t_.e(f"v_add_u32 v{u}, s{S_W4K}, v{u}")
            t_.e(f"v_add_u32 v{V_OFFKV}, v{t}, v{u}")
            t_.e(f"v_xor_b32 v{t}, 128, v{t}")
            t_.e(f"v_add_u32 v{V_OFFKV+1}, v{t}, v{u}")
        if rd:
            t_.e(f"v_bfe_u32 v{r4}, v{L}, 2, 2")
            t_.e(f"v_and_b32 v{c4}, 3, v{L}")
            t_.e(f"s_lshl_b32 s{S_T0}, s{S_KH}, 13")
            t_.e(f"s_add_u32 s{S_T1}, s{S_T0}, {PAIR(0) + 16384}")
            t_.e(f"v_and_b32 v{t}, 7, v{l15}")
            t_.e(f"v_lshlrev_b32 v{t}, 1, v{t}")
            t_.e(f"v_xor_b32 v{t}, v{t}, v{g}")
            t_.e(f"v_lshlrev_b32 v{t}, 4, v{t}")
            t_.e(f"v_lshlrev_b32 v{u}, 8, v{l15}")
            t_.e(f"v_add_u32 v{u}, s{S_T1}, v{u}")
            for ks in range(4):
                t_.e(f"v_xor_b32 v{V_KA+ks}, {ks*64}, v{t}")
                t_.e(f"v_add_u32 v{V_KA+ks}, v{V_KA+ks}, v{u}")
            t_.e(f"s_add_u32 s{S_T1}, s{S_T0}, {PAIR(0)}")
            t_.e(f"v_lshlrev_b32 v{u}, 2, v{g}")
            t_.e(f"v_add_u32 v{u}, v{u}, v{r4}")
            t_.e(f"v_and_b32 v{t}, 7, v{u}")
            t_.e(f"s_lshl_b32 s{S_T2}, s{S_KH}, 2")
            t_.e(f"v_xor_b32 v{t}, s{S_T2}, v{t}")
            t_.e(f"v_lshlrev_b32 v{t}, 5, v{t}")
            t_.e(f"v_lshlrev_b32 v{u}, 8, v{u}")
            t_.e(f"v_add_u32 v{u}, s{S_T1}, v{u}")
            t_.e(f"v_lshlrev_b32 v{c4}, 3, v{c4}")
            t_.e(f"v_add_u32 v{u}, v{u}, v{c4}")
            for tp in range(8):
                t_.e(f"v_xor_b32 v{V_VA+tp}, {tp*32}, v{t}")
                t_.e(f"v_add_u32 v{V_VA+tp}, v{V_VA+tp}, v{u}")

    def kv_dma(self, which, n, soff, lds=None):
        srd = S_K if which == "K" else S_V
        if lds is None:
            lds = PAIR(n) + (16384 if which == "K" else 0)
        r = [f"s_add_u32 m0, s{S_W4K}, {lds}"]
        for i in range(4):
            off = f" offset:{i*1024}" if i else ""
            r.append(VM(f"buffer_load_dwordx4 v{V_OFFKV + (i & 1)}, {sr(srd)}, {soff} offen{off}{self.kvpol()} lds", f"{which}{n}"))
        return r

    def kv_touch(self):
        self.npf += 1
        return [VM(f"buffer_load_dword v{V_PFD}, v{V_PF}, {sr(S_PF)}, 0 offen{self.o.pfpol}", "PF"),
                f"v_add_u32 v{V_PF}, 16384, v{V_PF}"]

    def x_dma(self, st):
        buf = BUF[st % 3]
        r = []
        if self.o.qrot:
            if st:
                r += [f"s_add_u32 s{S_SOX}, s{S_SOX}, 128", f"s_cmp_eq_u32 s{S_SOX}, 1152", f"s_cselect_b32 s{S_SOX}, 0, s{S_SOX}"]
        else:
            r.append(f"s_mov_b32 s{S_SOX}, {st*128}")
        r.append(f"s_add_u32 m0, s{S_W1K7}, {buf}")
        for i in range(7):
            if i == 4:
                r.append(f"s_add_u32 m0, s{S_W1K7}, {buf + 4096}")
            off = f" offset:{(i%4)*1024}" if i % 4 else ""
            r.append(VM(f"buffer_load_dwordx4 v{V_OFFX+i}, {sr(S_X)}, s{S_SOX} offen{off}{self.o.xpol} lds", f"X{st}"))
        if self.o.qrot:
            r.append(f"s_lshl_b32 s{S_SOW}, s{S_SOX}, 12")
        else:
            r.append(f"s_mov_b32 s{S_SOW}, {st*64*8192}")
        r.append(f"s_add_u32 m0, s{S_W4K}, {buf + 28672}")
        for i in range(4):
            off = f" offset:{i*1024}" if i else ""
            r.append(VM(f"buffer_load_dwordx4 v{V_OFFW+i}, {sr(S_WQ)}, s{S_SOW} offen{off}{self.o.wqpol} lds", f"X{st}"))
        return r

    def q_reads(self, st):
        buf = BUF[st % 3]
        sset = 1 if buf == 90112 else 0
        base = buf - (90112 if sset else 0)
        p = (st & 1) * 88
        r = []
        for s in range(2):
            for T in range(4):
                jj = T >> 1
                for hf in range(2):
                    off = base + 8192 * s + 1024 * hf + 8 * (T & 1)
                    r.append(DS(f"ds_read_b64_tr_b16 {ar(p + 56 + (s*4+T)*4 + 2*hf, 2)}, v{V_WR + sset*2 + jj} offset:{off}", f"R{st}"))
            for qt in range(7):
                off = base + qt * 2048
                r.append(DS(f"ds_read_b128 {ar(p + (s*7+qt)*4)}, v{V_XR + sset*2 + s} offset:{off}", f"R{st}"))
        return r

    def q_mf(self, st, s, T, qt, first):
        p = (st & 1) * 88
        d = vr((T * 7 + qt) * 4)
        c = "0" if (first and s == 0) else d
        return f"{MF} {d}, {ar(p + 56 + (s*4+T)*4)}, {ar(p + (s*7+qt)*4)}, {c}"

    def q_mfmas(self, st, first):
        return [self.q_mf(st, s, T, qt, first) for s in range(2) for T in range(4) for qt in range(7)]

    def k_read(self, kt, ks, n):
        off = f" offset:{kt*4096}" if kt else ""
        return DS(f"ds_read_b128 {vr(V_K + (kt*4+ks)*4)}, v{V_KA+ks}{off}", f"k{n}.{kt}")

    def v_read(self, tp, hf, n):
        off = f" offset:{hf*4096}" if hf else ""
        return DS(f"ds_read_b64_tr_b16 {vr(V_V + tp*4 + 2*hf, 2)}, v{V_VA+tp}{off}", f"v{n}.{tp}")

    def q_read(self, qt):
        return [DS(f"ds_read_b128 {ar(A_Q + (qt*4+ks)*4)}, v{V_QR} offset:{(ks*7+qt)*1024}", f"q{qt}") for ks in range(4)]

    def qk_mfmas(self, par, j2):
        r = []
        for kt in range(2):
            for ks in range(4):
                d = vr(V_S + par * 8 + kt * 4)
                c = vr(V_NEGM + j2 * 4) if ks == 0 else d
                r.append(f"{MF} {d}, {vr(V_K + (kt*4+ks)*4)}, {ar(A_Q + (j2*4+ks)*4)}, {c}")
        return r

    def pv_mfmas(self, par, j, first):
        r = []
        p = vr(V_P + par * 4)
        for tp in range(8):
            d = o_reg(j, tp)
            r.append(f"{MF} {d}, {vr(V_V + tp*4)}, {p}, {'0' if first else d}")
        d = ar(A_L + j * 4)
        r.append(f"{MF} {d}, {ar(A_ONES)}, {p}, {'0' if first else d}")
        return r

    def exps(self, par):
        return [f"v_exp_f32 v{V_S + par*8 + i}, v{V_S + par*8 + i}" for i in range(8)]

    def cvts(self, par):
        return [f"v_cvt_pk_bf16_f32 v{V_P + par*4 + i}, v{V_S + par*8 + 2*i}, v{V_S + par*8 + 2*i + 1}" for i in range(4)]

    def tile(self, n):
        t = self.t
        first = (n == 0)
        last = (n == 15)
        dl = (PAIR(n + 1) - PAIR(n)) & 0xffffffff
        vdma = self.kv_dma("V", n + 3, "0") if (n + 3 <= 15 and n >= 1) else None
        kdma = self.kv_dma("K", n + 4, "0") if n + 4 <= 15 else None
        adv = [f"v_add_u32 v{V_OFFKV}, 16384, v{V_OFFKV}", f"v_add_u32 v{V_OFFKV+1}, 16384, v{V_OFFKV+1}"]
        for j in range(7):
            par = (n + j) & 1
            mf = self.pv_mfmas(par, j, first)
            has_qk = not (last and j >= 5)
            if has_qk:
                mf = mf + self.qk_mfmas(par, (j + 2) % 7)
            S = Sched(mf)
            G, PRE = S.post, S.pre
            if not (last and j == 6):
                ex = self.exps(par ^ 1); cv = self.cvts(par ^ 1)
                if has_qk:
                    for i in range(8): G[2 * i].append(ex[i])
                    for i in range(4): G[4 * i + 3].append(cv[i])
                else:
                    for i in range(8): G[i // 2].append(ex[i])
                    G[2].append(cv[0]); G[3].append(cv[1]); G[4].append(cv[2]); G[5].append(cv[3])
            nn = n + 1
            if j == 0:
                PRE[0].append(WL(f"v{n}.0", f"v{n}.1", f"v{n}.2"))
                G[1] += [self.v_read(7, 0, n), self.v_read(7, 1, n)]
                PRE[3].append(WL(f"v{n}.3", f"v{n}.4", f"v{n}.5"))
                PRE[6].append(WL(f"v{n}.6", f"v{n}.7"))
                if vdma:
                    G[9] += [vdma[0]]
                    G[13] += [vdma[1]]
            if first and j <= 3:
                q = self.q_read(j + 3)
                G[5] += q[:2]; G[9] += q[2:]
            if first and j <= 4:
                PRE[9].append(WL(f"q{j+2}"))
            if j == 1:
                if vdma: G[5] += [vdma[2]]
                if not last:
                    G[9] += [f"v_add_u32 v{V_VA+0}, {dl}, v{V_VA+0}", f"v_add_u32 v{V_VA+1}, {dl}, v{V_VA+1}"] if not first else []
                    G[13] += [f"v_add_u32 v{V_VA+2}, {dl}, v{V_VA+2}", f"v_add_u32 v{V_VA+3}, {dl}, v{V_VA+3}"]
                    if first:
                        G[1] += [f"v_add_u32 v{V_VA+0}, {dl}, v{V_VA+0}", f"v_add_u32 v{V_VA+1}, {dl}, v{V_VA+1}"]
            if j == 2:
                if vdma: G[5] += [vdma[3]]
                if not last:
                    G[1] += [f"v_add_u32 v{V_VA+4}, {dl}, v{V_VA+4}", f"v_add_u32 v{V_VA+5}, {dl}, v{V_VA+5}"]
                    G[13] += [f"v_add_u32 v{V_VA+6}, {dl}, v{V_VA+6}", f"v_add_u32 v{V_VA+7}, {dl}, v{V_VA+7}"]
            if j == 3:
                if vdma: G[5] += [vdma[4]]
                if not last:
                    G[1] += [f"v_add_u32 v{V_KA+0}, {dl}, v{V_KA+0}", f"v_add_u32 v{V_KA+1}, {dl}, v{V_KA+1}"]
                    G[13] += [f"v_add_u32 v{V_KA+2}, {dl}, v{V_KA+2}", f"v_add_u32 v{V_KA+3}, {dl}, v{V_KA+3}"]
                if kdma and not first:
                    G[16] += adv
            if j == 4:
                if first:
                    G[5] += [WL("q6")]
                if not last:
                    G[5] += [WV(f"K{nn}", f"V{nn}")]
                else:
                    G[5] += [WL("ow0", "ow1", "ow2", "ow3")]
                G[7] += ["s_barrier"]
                if not last:
                    G[9] += [self.k_read(0, 0, nn)]
                    G[11] += [self.k_read(0, 1, nn)]
                    G[13] += [self.k_read(0, 2, nn), self.k_read(0, 3, nn)]
                    G[15] += [self.k_read(1, 0, nn)]
                    G[16] += [self.k_read(1, 1, nn), self.k_read(1, 2, nn)]
                if first:
                    k3 = self.kv_dma("K", 3, "0")
                    G[9] += [k3[0]]
                    self.k3 = k3
            if j == 5 and not last:
                G[1] += [self.k_read(1, 3, nn)]
                PRE[9].append(WL(f"k{nn}.0", f"k{nn}.1"))
                if first:
                    k3 = self.k3
                    G[1] += [k3[1]]; G[3] += [k3[2]]; G[5] += [k3[3]]; G[7] += [k3[4]]
                    v3 = self.kv_dma("V", 3, "0")
                    G[9] += [v3[0], v3[1]]; G[11] += [v3[2]]; G[13] += [v3[3]]; G[15] += [v3[4]]
                    G[16] += adv
                elif kdma:
                    G[0] += [kdma[0]]
                    G[1] += [kdma[1]]; G[5] += [kdma[2]]; G[9] += [kdma[3]]; G[13] += [kdma[4]]
            if j == self.o.pfas and self.o.pfa and n <= self.o.pfan:
                tc = self.kv_touch()
                G[14] += [tc[0]]; G[16] += [tc[1]]
            if self.o.pfw and n == self.o.pfwt and j in (4, 5, 6):
                w = self.wo_touch()
                if j == 4:
                    for i, x in enumerate(w[0]): G[9 + (i * 7) // len(w[0])].append(x)
                else:
                    tch = w[1] if j == 5 else w[2]
                    nv = sum(isinstance(x, VM) for x in tch)
                    gi = 2
                    for x in tch:
                        G[gi].append(x)
                        if isinstance(x, VM): gi += max(1, 14 // max(nv, 1))
            if j == 6 and not last:
                v = lambda a, b: self.v_read(a, b, nn)
                G[1] += [v(0, 0), v(0, 1)]
                G[3] += [v(1, 0)]
                G[5] += [v(1, 1), v(2, 0)]
                G[7] += [v(2, 1)]
                G[9] += [v(3, 0), v(3, 1)]
                G[11] += [v(4, 0)]
                G[13] += [v(4, 1), v(5, 0)]
                G[15] += [v(5, 1)]
                G[16] += [v(6, 0), v(6, 1)]
                if first:
                    PRE[0] += [kdma[0]]
                    G[0] += [kdma[1]]; G[4] += [kdma[2]]; G[8] += [kdma[3]]; G[12] += [kdma[4]]
            if last:
                if j == 1:
                    PRE[0] = ["s_barrier"] + PRE[0]
                    w = self.o_writes(0)
                    G[1] += [w[0]]; G[3] += [w[1]]; G[5] += [w[2]]; G[7] += [w[3]]; G[8] += [w[4]]
                if 1 <= j <= 4:
                    w = self.o_writes(j)
                    G[10] += [w[0]]; G[11] += [w[1]]; G[13] += [w[2], w[3]]; G[15] += [w[4]]
                if self.o.fused and j in (2, 3):
                    d = self.wo_dma(j - 2)
                    ns = len(d) - 4
                    G[0] += d[:ns]; G[1] += [d[ns]]; G[3] += [d[ns+1]]; G[5] += [d[ns+2]]; G[7] += [d[ns+3]]
                if j == 6:
                    w = self.o_writes(5)
                    G[1] += [w[0]]; G[3] += [w[1]]; G[4] += [w[2]]; G[6] += [w[3]]; G[7] += [w[4]]
                if j == 0:
                    PRE[0] = self.ox_addr() + PRE[0]
            t.c(f"tile {n} slot {j}")
            S.emit(t)
            t.many(self.stamp(f"s{n}_{j}"))

    def wo_touch(self):
        a = V_PF
        su = [f"v_and_b32 v{a}, 63, v{V_TID}", f"s_lshr_b32 s{S_T0}, s2, 3"]
        pol = self.o.pfwpol
        if self.o.bmap == 0:
            su += [f"s_lshl_b32 s{S_T0}, s{S_T0}, 2", f"s_add_u32 s{S_T0}, s{S_T0}, s{S_W}",
                   f"s_mul_i32 s{S_T0}, s{S_T0}, {32*1152}",
                   f"s_and_b32 s{S_T1}, s2, 1", f"s_lshl_b32 s{S_T1}, s{S_T1}, 9", f"s_add_u32 s{S_T0}, s{S_T0}, s{S_T1}",
                   f"v_cmp_gt_u32 vcc, 32, v{a}",
                   f"v_mul_u32_u24 v{a}, 1152, v{a}", f"v_add_u32 v{a}, s{S_T0}, v{a}",
                   f"v_mov_b32 v{V_PFD}, 0x40000000",
                   f"v_cndmask_b32 v{a}, v{V_PFD}, v{a}, vcc"]
            T = [VM(f"buffer_load_dword v{V_PFD}, v{a}, {sr(S_WO)}, 0 offen" + (f" offset:{i*128}" if i else "") + pol, "PW") for i in range(5)]
            return su, T[:3], T[3:]
        su += [f"s_mul_i32 s{S_T0}, s{S_T0}, 147456", f"s_mul_i32 s{S_T1}, s{S_W}, 36864", f"s_add_u32 s{S_T0}, s{S_T0}, s{S_T1}",
               f"v_lshlrev_b32 v{a}, 7, v{a}", f"v_add_u32 v{a}, s{S_T0}, v{a}"]
        T = []
        for i in range(5):
            T.append([VM(f"buffer_load_dword v{V_PFD}, v{a}, {sr(S_WO)}, 0 offen{pol}", "PW"), f"v_add_u32 v{a}, 8192, v{a}"])
        return su, T[0] + T[1] + T[2], T[3] + T[4]

    def ox_addr(self):
        r = []
        T = V_T0
        r.append(f"v_and_b32 v{T}, 63, v{V_TID}")
        r.append(f"v_lshlrev_b32 v{T+1}, 4, v{T}")
        r.append(f"v_lshlrev_b32 v{T}, 2, v{T}")
        r.append(f"s_xor_b32 s{S_T3}, s{S_W}, 1")
        r.append(f"s_mul_i32 s{S_T0}, s{S_T3}, {RG}")
        r.append(f"v_add_u32 v{V_KA}, s{S_T0}, v{T+1}")
        r.append(f"s_add_u32 s{S_T0}, s{S_T0}, {LOFF}")
        r.append(f"v_add_u32 v{V_KA+1}, s{S_T0}, v{T}")
        r.append(f"s_mul_i32 s{S_T0}, s{S_W}, {RG}")
        r.append(f"v_add_u32 v{V_KA+2}, s{S_T0}, v{T+1}")
        r.append(f"s_add_u32 s{S_T0}, s{S_T0}, {LOFF}")
        r.append(f"v_add_u32 v{V_KA+3}, s{S_T0}, v{T}")
        r.append(f"s_mul_i32 s{S_T0}, s{S_B}, 14")
        r.append(f"s_mul_i32 s{S_T1}, s{S_QH}, 7")
        r.append(f"s_add_u32 s{S_T0}, s{S_T0}, s{S_T1}")
        r.append(f"s_mul_i32 s{S_T0}, s{S_T0}, {self.QS}")
        r.append(f"s_lshl_b32 s{S_T1}, s{S_H}, 1")
        r.append(f"s_add_u32 s{S_T1}, s{S_T1}, s{S_KH}")
        r.append(f"s_lshl_b32 s{S_T1}, s{S_T1}, 11")
        r.append(f"s_add_u32 s{S_OB}, s{S_T0}, s{S_T1}")
        return r

    def o_writes(self, j):
        r = []
        for tpp in range(4):
            i = j * 4 + tpp
            r.append(DS(f"ds_write_b128 v{V_KA}, {ar(A_OOTH + i*4)} offset:{i*1024}", f"ow{j}"))
        r.append(DS(f"ds_write_b32 v{V_KA+1}, a{A_L + 4*j} offset:{j*256}", f"ow{j}"))
        return r

    def gen(self):
        t_ = self.t
        o = self.o
        kn = f"{NAME}_kernel"
        t_.raw(f".globl {kn}\n.p2align 8\n.type {kn},@function\n{kn}:")
        t_.e("s_cmp_ge_u32 s2, 256")
        t_.e("s_cbranch_scc1 A_END")
        t_.e("s_load_dwordx8 s[4:11], s[0:1], 0")
        t_.e("s_load_dwordx2 s[12:13], s[0:1], 56")
        t_.many(self.stamp("start"))
        if o.stamps:
            t_.e(f"s_memrealtime s[{S_ST+36}:{S_ST+37}]")
        if o.ctouch:
            t_.e("s_getpc_b64 s[14:15]")
            t_.lab("CT_PC")
            t_.e("s_lshr_b32 s3, s2, 3")
            t_.e("s_and_b32 s3, s3, 1")
            t_.e("s_lshl_b32 s3, s3, 15")
            t_.e("v_lshlrev_b32 v1, 7, v0")
            t_.e("v_add_u32 v1, s3, v1")
            t_.e("v_min_u32 v1, CT_END-CT_PC-4, v1")
            t_.e(VM(f"global_load_dword v{V_PFD}, v1, s[14:15]", "PF"))
        t_.e(f"v_mov_b32 v{V_TID}, v0")
        t_.e(f"v_lshrrev_b32 v1, 6, v0")
        t_.e("s_and_b32 s3, s2, 7")
        t_.e(f"s_lshr_b32 s{S_T0}, s2, 3")
        t_.e(f"v_readfirstlane_b32 s{S_W}, v1")
        t_.e(f"s_and_b32 s{S_T1}, s3, 1")
        t_.e(f"s_lshl_b32 s{S_T1}, s{S_T1}, 2")
        t_.e(f"s_and_b32 s{S_T2}, s{S_T0}, 3")
        t_.e(f"s_add_u32 s{S_B}, s{S_T1}, s{S_T2}")
        t_.e(f"s_lshr_b32 s{S_T1}, s3, 1")
        t_.e(f"s_lshl_b32 s{S_T1}, s{S_T1}, 3")
        t_.e(f"s_lshr_b32 s{S_T2}, s{S_T0}, 2")
        t_.e(f"s_add_u32 s{S_H}, s{S_T1}, s{S_T2}")
        t_.e(f"s_lshr_b32 s{S_QH}, s{S_W}, 1")
        t_.e(f"s_and_b32 s{S_KH}, s{S_W}, 1")
        t_.e(f"s_mul_i32 s{S_W1K7}, s{S_W}, 7168")
        t_.e(f"s_lshl_b32 s{S_W4K}, s{S_W}, 12")
        L, l15, g, r4, c4, t, u = V_T0, V_T0+1, V_T0+2, V_T0+3, V_T0+4, V_T0+5, V_T0+6
        t_.e(f"v_and_b32 v{L}, 63, v{V_TID}")
        t_.e(f"v_and_b32 v{l15}, 15, v{L}")
        t_.e(f"v_lshrrev_b32 v{g}, 4, v{L}")
        t_.e(f"v_lshrrev_b32 v{t}, 3, v{L}")
        t_.e(f"v_and_b32 v{r4}, 7, v{L}")
        t_.e(f"v_xor_b32 v{u}, v{g}, v{r4}")
        t_.e(f"v_lshlrev_b32 v{u}, 4, v{u}")
        t_.e(f"s_lshl_b32 s{S_T0}, s{S_KH}, 6")
        t_.e(f"v_xor_b32 v{u}, s{S_T0}, v{u}")
        t_.e(f"v_mul_u32_u24 v{t}, 1152, v{t}")
        t_.e(f"s_mul_i32 s{S_T1}, s{S_W}, {56*1152}")
        t_.e(f"v_add_u32 v{t}, s{S_T1}, v{t}")
        t_.e(f"v_xor_b32 v{c4}, 64, v{u}")
        t_.e(f"v_add_u32 v{V_OFFX}, v{u}, v{t}")
        t_.e(f"v_add_u32 v{c4}, v{c4}, v{t}")
        for i in range(1, 7):
            src = V_OFFX if (i & 1) == 0 else c4
            k = i * 9216 - (i % 4) * 1024
            t_.e(f"v_add_u32 v{V_OFFX+i}, {k}, v{src}")
        t_.e(f"v_lshlrev_b32 v{t}, 2, v{g}")
        t_.e(f"v_xor_b32 v{t}, v{t}, v{l15}")
        t_.e(f"v_lshlrev_b32 v{t}, 4, v{t}")
        t_.e(f"v_lshlrev_b32 v{u}, 13, v{g}")
        t_.e(f"s_lshl_b32 s{S_T1}, s{S_W}, 17")
        t_.e(f"v_add_u32 v{u}, s{S_T1}, v{u}")
        t_.e(f"v_add_u32 v{V_OFFW}, v{t}, v{u}")
        for i in range(1, 4):
            t_.e(f"v_add_u32 v{V_OFFW+i}, {i*(32768-1024)}, v{V_OFFW}")
        t_.e(f"s_mul_i32 s{S_T0}, s{S_B}, 258048")
        t_.e(f"s_lshl_b32 s{S_T1}, s{S_H}, 8")
        t_.e(f"s_mov_b32 s{S_X+2}, 258048")
        t_.e(f"s_mov_b32 s{S_X+3}, 0x00020000")
        t_.e(f"s_sub_u32 s{S_WQ+2}, {576*8192}, s{S_T1}")
        t_.e(f"s_mov_b32 s{S_WQ+3}, 0x00020000")
        if o.qrot:
            al, be, sh = [int(z) for z in o.qrot.split(",")]
            t_.e(f"s_lshr_b32 s{S_T0}, s2, 5")
            t_.e(f"s_mul_i32 s{S_T0}, s{S_T0}, {al}")
            t_.e(f"s_bfe_u32 s{S_T1}, s2, {(2 << 16) | 3}")
            t_.e(f"s_mul_i32 s{S_T1}, s{S_T1}, {be}")
            t_.e(f"s_add_u32 s{S_T0}, s{S_T0}, s{S_T1}")
            t_.e(f"s_lshr_b32 s{S_T0}, s{S_T0}, {sh}")
            for _ in range(((7 * al + 3 * be) >> sh) // 9):
                t_.e(f"s_sub_u32 s{S_T1}, s{S_T0}, 9")
                t_.e(f"s_cmp_ge_u32 s{S_T0}, 9")
                t_.e(f"s_cselect_b32 s{S_T0}, s{S_T1}, s{S_T0}")
            t_.e(f"s_lshl_b32 s{S_SOX}, s{S_T0}, 7")
            t_.e(f"s_mul_i32 s{S_T0}, s{S_B}, 258048")
            t_.e(f"s_lshl_b32 s{S_T1}, s{S_H}, 8")
        t_.e("s_waitcnt lgkmcnt(0)")
        t_.many(self.stamp("karg"))
        t_.e(f"s_add_u32 s{S_X}, s4, s{S_T0}")
        t_.e(f"s_addc_u32 s{S_X+1}, s5, 0")
        t_.e(f"s_add_u32 s{S_WQ}, s10, s{S_T1}")
        t_.e(f"s_addc_u32 s{S_WQ+1}, s11, 0")
        t_.many(self.x_dma(0))
        t_.many(self.stamp("x0"))
        t_.many(self.x_dma(1))
        t_.many(self.stamp("x1"))
        t_.e(f"s_lshl_b32 s{S_T0}, s{S_B}, 5")
        t_.e(f"s_add_u32 s{S_T0}, s{S_T0}, s{S_H}")
        t_.e(f"s_lshl_b32 s{S_T0}, s{S_T0}, 18")
        t_.e(f"s_add_u32 s{S_K}, s6, s{S_T0}")
        t_.e(f"s_addc_u32 s{S_K+1}, s7, 0")
        t_.e(f"s_mov_b32 s{S_K+2}, 262144")
        t_.e(f"s_mov_b32 s{S_K+3}, 0x00020000")
        t_.e(f"s_add_u32 s{S_V}, s8, s{S_T0}")
        t_.e(f"s_addc_u32 s{S_V+1}, s9, 0")
        t_.e(f"s_mov_b32 s{S_V+2}, 262144")
        t_.e(f"s_mov_b32 s{S_V+3}, 0x00020000")
        t_.e(f"s_mov_b32 s{S_O}, s12")
        t_.e(f"s_mov_b32 s{S_O+1}, s13")
        t_.e(f"s_mov_b32 s{S_O+2}, {112*self.QS}")
        t_.e(f"s_mov_b32 s{S_O+3}, 0x00020000")
        if o.fused:
            t_.e("s_load_dwordx4 s[4:7], s[0:1], 32")
            t_.e("s_load_dwordx2 s[8:9], s[0:1], 48")
        self.emit_kv_addr(rd=False, dma=True)
        t_.many(self.kv_dma("K", 0, "0"))
        t_.many(self.stamp("k0i"))
        if o.pfq:
            a0, a1 = 112, 113
            pl = V_T0
            t_.e(f"s_and_b32 s{S_T0}, s{S_H}, 7")
            t_.e(f"s_mul_i32 s{S_T0}, s{S_T0}, 32256")
            t_.e(f"s_lshl_b32 s{S_T1}, s{S_W}, 13")
            t_.e(f"s_add_u32 s{S_T0}, s{S_T0}, s{S_T1}")
            t_.e(f"v_lshlrev_b32 v{a0}, 7, v{pl}")
            t_.e(f"v_add_u32 v{a0}, s{S_T0}, v{a0}")
            t_.e(VM(f"buffer_load_dword v{V_PFD}, v{a0}, {sr(S_X)}, 0 offen{o.pfqpol}", "PF"))
            t_.e(f"s_and_b32 s{S_T0}, s{S_B}, 3")
            t_.e(f"s_mul_i32 s{S_T0}, s{S_T0}, 144")
            t_.e(f"s_mul_i32 s{S_T1}, s{S_W}, 36")
            t_.e(f"s_add_u32 s{S_T0}, s{S_T0}, s{S_T1}")
            t_.e(f"s_lshl_b32 s{S_T0}, s{S_T0}, 13")
            t_.e(f"v_lshrrev_b32 v{a0}, 1, v{pl}")
            t_.e(f"v_lshlrev_b32 v{a0}, 13, v{a0}")
            t_.e(f"v_and_b32 v{a1}, 1, v{pl}")
            t_.e(f"v_lshlrev_b32 v{a1}, 7, v{a1}")
            t_.e(f"v_add_u32 v{a0}, v{a0}, v{a1}")
            t_.e(f"v_add_u32 v{a0}, s{S_T0}, v{a0}")
            t_.e(VM(f"buffer_load_dword v{V_PFD}, v{a0}, {sr(S_WQ)}, 0 offen{o.pfqpol}", "PF"))
            t_.e(f"v_add_u32 v{a1}, {32*8192}, v{a0}")
            t_.e(f"v_mov_b32 v{a0}, 0x40000000")
            t_.e(f"v_cmp_gt_u32 vcc, 8, v{pl}")
            t_.e(f"v_cndmask_b32 v{a1}, v{a0}, v{a1}, vcc")
            t_.e(VM(f"buffer_load_dword v{V_PFD}, v{a1}, {sr(S_WQ)}, 0 offen{o.pfqpol}", "PF"))
        if self.pf_on:
            t_.e(f"s_lshr_b32 s{S_T0}, s{S_W}, 1")
            t_.e(f"s_cmp_eq_u32 s{S_T0}, 0")
            t_.e(f"s_cselect_b32 s{S_PF}, s{S_K}, s{S_V}")
            t_.e(f"s_cselect_b32 s{S_PF+1}, s{S_K+1}, s{S_V+1}")
            t_.e(f"s_and_b32 s{S_T0}, s{S_W}, 1")
            t_.e(f"s_lshl_b32 s{S_T0}, s{S_T0}, 13")
            t_.e(f"s_add_u32 s{S_PF}, s{S_PF}, s{S_T0}")
            t_.e(f"s_addc_u32 s{S_PF+1}, s{S_PF+1}, 0")
            t_.e(f"s_sub_u32 s{S_PF+2}, 262144, s{S_T0}")
            t_.e(f"s_mov_b32 s{S_PF+3}, 0x00020000")
            t_.e(f"v_lshlrev_b32 v112, 7, v{V_T0}")
            if o.pf0: t_.e(f"v_add_u32 v112, {o.pf0*16384}, v112")
            self.pfreg = 112
            for i in range(self.pfc[0]):
                t_.e(VM(f"buffer_load_dword v{V_PFD}, v112, {sr(S_PF)}, 0 offen{o.pfpol}", "PF"))
                t_.e(f"v_add_u32 v112, 16384, v112")
        t_.many(self.stamp("k0"))
        self.emit_kv_addr(rd=True, dma=False)
        sc = f32(1.4426950408889634 / (128 ** 0.5))
        t_.e(f"s_mov_b32 s{S_SC}, {hex(sc)}")
        t_.e(f"s_mov_b32 s{S_PASS}, 0")
        t_.e(f"v_bfe_u32 v{r4}, v{L}, 2, 2")
        t_.e(f"v_and_b32 v{c4}, 3, v{L}")
        t_.e(f"v_lshrrev_b32 v{t}, 1, v{l15}")
        t_.e(f"v_xor_b32 v{t}, v{t}, v{g}")
        t_.e(f"v_lshlrev_b32 v{t}, 4, v{t}")
        t_.e(f"v_lshlrev_b32 v{u}, 7, v{l15}")
        t_.e(f"s_mul_i32 s{S_T0}, s{S_QH}, {112*128}")
        t_.e(f"v_add_u32 v{u}, s{S_T0}, v{u}")
        t_.e(f"v_add_u32 v{V_XR}, v{t}, v{u}")
        t_.e(f"v_xor_b32 v{t}, 64, v{t}")
        t_.e(f"v_add_u32 v{V_XR+1}, v{t}, v{u}")
        t_.e(f"v_add_u32 v{V_XR+2}, 90112, v{V_XR}")
        t_.e(f"v_add_u32 v{V_XR+3}, 90112, v{V_XR+1}")
        t_.e(f"s_lshl_b32 s{S_T0}, s{S_KH}, 1")
        t_.e(f"v_xor_b32 v{t}, s{S_T0}, v{r4}")
        t_.e(f"v_lshlrev_b32 v{t}, 6, v{t}")
        t_.e(f"v_lshlrev_b32 v{u}, 3, v{g}")
        t_.e(f"v_add_u32 v{u}, v{u}, v{r4}")
        t_.e(f"v_lshlrev_b32 v{u}, 8, v{u}")
        t_.e(f"v_lshlrev_b32 v{c4}, 4, v{c4}")
        t_.e(f"v_add_u32 v{u}, v{u}, v{c4}")
        t_.e(f"v_add_u32 v{u}, 28672, v{u}")
        t_.e(f"v_add_u32 v{V_WR}, v{t}, v{u}")
        t_.e(f"v_xor_b32 v{t}, 64, v{t}")
        t_.e(f"v_add_u32 v{V_WR+1}, v{t}, v{u}")
        t_.e(f"v_add_u32 v{V_WR+2}, 90112, v{V_WR}")
        t_.e(f"v_add_u32 v{V_WR+3}, 90112, v{V_WR+1}")
        t_.e(f"v_lshlrev_b32 v{t}, 4, v{L}")
        t_.e(f"s_mul_i32 s{S_T0}, s{S_QH}, 28672")
        t_.e(f"v_add_u32 v{V_QR}, s{S_T0}, v{t}")
        t_.e(f"s_mul_i32 s{S_T1}, s{S_KH}, 14336")
        t_.e(f"v_add_u32 v{V_QW}, s{S_T1}, v{V_QR}")
        for i in range(28):
            t_.e(f"v_mov_b32 v{V_NEGM+i}, 0")
        t_.e(f"v_mov_b32 v{t}, 0x3f803f80")
        for i in range(4):
            t_.e(f"v_accvgpr_write_b32 a{A_ONES+i}, v{t}")
        if self.pf_on:
            t_.e(f"v_mov_b32 v{V_PF}, v112")
        for k in range(9):
            t_.c(f"---- Q-proj period {k}")
            t_.many(self.stamp(f"a{k}"))
            t_.e(WV(f"X{k}"))
            t_.many(self.stamp(f"w{k}"))
            if k: t_.e(WL(f"R{k-1}"))
            t_.e("s_barrier")
            t_.many(self.stamp(f"p{k}"))
            rd = self.q_reads(k)
            if k <= 6:
                dm = self.x_dma(k + 2)
            elif k == 7:
                dm = self.kv_dma("V", 0, "0") + [f"s_mov_b32 s{S_SOKV}, 16384"] + self.kv_dma("K", 1, f"s{S_SOKV}") + \
                     self.kv_dma("V", 1, f"s{S_SOKV}")
            else:
                dm = [f"s_mov_b32 s{S_SOKV}, 32768"] + self.kv_dma("K", 2, f"s{S_SOKV}") + self.kv_dma("V", 2, f"s{S_SOKV}")
            for i in range(self.pfc[k + 1]): dm = dm + self.kv_touch()
            if k == 0:
                t_.many(rd); t_.many(self.stamp("r0")); t_.many(dm)
                continue
            S = Sched(self.q_mfmas(k - 1, k == 1))
            pos = [g for g in range(56) if g % 5 != 2][:len(rd)]
            for p_, r_ in zip(pos, rd): S.post[p_].append(r_)
            nvm = sum(isinstance(x, VM) for x in dm)
            step = 56.0 / nvm
            i = 0
            pend = []
            for x in dm:
                if isinstance(x, VM):
                    gpos = int(i * step + 2 - (i * step + 2) % 1)
                    gpos = min(55, gpos)
                    if pend:
                        S.post[gpos - 1] += pend; pend = []
                    S.post[gpos].append(x); i += 1
                else:
                    pend.append(x)
            if pend: S.post[55] += pend
            if o.fused and k in (3, 4, 8):
                extra = {3: self.b_addr_s, 4: self.b_addr_v, 8: self.b_srd}[k]()
                for i, x in enumerate(extra): S.post[38 + (i * 17) // len(extra)].append(x)
            S.emit(t_)
        t_.c("---- Q-proj period 9 + finalisation")
        t_.e(WL("R8"))
        t_.e("s_barrier")
        t_.many(self.stamp("p9"))
        groups = [(jj, qt) for jj in range(2) for qt in range(7)]
        mf = []
        for (jj, qt) in groups:
            for s in range(2):
                for T in (2 * jj, 2 * jj + 1):
                    mf.append(self.q_mf(8, s, T, qt, False))
        S = Sched(mf)
        def fin(gi):
            jj, qt = groups[gi]
            tb = V_QT + (gi & 1) * 4
            r0 = ((2 * jj) * 7 + qt) * 4
            r1 = ((2 * jj + 1) * 7 + qt) * 4
            m0_ = [f"v_mul_f32 v{r0+i}, s{S_SC}, v{r0+i}" for i in range(4)]
            m1_ = [f"v_mul_f32 v{r1+i}, s{S_SC}, v{r1+i}" for i in range(4)]
            c_ = [f"v_cvt_pk_bf16_f32 v{tb}, v{r0}, v{r0+1}", f"v_cvt_pk_bf16_f32 v{tb+1}, v{r0+2}, v{r0+3}",
                  f"v_cvt_pk_bf16_f32 v{tb+2}, v{r1}, v{r1+1}", f"v_cvt_pk_bf16_f32 v{tb+3}, v{r1+2}, v{r1+3}"]
            w_ = DS(f"ds_write_b128 v{V_QW}, {vr(tb)} offset:{(jj*7+qt)*1024}", "qw")
            return m0_, m1_, c_, w_
        for gi in range(13):
            m0_, m1_, c_, w_ = fin(gi)
            b = 4 * (gi + 1) + 1
            S.post[b] += m0_; S.post[b + 1] += m1_; S.post[b + 2] += c_; S.post[b + 3] += [w_]
        kr = [self.k_read(kt, ks, 0) for kt in range(2) for ks in range(4)]
        for i, x in enumerate(kr): S.post[i].append(x)
        S.emit(t_)
        t_.e("s_nop 7")
        m0_, m1_, c_, w_ = fin(13)
        t_.many(m0_); t_.many(m1_); t_.many(c_); t_.e(w_)
        t_.e(WL("qw"))
        t_.e(WV("V0"))
        t_.e("s_barrier")
        t_.many(self.stamp("qx"))
        if o.dbgq:
            for qt in range(7): t_.many(self.q_read(qt))
            t_.e(WALL('l'))
            t_.e(f"s_lshl_b32 s{S_T0}, s2, 2")
            t_.e(f"s_add_u32 s{S_T0}, s{S_T0}, s{S_W}")
            t_.e(f"s_mul_i32 s{S_T0}, s{S_T0}, 28672")
            t_.e(f"s_add_u32 s{S_T0}, s{S_T0}, {32<<20}")
            t_.e(f"s_mov_b32 s{S_O+2}, {256<<20}")
            t_.e(f"v_and_b32 v{V_T0}, 63, v{V_TID}")
            t_.e(f"v_lshlrev_b32 v{V_T0}, 4, v{V_T0}")
            for i in range(28):
                t_.e(f"buffer_store_dwordx4 {ar(A_Q + i*4)}, v{V_T0}, {sr(S_O)}, s{S_T0} offen")
                t_.e(f"s_add_u32 s{S_T0}, s{S_T0}, 1024")
            t_.e("s_waitcnt vmcnt(0)")
            t_.e(f"s_mov_b32 s{S_O+2}, {112*self.QS}")
        t_.lab("A_ATT")
        t_.many(self.q_read(0)); t_.many(self.q_read(1))
        t_.e(f"v_add_u32 v{V_OFFKV}, {3*16384}, v{V_OFFKV}")
        t_.e(f"v_add_u32 v{V_OFFKV+1}, {3*16384}, v{V_OFFKV+1}")
        self.preamble(True)
        self.body()
        self.epilogue()
        t_.lab("CT_END")
        self.slowpath()
        t_.lab("A_END")
        t_.e("s_endpgm")
        return "\n".join(t_.L)

    def preamble(self, with_q):
        t_ = self.t
        vr_ = [self.v_read(tp, hf, 0) for tp in range(7) for hf in range(2)]
        t_.e(WL("k0.0", "k0.1", "q0"))
        S = Sched(self.qk_mfmas(0, 0))
        for i, x in enumerate(vr_): S.post[i // 2].append(x)
        if with_q:
            q2 = self.q_read(2)
            S.post[7] += q2
        S.emit(t_)
        t_.e(WL("q1"))
        m1 = self.qk_mfmas(1, 1)
        ex = self.exps(0); cv = self.cvts(0)
        S = Sched(m1)
        S.post[0] += ex[0:2]; S.post[1] += ex[2:4]; S.post[2] += ex[4:6]; S.post[3] += ex[6:8]
        S.post[4] += cv[0:2]; S.post[5] += cv[2:4]
        S.emit(t_)
        t_.many(self.stamp("pre"))

    def body(self):
        t_ = self.t
        texts = []
        start = len(t_.L)
        for n in range(4):
            self.tile(n)
            t_.many(self.stamp(f"t{n}"))
        i0 = len(t_.L)
        if self.o.unroll:
            for n in range(4, 12): self.tile(n)
            t_.many(self.stamp("t11"))
            for n in range(12, 16): self.tile(n)
            t_.many(self.stamp("t15"))
            return
        for n in range(4, 8): self.tile(n)
        i1 = len(t_.L)
        for n in range(8, 12): self.tile(n)
        i2 = len(t_.L)
        strip = lambda xs: [x for x in xs if not x.strip().startswith(";")]
        assert strip(t_.L[i0:i1]) == strip(t_.L[i1:i2]), "loop iterations differ"
        body = t_.L[i0:i1]
        t_.L = t_.L[:i0]
        t_.e(f"s_mov_b32 s{S_CNT}, 2")
        t_.lab("A_LOOP")
        t_.L += body
        t_.e(f"s_sub_u32 s{S_CNT}, s{S_CNT}, 1")
        t_.e(f"s_cmp_lg_u32 s{S_CNT}, 0")
        t_.e("s_cbranch_scc1 A_LOOP")
        t_.many(self.stamp("t11"))
        for n in range(12, 16):
            self.tile(n)
            t_.many(self.stamp(f"t{n}"))

    def fin_tile(self, qt, pb, tb, lt):
        r = []
        ob = V_OOWN + qt * 16
        r.append(f"v_accvgpr_read_b32 v{lt}, a{A_L + 4*qt}")
        r.append(f"v_add_f32 v{lt}, v{lt}, v{lt+1}")
        r.append(f"v_rcp_f32 v{lt}, v{lt}")
        for k in range(8):
            r.append(f"v_pk_add_f32 {vr(ob+2*k,2)}, {vr(ob+2*k,2)}, {vr(pb+2*k,2)}")
        for k in range(8):
            r.append(f"v_pk_mul_f32 {vr(ob+2*k,2)}, {vr(ob+2*k,2)}, {vr(lt,2)} op_sel:[0,0] op_sel_hi:[1,0]")
        for jj in range(2):
            s0 = ob + jj * 8
            for k in range(4):
                r.append(f"v_cvt_pk_bf16_f32 v{tb + jj*4 + k}, v{s0 + 2*k}, v{s0 + 2*k + 1}")
        pol = " sc1" if (self.o.osc1 or self.o.fused) else ""
        for jj in range(2):
            off = " offset:1024" if jj else ""
            r.append(VM(f"buffer_store_dwordx4 {vr(tb + jj*4)}, v{V_T0+1}, {sr(S_O)}, s{S_OB} offen{off}{pol}", "ost"))
        r.append(f"s_add_u32 s{S_OB}, s{S_OB}, {self.QS}")
        return r

    def p_reads(self, qt, pb, lt):
        r = []
        for tpp in range(4):
            i = qt * 4 + tpp
            r.append(DS(f"ds_read_b128 {vr(pb + tpp*4)}, v{V_KA+2} offset:{i*1024}", f"p{qt}"))
        r.append(DS(f"ds_read_b32 v{lt+1}, v{V_KA+3} offset:{qt*256}", f"p{qt}"))
        return r

    def epilogue(self):
        t_ = self.t
        o = self.o
        t_.c("---- epilogue")
        PB = [112, 128, 144, 160]
        LT = [V_NEGM + 16, V_NEGM + 18, V_NEGM + 20, V_NEGM + 22]
        TB = [V_NEGM, V_NEGM + 8]
        t_.many(self.p_reads(0, PB[0], LT[0]))
        t_.many(self.p_reads(1, PB[1], LT[1]))
        t_.e("s_nop 7")
        t_.many(self.o_writes(6))
        t_.many(self.p_reads(2, PB[2], LT[2]))
        t_.many(self.p_reads(3, PB[3], LT[3]))
        T = V_S
        lo, hi = f32(2.0 ** -24), f32(2.0 ** 30)
        t_.e(f"s_mov_b32 s{S_T0}, {hex(lo)}")
        t_.e(f"s_mov_b32 s{S_T1}, {hex(hi - lo)}")
        for qt in range(7):
            t_.e(f"v_accvgpr_read_b32 v{T+qt}, a{A_L + 4*qt}")
        t_.e(f"v_subrev_u32 v{T+8}, s{S_T0}, v{T}")
        for qt in range(1, 7):
            t_.e(f"v_subrev_u32 v{T+9}, s{S_T0}, v{T+qt}")
            t_.e(f"v_max_u32 v{T+8}, v{T+8}, v{T+9}")
        t_.e(f"v_cmp_lt_u32 vcc, s{S_T1}, v{T+8}")
        t_.e(f"s_lshl_b32 s{S_T3}, s{S_W}, 2")
        t_.e(f"s_add_u32 s{S_T3}, s{S_T3}, {FOFF}")
        t_.e(f"s_cmp_lg_u64 vcc, 0")
        t_.e(f"s_cselect_b32 s{S_T2}, 1, 0")
        t_.e(f"v_mov_b32 v{T+10}, s{S_T2}")
        t_.e(f"v_and_b32 v{T+11}, 3, v{V_TID}")
        t_.e(f"v_mul_u32_u24 v{T+11}, {RG}, v{T+11}")
        t_.e(f"v_add_u32 v{T+11}, s{S_T3}, v{T+11}")
        t_.e(DS(f"ds_write_b32 v{T+11}, v{T+10}", "fl"))
        for qt in range(4):
            t_.e(WL(f"p{qt}"))
            t_.many(self.fin_tile(qt, PB[qt], TB[qt & 1], LT[qt]))
            if o.fused: t_.many(self.wo_dma(2 + qt))
        t_.e(WL("fl", "ow4", "ow5", "ow6"))
        t_.e("s_barrier")
        t_.many(self.stamp("e1"))
        F = V_P + 4
        t_.e(f"s_mul_i32 s{S_T0}, s{S_W}, {RG}")
        t_.e(f"s_add_u32 s{S_T0}, s{S_T0}, {FOFF}")
        t_.e(f"v_mov_b32 v{T+11}, s{S_T0}")
        t_.e(DS(f"ds_read_b128 {vr(F)}, v{T+11}", "flr"))
        for qt in range(4, 7):
            t_.many(self.p_reads(qt, PB[qt - 4], LT[qt - 4]))
        t_.e(WL("flr"))
        t_.e(f"v_or_b32 v{F}, v{F}, v{F+1}")
        t_.e(f"v_or_b32 v{F+2}, v{F+2}, v{F+3}")
        t_.e(f"v_or_b32 v{F}, v{F}, v{F+2}")
        t_.e("s_nop 1")
        t_.e(f"v_readfirstlane_b32 s{S_T0}, v{F}")
        t_.e(f"s_xor_b32 s{S_T1}, s{S_PASS}, 1")
        t_.e(f"s_and_b32 s{S_T0}, s{S_T0}, s{S_T1}")
        t_.e(f"s_cmp_lg_u32 s{S_T0}, 0")
        t_.e("s_cbranch_scc1 A_SLOW")
        for qt in range(4, 7):
            t_.e(WL(f"p{qt}"))
            if o.fused:
                t_.many(self.wo_dma(2 + qt))
                if qt == 6: t_.many(self.wo_dma(9))
            t_.many(self.fin_tile(qt, PB[qt - 4], TB[qt & 1], LT[qt - 4]))
        t_.many(self.stamp("e2"))
        if o.fused: self.phase_b()
        if o.stamps:
            t_.e(f"s_memrealtime s[{S_ST+38}:{S_ST+39}]")
            t_.e("s_waitcnt lgkmcnt(0)")
            t_.e(f"s_cmp_lg_u32 s{S_W}, 0")
            t_.e("s_cbranch_scc1 A_END")
            ns = 20
            t_.e(f"s_mul_i32 s{S_T0}, s2, {ns*4*2}")
            t_.e(f"s_add_u32 s{S_T0}, s{S_T0}, {64<<20}")
            t_.e(f"s_mov_b32 s{S_O+2}, {256<<20}")
            t_.e(f"v_mov_b32 v{V_T0+1}, 0")
            for i in range(ns * 2):
                if 2 * self.nst <= i < 36:
                    t_.e(f"v_mov_b32 v{V_T0}, 0")
                else:
                    t_.e(f"v_mov_b32 v{V_T0}, s{S_ST+i}")
                t_.e(f"buffer_store_dword v{V_T0}, v{V_T0+1}, {sr(S_O)}, s{S_T0} offen offset:{i*4}")
                t_.e("s_nop 1")
        t_.e("s_endpgm")

    def b_addr_v(self):
        L, t0, t1, t2 = 184, 185, 186, 187
        r = []
        r.append(f"v_and_b32 v{L}, 63, v{V_TID}")
        r.append(f"v_lshrrev_b32 v{t0}, 3, v{L}")
        r.append(f"v_and_b32 v{t1}, 7, v{L}")
        r.append(f"v_bfe_u32 v{t2}, v{L}, 4, 2")
        r.append(f"v_lshlrev_b32 v{t2}, 1, v{t2}")
        r.append(f"v_xor_b32 v{t1}, v{t1}, v{t2}")
        r.append(f"v_lshlrev_b32 v{t1}, 4, v{t1}")
        r.append(f"v_mul_u32_u24 v{t0}, 1152, v{t0}")
        r.append(f"v_add_u32 v{V_WOF}, v{t0}, v{t1}")
        for i in range(1, 4):
            r.append(f"v_add_u32 v{V_WOF+i}, {i*(9216-1024)}, v{V_WOF}")
        r.append(f"v_lshrrev_b32 v{t0}, 2, v{L}")
        r.append(f"v_bfe_u32 v{t1}, v{L}, 3, 2")
        r.append(f"v_lshlrev_b32 v{t1}, 5, v{t1}")
        r.append(f"v_lshlrev_b32 v{t0}, 7, v{t0}")
        r.append(f"v_and_b32 v{t2}, 3, v{L}")
        r.append(f"v_lshlrev_b32 v{t2}, 3, v{t2}")
        r.append(f"v_add_u32 v{t0}, v{t0}, v{t2}")
        r.append(f"v_add_u32 v{t0}, s{S_RB}, v{t0}")
        for nt in range(4):
            r.append(f"v_xor_b32 v{V_TR+nt}, {nt*32}, v{t1}")
            r.append(f"v_add_u32 v{V_TR+nt}, v{V_TR+nt}, v{t0}")
        return r

    def b_addr_s(self):
        r = []
        r.append(f"s_mul_i32 s{S_RB}, s{S_W}, {RG}")
        r.append(f"s_and_b32 s{S_T0}, s2, 7")
        r.append(f"s_lshr_b32 s{S_T1}, s2, 3")
        r.append(f"s_and_b32 s{S_T2}, s{S_T0}, 1")
        r.append(f"s_lshl_b32 s{S_T2}, s{S_T2}, 5")
        r.append(f"s_add_u32 s{S_T1}, s{S_T1}, s{S_T2}")
        r.append(f"s_lshr_b32 s{S_T0}, s{S_T0}, 1")
        r.append(f"s_mul_i32 s{S_T0}, s{S_T0}, 7")
        if self.o.bmap == 0:
            r.append(f"s_mul_i32 s{S_NG}, s{S_T1}, 37")
            r.append(f"s_lshr_b32 s{S_NG}, s{S_NG}, 8")
            r.append(f"s_mul_i32 s{S_T2}, s{S_NG}, 7")
            r.append(f"s_sub_u32 s{S_T2}, s{S_T1}, s{S_T2}")
            r.append(f"s_add_u32 s{S_MG}, s{S_T2}, s{S_T0}")
        else:
            r.append(f"s_mul_i32 s{S_T2}, s{S_T1}, 57")
            r.append(f"s_lshr_b32 s{S_T2}, s{S_T2}, 9")
            r.append(f"s_add_u32 s{S_MG}, s{S_T2}, s{S_T0}")
            r.append(f"s_mul_i32 s{S_T2}, s{S_T2}, 9")
            r.append(f"s_sub_u32 s{S_NG}, s{S_T1}, s{S_T2}")
        r.append(f"s_cmp_ge_u32 s{S_T1}, 63")
        r.append(f"s_cselect_b32 s{S_NG}, 15, s{S_NG}")
        r.append(f"s_cselect_b32 s{S_MG}, 0, s{S_MG}")
        if self.o.brot:
            r.append(f"s_mul_i32 s{S_ROT}, s{S_NG}, {self.o.brot * 1024}")
        r.append(f"s_mul_i32 s{S_T0}, s{S_W}, {1024*1152}")
        r.append(f"s_lshl_b32 s{S_T1}, s{S_NG}, 7")
        r.append(f"s_add_u32 s{S_SW}, s{S_T0}, s{S_T1}")
        r.append(f"s_mul_i32 s{S_T0}, s{S_MG}, {4*self.QS}")
        r.append(f"s_lshl_b32 s{S_T1}, s{S_W}, 15")
        r.append(f"s_add_u32 s{S_SO}, s{S_T0}, s{S_T1}")
        r.append(f"s_lshl_b32 s{S_T0}, s{S_MG}, 2")
        r.append(f"s_mul_i32 s{S_T1}, s{S_T0}, 147")
        r.append(f"s_lshr_b32 s{S_T1}, s{S_T1}, 11")
        r.append(f"s_lshl_b32 s{S_L0}, s{S_T1}, 3")
        r.append(f"s_add_u32 s{S_T0}, s{S_T0}, 3")
        r.append(f"s_mul_i32 s{S_T1}, s{S_T0}, 147")
        r.append(f"s_lshr_b32 s{S_T1}, s{S_T1}, 11")
        r.append(f"s_lshl_b32 s{S_L1}, s{S_T1}, 3")
        return r

    def b_srd(self):
        r = []
        r.append(f"s_mov_b32 s{S_WO}, s4"); r.append(f"s_mov_b32 s{S_WO+1}, s5")
        r.append(f"s_mov_b32 s{S_WO+2}, {4096*1152}"); r.append(f"s_mov_b32 s{S_WO+3}, 0x00020000")
        r.append(f"s_mov_b32 s{S_OUT}, s6"); r.append(f"s_mov_b32 s{S_OUT+1}, s7")
        r.append(f"s_mov_b32 s{S_OUT+2}, {1792*1152}"); r.append(f"s_mov_b32 s{S_OUT+3}, 0x00020000")
        return r

    @staticmethod
    def slot(f): return (f + 8) % 10

    def btime(self, f):
        NR, NL = self.o.nr, 10
        order = list(range(NR, NR + NL)) + list(range(NR)) + list(range(NR + NL, 32))
        return order.index(f)

    def wo_dma(self, f):
        if self.o.brot:
            r = [f"s_add_u32 s{S_RT}, s{S_ROT}, {self.btime(f)*1024}", f"s_and_b32 s{S_RT}, s{S_RT}, 0x7fff",
                 f"s_mul_i32 s{S_RT}, s{S_RT}, 36", f"s_add_u32 s{S_SWC}, s{S_SW}, s{S_RT}",
                 f"s_add_u32 m0, s{S_RB}, {self.slot(f)*4096}"]
            for i in range(4):
                off = f" offset:{i*1024}" if i else ""
                r.append(VM(f"buffer_load_dwordx4 v{V_WOF+i}, {sr(S_WO)}, s{S_SWC} offen{off} lds", f"W{f}"))
            return r
        fa = f % self.o.wsm if self.o.wsm else f
        r = [f"s_add_u32 s{S_SWC}, s{S_SW}, {fa*32*1152}", f"s_add_u32 m0, s{S_RB}, {self.slot(f)*4096}"]
        for i in range(4):
            off = f" offset:{i*1024}" if i else ""
            r.append(VM(f"buffer_load_dwordx4 v{V_WOF+i}, {sr(S_WO)}, s{S_SWC} offen{off} lds", f"W{f}"))
        return r

    def tr_reads(self, f, unit):
        k, b = unit
        r = []
        for nt in range(4):
            for hf in range(2):
                r.append(DS(f"ds_read_b64_tr_b16 {k}[{b + nt*4 + 2*hf}:{b + nt*4 + 2*hf + 1}], v{V_TR+nt} offset:{self.slot(f)*4096 + hf*2048}", f"t{f}"))
        return r

    def phase_b(self):
        t_, o = self.t, self.o
        NR, D, NL = o.nr, o.od, 10
        units = [("a", 16*i) for i in range(16)] + [("v", 64 + 16*i) for i in range(10)]
        assert NR + 2 + D <= len(units)
        res = units[:NR]; jit = units[-(D + 2):-D]; ring = units[-D:]
        U = lambda u, off: f"{u[0]}[{u[1]+off}:{u[1]+off+3}]"
        NK = 32
        order = list(range(NR, NR + NL)) + list(range(NR)) + list(range(NR + NL, NK))
        t_.c("---- out-projection: weight prefetch + publish")
        t_.e(WV("PW"))
        for mi in range(1, 4):
            t_.e(f"v_add_u32 v{V_OO[mi]}, {mi*self.QS}, v{V_OO[0]}")
        def publish():
            t_.e(WV("ost"))
            t_.e("s_barrier")
            t_.e(f"s_cmp_lg_u32 s{S_W}, {o.pubw}")
            t_.e("s_cbranch_scc1 B_PUB")
            if o.pubmode == 0:
                t_.e(f"s_lshl_b32 s{S_T0}, s{S_B}, 5")
                t_.e(f"v_mov_b32 v{V_S}, s{S_T0}")
                t_.e(f"v_mov_b32 v{V_S+1}, 1")
                t_.e("s_mov_b64 exec, 1")
                t_.e(f"global_atomic_add v{V_S}, v{V_S+1}, s[8:9]")
                t_.e("s_mov_b64 exec, -1")
            else:
                t_.e(f"s_lshl_b32 s{S_T0}, s{S_B}, 5")
                t_.e(f"s_add_u32 s{S_T0}, s{S_T0}, s{S_H}")
                t_.e(f"v_mov_b32 v{V_S}, s{S_T0}")
                t_.e(f"v_mov_b32 v{V_S+1}, 1")
                t_.e("s_mov_b64 exec, 1")
                t_.e(f"global_store_byte v{V_S}, v{V_S+1}, s[8:9] sc1")
                t_.e("s_mov_b64 exec, -1")
            t_.lab("B_PUB")
            t_.many(self.stamp("pub"))
            t_.e(f"s_cmp_eq_u32 s{S_NG}, 15")
            t_.e("s_cbranch_scc1 A_END")
        published = False
        nxt = NL
        for f in range(NR):
            if f == o.npre and not published:
                publish(); published = True
            t_.e(WV(f"W{f}"))
            t_.many(self.stamp(f"wf{f}"))
            if not (o.wdiag & 1): t_.many(self.tr_reads(f, res[f]))
            if f >= 1:
                t_.e(WL(f"t{f-1}"))
                if nxt < NK:
                    if not (o.wdiag & 2): t_.many(self.wo_dma(nxt))
                    nxt += 1
        if not published:
            publish(); published = True
        t_.e(WL(f"t{NR-1}"))
        if nxt < NK: t_.many(self.wo_dma(nxt)); nxt += 1
        for i in range(2):
            f = order[i]
            t_.e(WV(f"W{f}"))
            t_.many(self.tr_reads(f, jit[i]))
        for i in range(2):
            t_.e(WL(f"t{order[i]}"))
            if nxt < NK: t_.many(self.wo_dma(nxt)); nxt += 1
        t_.many(self.stamp("wpf"))
        P, Q = V_S, V_S + 1
        t_.e(f"s_cmp_lg_u32 s{S_W}, {o.pollw}")
        t_.e("s_cbranch_scc1 B_GO")
        if o.pubmode == 0:
            t_.e(f"v_and_b32 v{Q}, 63, v{V_TID}")
            t_.e(f"v_lshlrev_b32 v{Q}, 2, v{Q}")
            t_.e(f"s_mov_b32 s{S_CNT}, 200000")
            t_.lab("B_POLL")
            t_.e(f"global_load_dword v{P}, v{Q}, s[8:9] sc1")
            t_.e("s_waitcnt vmcnt(0)")
            t_.e(f"v_readlane_b32 s{S_T0}, v{P}, s{S_L0}")
            t_.e(f"v_readlane_b32 s{S_T1}, v{P}, s{S_L1}")
            t_.e(f"s_min_u32 s{S_T0}, s{S_T0}, s{S_T1}")
            t_.e(f"s_cmp_ge_u32 s{S_T0}, 32")
            t_.e("s_cbranch_scc1 B_GO")
        else:
            t_.e(f"v_and_b32 v{Q}, 63, v{V_TID}")
            t_.e(f"v_mov_b32 v{P}, s{S_L0}")
            t_.e(f"v_mov_b32 v{P+2}, s{S_L1}")
            t_.e(f"v_cmp_gt_u32 vcc, 8, v{Q}")
            t_.e(f"v_cndmask_b32 v{P}, v{P+2}, v{P}, vcc")
            t_.e(f"v_and_b32 v{Q}, 7, v{Q}")
            t_.e(f"v_add_u32 v{Q}, v{Q}, v{P}")
            t_.e(f"v_lshlrev_b32 v{Q}, 2, v{Q}")
            t_.e(f"s_mov_b32 s{S_CNT}, 200000")
            t_.e(f"s_mov_b32 s{S_T1}, 0x01010101")
            t_.e("s_mov_b64 exec, 0xffff")
            t_.lab("B_POLL")
            t_.e(f"global_load_dword v{P}, v{Q}, s[8:9] sc1")
            t_.e("s_waitcnt vmcnt(0)")
            t_.e(f"v_cmp_ne_u32 vcc, s{S_T1}, v{P}")
            t_.e("s_nop 4")
            t_.e("s_cbranch_vccz B_PD")
        t_.e(f"s_sub_u32 s{S_CNT}, s{S_CNT}, 1")
        t_.e(f"s_cmp_eq_u32 s{S_CNT}, 0")
        t_.e(f"s_cbranch_scc1 {'B_PD' if o.pubmode else 'B_GO'}")
        t_.e(f"s_sleep {o.psleep}")
        t_.e("s_branch B_POLL")
        if o.pubmode:
            t_.lab("B_PD")
            t_.e("s_mov_b64 exec, -1")
        t_.lab("B_GO")
        t_.e("s_barrier")
        t_.many(self.stamp("poll"))
        def o_soff(i):
            if o.brot:
                return [f"s_add_u32 s{S_RT}, s{S_ROT}, {i*1024}", f"s_and_b32 s{S_RT}, s{S_RT}, 0x7fff", f"s_add_u32 s{S_SOC}, s{S_SO}, s{S_RT}"]
            return [f"s_add_u32 s{S_SOC}, s{S_SO}, {order[i]*1024}"]
        def o_load(i, mi):
            if o.bnold and i >= D: return "s_nop 0"
            return VM(f"buffer_load_dwordx4 {U(ring[i % D], mi*4)}, v{V_OO[mi]}, {sr(S_O)}, s{S_SOC} offen{' sc1' if o.olsc else ''}", f"O{i}.{mi}")
        if o.b2x:
            t_.e(f"s_mov_b32 s{S_CNT}, 2")
            t_.lab("B_2X")
        for i in range(D):
            t_.many(o_soff(i))
            for mi in range(4): t_.e(o_load(i, mi))
        for i in range(NK):
            f = order[i]
            inlds = f >= NR
            wu = jit[i & 1] if inlds else res[f]
            if i == NK - (NK - NR - NL) and (i & 1) != ((NL) & 1):
                pass
            mf = []
            for mi in range(4):
                for nt in range(4):
                    d = vr((mi*4 + nt)*4)
                    mf.append(f"{MF} {d}, {U(wu, nt*4)}, {U(ring[i % D], mi*4)}, {'0' if i == 0 else d}")
            if o.bnomf: mf = ["s_nop 0"] * 16
            S = Sched(mf)
            if inlds: S.pre[0].append(WL(f"t{f}"))
            if inlds: S.pre[0].append(WV(f"W{f}"))
            for mi in range(4): S.pre[4*mi].append(WV(f"O{i}.{mi}"))
            if i + D < NK:
                S.post[0] += o_soff(i + D)
                for mi in range(4): S.post[4*mi + 3].append(o_load(i + D, mi))
            if i + 1 < NK and order[i + 1] >= NR and (i + 1) >= 2:
                fn = order[i + 1]
                rd = self.tr_reads(fn, jit[(i + 1) & 1])
                S.post[1].append(WV(f"W{fn}"))
                for k, x in enumerate(rd): S.post[1 + k].append(x)
            if inlds and i >= 2 and nxt < NK:
                d = self.wo_dma(nxt); nxt += 1
                ns = len(d) - 4
                S.post[9] += d[:ns]; S.post[10].append(d[ns]); S.post[12].append(d[ns+1]); S.post[13].append(d[ns+2]); S.post[14].append(d[ns+3])
            S.emit(t_)
        assert nxt == NK
        if o.b2x:
            t_.e(f"s_cmp_eq_u32 s{S_CNT}, 2")
            t_.e("s_cbranch_scc0 B_2XE")
            t_.e(f"s_memtime s[{S_ST+2}:{S_ST+3}]")
            t_.e(f"s_mov_b32 s{S_CNT}, 1")
            t_.e("s_branch B_2X")
            t_.lab("B_2XE")
        t_.many(self.stamp("main"))
        t0, t1, t2, t3, t4, L = 64, 65, 66, 67, 68, 69
        TRW = 70
        t_.e(f"v_and_b32 v{L}, 63, v{V_TID}")
        t_.e(f"v_and_b32 v{t0}, 15, v{L}")
        t_.e(f"v_lshrrev_b32 v{t1}, 4, v{L}")
        t_.e(f"v_xor_b32 v{t1}, v{t1}, v{t0}")
        t_.e(f"v_lshlrev_b32 v{t1}, 4, v{t1}")
        t_.e(f"v_lshlrev_b32 v{t0}, 8, v{t0}")
        t_.e(f"v_add_u32 v{t0}, s{S_RB}, v{t0}")
        for nt in range(4):
            t_.e(f"v_xor_b32 v{TRW+nt}, {nt*64}, v{t1}")
            t_.e(f"v_add_u32 v{TRW+nt}, v{TRW+nt}, v{t0}")
        t_.e("s_nop 7")
        for mi in range(4):
            for nt in range(4):
                t_.e(DS(f"ds_write_b128 v{TRW+nt}, {vr((mi*4+nt)*4)} offset:{mi*4096}", "rw"))
        t_.e(f"v_lshrrev_b32 v{t0}, 3, v{L}")
        t_.e(f"s_lshl_b32 s{S_T0}, s{S_W}, 4")
        t_.e(f"v_add_u32 v{t0}, s{S_T0}, v{t0}")
        t_.e(f"v_and_b32 v{t1}, 7, v{L}")
        t_.e(f"v_lshlrev_b32 v{t1}, 1, v{t1}")
        AD = 80
        for ps in range(2):
            if ps: t_.e(f"v_add_u32 v{t0}, 8, v{t0}")
            t_.e(f"v_and_b32 v{t2}, 15, v{t0}")
            t_.e(f"v_xor_b32 v{t3}, v{t1}, v{t2}")
            t_.e(f"v_lshlrev_b32 v{t3}, 4, v{t3}")
            t_.e(f"v_lshlrev_b32 v{t4}, 8, v{t0}")
            t_.e(f"v_add_u32 v{AD+ps*4}, v{t3}, v{t4}")
            t_.e(f"v_xor_b32 v{AD+ps*4+1}, 16, v{AD+ps*4}")
            t_.e(f"v_add_u32 v{AD+ps*4+2}, {2*RG}, v{AD+ps*4}")
            t_.e(f"v_add_u32 v{AD+ps*4+3}, {2*RG}, v{AD+ps*4+1}")
            t_.e(f"s_lshl_b32 s{S_T0}, s{S_MG}, 6")
            t_.e(f"v_add_u32 v{t4}, s{S_T0}, v{t0}")
            t_.e(f"v_mul_u32_u24 v{t4}, 1152, v{t4}")
            t_.e(f"v_lshlrev_b32 v{t2}, 3, v{t1}")
            t_.e(f"v_add_u32 v{88+ps}, v{t4}, v{t2}")
        t_.e(WL("rw"))
        t_.e("s_barrier")
        R = 96
        for ps in range(2):
            for wv in range(4):
                for ch in range(2):
                    a = AD + ps*4 + ch + (2 if wv >= 2 else 0)
                    off = (wv & 1) * RG
                    t_.e(DS(f"ds_read_b128 {vr(R + ps*32 + wv*8 + ch*4)}, v{a} offset:{off}", f"rr{ps}"))
        t_.e(f"s_lshl_b32 s{S_T1}, s{S_NG}, 7")
        for ps in range(2):
            t_.e(WL(f"rr{ps}"))
            B_ = R + ps*32
            for k in range(4):
                t_.e(f"v_pk_add_f32 {vr(B_+2*k,2)}, {vr(B_+2*k,2)}, {vr(B_+8+2*k,2)}")
                t_.e(f"v_pk_add_f32 {vr(B_+16+2*k,2)}, {vr(B_+16+2*k,2)}, {vr(B_+24+2*k,2)}")
            for k in range(4):
                t_.e(f"v_pk_add_f32 {vr(B_+2*k,2)}, {vr(B_+2*k,2)}, {vr(B_+16+2*k,2)}")
            for k in range(4):
                t_.e(f"v_cvt_pk_bf16_f32 v{72 + ps*4 + k}, v{B_+2*k}, v{B_+2*k+1}")
            t_.e(VM(f"buffer_store_dwordx4 {vr(72 + ps*4)}, v{88+ps}, {sr(S_OUT)}, s{S_T1} offen", "out"))
        t_.many(self.stamp("end"))

    def slowpath(self):
        a = self.t
        a.lab("A_SLOW")
        a.c("---- fallback: true row maximum, then redo the attention loop with it")
        a.lq, a.vq = [], []
        a.e("s_waitcnt vmcnt(0) lgkmcnt(0)")
        a.e("s_barrier")
        a.e(f"s_mov_b32 s{S_PASS}, 1")
        self.emit_kv_addr()
        for qt in range(7):
            a.e(f"v_mov_b32 v{V_NEGM + 4*qt}, 0xff800000")
        KA = V_V
        for ks in range(4):
            a.e(f"v_subrev_u32 v{KA+ks}, {PAIR(0)+16384}, v{V_KA+ks}")
        a.e(f"s_mov_b32 s{S_SOKV}, 0")
        a.lab("A_MAXLOOP")
        a.many([x.t if isinstance(x, VM) else x for x in self.kv_dma("K", 0, f"s{S_SOKV}", lds=0)])
        a.e("s_waitcnt vmcnt(0)")
        a.e("s_barrier")
        for kt in range(2):
            for ks in range(4):
                off = f" offset:{kt*4096}" if kt else ""
                a.e(f"ds_read_b128 {vr(V_K + (kt*4+ks)*4)}, v{KA+ks}{off}")
        a.e("s_waitcnt lgkmcnt(0)")
        for qt in range(7):
            for kt in range(2):
                for ks in range(4):
                    d = vr(V_S + kt * 4)
                    a.e(f"{MF} {d}, {vr(V_K + (kt*4+ks)*4)}, {ar(A_Q + (qt*4+ks)*4)}, {'0' if ks == 0 else d}")
            a.e("s_nop 15")
            m = V_NEGM + 4 * qt
            for i in range(4):
                a.e(f"v_max3_f32 v{m}, v{m}, v{V_S+2*i}, v{V_S+2*i+1}")
            a.e("s_nop 3")
        a.e("s_barrier")
        a.e(f"s_add_u32 s{S_SOKV}, s{S_SOKV}, 16384")
        a.e(f"s_cmp_lt_u32 s{S_SOKV}, 262144")
        a.e("s_cbranch_scc1 A_MAXLOOP")
        L, t, u = V_T0, V_T0 + 1, V_T0 + 2
        a.e(f"v_and_b32 v{L}, 63, v{V_TID}")
        a.e(f"v_lshlrev_b32 v{t}, 2, v{L}")
        a.e(f"s_mul_i32 s{S_T0}, s{S_W}, 1792")
        a.e(f"s_add_u32 s{S_T0}, s{S_T0}, {MXX}")
        a.e(f"v_add_u32 v{t}, s{S_T0}, v{t}")
        for qt in range(7):
            a.e(f"ds_write_b32 v{t}, v{V_NEGM + 4*qt} offset:{qt*256}")
        a.e("s_waitcnt lgkmcnt(0)")
        a.e("s_barrier")
        a.e(f"v_and_b32 v{u}, 15, v{L}")
        a.e(f"v_lshlrev_b32 v{u}, 2, v{u}")
        a.e(f"s_mul_i32 s{S_T0}, s{S_QH}, 3584")
        a.e(f"s_add_u32 s{S_T0}, s{S_T0}, {MXX}")
        a.e(f"v_add_u32 v{u}, s{S_T0}, v{u}")
        for qt in range(7):
            for i in range(8):
                off = (i >> 2) * 1792 + qt * 256 + (i & 3) * 64
                a.e(f"ds_read_b32 v{V_S+i}, v{u} offset:{off}")
            a.e("s_waitcnt lgkmcnt(0)")
            m = V_NEGM + 4 * qt
            a.e(f"v_max3_f32 v{m}, v{V_S}, v{V_S+1}, v{V_S+2}")
            a.e(f"v_max3_f32 v{m}, v{m}, v{V_S+3}, v{V_S+4}")
            a.e(f"v_max3_f32 v{m}, v{m}, v{V_S+5}, v{V_S+6}")
            a.e(f"v_max_f32 v{m}, v{m}, v{V_S+7}")
            a.e(f"v_sub_f32 v{m}, 0, v{m}")
            for i in range(1, 4):
                a.e(f"v_mov_b32 v{m+i}, v{m}")
        a.e("s_barrier")
        a.e(f"v_lshlrev_b32 v{t}, 4, v{L}")
        a.e(f"s_mul_i32 s{S_T0}, s{S_QH}, 28672")
        a.e(f"v_add_u32 v{V_QR}, s{S_T0}, v{t}")
        for ks in range(4):
            for qt in range(7):
                a.e(f"ds_write_b128 v{V_QR}, {ar(A_Q + (qt*4+ks)*4)} offset:{(ks*7+qt)*1024}")
        strip = lambda xs: [x.t if isinstance(x, VM) else x for x in xs]
        a.many(strip(self.kv_dma("K", 0, "0")))
        a.many(strip(self.kv_dma("V", 0, "0")))
        a.e(f"s_mov_b32 s{S_SOKV}, 16384")
        a.many(strip(self.kv_dma("K", 1, f"s{S_SOKV}")))
        a.many(strip(self.kv_dma("V", 1, f"s{S_SOKV}")))
        a.e(f"s_mov_b32 s{S_SOKV}, 32768")
        a.many(strip(self.kv_dma("K", 2, f"s{S_SOKV}")))
        a.many(strip(self.kv_dma("V", 2, f"s{S_SOKV}")))
        if self.o.fused: a.many(self.b_addr_v())
        if self.pf_on: a.e(f"v_mov_b32 v{V_PF}, 0x40000000")
        a.e(f"s_waitcnt vmcnt(16) lgkmcnt(0)")
        a.e("s_barrier")
        for kt in range(2):
            for ks in range(4):
                a.e(self.k_read(kt, ks, 0).t)
        a.e("s_branch A_ATT")


def main():
    import gen as G1
    ap = argparse.ArgumentParser()
    ap.add_argument("-o", default="cdna_kernels/" + NAME + ".s")
    ap.add_argument("--nt", type=int, default=0)
    ap.add_argument("--stamps", type=int, default=0)
    ap.add_argument("--dbgq", type=int, default=0)
    ap.add_argument("--bw", type=int, default=8)
    ap.add_argument("--brs", type=int, default=4)
    ap.add_argument("--only", default="")
    ap.add_argument("--rts", type=int, default=0)
    ap.add_argument("--osc1", type=int, default=0)
    ap.add_argument("--probe", default="")
    ap.add_argument("--fused", type=int, default=1)
    ap.add_argument("--bmap", type=int, default=0)
    ap.add_argument("--nr", type=int, default=16)
    ap.add_argument("--od", type=int, default=8)
    ap.add_argument("--npre", type=int, default=4)
    ap.add_argument("--opad", type=int, default=0)
    ap.add_argument("--bnomf", type=int, default=0)
    ap.add_argument("--bnold", type=int, default=0)
    ap.add_argument("--b2x", type=int, default=0)
    ap.add_argument("--olsc", type=int, default=1)
    ap.add_argument("--ctouch", type=int, default=0)
    ap.add_argument("--unroll", type=int, default=0)
    ap.add_argument("--xpol", default="")
    ap.add_argument("--wqpol", default="")
    ap.add_argument("--stsel", default="start,karg,k0,p0,p1,p8,p9,qx,pre,t11,t15,e1,e2,pub,wpf,poll,main,end")
    ap.add_argument("--qrot", default="", help="alpha,beta,shift: r = ((alpha*h' + beta*b') >> shift) mod 9")
    ap.add_argument("--brot", type=int, default=0)
    ap.add_argument("--pubmode", type=int, default=0)
    ap.add_argument("--wsm", type=int, default=0)
    ap.add_argument("--wdiag", type=int, default=0)
    ap.add_argument("--pubw", type=int, default=0)
    ap.add_argument("--pollw", type=int, default=0)
    ap.add_argument("--psleep", type=int, default=1)
    ap.add_argument("--pfq", type=int, default=0)
    ap.add_argument("--pfc", default="0,0,0,0,0,0,0,0,0,0")
    ap.add_argument("--pf0", type=int, default=0)
    ap.add_argument("--pfa", type=int, default=0)
    ap.add_argument("--pfpol", default="")
    ap.add_argument("--pfqpol", default="")
    ap.add_argument("--pfas", type=int, default=6)
    ap.add_argument("--pfan", type=int, default=11)
    ap.add_argument("--pfw", type=int, default=0)
    ap.add_argument("--pfwt", type=int, default=12)
    ap.add_argument("--pfwpol", default="")
    o = ap.parse_args()
    if o.xpol: o.xpol = " " + o.xpol.replace("+", " ")
    if o.wqpol: o.wqpol = " " + o.wqpol.replace("+", " ")
    if o.pfpol: o.pfpol = " " + o.pfpol
    if o.pfqpol: o.pfqpol = " " + o.pfqpol
    if o.pfwpol: o.pfwpol = " " + o.pfwpol
    ga = GenA(o); ta = ga.gen()
    if o.fused:
        hdr = G1.HDR.replace("Launch 1: one workgroup", "Phase 1: one workgroup").replace("Launch 2: out = O * wo.", "Phase 2 (same launch, after a counter hand-off): out = O * wo.")
        if o.probe:
            hdr += f"; @launch kernel={NAME}_kernel grid=(256,1,1) block=(256,1,1) lds=163840\n"
            hdr += "; @launch kernel=probe_kernel grid=(1,1,1) block=(64,1,1) lds=0\n"
        else:
            hdr += "; @launch grid=(256,1,1) block=(256,1,1) lds=163840\n"
        txt = hdr + '.amdgcn_target "amdgcn-amd-amdhsa--gfx950"\n.text\n' + G1.fix_hazards(ta) + "\n"
        if o.probe:
            txt += G1.gen_probe(o.probe) + "\n"
        txt += '.section .rodata,"a"\n.p2align 6\n' + G1.descriptor(NAME + "_kernel", 512, 256)
        if o.probe:
            txt += ".p2align 6\n" + G1.descriptor("probe_kernel", 32, 32)
        open(o.o, "w").write(txt)
        print("wrote", o.o, len(txt), "bytes; stamps", ga.nst)
        return
    gb = G1.GenB(o); tb = gb.gen()
    hdr = G1.HDR
    blds = max(o.bw * o.brs * 4096, o.bw * 16384)
    if o.only != "B":
        hdr += f"; @launch kernel={NAME}_kernel grid=(256,1,1) block=(256,1,1) lds=163840\n"
    if o.only != "A":
        hdr += f"; @launch kernel=oproj_kernel grid=(256,1,1) block=({o.bw*64},1,1) lds={blds}\n"
    if o.probe:
        hdr += "; @launch kernel=probe_kernel grid=(1,1,1) block=(64,1,1) lds=0\n"
    txt = hdr + '.amdgcn_target "amdgcn-amd-amdhsa--gfx950"\n.text\n' + G1.fix_hazards(ta) + "\n" + G1.fix_hazards(tb) + "\n"
    if o.probe:
        txt += G1.gen_probe(o.probe) + "\n"
    txt += '.section .rodata,"a"\n.p2align 6\n' + G1.descriptor(NAME + "_kernel", 512, 256)
    nvb = (gb.nv + 7) // 8 * 8
    txt += ".p2align 6\n" + G1.descriptor("oproj_kernel", nvb, (gb.nv + 3) // 4 * 4)
    if o.probe:
        txt += ".p2align 6\n" + G1.descriptor("probe_kernel", 32, 32)
    open(o.o, "w").write(txt)
    print("wrote", o.o, len(txt), "bytes; B vgprs", gb.nv, "stamps", ga.nst)

if __name__ == "__main__":
    main()
```

```python
import sys, struct, re, argparse
from collections import defaultdict
sys.path.insert(0, "tools")

NAME = "standalone__mha_block_cached__near_ridge"
MF = "v_mfma_f32_16x16x32_bf16"

def f32(x):
    return struct.unpack("<I", struct.pack("<f", x))[0]
def vr(b, n=4): return f"v[{b}:{b+n-1}]" if n > 1 else f"v{b}"
def ar(b, n=4): return f"a[{b}:{b+n-1}]" if n > 1 else f"a{b}"
def sr(b, n=4): return f"s[{b}:{b+n-1}]" if n > 1 else f"s{b}"

class DS:
    def __init__(s, t, tag): s.t, s.tag = t, tag
class VM:
    def __init__(s, t, tag): s.t, s.tag = t, tag
class WL:
    def __init__(s, *tags): s.tags = set(tags)
class WV:
    def __init__(s, *tags): s.tags = set(tags)
class WALL:
    def __init__(s, k): s.k = k

class Trace:
    def __init__(self):
        self.L = []
        self.lq = []
        self.vq = []
    def raw(self, s): self.L.append(s)
    def lab(self, s): self.L.append(s + ":")
    def c(self, s): self.L.append("    ; " + s)
    def e(self, x):
        if isinstance(x, str):
            self.L.append("    " + x)
        elif isinstance(x, DS):
            self.L.append("    " + x.t); self.lq.append(x.tag)
        elif isinstance(x, VM):
            self.L.append("    " + x.t); self.vq.append(x.tag)
        elif isinstance(x, WL):
            idx = max([i for i, t in enumerate(self.lq) if t in x.tags], default=-1)
            if idx >= 0:
                n = len(self.lq) - 1 - idx
                if n > 15:
                    n = 15
                self.L.append(f"    s_waitcnt lgkmcnt({n})")
                self.lq = self.lq[len(self.lq) - n:] if n else []
        elif isinstance(x, WV):
            idx = max([i for i, t in enumerate(self.vq) if t in x.tags], default=-1)
            if idx >= 0:
                n = len(self.vq) - 1 - idx
                if n > 63:
                    n = 63
                self.L.append(f"    s_waitcnt vmcnt({n})")
                self.vq = self.vq[len(self.vq) - n:] if n else []
        elif isinstance(x, WALL):
            w = []
            if 'v' in x.k: w.append("vmcnt(0)"); self.vq = []
            if 'l' in x.k: w.append("lgkmcnt(0)"); self.lq = []
            self.L.append("    s_waitcnt " + " ".join(w))
        else:
            raise TypeError(x)
    def many(self, xs):
        for x in xs: self.e(x)

class Sched:
    def __init__(self, mf):
        self.mf = mf
        self.pre = defaultdict(list)
        self.post = defaultdict(list)
    def emit(self, t):
        for g, m in enumerate(self.mf):
            t.many(self.pre[g])
            t.e(m)
            t.many(self.post[g])
        n = len(self.mf)
        for g in sorted(set(list(self.pre) + list(self.post))):
            if g >= n:
                t.many(self.pre[g]); t.many(self.post[g])

BUF = {0: 90112, 1: 45056, 2: 0}
def PAIR(n):
    return 32768 + ((3 - n) & 3) * 32768
QX = 0
RG = 40960
LOFF = 7 * 4096
FOFF = 7 * 4096 + 2048
MXX = 16384

V_OOWN = 0
V_K = 112
V_V = 144
V_S = 176
V_P = 192
V_NEGM = 200
V_KA = 228
V_VA = 232
V_OFFKV = 240
V_TID = 242
V_T0 = 243
V_OFFX = 144
V_OFFW = 151
V_XR = 156
V_WR = 160
V_QW = 253
V_QR = 254
V_QT = 176
V_WOF = 245
V_TR = 249
V_OO = [244, 253, 254, 255]
S_WO, S_OUT = 16, 20
S_MG, S_NG, S_SW, S_SO, S_L0, S_L1, S_RB, S_SWC, S_SOC = 57, 58, 59, 10, 11, 3, 100, 101, 42
S_ROT, S_RT = 54, 43
S_PF = 12
V_PF, V_PFD = 243, 255
A_Q = 0
A_OOTH = 112
A_L = 224
A_ONES = 252
S_X, S_WQ, S_K, S_V, S_O = 16, 20, 24, 28, 32
S_W, S_QH, S_KH = 36, 37, 38
S_W1K7 = 39
S_SC = 40
S_SOX, S_SOW = 42, 43
S_W4K = 44
S_B, S_H = 45, 46
S_CNT = 47
S_PASS = 48
S_T0, S_T1, S_T2, S_T3 = 49, 50, 51, 52
S_OB = 53
S_SOKV = 56
S_ST = 60


def o_reg(j, tp):
    if tp < 4:
        return vr(V_OOWN + (j * 4 + tp) * 4)
    return ar(A_OOTH + (j * 4 + tp - 4) * 4)


class GenA:
    def __init__(self, opt):
        self.o = opt
        self.t = Trace()
        self.nst = 0
        self.npf = 0
        self.pfc = [int(z) for z in opt.pfc.split(",")]
        assert len(self.pfc) == 10
        self.pf_on = (sum(self.pfc) > 0 or opt.pfa)
        self.QS = 131072 + opt.opad

    def stamp(self, name):
        if not self.o.stamps: return []
        sel = self.o.stsel.split(",")
        r = []
        for nm, ins in ((name, "s_memrealtime" if self.o.rts else "s_memtime"), (name + "@", "s_memrealtime")):
            if nm in sel:
                r.append(f"{ins} s[{S_ST + 2*self.nst}:{S_ST + 2*self.nst + 1}]")
                self.nst += 1
                assert self.nst <= 18
        return r

    def kvpol(self):
        return " nt" if self.o.nt else ""

    def emit_kv_addr(self, rd=True, dma=True):
        t_ = self.t
        L, l15, g, r4, c4, t, u = V_T0, V_T0+1, V_T0+2, V_T0+3, V_T0+4, V_T0+5, V_T0+6
        t_.e(f"v_and_b32 v{L}, 63, v{V_TID}")
        t_.e(f"v_and_b32 v{l15}, 15, v{L}")
        t_.e(f"v_lshrrev_b32 v{g}, 4, v{L}")
        if dma:
            t_.e(f"v_lshlrev_b32 v{t}, 1, v{g}")
            t_.e(f"v_xor_b32 v{t}, v{t}, v{l15}")
            t_.e(f"v_lshlrev_b32 v{t}, 4, v{t}")
            t_.e(f"v_lshlrev_b32 v{u}, 8, v{g}")
            t_.e(f"v_add_u32 v{u}, s{S_W4K}, v{u}")
            t_.e(f"v_add_u32 v{V_OFFKV}, v{t}, v{u}")
            t_.e(f"v_xor_b32 v{t}, 128, v{t}")
            t_.e(f"v_add_u32 v{V_OFFKV+1}, v{t}, v{u}")
        if rd:
            t_.e(f"v_bfe_u32 v{r4}, v{L}, 2, 2")
            t_.e(f"v_and_b32 v{c4}, 3, v{L}")
            t_.e(f"s_lshl_b32 s{S_T0}, s{S_KH}, 13")
            t_.e(f"s_add_u32 s{S_T1}, s{S_T0}, {PAIR(0) + 16384}")
            t_.e(f"v_and_b32 v{t}, 7, v{l15}")
            t_.e(f"v_lshlrev_b32 v{t}, 1, v{t}")
            t_.e(f"v_xor_b32 v{t}, v{t}, v{g}")
            t_.e(f"v_lshlrev_b32 v{t}, 4, v{t}")
            t_.e(f"v_lshlrev_b32 v{u}, 8, v{l15}")
            t_.e(f"v_add_u32 v{u}, s{S_T1}, v{u}")
            for ks in range(4):
                t_.e(f"v_xor_b32 v{V_KA+ks}, {ks*64}, v{t}")
                t_.e(f"v_add_u32 v{V_KA+ks}, v{V_KA+ks}, v{u}")
            t_.e(f"s_add_u32 s{S_T1}, s{S_T0}, {PAIR(0)}")
            t_.e(f"v_lshlrev_b32 v{u}, 2, v{g}")
            t_.e(f"v_add_u32 v{u}, v{u}, v{r4}")
            t_.e(f"v_and_b32 v{t}, 7, v{u}")
            t_.e(f"s_lshl_b32 s{S_T2}, s{S_KH}, 2")
            t_.e(f"v_xor_b32 v{t}, s{S_T2}, v{t}")
            t_.e(f"v_lshlrev_b32 v{t}, 5, v{t}")
            t_.e(f"v_lshlrev_b32 v{u}, 8, v{u}")
            t_.e(f"v_add_u32 v{u}, s{S_T1}, v{u}")
            t_.e(f"v_lshlrev_b32 v{c4}, 3, v{c4}")
            t_.e(f"v_add_u32 v{u}, v{u}, v{c4}")
            for tp in range(8):
                t_.e(f"v_xor_b32 v{V_VA+tp}, {tp*32}, v{t}")
                t_.e(f"v_add_u32 v{V_VA+tp}, v{V_VA+tp}, v{u}")

    def kv_dma(self, which, n, soff, lds=None):
        srd = S_K if which == "K" else S_V
        if lds is None:
            lds = PAIR(n) + (16384 if which == "K" else 0)
        r = [f"s_add_u32 m0, s{S_W4K}, {lds}"]
        for i in range(4):
            off = f" offset:{i*1024}" if i else ""
            r.append(VM(f"buffer_load_dwordx4 v{V_OFFKV + (i & 1)}, {sr(srd)}, {soff} offen{off}{self.kvpol()} lds", f"{which}{n}"))
        return r

    def kv_touch(self):
        self.npf += 1
        return [VM(f"buffer_load_dword v{V_PFD}, v{V_PF}, {sr(S_PF)}, 0 offen{self.o.pfpol}", "PF"),
                f"v_add_u32 v{V_PF}, 16384, v{V_PF}"]

    def x_dma(self, st):
        buf = BUF[st % 3]
        r = []
        if self.o.qrot:
            if st:
                r += [f"s_add_u32 s{S_SOX}, s{S_SOX}, 128", f"s_cmp_eq_u32 s{S_SOX}, 1152", f"s_cselect_b32 s{S_SOX}, 0, s{S_SOX}"]
        else:
            r.append(f"s_mov_b32 s{S_SOX}, {st*128}")
        r.append(f"s_add_u32 m0, s{S_W1K7}, {buf}")
        for i in range(7):
            if i == 4:
                r.append(f"s_add_u32 m0, s{S_W1K7}, {buf + 4096}")
            off = f" offset:{(i%4)*1024}" if i % 4 else ""
            r.append(VM(f"buffer_load_dwordx4 v{V_OFFX+i}, {sr(S_X)}, s{S_SOX} offen{off}{self.o.xpol} lds", f"X{st}"))
        if self.o.qrot:
            r.append(f"s_lshl_b32 s{S_SOW}, s{S_SOX}, 12")
        else:
            r.append(f"s_mov_b32 s{S_SOW}, {st*64*8192}")
        r.append(f"s_add_u32 m0, s{S_W4K}, {buf + 28672}")
        for i in range(4):
            off = f" offset:{i*1024}" if i else ""
            r.append(VM(f"buffer_load_dwordx4 v{V_OFFW+i}, {sr(S_WQ)}, s{S_SOW} offen{off}{self.o.wqpol} lds", f"X{st}"))
        return r

    def q_reads(self, st):
        buf = BUF[st % 3]
        sset = 1 if buf == 90112 else 0
        base = buf - (90112 if sset else 0)
        p = (st & 1) * 88
        r = []
        for s in range(2):
            for T in range(4):
                jj = T >> 1
                for hf in range(2):
                    off = base + 8192 * s + 1024 * hf + 8 * (T & 1)
                    r.append(DS(f"ds_read_b64_tr_b16 {ar(p + 56 + (s*4+T)*4 + 2*hf, 2)}, v{V_WR + sset*2 + jj} offset:{off}", f"R{st}"))
            for qt in range(7):
                off = base + qt * 2048
                r.append(DS(f"ds_read_b128 {ar(p + (s*7+qt)*4)}, v{V_XR + sset*2 + s} offset:{off}", f"R{st}"))
        return r

    def q_mf(self, st, s, T, qt, first):
        p = (st & 1) * 88
        d = vr((T * 7 + qt) * 4)
        c = "0" if (first and s == 0) else d
        return f"{MF} {d}, {ar(p + 56 + (s*4+T)*4)}, {ar(p + (s*7+qt)*4)}, {c}"

    def q_mfmas(self, st, first):
        return [self.q_mf(st, s, T, qt, first) for s in range(2) for T in range(4) for qt in range(7)]

    def k_read(self, kt, ks, n):
        off = f" offset:{kt*4096}" if kt else ""
        return DS(f"ds_read_b128 {vr(V_K + (kt*4+ks)*4)}, v{V_KA+ks}{off}", f"k{n}.{kt}")

    def v_read(self, tp, hf, n):
        off = f" offset:{hf*4096}" if hf else ""
        return DS(f"ds_read_b64_tr_b16 {vr(V_V + tp*4 + 2*hf, 2)}, v{V_VA+tp}{off}", f"v{n}.{tp}")

    def q_read(self, qt):
        return [DS(f"ds_read_b128 {ar(A_Q + (qt*4+ks)*4)}, v{V_QR} offset:{(ks*7+qt)*1024}", f"q{qt}") for ks in range(4)]

    def qk_mfmas(self, par, j2):
        r = []
        for kt in range(2):
            for ks in range(4):
                d = vr(V_S + par * 8 + kt * 4)
                c = vr(V_NEGM + j2 * 4) if ks == 0 else d
                r.append(f"{MF} {d}, {vr(V_K + (kt*4+ks)*4)}, {ar(A_Q + (j2*4+ks)*4)}, {c}")
        return r

    def pv_mfmas(self, par, j, first):
        r = []
        p = vr(V_P + par * 4)
        for tp in range(8):
            d = o_reg(j, tp)
            r.append(f"{MF} {d}, {vr(V_V + tp*4)}, {p}, {'0' if first else d}")
        d = ar(A_L + j * 4)
        r.append(f"{MF} {d}, {ar(A_ONES)}, {p}, {'0' if first else d}")
        return r

    def exps(self, par):
        return [f"v_exp_f32 v{V_S + par*8 + i}, v{V_S + par*8 + i}" for i in range(8)]

    def cvts(self, par):
        return [f"v_cvt_pk_bf16_f32 v{V_P + par*4 + i}, v{V_S + par*8 + 2*i}, v{V_S + par*8 + 2*i + 1}" for i in range(4)]

    def tile(self, n):
        t = self.t
        first = (n == 0)
        last = (n == 15)
        dl = (PAIR(n + 1) - PAIR(n)) & 0xffffffff
        vdma = self.kv_dma("V", n + 3, "0") if (n + 3 <= 15 and n >= 1) else None
        kdma = self.kv_dma("K", n + 4, "0") if n + 4 <= 15 else None
        adv = [f"v_add_u32 v{V_OFFKV}, 16384, v{V_OFFKV}", f"v_add_u32 v{V_OFFKV+1}, 16384, v{V_OFFKV+1}"]
        for j in range(7):
            par = (n + j) & 1
            mf = self.pv_mfmas(par, j, first)
            has_qk = not (last and j >= 5)
            if has_qk:
                mf = mf + self.qk_mfmas(par, (j + 2) % 7)
            S = Sched(mf)
            G, PRE = S.post, S.pre
            if not (last and j == 6):
                ex = self.exps(par ^ 1); cv = self.cvts(par ^ 1)
                if has_qk:
                    for i in range(8): G[2 * i].append(ex[i])
                    for i in range(4): G[4 * i + 3].append(cv[i])
                else:
                    for i in range(8): G[i // 2].append(ex[i])
                    G[2].append(cv[0]); G[3].append(cv[1]); G[4].append(cv[2]); G[5].append(cv[3])
            nn = n + 1
            if j == 0:
                PRE[0].append(WL(f"v{n}.0", f"v{n}.1", f"v{n}.2"))
                G[1] += [self.v_read(7, 0, n), self.v_read(7, 1, n)]
                PRE[3].append(WL(f"v{n}.3", f"v{n}.4", f"v{n}.5"))
                PRE[6].append(WL(f"v{n}.6", f"v{n}.7"))
                if vdma:
                    G[9] += [vdma[0]]
                    G[13] += [vdma[1]]
            if first and j <= 3:
                q = self.q_read(j + 3)
                G[5] += q[:2]; G[9] += q[2:]
            if first and j <= 4:
                PRE[9].append(WL(f"q{j+2}"))
            if j == 1:
                if vdma: G[5] += [vdma[2]]
                if not last:
                    G[9] += [f"v_add_u32 v{V_VA+0}, {dl}, v{V_VA+0}", f"v_add_u32 v{V_VA+1}, {dl}, v{V_VA+1}"] if not first else []
                    G[13] += [f"v_add_u32 v{V_VA+2}, {dl}, v{V_VA+2}", f"v_add_u32 v{V_VA+3}, {dl}, v{V_VA+3}"]
                    if first:
                        G[1] += [f"v_add_u32 v{V_VA+0}, {dl}, v{V_VA+0}", f"v_add_u32 v{V_VA+1}, {dl}, v{V_VA+1}"]
            if j == 2:
                if vdma: G[5] += [vdma[3]]
                if not last:
                    G[1] += [f"v_add_u32 v{V_VA+4}, {dl}, v{V_VA+4}", f"v_add_u32 v{V_VA+5}, {dl}, v{V_VA+5}"]
                    G[13] += [f"v_add_u32 v{V_VA+6}, {dl}, v{V_VA+6}", f"v_add_u32 v{V_VA+7}, {dl}, v{V_VA+7}"]
            if j == 3:
                if vdma: G[5] += [vdma[4]]
                if not last:
                    G[1] += [f"v_add_u32 v{V_KA+0}, {dl}, v{V_KA+0}", f"v_add_u32 v{V_KA+1}, {dl}, v{V_KA+1}"]
                    G[13] += [f"v_add_u32 v{V_KA+2}, {dl}, v{V_KA+2}", f"v_add_u32 v{V_KA+3}, {dl}, v{V_KA+3}"]
                if kdma and not first:
                    G[16] += adv
            if j == 4:
                if first:
                    G[5] += [WL("q6")]
                if not last:
                    G[5] += [WV(f"K{nn}", f"V{nn}")]
                else:
                    G[5] += [WL("ow0", "ow1", "ow2", "ow3")]
                G[7] += ["s_barrier"]
                if not last:
                    G[9] += [self.k_read(0, 0, nn)]
                    G[11] += [self.k_read(0, 1, nn)]
                    G[13] += [self.k_read(0, 2, nn), self.k_read(0, 3, nn)]
                    G[15] += [self.k_read(1, 0, nn)]
                    G[16] += [self.k_read(1, 1, nn), self.k_read(1, 2, nn)]
                if first:
                    k3 = self.kv_dma("K", 3, "0")
                    G[9] += [k3[0]]
                    self.k3 = k3
            if j == 5 and not last:
                G[1] += [self.k_read(1, 3, nn)]
                PRE[9].append(WL(f"k{nn}.0", f"k{nn}.1"))
                if first:
                    k3 = self.k3
                    G[1] += [k3[1]]; G[3] += [k3[2]]; G[5] += [k3[3]]; G[7] += [k3[4]]
                    v3 = self.kv_dma("V", 3, "0")
                    G[9] += [v3[0], v3[1]]; G[11] += [v3[2]]; G[13] += [v3[3]]; G[15] += [v3[4]]
                    G[16] += adv
                elif kdma:
                    G[0] += [kdma[0]]
                    G[1] += [kdma[1]]; G[5] += [kdma[2]]; G[9] += [kdma[3]]; G[13] += [kdma[4]]
            if j == self.o.pfas and self.o.pfa and n <= self.o.pfan:
                tc = self.kv_touch()
                G[14] += [tc[0]]; G[16] += [tc[1]]
            if self.o.pfw and n == self.o.pfwt and j in (4, 5, 6):
                w = self.wo_touch()
                if j == 4:
                    for i, x in enumerate(w[0]): G[9 + (i * 7) // len(w[0])].append(x)
                else:
                    tch = w[1] if j == 5 else w[2]
                    nv = sum(isinstance(x, VM) for x in tch)
                    gi = 2
                    for x in tch:
                        G[gi].append(x)
                        if isinstance(x, VM): gi += max(1, 14 // max(nv, 1))
                    if j == 6 and self.o.tlbt:
                        a = V_PF
                        D = V_PFD
                        q = self.QS
                        tl = []
                        if self.o.tlbt & 1:
                            tl += [f"v_and_b32 v{a}, 15, v{V_TID}", f"s_mul_i32 s{S_T0}, s{S_B}, 14",
                                   f"v_add_u32 v{a}, s{S_T0}, v{a}", f"v_min_u32 v{a}, 111, v{a}",
                                   f"s_mov_b32 s{S_T0}, {q}", f"v_mul_lo_u32 v{a}, v{a}, s{S_T0}", f"v_add_u32 v{a}, 131072, v{a}",
                                   VM(f"global_load_dword v{D}, v{a}, s[{S_O}:{S_O+1}] sc1", "PW"),
                                   f"v_and_b32 v{a}, 3, v{V_TID}", f"s_lshl_b32 s{S_T1}, s{S_MG}, 2",
                                   f"v_add_u32 v{a}, s{S_T1}, v{a}", f"v_mul_lo_u32 v{a}, v{a}, s{S_T0}", f"v_add_u32 v{a}, 131072, v{a}",
                                   VM(f"global_load_dword v{D}, v{a}, s[{S_O}:{S_O+1}] sc1", "PW")]
                        if self.o.tlbt & 2:
                            tl += [f"v_and_b32 v{a}, 63, v{V_TID}", f"s_lshl_b32 s{S_T1}, s{S_MG}, 6", f"v_add_u32 v{a}, s{S_T1}, v{a}",
                                   f"v_mul_u32_u24 v{a}, 1152, v{a}",
                                   VM(f"buffer_load_dword v{D}, v{a}, {sr(S_OUT)}, 0 offen", "PW")]
                        if self.o.tlbt & 4:
                            tl += [f"v_mov_b32 v{a}, 0", VM(f"global_load_dword v{D}, v{a}, s[8:9] sc1", "PW")]
                        g0 = 10
                        for x in tl:
                            G[min(g0, 16)].append(x)
                            if isinstance(x, VM): g0 += 2
            if j == 6 and not last:
                v = lambda a, b: self.v_read(a, b, nn)
                G[1] += [v(0, 0), v(0, 1)]
                G[3] += [v(1, 0)]
                G[5] += [v(1, 1), v(2, 0)]
                G[7] += [v(2, 1)]
                G[9] += [v(3, 0), v(3, 1)]
                G[11] += [v(4, 0)]
                G[13] += [v(4, 1), v(5, 0)]
                G[15] += [v(5, 1)]
                G[16] += [v(6, 0), v(6, 1)]
                if first:
                    PRE[0] += [kdma[0]]
                    G[0] += [kdma[1]]; G[4] += [kdma[2]]; G[8] += [kdma[3]]; G[12] += [kdma[4]]
            if last:
                if j == 1:
                    PRE[0] = ["s_barrier"] + PRE[0]
                    w = self.o_writes(0)
                    G[1] += [w[0]]; G[3] += [w[1]]; G[5] += [w[2]]; G[7] += [w[3]]; G[8] += [w[4]]
                if 1 <= j <= 4:
                    w = self.o_writes(j)
                    G[10] += [w[0]]; G[11] += [w[1]]; G[13] += [w[2], w[3]]; G[15] += [w[4]]
                if self.o.fused and j in (2, 3):
                    d = self.wo_dma(j - 2)
                    ns = len(d) - 4
                    G[0] += d[:ns]; G[1] += [d[ns]]; G[3] += [d[ns+1]]; G[5] += [d[ns+2]]; G[7] += [d[ns+3]]
                if j == 6:
                    w = self.o_writes(5)
                    G[1] += [w[0]]; G[3] += [w[1]]; G[4] += [w[2]]; G[6] += [w[3]]; G[7] += [w[4]]
                if j == 0:
                    PRE[0] = self.ox_addr() + PRE[0]
            t.c(f"tile {n} slot {j}")
            S.emit(t)
            t.many(self.stamp(f"s{n}_{j}"))

    def wo_touch(self):
        a = V_PF
        su = [f"v_and_b32 v{a}, 63, v{V_TID}", f"s_lshr_b32 s{S_T0}, s2, 3"]
        pol = self.o.pfwpol
        if self.o.pfw == 2:
            su = [f"v_and_b32 v{a}, 63, v{V_TID}", f"v_mul_u32_u24 v{a}, 73728, v{a}"]
            return su, [VM(f"buffer_load_dword v{V_PFD}, v{a}, {sr(S_WO)}, 0 offen{pol}", "PW")], []
        if self.o.pfw == 3:
            su = [f"v_and_b32 v{a}, 63, v{V_TID}", f"s_lshl_b32 s{S_T0}, s{S_W}, 6", f"v_add_u32 v{a}, s{S_T0}, v{a}", f"v_mul_u32_u24 v{a}, {16*1152}, v{a}"]
            return su, [VM(f"buffer_load_dword v{V_PFD}, v{a}, {sr(S_WO)}, 0 offen{pol}", "PW")], []
        if self.o.bmap == 0:
            su += [f"s_lshl_b32 s{S_T0}, s{S_T0}, 2", f"s_add_u32 s{S_T0}, s{S_T0}, s{S_W}",
                   f"s_mul_i32 s{S_T0}, s{S_T0}, {32*1152}",
                   f"s_and_b32 s{S_T1}, s2, 1", f"s_lshl_b32 s{S_T1}, s{S_T1}, 9", f"s_add_u32 s{S_T0}, s{S_T0}, s{S_T1}",
                   f"v_cmp_gt_u32 vcc, 32, v{a}",
                   f"v_mul_u32_u24 v{a}, 1152, v{a}", f"v_add_u32 v{a}, s{S_T0}, v{a}",
                   f"v_mov_b32 v{V_PFD}, 0x40000000",
                   f"v_cndmask_b32 v{a}, v{V_PFD}, v{a}, vcc"]
            T = [VM(f"buffer_load_dword v{V_PFD}, v{a}, {sr(S_WO)}, 0 offen" + (f" offset:{i*128}" if i else "") + pol, "PW") for i in range(5)]
            return su, T[:3], T[3:]
        su += [f"s_mul_i32 s{S_T0}, s{S_T0}, 147456", f"s_mul_i32 s{S_T1}, s{S_W}, 36864", f"s_add_u32 s{S_T0}, s{S_T0}, s{S_T1}",
               f"v_lshlrev_b32 v{a}, 7, v{a}", f"v_add_u32 v{a}, s{S_T0}, v{a}"]
        T = []
        for i in range(5):
            T.append([VM(f"buffer_load_dword v{V_PFD}, v{a}, {sr(S_WO)}, 0 offen{pol}", "PW"), f"v_add_u32 v{a}, 8192, v{a}"])
        return su, T[0] + T[1] + T[2], T[3] + T[4]

    def ox_addr(self):
        r = []
        T = V_T0
        r.append(f"v_and_b32 v{T}, 63, v{V_TID}")
        r.append(f"v_lshlrev_b32 v{T+1}, 4, v{T}")
        r.append(f"v_lshlrev_b32 v{T}, 2, v{T}")
        r.append(f"s_xor_b32 s{S_T3}, s{S_W}, 1")
        r.append(f"s_mul_i32 s{S_T0}, s{S_T3}, {RG}")
        r.append(f"v_add_u32 v{V_KA}, s{S_T0}, v{T+1}")
        r.append(f"s_add_u32 s{S_T0}, s{S_T0}, {LOFF}")
        r.append(f"v_add_u32 v{V_KA+1}, s{S_T0}, v{T}")
        r.append(f"s_mul_i32 s{S_T0}, s{S_W}, {RG}")
        r.append(f"v_add_u32 v{V_KA+2}, s{S_T0}, v{T+1}")
        r.append(f"s_add_u32 s{S_T0}, s{S_T0}, {LOFF}")
        r.append(f"v_add_u32 v{V_KA+3}, s{S_T0}, v{T}")
        r.append(f"s_mul_i32 s{S_T0}, s{S_B}, 14")
        r.append(f"s_mul_i32 s{S_T1}, s{S_QH}, 7")
        r.append(f"s_add_u32 s{S_T0}, s{S_T0}, s{S_T1}")
        r.append(f"s_mul_i32 s{S_T0}, s{S_T0}, {self.QS}")
        r.append(f"s_lshl_b32 s{S_T1}, s{S_H}, 1")
        r.append(f"s_add_u32 s{S_T1}, s{S_T1}, s{S_KH}")
        r.append(f"s_lshl_b32 s{S_T1}, s{S_T1}, 11")
        r.append(f"s_add_u32 s{S_OB}, s{S_T0}, s{S_T1}")
        return r

    def o_writes(self, j):
        r = []
        for tpp in range(4):
            i = j * 4 + tpp
            r.append(DS(f"ds_write_b128 v{V_KA}, {ar(A_OOTH + i*4)} offset:{i*1024}", f"ow{j}"))
        r.append(DS(f"ds_write_b32 v{V_KA+1}, a{A_L + 4*j} offset:{j*256}", f"ow{j}"))
        return r

    def gen(self):
        t_ = self.t
        o = self.o
        kn = f"{NAME}_kernel"
        t_.raw(f".globl {kn}\n.p2align 8\n.type {kn},@function\n{kn}:")
        t_.e("s_cmp_ge_u32 s2, 256")
        t_.e("s_cbranch_scc1 A_END")
        t_.e("s_load_dwordx8 s[4:11], s[0:1], 0")
        t_.e("s_load_dwordx2 s[12:13], s[0:1], 56")
        t_.many(self.stamp("start"))
        if o.stamps:
            t_.e(f"s_memrealtime s[{S_ST+36}:{S_ST+37}]")
        if o.ctouch:
            t_.e("s_getpc_b64 s[14:15]")
            t_.lab("CT_PC")
            t_.e("s_lshr_b32 s3, s2, 3")
            t_.e("s_and_b32 s3, s3, 1")
            t_.e("s_lshl_b32 s3, s3, 15")
            t_.e("v_lshlrev_b32 v1, 7, v0")
            t_.e("v_add_u32 v1, s3, v1")
            t_.e("v_min_u32 v1, CT_END-CT_PC-4, v1")
            t_.e(VM(f"global_load_dword v{V_PFD}, v1, s[14:15]", "PF"))
        t_.e(f"v_mov_b32 v{V_TID}, v0")
        t_.e(f"v_lshrrev_b32 v1, 6, v0")
        t_.e("s_and_b32 s3, s2, 7")
        t_.e(f"s_lshr_b32 s{S_T0}, s2, 3")
        t_.e(f"v_readfirstlane_b32 s{S_W}, v1")
        t_.e(f"s_and_b32 s{S_T1}, s3, 1")
        t_.e(f"s_lshl_b32 s{S_T1}, s{S_T1}, 2")
        t_.e(f"s_and_b32 s{S_T2}, s{S_T0}, 3")
        t_.e(f"s_add_u32 s{S_B}, s{S_T1}, s{S_T2}")
        t_.e(f"s_lshr_b32 s{S_T1}, s3, 1")
        t_.e(f"s_lshl_b32 s{S_T1}, s{S_T1}, 3")
        t_.e(f"s_lshr_b32 s{S_T2}, s{S_T0}, 2")
        t_.e(f"s_add_u32 s{S_H}, s{S_T1}, s{S_T2}")
        t_.e(f"s_lshr_b32 s{S_QH}, s{S_W}, 1")
        t_.e(f"s_and_b32 s{S_KH}, s{S_W}, 1")
        t_.e(f"s_mul_i32 s{S_W1K7}, s{S_W}, 7168")
        t_.e(f"s_lshl_b32 s{S_W4K}, s{S_W}, 12")
        L, l15, g, r4, c4, t, u = V_T0, V_T0+1, V_T0+2, V_T0+3, V_T0+4, V_T0+5, V_T0+6
        t_.e(f"v_and_b32 v{L}, 63, v{V_TID}")
        t_.e(f"v_and_b32 v{l15}, 15, v{L}")
        t_.e(f"v_lshrrev_b32 v{g}, 4, v{L}")
        t_.e(f"v_lshrrev_b32 v{t}, 3, v{L}")
        t_.e(f"v_and_b32 v{r4}, 7, v{L}")
        t_.e(f"v_xor_b32 v{u}, v{g}, v{r4}")
        t_.e(f"v_lshlrev_b32 v{u}, 4, v{u}")
        t_.e(f"s_lshl_b32 s{S_T0}, s{S_KH}, 6")
        t_.e(f"v_xor_b32 v{u}, s{S_T0}, v{u}")
        t_.e(f"v_mul_u32_u24 v{t}, 1152, v{t}")
        t_.e(f"s_mul_i32 s{S_T1}, s{S_W}, {56*1152}")
        t_.e(f"v_add_u32 v{t}, s{S_T1}, v{t}")
        t_.e(f"v_xor_b32 v{c4}, 64, v{u}")
        t_.e(f"v_add_u32 v{V_OFFX}, v{u}, v{t}")
        t_.e(f"v_add_u32 v{c4}, v{c4}, v{t}")
        for i in range(1, 7):
            src = V_OFFX if (i & 1) == 0 else c4
            k = i * 9216 - (i % 4) * 1024
            t_.e(f"v_add_u32 v{V_OFFX+i}, {k}, v{src}")
        t_.e(f"v_lshlrev_b32 v{t}, 2, v{g}")
        t_.e(f"v_xor_b32 v{t}, v{t}, v{l15}")
        t_.e(f"v_lshlrev_b32 v{t}, 4, v{t}")
        t_.e(f"v_lshlrev_b32 v{u}, 13, v{g}")
        t_.e(f"s_lshl_b32 s{S_T1}, s{S_W}, 17")
        t_.e(f"v_add_u32 v{u}, s{S_T1}, v{u}")
        t_.e(f"v_add_u32 v{V_OFFW}, v{t}, v{u}")
        for i in range(1, 4):
            t_.e(f"v_add_u32 v{V_OFFW+i}, {i*(32768-1024)}, v{V_OFFW}")
        t_.e(f"s_mul_i32 s{S_T0}, s{S_B}, 258048")
        t_.e(f"s_lshl_b32 s{S_T1}, s{S_H}, 8")
        t_.e(f"s_mov_b32 s{S_X+2}, 258048")
        t_.e(f"s_mov_b32 s{S_X+3}, 0x00020000")
        t_.e(f"s_sub_u32 s{S_WQ+2}, {576*8192}, s{S_T1}")
        t_.e(f"s_mov_b32 s{S_WQ+3}, 0x00020000")
        if o.qrot:
            al, be, sh = [int(z) for z in o.qrot.split(",")]
            t_.e(f"s_lshr_b32 s{S_T0}, s2, 5")
            t_.e(f"s_mul_i32 s{S_T0}, s{S_T0}, {al}")
            t_.e(f"s_bfe_u32 s{S_T1}, s2, {(2 << 16) | 3}")
            t_.e(f"s_mul_i32 s{S_T1}, s{S_T1}, {be}")
            t_.e(f"s_add_u32 s{S_T0}, s{S_T0}, s{S_T1}")
            t_.e(f"s_lshr_b32 s{S_T0}, s{S_T0}, {sh}")
            for _ in range(((7 * al + 3 * be) >> sh) // 9):
                t_.e(f"s_sub_u32 s{S_T1}, s{S_T0}, 9")
                t_.e(f"s_cmp_ge_u32 s{S_T0}, 9")
                t_.e(f"s_cselect_b32 s{S_T0}, s{S_T1}, s{S_T0}")
            t_.e(f"s_lshl_b32 s{S_SOX}, s{S_T0}, 7")
            t_.e(f"s_mul_i32 s{S_T0}, s{S_B}, 258048")
            t_.e(f"s_lshl_b32 s{S_T1}, s{S_H}, 8")
        t_.e("s_waitcnt lgkmcnt(0)")
        t_.many(self.stamp("karg"))
        t_.e(f"s_add_u32 s{S_X}, s4, s{S_T0}")
        t_.e(f"s_addc_u32 s{S_X+1}, s5, 0")
        t_.e(f"s_add_u32 s{S_WQ}, s10, s{S_T1}")
        t_.e(f"s_addc_u32 s{S_WQ+1}, s11, 0")
        t_.many(self.x_dma(0))
        t_.many(self.stamp("x0"))
        t_.many(self.x_dma(1))
        t_.many(self.stamp("x1"))
        t_.e(f"s_lshl_b32 s{S_T0}, s{S_B}, 5")
        t_.e(f"s_add_u32 s{S_T0}, s{S_T0}, s{S_H}")
        t_.e(f"s_lshl_b32 s{S_T0}, s{S_T0}, 18")
        t_.e(f"s_add_u32 s{S_K}, s6, s{S_T0}")
        t_.e(f"s_addc_u32 s{S_K+1}, s7, 0")
        t_.e(f"s_mov_b32 s{S_K+2}, 262144")
        t_.e(f"s_mov_b32 s{S_K+3}, 0x00020000")
        t_.e(f"s_add_u32 s{S_V}, s8, s{S_T0}")
        t_.e(f"s_addc_u32 s{S_V+1}, s9, 0")
        t_.e(f"s_mov_b32 s{S_V+2}, 262144")
        t_.e(f"s_mov_b32 s{S_V+3}, 0x00020000")
        t_.e(f"s_mov_b32 s{S_O}, s12")
        t_.e(f"s_mov_b32 s{S_O+1}, s13")
        t_.e(f"s_mov_b32 s{S_O+2}, {112*self.QS}")
        t_.e(f"s_mov_b32 s{S_O+3}, 0x00020000")
        if o.fused:
            t_.e("s_load_dwordx4 s[4:7], s[0:1], 32")
            t_.e("s_load_dwordx2 s[8:9], s[0:1], 48")
        self.emit_kv_addr(rd=False, dma=True)
        t_.many(self.kv_dma("K", 0, "0"))
        t_.many(self.stamp("k0i"))
        if o.pfq:
            a0, a1 = 112, 113
            pl = V_T0
            t_.e(f"s_and_b32 s{S_T0}, s{S_H}, 7")
            t_.e(f"s_mul_i32 s{S_T0}, s{S_T0}, 32256")
            t_.e(f"s_lshl_b32 s{S_T1}, s{S_W}, 13")
            t_.e(f"s_add_u32 s{S_T0}, s{S_T0}, s{S_T1}")
            t_.e(f"v_lshlrev_b32 v{a0}, 7, v{pl}")
            t_.e(f"v_add_u32 v{a0}, s{S_T0}, v{a0}")
            t_.e(VM(f"buffer_load_dword v{V_PFD}, v{a0}, {sr(S_X)}, 0 offen{o.pfqpol}", "PF"))
            t_.e(f"s_and_b32 s{S_T0}, s{S_B}, 3")
            t_.e(f"s_mul_i32 s{S_T0}, s{S_T0}, 144")
            t_.e(f"s_mul_i32 s{S_T1}, s{S_W}, 36")
            t_.e(f"s_add_u32 s{S_T0}, s{S_T0}, s{S_T1}")
            t_.e(f"s_lshl_b32 s{S_T0}, s{S_T0}, 13")
            t_.e(f"v_lshrrev_b32 v{a0}, 1, v{pl}")
            t_.e(f"v_lshlrev_b32 v{a0}, 13, v{a0}")
            t_.e(f"v_and_b32 v{a1}, 1, v{pl}")
            t_.e(f"v_lshlrev_b32 v{a1}, 7, v{a1}")
            t_.e(f"v_add_u32 v{a0}, v{a0}, v{a1}")
            t_.e(f"v_add_u32 v{a0}, s{S_T0}, v{a0}")
            t_.e(VM(f"buffer_load_dword v{V_PFD}, v{a0}, {sr(S_WQ)}, 0 offen{o.pfqpol}", "PF"))
            t_.e(f"v_add_u32 v{a1}, {32*8192}, v{a0}")
            t_.e(f"v_mov_b32 v{a0}, 0x40000000")
            t_.e(f"v_cmp_gt_u32 vcc, 8, v{pl}")
            t_.e(f"v_cndmask_b32 v{a1}, v{a0}, v{a1}, vcc")
            t_.e(VM(f"buffer_load_dword v{V_PFD}, v{a1}, {sr(S_WQ)}, 0 offen{o.pfqpol}", "PF"))
        if self.pf_on:
            t_.e(f"s_lshr_b32 s{S_T0}, s{S_W}, 1")
            t_.e(f"s_cmp_eq_u32 s{S_T0}, 0")
            t_.e(f"s_cselect_b32 s{S_PF}, s{S_K}, s{S_V}")
            t_.e(f"s_cselect_b32 s{S_PF+1}, s{S_K+1}, s{S_V+1}")
            t_.e(f"s_and_b32 s{S_T0}, s{S_W}, 1")
            t_.e(f"s_lshl_b32 s{S_T0}, s{S_T0}, 13")
            t_.e(f"s_add_u32 s{S_PF}, s{S_PF}, s{S_T0}")
            t_.e(f"s_addc_u32 s{S_PF+1}, s{S_PF+1}, 0")
            t_.e(f"s_sub_u32 s{S_PF+2}, 262144, s{S_T0}")
            t_.e(f"s_mov_b32 s{S_PF+3}, 0x00020000")
            t_.e(f"v_lshlrev_b32 v112, 7, v{V_T0}")
            if o.pf0: t_.e(f"v_add_u32 v112, {o.pf0*16384}, v112")
            self.pfreg = 112
            for i in range(self.pfc[0]):
                t_.e(VM(f"buffer_load_dword v{V_PFD}, v112, {sr(S_PF)}, 0 offen{o.pfpol}", "PF"))
                t_.e(f"v_add_u32 v112, 16384, v112")
        t_.many(self.stamp("k0"))
        self.emit_kv_addr(rd=True, dma=False)
        sc = f32(1.4426950408889634 / (128 ** 0.5))
        t_.e(f"s_mov_b32 s{S_SC}, {hex(sc)}")
        t_.e(f"s_mov_b32 s{S_PASS}, 0")
        t_.e(f"v_bfe_u32 v{r4}, v{L}, 2, 2")
        t_.e(f"v_and_b32 v{c4}, 3, v{L}")
        t_.e(f"v_lshrrev_b32 v{t}, 1, v{l15}")
        t_.e(f"v_xor_b32 v{t}, v{t}, v{g}")
        t_.e(f"v_lshlrev_b32 v{t}, 4, v{t}")
        t_.e(f"v_lshlrev_b32 v{u}, 7, v{l15}")
        t_.e(f"s_mul_i32 s{S_T0}, s{S_QH}, {112*128}")
        t_.e(f"v_add_u32 v{u}, s{S_T0}, v{u}")
        t_.e(f"v_add_u32 v{V_XR}, v{t}, v{u}")
        t_.e(f"v_xor_b32 v{t}, 64, v{t}")
        t_.e(f"v_add_u32 v{V_XR+1}, v{t}, v{u}")
        t_.e(f"v_add_u32 v{V_XR+2}, 90112, v{V_XR}")
        t_.e(f"v_add_u32 v{V_XR+3}, 90112, v{V_XR+1}")
        t_.e(f"s_lshl_b32 s{S_T0}, s{S_KH}, 1")
        t_.e(f"v_xor_b32 v{t}, s{S_T0}, v{r4}")
        t_.e(f"v_lshlrev_b32 v{t}, 6, v{t}")
        t_.e(f"v_lshlrev_b32 v{u}, 3, v{g}")
        t_.e(f"v_add_u32 v{u}, v{u}, v{r4}")
        t_.e(f"v_lshlrev_b32 v{u}, 8, v{u}")
        t_.e(f"v_lshlrev_b32 v{c4}, 4, v{c4}")
        t_.e(f"v_add_u32 v{u}, v{u}, v{c4}")
        t_.e(f"v_add_u32 v{u}, 28672, v{u}")
        t_.e(f"v_add_u32 v{V_WR}, v{t}, v{u}")
        t_.e(f"v_xor_b32 v{t}, 64, v{t}")
        t_.e(f"v_add_u32 v{V_WR+1}, v{t}, v{u}")
        t_.e(f"v_add_u32 v{V_WR+2}, 90112, v{V_WR}")
        t_.e(f"v_add_u32 v{V_WR+3}, 90112, v{V_WR+1}")
        t_.e(f"v_lshlrev_b32 v{t}, 4, v{L}")
        t_.e(f"s_mul_i32 s{S_T0}, s{S_QH}, 28672")
        t_.e(f"v_add_u32 v{V_QR}, s{S_T0}, v{t}")
        t_.e(f"s_mul_i32 s{S_T1}, s{S_KH}, 14336")
        t_.e(f"v_add_u32 v{V_QW}, s{S_T1}, v{V_QR}")
        for i in range(28):
            t_.e(f"v_mov_b32 v{V_NEGM+i}, 0")
        t_.e(f"v_mov_b32 v{t}, 0x3f803f80")
        for i in range(4):
            t_.e(f"v_accvgpr_write_b32 a{A_ONES+i}, v{t}")
        if self.pf_on:
            t_.e(f"v_mov_b32 v{V_PF}, v112")
        for k in range(9):
            t_.c(f"---- Q-proj period {k}")
            t_.many(self.stamp(f"a{k}"))
            t_.e(WV(f"X{k}"))
            t_.many(self.stamp(f"w{k}"))
            if k: t_.e(WL(f"R{k-1}"))
            t_.e("s_barrier")
            t_.many(self.stamp(f"p{k}"))
            rd = self.q_reads(k)
            if k <= 6:
                dm = self.x_dma(k + 2)
            elif k == 7:
                dm = self.kv_dma("V", 0, "0") + [f"s_mov_b32 s{S_SOKV}, 16384"] + self.kv_dma("K", 1, f"s{S_SOKV}") + \
                     self.kv_dma("V", 1, f"s{S_SOKV}")
            else:
                dm = [f"s_mov_b32 s{S_SOKV}, 32768"] + self.kv_dma("K", 2, f"s{S_SOKV}") + self.kv_dma("V", 2, f"s{S_SOKV}")
            for i in range(self.pfc[k + 1]): dm = dm + self.kv_touch()
            if k == 0:
                t_.many(rd); t_.many(self.stamp("r0")); t_.many(dm)
                continue
            S = Sched(self.q_mfmas(k - 1, k == 1))
            pos = [g for g in range(56) if g % 5 != 2][:len(rd)]
            for p_, r_ in zip(pos, rd): S.post[p_].append(r_)
            nvm = sum(isinstance(x, VM) for x in dm)
            step = 56.0 / nvm
            i = 0
            pend = []
            for x in dm:
                if isinstance(x, VM):
                    gpos = int(i * step + 2 - (i * step + 2) % 1)
                    gpos = min(55, gpos)
                    if pend:
                        S.post[gpos - 1] += pend; pend = []
                    S.post[gpos].append(x); i += 1
                else:
                    pend.append(x)
            if pend: S.post[55] += pend
            if o.fused and k in (3, 4, 8):
                extra = {3: self.b_addr_s, 4: self.b_addr_v, 8: self.b_srd}[k]()
                for i, x in enumerate(extra): S.post[38 + (i * 17) // len(extra)].append(x)
            S.emit(t_)
        t_.c("---- Q-proj period 9 + finalisation")
        t_.e(WL("R8"))
        t_.e("s_barrier")
        t_.many(self.stamp("p9"))
        groups = [(jj, qt) for jj in range(2) for qt in range(7)]
        mf = []
        for (jj, qt) in groups:
            for s in range(2):
                for T in (2 * jj, 2 * jj + 1):
                    mf.append(self.q_mf(8, s, T, qt, False))
        S = Sched(mf)
        def fin(gi):
            jj, qt = groups[gi]
            tb = V_QT + (gi & 1) * 4
            r0 = ((2 * jj) * 7 + qt) * 4
            r1 = ((2 * jj + 1) * 7 + qt) * 4
            m0_ = [f"v_mul_f32 v{r0+i}, s{S_SC}, v{r0+i}" for i in range(4)]
            m1_ = [f"v_mul_f32 v{r1+i}, s{S_SC}, v{r1+i}" for i in range(4)]
            c_ = [f"v_cvt_pk_bf16_f32 v{tb}, v{r0}, v{r0+1}", f"v_cvt_pk_bf16_f32 v{tb+1}, v{r0+2}, v{r0+3}",
                  f"v_cvt_pk_bf16_f32 v{tb+2}, v{r1}, v{r1+1}", f"v_cvt_pk_bf16_f32 v{tb+3}, v{r1+2}, v{r1+3}"]
            w_ = DS(f"ds_write_b128 v{V_QW}, {vr(tb)} offset:{(jj*7+qt)*1024}", "qw")
            return m0_, m1_, c_, w_
        for gi in range(13):
            m0_, m1_, c_, w_ = fin(gi)
            b = 4 * (gi + 1) + 1
            S.post[b] += m0_; S.post[b + 1] += m1_; S.post[b + 2] += c_; S.post[b + 3] += [w_]
        kr = [self.k_read(kt, ks, 0) for kt in range(2) for ks in range(4)]
        for i, x in enumerate(kr): S.post[i].append(x)
        S.emit(t_)
        t_.e("s_nop 7")
        m0_, m1_, c_, w_ = fin(13)
        t_.many(m0_); t_.many(m1_); t_.many(c_); t_.e(w_)
        t_.e(WL("qw"))
        t_.e(WV("V0"))
        t_.e("s_barrier")
        t_.many(self.stamp("qx"))
        if o.dbgq:
            for qt in range(7): t_.many(self.q_read(qt))
            t_.e(WALL('l'))
            t_.e(f"s_lshl_b32 s{S_T0}, s2, 2")
            t_.e(f"s_add_u32 s{S_T0}, s{S_T0}, s{S_W}")
            t_.e(f"s_mul_i32 s{S_T0}, s{S_T0}, 28672")
            t_.e(f"s_add_u32 s{S_T0}, s{S_T0}, {32<<20}")
            t_.e(f"s_mov_b32 s{S_O+2}, {256<<20}")
            t_.e(f"v_and_b32 v{V_T0}, 63, v{V_TID}")
            t_.e(f"v_lshlrev_b32 v{V_T0}, 4, v{V_T0}")
            for i in range(28):
                t_.e(f"buffer_store_dwordx4 {ar(A_Q + i*4)}, v{V_T0}, {sr(S_O)}, s{S_T0} offen")
                t_.e(f"s_add_u32 s{S_T0}, s{S_T0}, 1024")
            t_.e("s_waitcnt vmcnt(0)")
            t_.e(f"s_mov_b32 s{S_O+2}, {112*self.QS}")
        t_.lab("A_ATT")
        t_.many(self.q_read(0)); t_.many(self.q_read(1))
        t_.e(f"v_add_u32 v{V_OFFKV}, {3*16384}, v{V_OFFKV}")
        t_.e(f"v_add_u32 v{V_OFFKV+1}, {3*16384}, v{V_OFFKV+1}")
        self.preamble(True)
        self.body()
        self.epilogue()
        t_.lab("CT_END")
        self.slowpath()
        t_.lab("A_END")
        t_.e("s_endpgm")
        return "\n".join(t_.L)

    def preamble(self, with_q):
        t_ = self.t
        vr_ = [self.v_read(tp, hf, 0) for tp in range(7) for hf in range(2)]
        t_.e(WL("k0.0", "k0.1", "q0"))
        S = Sched(self.qk_mfmas(0, 0))
        for i, x in enumerate(vr_): S.post[i // 2].append(x)
        if with_q:
            q2 = self.q_read(2)
            S.post[7] += q2
        S.emit(t_)
        t_.e(WL("q1"))
        m1 = self.qk_mfmas(1, 1)
        ex = self.exps(0); cv = self.cvts(0)
        S = Sched(m1)
        S.post[0] += ex[0:2]; S.post[1] += ex[2:4]; S.post[2] += ex[4:6]; S.post[3] += ex[6:8]
        S.post[4] += cv[0:2]; S.post[5] += cv[2:4]
        S.emit(t_)
        t_.many(self.stamp("pre"))

    def body(self):
        t_ = self.t
        texts = []
        start = len(t_.L)
        for n in range(4):
            self.tile(n)
            t_.many(self.stamp(f"t{n}"))
        i0 = len(t_.L)
        if self.o.unroll:
            for n in range(4, 12): self.tile(n)
            t_.many(self.stamp("t11"))
            for n in range(12, 16): self.tile(n)
            t_.many(self.stamp("t15"))
            return
        for n in range(4, 8): self.tile(n)
        i1 = len(t_.L)
        for n in range(8, 12): self.tile(n)
        i2 = len(t_.L)
        strip = lambda xs: [x for x in xs if not x.strip().startswith(";")]
        assert strip(t_.L[i0:i1]) == strip(t_.L[i1:i2]), "loop iterations differ"
        body = t_.L[i0:i1]
        t_.L = t_.L[:i0]
        t_.e(f"s_mov_b32 s{S_CNT}, 2")
        t_.lab("A_LOOP")
        t_.L += body
        t_.e(f"s_sub_u32 s{S_CNT}, s{S_CNT}, 1")
        t_.e(f"s_cmp_lg_u32 s{S_CNT}, 0")
        t_.e("s_cbranch_scc1 A_LOOP")
        t_.many(self.stamp("t11"))
        for n in range(12, 16):
            self.tile(n)
            t_.many(self.stamp(f"t{n}"))

    def fin_tile(self, qt, pb, tb, lt):
        r = []
        ob = V_OOWN + qt * 16
        r.append(f"v_accvgpr_read_b32 v{lt}, a{A_L + 4*qt}")
        r.append(f"v_add_f32 v{lt}, v{lt}, v{lt+1}")
        r.append(f"v_rcp_f32 v{lt}, v{lt}")
        for k in range(8):
            r.append(f"v_pk_add_f32 {vr(ob+2*k,2)}, {vr(ob+2*k,2)}, {vr(pb+2*k,2)}")
        for k in range(8):
            r.append(f"v_pk_mul_f32 {vr(ob+2*k,2)}, {vr(ob+2*k,2)}, {vr(lt,2)} op_sel:[0,0] op_sel_hi:[1,0]")
        for jj in range(2):
            s0 = ob + jj * 8
            for k in range(4):
                r.append(f"v_cvt_pk_bf16_f32 v{tb + jj*4 + k}, v{s0 + 2*k}, v{s0 + 2*k + 1}")
        pol = " sc1" if (self.o.osc1 or self.o.fused) else ""
        for jj in range(2):
            off = " offset:1024" if jj else ""
            r.append(VM(f"buffer_store_dwordx4 {vr(tb + jj*4)}, v{V_T0+1}, {sr(S_O)}, s{S_OB} offen{off}{pol}", "ost"))
        r.append(f"s_add_u32 s{S_OB}, s{S_OB}, {self.QS}")
        return r

    def p_reads(self, qt, pb, lt):
        r = []
        for tpp in range(4):
            i = qt * 4 + tpp
            r.append(DS(f"ds_read_b128 {vr(pb + tpp*4)}, v{V_KA+2} offset:{i*1024}", f"p{qt}"))
        r.append(DS(f"ds_read_b32 v{lt+1}, v{V_KA+3} offset:{qt*256}", f"p{qt}"))
        return r

    def epilogue(self):
        t_ = self.t
        o = self.o
        t_.c("---- epilogue")
        PB = [112, 128, 144, 160]
        LT = [V_NEGM + 16, V_NEGM + 18, V_NEGM + 20, V_NEGM + 22]
        TB = [V_NEGM, V_NEGM + 8]
        t_.many(self.p_reads(0, PB[0], LT[0]))
        t_.many(self.p_reads(1, PB[1], LT[1]))
        t_.e("s_nop 7")
        t_.many(self.o_writes(6))
        t_.many(self.p_reads(2, PB[2], LT[2]))
        t_.many(self.p_reads(3, PB[3], LT[3]))
        T = V_S
        lo, hi = f32(2.0 ** -24), f32(2.0 ** 30)
        t_.e(f"s_mov_b32 s{S_T0}, {hex(lo)}")
        t_.e(f"s_mov_b32 s{S_T1}, {hex(hi - lo)}")
        for qt in range(7):
            t_.e(f"v_accvgpr_read_b32 v{T+qt}, a{A_L + 4*qt}")
        t_.e(f"v_subrev_u32 v{T+8}, s{S_T0}, v{T}")
        for qt in range(1, 7):
            t_.e(f"v_subrev_u32 v{T+9}, s{S_T0}, v{T+qt}")
            t_.e(f"v_max_u32 v{T+8}, v{T+8}, v{T+9}")
        t_.e(f"v_cmp_lt_u32 vcc, s{S_T1}, v{T+8}")
        t_.e(f"s_lshl_b32 s{S_T3}, s{S_W}, 2")
        t_.e(f"s_add_u32 s{S_T3}, s{S_T3}, {FOFF}")
        t_.e(f"s_cmp_lg_u64 vcc, 0")
        t_.e(f"s_cselect_b32 s{S_T2}, 1, 0")
        t_.e(f"v_mov_b32 v{T+10}, s{S_T2}")
        t_.e(f"v_and_b32 v{T+11}, 3, v{V_TID}")
        t_.e(f"v_mul_u32_u24 v{T+11}, {RG}, v{T+11}")
        t_.e(f"v_add_u32 v{T+11}, s{S_T3}, v{T+11}")
        t_.e(DS(f"ds_write_b32 v{T+11}, v{T+10}", "fl"))
        for qt in range(4):
            t_.e(WL(f"p{qt}"))
            t_.many(self.fin_tile(qt, PB[qt], TB[qt & 1], LT[qt]))
            if o.fused: t_.many(self.wo_dma(2 + qt))
        t_.e(WL("fl", "ow4", "ow5", "ow6"))
        t_.e("s_barrier")
        t_.many(self.stamp("e1"))
        F = V_P + 4
        t_.e(f"s_mul_i32 s{S_T0}, s{S_W}, {RG}")
        t_.e(f"s_add_u32 s{S_T0}, s{S_T0}, {FOFF}")
        t_.e(f"v_mov_b32 v{T+11}, s{S_T0}")
        t_.e(DS(f"ds_read_b128 {vr(F)}, v{T+11}", "flr"))
        for qt in range(4, 7):
            t_.many(self.p_reads(qt, PB[qt - 4], LT[qt - 4]))
        t_.e(WL("flr"))
        t_.e(f"v_or_b32 v{F}, v{F}, v{F+1}")
        t_.e(f"v_or_b32 v{F+2}, v{F+2}, v{F+3}")
        t_.e(f"v_or_b32 v{F}, v{F}, v{F+2}")
        t_.e("s_nop 1")
        t_.e(f"v_readfirstlane_b32 s{S_T0}, v{F}")
        t_.e(f"s_xor_b32 s{S_T1}, s{S_PASS}, 1")
        t_.e(f"s_and_b32 s{S_T0}, s{S_T0}, s{S_T1}")
        t_.e(f"s_cmp_lg_u32 s{S_T0}, 0")
        t_.e("s_cbranch_scc1 A_SLOW")
        for qt in range(4, 7):
            t_.e(WL(f"p{qt}"))
            if o.fused:
                t_.many(self.wo_dma(2 + qt))
                if qt == 6: t_.many(self.wo_dma(9))
            t_.many(self.fin_tile(qt, PB[qt - 4], TB[qt & 1], LT[qt - 4]))
        t_.many(self.stamp("e2"))
        if o.fused: self.phase_b()
        if o.stamps:
            t_.e(f"s_memrealtime s[{S_ST+38}:{S_ST+39}]")
            t_.e("s_waitcnt lgkmcnt(0)")
            t_.e(f"s_cmp_lg_u32 s{S_W}, 0")
            t_.e("s_cbranch_scc1 A_END")
            ns = 20
            t_.e(f"s_mul_i32 s{S_T0}, s2, {ns*4*2}")
            t_.e(f"s_add_u32 s{S_T0}, s{S_T0}, {64<<20}")
            t_.e(f"s_mov_b32 s{S_O+2}, {256<<20}")
            t_.e(f"v_mov_b32 v{V_T0+1}, 0")
            for i in range(ns * 2):
                if 2 * self.nst <= i < 36:
                    t_.e(f"v_mov_b32 v{V_T0}, 0")
                else:
                    t_.e(f"v_mov_b32 v{V_T0}, s{S_ST+i}")
                t_.e(f"buffer_store_dword v{V_T0}, v{V_T0+1}, {sr(S_O)}, s{S_T0} offen offset:{i*4}")
                t_.e("s_nop 1")
        t_.e("s_endpgm")

    def b_addr_v(self):
        L, t0, t1, t2 = 184, 185, 186, 187
        r = []
        r.append(f"v_and_b32 v{L}, 63, v{V_TID}")
        r.append(f"v_lshrrev_b32 v{t0}, 3, v{L}")
        r.append(f"v_and_b32 v{t1}, 7, v{L}")
        r.append(f"v_bfe_u32 v{t2}, v{L}, 4, 2")
        r.append(f"v_lshlrev_b32 v{t2}, 1, v{t2}")
        r.append(f"v_xor_b32 v{t1}, v{t1}, v{t2}")
        r.append(f"v_lshlrev_b32 v{t1}, 4, v{t1}")
        r.append(f"v_mul_u32_u24 v{t0}, 1152, v{t0}")
        r.append(f"v_add_u32 v{V_WOF}, v{t0}, v{t1}")
        for i in range(1, 4):
            r.append(f"v_add_u32 v{V_WOF+i}, {i*(9216-1024)}, v{V_WOF}")
        r.append(f"v_lshrrev_b32 v{t0}, 2, v{L}")
        r.append(f"v_bfe_u32 v{t1}, v{L}, 3, 2")
        r.append(f"v_lshlrev_b32 v{t1}, 5, v{t1}")
        r.append(f"v_lshlrev_b32 v{t0}, 7, v{t0}")
        r.append(f"v_and_b32 v{t2}, 3, v{L}")
        r.append(f"v_lshlrev_b32 v{t2}, 3, v{t2}")
        r.append(f"v_add_u32 v{t0}, v{t0}, v{t2}")
        r.append(f"v_add_u32 v{t0}, s{S_RB}, v{t0}")
        for nt in range(4):
            r.append(f"v_xor_b32 v{V_TR+nt}, {nt*32}, v{t1}")
            r.append(f"v_add_u32 v{V_TR+nt}, v{V_TR+nt}, v{t0}")
        return r

    def b_addr_s(self):
        r = []
        r.append(f"s_mul_i32 s{S_RB}, s{S_W}, {RG}")
        r.append(f"s_and_b32 s{S_T0}, s2, 7")
        r.append(f"s_lshr_b32 s{S_T1}, s2, 3")
        r.append(f"s_and_b32 s{S_T2}, s{S_T0}, 1")
        r.append(f"s_lshl_b32 s{S_T2}, s{S_T2}, 5")
        r.append(f"s_add_u32 s{S_T1}, s{S_T1}, s{S_T2}")
        r.append(f"s_lshr_b32 s{S_T0}, s{S_T0}, 1")
        r.append(f"s_mul_i32 s{S_T0}, s{S_T0}, 7")
        if self.o.bmap == 0:
            r.append(f"s_mul_i32 s{S_NG}, s{S_T1}, 37")
            r.append(f"s_lshr_b32 s{S_NG}, s{S_NG}, 8")
            r.append(f"s_mul_i32 s{S_T2}, s{S_NG}, 7")
            r.append(f"s_sub_u32 s{S_T2}, s{S_T1}, s{S_T2}")
            r.append(f"s_add_u32 s{S_MG}, s{S_T2}, s{S_T0}")
        else:
            r.append(f"s_mul_i32 s{S_T2}, s{S_T1}, 57")
            r.append(f"s_lshr_b32 s{S_T2}, s{S_T2}, 9")
            r.append(f"s_add_u32 s{S_MG}, s{S_T2}, s{S_T0}")
            r.append(f"s_mul_i32 s{S_T2}, s{S_T2}, 9")
            r.append(f"s_sub_u32 s{S_NG}, s{S_T1}, s{S_T2}")
        r.append(f"s_cmp_ge_u32 s{S_T1}, 63")
        r.append(f"s_cselect_b32 s{S_NG}, 15, s{S_NG}")
        r.append(f"s_cselect_b32 s{S_MG}, 0, s{S_MG}")
        if self.o.brot:
            r.append(f"s_mul_i32 s{S_ROT}, s{S_NG}, {self.o.brot * 1024}")
        r.append(f"s_mul_i32 s{S_T0}, s{S_W}, {1024*1152}")
        r.append(f"s_lshl_b32 s{S_T1}, s{S_NG}, 7")
        r.append(f"s_add_u32 s{S_SW}, s{S_T0}, s{S_T1}")
        r.append(f"s_mul_i32 s{S_T0}, s{S_MG}, {4*self.QS}")
        r.append(f"s_lshl_b32 s{S_T1}, s{S_W}, 15")
        r.append(f"s_add_u32 s{S_SO}, s{S_T0}, s{S_T1}")
        r.append(f"s_lshl_b32 s{S_T0}, s{S_MG}, 2")
        r.append(f"s_mul_i32 s{S_T1}, s{S_T0}, 147")
        r.append(f"s_lshr_b32 s{S_T1}, s{S_T1}, 11")
        r.append(f"s_lshl_b32 s{S_L0}, s{S_T1}, 3")
        r.append(f"s_add_u32 s{S_T0}, s{S_T0}, 3")
        r.append(f"s_mul_i32 s{S_T1}, s{S_T0}, 147")
        r.append(f"s_lshr_b32 s{S_T1}, s{S_T1}, 11")
        r.append(f"s_lshl_b32 s{S_L1}, s{S_T1}, 3")
        return r

    def b_srd(self):
        r = []
        r.append(f"s_mov_b32 s{S_WO}, s4"); r.append(f"s_mov_b32 s{S_WO+1}, s5")
        r.append(f"s_mov_b32 s{S_WO+2}, {4096*1152}"); r.append(f"s_mov_b32 s{S_WO+3}, 0x00020000")
        r.append(f"s_mov_b32 s{S_OUT}, s6"); r.append(f"s_mov_b32 s{S_OUT+1}, s7")
        r.append(f"s_mov_b32 s{S_OUT+2}, {1792*1152}"); r.append(f"s_mov_b32 s{S_OUT+3}, 0x00020000")
        return r

    @staticmethod
    def slot(f): return (f + 8) % 10

    def btime(self, f):
        NR, NL = self.o.nr, 10
        order = list(range(NR, NR + NL)) + list(range(NR)) + list(range(NR + NL, 32))
        return order.index(f)

    def wo_dma(self, f):
        if self.o.brot:
            r = [f"s_add_u32 s{S_RT}, s{S_ROT}, {self.btime(f)*1024}", f"s_and_b32 s{S_RT}, s{S_RT}, 0x7fff",
                 f"s_mul_i32 s{S_RT}, s{S_RT}, 36", f"s_add_u32 s{S_SWC}, s{S_SW}, s{S_RT}",
                 f"s_add_u32 m0, s{S_RB}, {self.slot(f)*4096}"]
            for i in range(4):
                off = f" offset:{i*1024}" if i else ""
                r.append(VM(f"buffer_load_dwordx4 v{V_WOF+i}, {sr(S_WO)}, s{S_SWC} offen{off} lds", f"W{f}"))
            return r
        fa = f % self.o.wsm if self.o.wsm else f
        r = [f"s_add_u32 s{S_SWC}, s{S_SW}, {fa*32*1152}", f"s_add_u32 m0, s{S_RB}, {self.slot(f)*4096}"]
        for i in range(4):
            off = f" offset:{i*1024}" if i else ""
            r.append(VM(f"buffer_load_dwordx4 v{V_WOF+i}, {sr(S_WO)}, s{S_SWC} offen{off} lds", f"W{f}"))
        return r

    def tr_reads(self, f, unit):
        k, b = unit
        r = []
        for nt in range(4):
            for hf in range(2):
                r.append(DS(f"ds_read_b64_tr_b16 {k}[{b + nt*4 + 2*hf}:{b + nt*4 + 2*hf + 1}], v{V_TR+nt} offset:{self.slot(f)*4096 + hf*2048}", f"t{f}"))
        return r

    def phase_b(self):
        t_, o = self.t, self.o
        NR, D, NL = o.nr, o.od, 10
        units = [("a", 16*i) for i in range(16)] + [("v", 64 + 16*i) for i in range(10)]
        assert NR + 2 + D <= len(units)
        res = units[:NR]; jit = units[-(D + 2):-D]; ring = units[-D:]
        U = lambda u, off: f"{u[0]}[{u[1]+off}:{u[1]+off+3}]"
        NK = 32
        order = list(range(NR, NR + NL)) + list(range(NR)) + list(range(NR + NL, NK))
        t_.c("---- out-projection: weight prefetch + publish")
        t_.e(WV("PW"))
        for mi in range(1, 4):
            t_.e(f"v_add_u32 v{V_OO[mi]}, {mi*self.QS}, v{V_OO[0]}")
        def publish():
            t_.e(WV("ost"))
            t_.e("s_barrier")
            t_.e(f"s_cmp_lg_u32 s{S_W}, {o.pubw}")
            t_.e("s_cbranch_scc1 B_PUB")
            if o.pubmode == 0:
                t_.e(f"s_lshl_b32 s{S_T0}, s{S_B}, 5")
                t_.e(f"v_mov_b32 v{V_S}, s{S_T0}")
                t_.e(f"v_mov_b32 v{V_S+1}, 1")
                t_.e("s_mov_b64 exec, 1")
                t_.e(f"global_atomic_add v{V_S}, v{V_S+1}, s[8:9]")
                t_.e("s_mov_b64 exec, -1")
            else:
                t_.e(f"s_lshl_b32 s{S_T0}, s{S_B}, 5")
                t_.e(f"s_add_u32 s{S_T0}, s{S_T0}, s{S_H}")
                t_.e(f"v_mov_b32 v{V_S}, s{S_T0}")
                t_.e(f"v_mov_b32 v{V_S+1}, 1")
                t_.e("s_mov_b64 exec, 1")
                t_.e(f"global_store_byte v{V_S}, v{V_S+1}, s[8:9] sc1")
                t_.e("s_mov_b64 exec, -1")
            t_.lab("B_PUB")
            t_.many(self.stamp("pub"))
            t_.e(f"s_cmp_eq_u32 s{S_NG}, 15")
            t_.e("s_cbranch_scc1 A_END")
        published = False
        nxt = NL
        for f in range(NR):
            if f == o.npre and not published:
                publish(); published = True
            t_.e(WV(f"W{f}"))
            t_.many(self.stamp(f"wf{f}"))
            if not (o.wdiag & 1): t_.many(self.tr_reads(f, res[f]))
            if f >= 1:
                t_.e(WL(f"t{f-1}"))
                if nxt < NK:
                    if not (o.wdiag & 2): t_.many(self.wo_dma(nxt))
                    nxt += 1
        if not published:
            publish(); published = True
        t_.e(WL(f"t{NR-1}"))
        if nxt < NK: t_.many(self.wo_dma(nxt)); nxt += 1
        for i in range(2):
            f = order[i]
            t_.e(WV(f"W{f}"))
            t_.many(self.tr_reads(f, jit[i]))
        for i in range(2):
            t_.e(WL(f"t{order[i]}"))
            if nxt < NK: t_.many(self.wo_dma(nxt)); nxt += 1
        t_.many(self.stamp("wpf"))
        P, Q = V_S, V_S + 1
        t_.e(f"s_cmp_lg_u32 s{S_W}, {o.pollw}")
        t_.e("s_cbranch_scc1 B_GO")
        if o.pubmode == 0:
            t_.e(f"v_and_b32 v{Q}, 63, v{V_TID}")
            t_.e(f"v_lshlrev_b32 v{Q}, 2, v{Q}")
            t_.e(f"s_mov_b32 s{S_CNT}, 200000")
            t_.lab("B_POLL")
            t_.e(f"global_load_dword v{P}, v{Q}, s[8:9] sc1")
            t_.e("s_waitcnt vmcnt(0)")
            t_.e(f"v_readlane_b32 s{S_T0}, v{P}, s{S_L0}")
            t_.e(f"v_readlane_b32 s{S_T1}, v{P}, s{S_L1}")
            t_.e(f"s_min_u32 s{S_T0}, s{S_T0}, s{S_T1}")
            t_.e(f"s_cmp_ge_u32 s{S_T0}, 32")
            t_.e("s_cbranch_scc1 B_GO")
        else:
            t_.e(f"v_and_b32 v{Q}, 63, v{V_TID}")
            t_.e(f"v_mov_b32 v{P}, s{S_L0}")
            t_.e(f"v_mov_b32 v{P+2}, s{S_L1}")
            t_.e(f"v_cmp_gt_u32 vcc, 8, v{Q}")
            t_.e(f"v_cndmask_b32 v{P}, v{P+2}, v{P}, vcc")
            t_.e(f"v_and_b32 v{Q}, 7, v{Q}")
            t_.e(f"v_add_u32 v{Q}, v{Q}, v{P}")
            t_.e(f"v_lshlrev_b32 v{Q}, 2, v{Q}")
            t_.e(f"s_mov_b32 s{S_CNT}, 200000")
            t_.e(f"s_mov_b32 s{S_T1}, 0x01010101")
            t_.e("s_mov_b64 exec, 0xffff")
            t_.lab("B_POLL")
            t_.e(f"global_load_dword v{P}, v{Q}, s[8:9] sc1")
            t_.e("s_waitcnt vmcnt(0)")
            t_.e(f"v_cmp_ne_u32 vcc, s{S_T1}, v{P}")
            t_.e("s_nop 4")
            t_.e("s_cbranch_vccz B_PD")
        t_.e(f"s_sub_u32 s{S_CNT}, s{S_CNT}, 1")
        t_.e(f"s_cmp_eq_u32 s{S_CNT}, 0")
        t_.e(f"s_cbranch_scc1 {'B_PD' if o.pubmode else 'B_GO'}")
        t_.e(f"s_sleep {o.psleep}")
        t_.e("s_branch B_POLL")
        if o.pubmode:
            t_.lab("B_PD")
            t_.e("s_mov_b64 exec, -1")
        t_.lab("B_GO")
        t_.e("s_barrier")
        t_.many(self.stamp("poll"))
        def o_soff(i):
            if o.brot:
                return [f"s_add_u32 s{S_RT}, s{S_ROT}, {i*1024}", f"s_and_b32 s{S_RT}, s{S_RT}, 0x7fff", f"s_add_u32 s{S_SOC}, s{S_SO}, s{S_RT}"]
            return [f"s_add_u32 s{S_SOC}, s{S_SO}, {order[i]*1024}"]
        def o_load(i, mi):
            if o.bnold and i >= D: return "s_nop 0"
            return VM(f"buffer_load_dwordx4 {U(ring[i % D], mi*4)}, v{V_OO[mi]}, {sr(S_O)}, s{S_SOC} offen{' sc1' if o.olsc else ''}", f"O{i}.{mi}")
        if o.b2x:
            t_.e(f"s_mov_b32 s{S_CNT}, 2")
            t_.lab("B_2X")
        for i in range(D):
            t_.many(o_soff(i))
            for mi in range(4): t_.e(o_load(i, mi))
        for i in range(NK):
            f = order[i]
            inlds = f >= NR
            wu = jit[i & 1] if inlds else res[f]
            if i == NK - (NK - NR - NL) and (i & 1) != ((NL) & 1):
                pass
            mf = []
            for mi in range(4):
                for nt in range(4):
                    d = vr((mi*4 + nt)*4)
                    mf.append(f"{MF} {d}, {U(wu, nt*4)}, {U(ring[i % D], mi*4)}, {'0' if i == 0 else d}")
            if o.bnomf: mf = ["s_nop 0"] * 16
            S = Sched(mf)
            if inlds: S.pre[0].append(WL(f"t{f}"))
            if inlds: S.pre[0].append(WV(f"W{f}"))
            for mi in range(4): S.pre[4*mi].append(WV(f"O{i}.{mi}"))
            if i + D < NK:
                S.post[0] += o_soff(i + D)
                for mi in range(4): S.post[4*mi + 3].append(o_load(i + D, mi))
            if i + 1 < NK and order[i + 1] >= NR and (i + 1) >= 2:
                fn = order[i + 1]
                rd = self.tr_reads(fn, jit[(i + 1) & 1])
                S.post[1].append(WV(f"W{fn}"))
                for k, x in enumerate(rd): S.post[1 + k].append(x)
            if inlds and i >= 2 and nxt < NK:
                d = self.wo_dma(nxt); nxt += 1
                ns = len(d) - 4
                S.post[9] += d[:ns]; S.post[10].append(d[ns]); S.post[12].append(d[ns+1]); S.post[13].append(d[ns+2]); S.post[14].append(d[ns+3])
            S.emit(t_)
        assert nxt == NK
        if o.b2x:
            t_.e(f"s_cmp_eq_u32 s{S_CNT}, 2")
            t_.e("s_cbranch_scc0 B_2XE")
            t_.e(f"s_memtime s[{S_ST+2}:{S_ST+3}]")
            t_.e(f"s_mov_b32 s{S_CNT}, 1")
            t_.e("s_branch B_2X")
            t_.lab("B_2XE")
        t_.many(self.stamp("main"))
        t0, t1, t2, t3, t4, L = 64, 65, 66, 67, 68, 69
        TRW = 70
        t_.e(f"v_and_b32 v{L}, 63, v{V_TID}")
        t_.e(f"v_and_b32 v{t0}, 15, v{L}")
        t_.e(f"v_lshrrev_b32 v{t1}, 4, v{L}")
        t_.e(f"v_xor_b32 v{t1}, v{t1}, v{t0}")
        t_.e(f"v_lshlrev_b32 v{t1}, 4, v{t1}")
        t_.e(f"v_lshlrev_b32 v{t0}, 8, v{t0}")
        t_.e(f"v_add_u32 v{t0}, s{S_RB}, v{t0}")
        for nt in range(4):
            t_.e(f"v_xor_b32 v{TRW+nt}, {nt*64}, v{t1}")
            t_.e(f"v_add_u32 v{TRW+nt}, v{TRW+nt}, v{t0}")
        t_.e("s_nop 7")
        for mi in range(4):
            for nt in range(4):
                t_.e(DS(f"ds_write_b128 v{TRW+nt}, {vr((mi*4+nt)*4)} offset:{mi*4096}", "rw"))
        t_.e(f"v_lshrrev_b32 v{t0}, 3, v{L}")
        t_.e(f"s_lshl_b32 s{S_T0}, s{S_W}, 4")
        t_.e(f"v_add_u32 v{t0}, s{S_T0}, v{t0}")
        t_.e(f"v_and_b32 v{t1}, 7, v{L}")
        t_.e(f"v_lshlrev_b32 v{t1}, 1, v{t1}")
        AD = 80
        for ps in range(2):
            if ps: t_.e(f"v_add_u32 v{t0}, 8, v{t0}")
            t_.e(f"v_and_b32 v{t2}, 15, v{t0}")
            t_.e(f"v_xor_b32 v{t3}, v{t1}, v{t2}")
            t_.e(f"v_lshlrev_b32 v{t3}, 4, v{t3}")
            t_.e(f"v_lshlrev_b32 v{t4}, 8, v{t0}")
            t_.e(f"v_add_u32 v{AD+ps*4}, v{t3}, v{t4}")
            t_.e(f"v_xor_b32 v{AD+ps*4+1}, 16, v{AD+ps*4}")
            t_.e(f"v_add_u32 v{AD+ps*4+2}, {2*RG}, v{AD+ps*4}")
            t_.e(f"v_add_u32 v{AD+ps*4+3}, {2*RG}, v{AD+ps*4+1}")
            t_.e(f"s_lshl_b32 s{S_T0}, s{S_MG}, 6")
            t_.e(f"v_add_u32 v{t4}, s{S_T0}, v{t0}")
            t_.e(f"v_mul_u32_u24 v{t4}, 1152, v{t4}")
            t_.e(f"v_lshlrev_b32 v{t2}, 3, v{t1}")
            t_.e(f"v_add_u32 v{88+ps}, v{t4}, v{t2}")
        t_.e(WL("rw"))
        t_.e("s_barrier")
        R = 96
        for ps in range(2):
            for wv in range(4):
                for ch in range(2):
                    a = AD + ps*4 + ch + (2 if wv >= 2 else 0)
                    off = (wv & 1) * RG
                    t_.e(DS(f"ds_read_b128 {vr(R + ps*32 + wv*8 + ch*4)}, v{a} offset:{off}", f"rr{ps}"))
        t_.e(f"s_lshl_b32 s{S_T1}, s{S_NG}, 7")
        for ps in range(2):
            t_.e(WL(f"rr{ps}"))
            B_ = R + ps*32
            for k in range(4):
                t_.e(f"v_pk_add_f32 {vr(B_+2*k,2)}, {vr(B_+2*k,2)}, {vr(B_+8+2*k,2)}")
                t_.e(f"v_pk_add_f32 {vr(B_+16+2*k,2)}, {vr(B_+16+2*k,2)}, {vr(B_+24+2*k,2)}")
            for k in range(4):
                t_.e(f"v_pk_add_f32 {vr(B_+2*k,2)}, {vr(B_+2*k,2)}, {vr(B_+16+2*k,2)}")
            for k in range(4):
                t_.e(f"v_cvt_pk_bf16_f32 v{72 + ps*4 + k}, v{B_+2*k}, v{B_+2*k+1}")
            t_.e(VM(f"buffer_store_dwordx4 {vr(72 + ps*4)}, v{88+ps}, {sr(S_OUT)}, s{S_T1} offen", "out"))
        t_.many(self.stamp("end"))

    def slowpath(self):
        a = self.t
        a.lab("A_SLOW")
        a.c("---- fallback: true row maximum, then redo the attention loop with it")
        a.lq, a.vq = [], []
        a.e("s_waitcnt vmcnt(0) lgkmcnt(0)")
        a.e("s_barrier")
        a.e(f"s_mov_b32 s{S_PASS}, 1")
        self.emit_kv_addr()
        for qt in range(7):
            a.e(f"v_mov_b32 v{V_NEGM + 4*qt}, 0xff800000")
        KA = V_V
        for ks in range(4):
            a.e(f"v_subrev_u32 v{KA+ks}, {PAIR(0)+16384}, v{V_KA+ks}")
        a.e(f"s_mov_b32 s{S_SOKV}, 0")
        a.lab("A_MAXLOOP")
        a.many([x.t if isinstance(x, VM) else x for x in self.kv_dma("K", 0, f"s{S_SOKV}", lds=0)])
        a.e("s_waitcnt vmcnt(0)")
        a.e("s_barrier")
        for kt in range(2):
            for ks in range(4):
                off = f" offset:{kt*4096}" if kt else ""
                a.e(f"ds_read_b128 {vr(V_K + (kt*4+ks)*4)}, v{KA+ks}{off}")
        a.e("s_waitcnt lgkmcnt(0)")
        for qt in range(7):
            for kt in range(2):
                for ks in range(4):
                    d = vr(V_S + kt * 4)
                    a.e(f"{MF} {d}, {vr(V_K + (kt*4+ks)*4)}, {ar(A_Q + (qt*4+ks)*4)}, {'0' if ks == 0 else d}")
            a.e("s_nop 15")
            m = V_NEGM + 4 * qt
            for i in range(4):
                a.e(f"v_max3_f32 v{m}, v{m}, v{V_S+2*i}, v{V_S+2*i+1}")
            a.e("s_nop 3")
        a.e("s_barrier")
        a.e(f"s_add_u32 s{S_SOKV}, s{S_SOKV}, 16384")
        a.e(f"s_cmp_lt_u32 s{S_SOKV}, 262144")
        a.e("s_cbranch_scc1 A_MAXLOOP")
        L, t, u = V_T0, V_T0 + 1, V_T0 + 2
        a.e(f"v_and_b32 v{L}, 63, v{V_TID}")
        a.e(f"v_lshlrev_b32 v{t}, 2, v{L}")
        a.e(f"s_mul_i32 s{S_T0}, s{S_W}, 1792")
        a.e(f"s_add_u32 s{S_T0}, s{S_T0}, {MXX}")
        a.e(f"v_add_u32 v{t}, s{S_T0}, v{t}")
        for qt in range(7):
            a.e(f"ds_write_b32 v{t}, v{V_NEGM + 4*qt} offset:{qt*256}")
        a.e("s_waitcnt lgkmcnt(0)")
        a.e("s_barrier")
        a.e(f"v_and_b32 v{u}, 15, v{L}")
        a.e(f"v_lshlrev_b32 v{u}, 2, v{u}")
        a.e(f"s_mul_i32 s{S_T0}, s{S_QH}, 3584")
        a.e(f"s_add_u32 s{S_T0}, s{S_T0}, {MXX}")
        a.e(f"v_add_u32 v{u}, s{S_T0}, v{u}")
        for qt in range(7):
            for i in range(8):
                off = (i >> 2) * 1792 + qt * 256 + (i & 3) * 64
                a.e(f"ds_read_b32 v{V_S+i}, v{u} offset:{off}")
            a.e("s_waitcnt lgkmcnt(0)")
            m = V_NEGM + 4 * qt
            a.e(f"v_max3_f32 v{m}, v{V_S}, v{V_S+1}, v{V_S+2}")
            a.e(f"v_max3_f32 v{m}, v{m}, v{V_S+3}, v{V_S+4}")
            a.e(f"v_max3_f32 v{m}, v{m}, v{V_S+5}, v{V_S+6}")
            a.e(f"v_max_f32 v{m}, v{m}, v{V_S+7}")
            a.e(f"v_sub_f32 v{m}, 0, v{m}")
            for i in range(1, 4):
                a.e(f"v_mov_b32 v{m+i}, v{m}")
        a.e("s_barrier")
        a.e(f"v_lshlrev_b32 v{t}, 4, v{L}")
        a.e(f"s_mul_i32 s{S_T0}, s{S_QH}, 28672")
        a.e(f"v_add_u32 v{V_QR}, s{S_T0}, v{t}")
        for ks in range(4):
            for qt in range(7):
                a.e(f"ds_write_b128 v{V_QR}, {ar(A_Q + (qt*4+ks)*4)} offset:{(ks*7+qt)*1024}")
        strip = lambda xs: [x.t if isinstance(x, VM) else x for x in xs]
        a.many(strip(self.kv_dma("K", 0, "0")))
        a.many(strip(self.kv_dma("V", 0, "0")))
        a.e(f"s_mov_b32 s{S_SOKV}, 16384")
        a.many(strip(self.kv_dma("K", 1, f"s{S_SOKV}")))
        a.many(strip(self.kv_dma("V", 1, f"s{S_SOKV}")))
        a.e(f"s_mov_b32 s{S_SOKV}, 32768")
        a.many(strip(self.kv_dma("K", 2, f"s{S_SOKV}")))
        a.many(strip(self.kv_dma("V", 2, f"s{S_SOKV}")))
        if self.o.fused: a.many(self.b_addr_v())
        if self.pf_on: a.e(f"v_mov_b32 v{V_PF}, 0x40000000")
        a.e(f"s_waitcnt vmcnt(16) lgkmcnt(0)")
        a.e("s_barrier")
        for kt in range(2):
            for ks in range(4):
                a.e(self.k_read(kt, ks, 0).t)
        a.e("s_branch A_ATT")


def main():
    import gen as G1
    ap = argparse.ArgumentParser()
    ap.add_argument("-o", default="cdna_kernels/" + NAME + ".s")
    ap.add_argument("--nt", type=int, default=0)
    ap.add_argument("--stamps", type=int, default=0)
    ap.add_argument("--dbgq", type=int, default=0)
    ap.add_argument("--bw", type=int, default=8)
    ap.add_argument("--brs", type=int, default=4)
    ap.add_argument("--only", default="")
    ap.add_argument("--rts", type=int, default=0)
    ap.add_argument("--osc1", type=int, default=0)
    ap.add_argument("--probe", default="")
    ap.add_argument("--fused", type=int, default=1)
    ap.add_argument("--bmap", type=int, default=0)
    ap.add_argument("--nr", type=int, default=16)
    ap.add_argument("--od", type=int, default=8)
    ap.add_argument("--npre", type=int, default=4)
    ap.add_argument("--opad", type=int, default=0)
    ap.add_argument("--bnomf", type=int, default=0)
    ap.add_argument("--bnold", type=int, default=0)
    ap.add_argument("--b2x", type=int, default=0)
    ap.add_argument("--olsc", type=int, default=1)
    ap.add_argument("--ctouch", type=int, default=0)
    ap.add_argument("--unroll", type=int, default=0)
    ap.add_argument("--xpol", default="")
    ap.add_argument("--wqpol", default="")
    ap.add_argument("--stsel", default="start,karg,k0,p0,p1,p8,p9,qx,pre,t11,t15,e1,e2,pub,wpf,poll,main,end")
    ap.add_argument("--qrot", default="", help="alpha,beta,shift: r = ((alpha*h' + beta*b') >> shift) mod 9")
    ap.add_argument("--brot", type=int, default=0)
    ap.add_argument("--pubmode", type=int, default=0)
    ap.add_argument("--wsm", type=int, default=0)
    ap.add_argument("--wdiag", type=int, default=0)
    ap.add_argument("--pubw", type=int, default=0)
    ap.add_argument("--pollw", type=int, default=0)
    ap.add_argument("--psleep", type=int, default=1)
    ap.add_argument("--pfq", type=int, default=0)
    ap.add_argument("--pfc", default="0,0,0,0,0,0,0,0,0,0")
    ap.add_argument("--pf0", type=int, default=0)
    ap.add_argument("--pfa", type=int, default=0)
    ap.add_argument("--pfpol", default="")
    ap.add_argument("--pfqpol", default="")
    ap.add_argument("--pfas", type=int, default=6)
    ap.add_argument("--pfan", type=int, default=11)
    ap.add_argument("--pfw", type=int, default=0)
    ap.add_argument("--pfwt", type=int, default=12)
    ap.add_argument("--tlbt", type=int, default=0)
    ap.add_argument("--pfwpol", default="")
    o = ap.parse_args()
    if o.xpol: o.xpol = " " + o.xpol.replace("+", " ")
    if o.wqpol: o.wqpol = " " + o.wqpol.replace("+", " ")
    if o.pfpol: o.pfpol = " " + o.pfpol
    if o.pfqpol: o.pfqpol = " " + o.pfqpol
    if o.pfwpol: o.pfwpol = " " + o.pfwpol
    ga = GenA(o); ta = ga.gen()
    if o.fused:
        hdr = G1.HDR.replace("Launch 1: one workgroup", "Phase 1: one workgroup").replace("Launch 2: out = O * wo.", "Phase 2 (same launch, after a counter hand-off): out = O * wo.")
        if o.probe:
            hdr += f"; @launch kernel={NAME}_kernel grid=(256,1,1) block=(256,1,1) lds=163840\n"
            hdr += "; @launch kernel=probe_kernel grid=(1,1,1) block=(64,1,1) lds=0\n"
        else:
            hdr += "; @launch grid=(256,1,1) block=(256,1,1) lds=163840\n"
        txt = hdr + '.amdgcn_target "amdgcn-amd-amdhsa--gfx950"\n.text\n' + G1.fix_hazards(ta) + "\n"
        if o.probe:
            txt += G1.gen_probe(o.probe) + "\n"
        txt += '.section .rodata,"a"\n.p2align 6\n' + G1.descriptor(NAME + "_kernel", 512, 256)
        if o.probe:
            txt += ".p2align 6\n" + G1.descriptor("probe_kernel", 32, 32)
        open(o.o, "w").write(txt)
        print("wrote", o.o, len(txt), "bytes; stamps", ga.nst)
        return
    gb = G1.GenB(o); tb = gb.gen()
    hdr = G1.HDR
    blds = max(o.bw * o.brs * 4096, o.bw * 16384)
    if o.only != "B":
        hdr += f"; @launch kernel={NAME}_kernel grid=(256,1,1) block=(256,1,1) lds=163840\n"
    if o.only != "A":
        hdr += f"; @launch kernel=oproj_kernel grid=(256,1,1) block=({o.bw*64},1,1) lds={blds}\n"
    if o.probe:
        hdr += "; @launch kernel=probe_kernel grid=(1,1,1) block=(64,1,1) lds=0\n"
    txt = hdr + '.amdgcn_target "amdgcn-amd-amdhsa--gfx950"\n.text\n' + G1.fix_hazards(ta) + "\n" + G1.fix_hazards(tb) + "\n"
    if o.probe:
        txt += G1.gen_probe(o.probe) + "\n"
    txt += '.section .rodata,"a"\n.p2align 6\n' + G1.descriptor(NAME + "_kernel", 512, 256)
    nvb = (gb.nv + 7) // 8 * 8
    txt += ".p2align 6\n" + G1.descriptor("oproj_kernel", nvb, (gb.nv + 3) // 4 * 4)
    if o.probe:
        txt += ".p2align 6\n" + G1.descriptor("probe_kernel", 32, 32)
    open(o.o, "w").write(txt)
    print("wrote", o.o, len(txt), "bytes; B vgprs", gb.nv, "stamps", ga.nst)

if __name__ == "__main__":
    main()
```

```python
import sys, struct, re, argparse
from collections import defaultdict
sys.path.insert(0, "tools")

NAME = "standalone__mha_block_cached__near_ridge"
MF = "v_mfma_f32_16x16x32_bf16"

def f32(x):
    return struct.unpack("<I", struct.pack("<f", x))[0]
def vr(b, n=4): return f"v[{b}:{b+n-1}]" if n > 1 else f"v{b}"
def ar(b, n=4): return f"a[{b}:{b+n-1}]" if n > 1 else f"a{b}"
def sr(b, n=4): return f"s[{b}:{b+n-1}]" if n > 1 else f"s{b}"

class DS:
    def __init__(s, t, tag): s.t, s.tag = t, tag
class VM:
    def __init__(s, t, tag): s.t, s.tag = t, tag
class WL:
    def __init__(s, *tags): s.tags = set(tags)
class WV:
    def __init__(s, *tags): s.tags = set(tags)
class WALL:
    def __init__(s, k): s.k = k

class Trace:
    def __init__(self):
        self.L = []
        self.lq = []
        self.vq = []
    def raw(self, s): self.L.append(s)
    def lab(self, s): self.L.append(s + ":")
    def c(self, s): self.L.append("    ; " + s)
    def e(self, x):
        if isinstance(x, str):
            self.L.append("    " + x)
        elif isinstance(x, DS):
            self.L.append("    " + x.t); self.lq.append(x.tag)
        elif isinstance(x, VM):
            self.L.append("    " + x.t); self.vq.append(x.tag)
        elif isinstance(x, WL):
            idx = max([i for i, t in enumerate(self.lq) if t in x.tags], default=-1)
            if idx >= 0:
                n = len(self.lq) - 1 - idx
                if n > 15:
                    n = 15
                self.L.append(f"    s_waitcnt lgkmcnt({n})")
                self.lq = self.lq[len(self.lq) - n:] if n else []
        elif isinstance(x, WV):
            idx = max([i for i, t in enumerate(self.vq) if t in x.tags], default=-1)
            if idx >= 0:
                n = len(self.vq) - 1 - idx
                if n > 63:
                    n = 63
                self.L.append(f"    s_waitcnt vmcnt({n})")
                self.vq = self.vq[len(self.vq) - n:] if n else []
        elif isinstance(x, WALL):
            w = []
            if 'v' in x.k: w.append("vmcnt(0)"); self.vq = []
            if 'l' in x.k: w.append("lgkmcnt(0)"); self.lq = []
            self.L.append("    s_waitcnt " + " ".join(w))
        else:
            raise TypeError(x)
    def many(self, xs):
        for x in xs: self.e(x)

class Sched:
    def __init__(self, mf):
        self.mf = mf
        self.pre = defaultdict(list)
        self.post = defaultdict(list)
    def emit(self, t):
        for g, m in enumerate(self.mf):
            t.many(self.pre[g])
            t.e(m)
            t.many(self.post[g])
        n = len(self.mf)
        for g in sorted(set(list(self.pre) + list(self.post))):
            if g >= n:
                t.many(self.pre[g]); t.many(self.post[g])

BUF = {0: 90112, 1: 45056, 2: 0}
def PAIR(n):
    return 32768 + ((3 - n) & 3) * 32768
QX = 0
RG = 40960
LOFF = 7 * 4096
FOFF = 7 * 4096 + 2048
MXX = 16384

V_OOWN = 0
V_K = 112
V_V = 144
V_S = 176
V_P = 192
V_NEGM = 200
V_KA = 228
V_VA = 232
V_OFFKV = 240
V_TID = 242
V_T0 = 243
V_OFFX = 144
V_OFFW = 151
V_XR = 156
V_WR = 160
V_QW = 253
V_QR = 254
V_QT = 176
V_WOF = 245
V_TR = 249
V_OO = [244, 253, 254, 255]
S_WO, S_OUT = 16, 20
S_MG, S_NG, S_SW, S_SO, S_L0, S_L1, S_RB, S_SWC, S_SOC = 57, 58, 59, 10, 11, 3, 100, 101, 42
S_ROT, S_RT = 54, 43
S_PF = 12
V_PF, V_PFD = 243, 255
A_Q = 0
A_OOTH = 112
A_L = 224
A_ONES = 252
S_X, S_WQ, S_K, S_V, S_O = 16, 20, 24, 28, 32
S_W, S_QH, S_KH = 36, 37, 38
S_W1K7 = 39
S_SC = 40
S_SOX, S_SOW = 42, 43
S_W4K = 44
S_B, S_H = 45, 46
S_CNT = 47
S_PASS = 48
S_T0, S_T1, S_T2, S_T3 = 49, 50, 51, 52
S_OB = 53
S_SOKV = 56
S_ST = 60


def o_reg(j, tp):
    if tp < 4:
        return vr(V_OOWN + (j * 4 + tp) * 4)
    return ar(A_OOTH + (j * 4 + tp - 4) * 4)


class GenA:
    def __init__(self, opt):
        self.o = opt
        self.t = Trace()
        self.nst = 0
        self.npf = 0
        self.pfc = [int(z) for z in opt.pfc.split(",")]
        assert len(self.pfc) == 10
        self.pf_on = (sum(self.pfc) > 0 or opt.pfa)
        self.QS = 131072 + opt.opad

    def stamp(self, name):
        if not self.o.stamps: return []
        sel = self.o.stsel.split(",")
        r = []
        for nm, ins in ((name, "s_memrealtime" if self.o.rts else "s_memtime"), (name + "@", "s_memrealtime")):
            if nm in sel:
                r.append(f"{ins} s[{S_ST + 2*self.nst}:{S_ST + 2*self.nst + 1}]")
                self.nst += 1
                assert self.nst <= 18
        return r

    def kvpol(self):
        return " nt" if self.o.nt else ""

    def emit_kv_addr(self, rd=True, dma=True):
        t_ = self.t
        L, l15, g, r4, c4, t, u = V_T0, V_T0+1, V_T0+2, V_T0+3, V_T0+4, V_T0+5, V_T0+6
        t_.e(f"v_and_b32 v{L}, 63, v{V_TID}")
        t_.e(f"v_and_b32 v{l15}, 15, v{L}")
        t_.e(f"v_lshrrev_b32 v{g}, 4, v{L}")
        if dma:
            t_.e(f"v_lshlrev_b32 v{t}, 1, v{g}")
            t_.e(f"v_xor_b32 v{t}, v{t}, v{l15}")
            t_.e(f"v_lshlrev_b32 v{t}, 4, v{t}")
            t_.e(f"v_lshlrev_b32 v{u}, 8, v{g}")
            t_.e(f"v_add_u32 v{u}, s{S_W4K}, v{u}")
            t_.e(f"v_add_u32 v{V_OFFKV}, v{t}, v{u}")
            t_.e(f"v_xor_b32 v{t}, 128, v{t}")
            t_.e(f"v_add_u32 v{V_OFFKV+1}, v{t}, v{u}")
        if rd:
            t_.e(f"v_bfe_u32 v{r4}, v{L}, 2, 2")
            t_.e(f"v_and_b32 v{c4}, 3, v{L}")
            t_.e(f"s_lshl_b32 s{S_T0}, s{S_KH}, 13")
            t_.e(f"s_add_u32 s{S_T1}, s{S_T0}, {PAIR(0) + 16384}")
            t_.e(f"v_and_b32 v{t}, 7, v{l15}")
            t_.e(f"v_lshlrev_b32 v{t}, 1, v{t}")
            t_.e(f"v_xor_b32 v{t}, v{t}, v{g}")
            t_.e(f"v_lshlrev_b32 v{t}, 4, v{t}")
            t_.e(f"v_lshlrev_b32 v{u}, 8, v{l15}")
            t_.e(f"v_add_u32 v{u}, s{S_T1}, v{u}")
            for ks in range(4):
                t_.e(f"v_xor_b32 v{V_KA+ks}, {ks*64}, v{t}")
                t_.e(f"v_add_u32 v{V_KA+ks}, v{V_KA+ks}, v{u}")
            t_.e(f"s_add_u32 s{S_T1}, s{S_T0}, {PAIR(0)}")
            t_.e(f"v_lshlrev_b32 v{u}, 2, v{g}")
            t_.e(f"v_add_u32 v{u}, v{u}, v{r4}")
            t_.e(f"v_and_b32 v{t}, 7, v{u}")
            t_.e(f"s_lshl_b32 s{S_T2}, s{S_KH}, 2")
            t_.e(f"v_xor_b32 v{t}, s{S_T2}, v{t}")
            t_.e(f"v_lshlrev_b32 v{t}, 5, v{t}")
            t_.e(f"v_lshlrev_b32 v{u}, 8, v{u}")
            t_.e(f"v_add_u32 v{u}, s{S_T1}, v{u}")
            t_.e(f"v_lshlrev_b32 v{c4}, 3, v{c4}")
            t_.e(f"v_add_u32 v{u}, v{u}, v{c4}")
            for tp in range(8):
                t_.e(f"v_xor_b32 v{V_VA+tp}, {tp*32}, v{t}")
                t_.e(f"v_add_u32 v{V_VA+tp}, v{V_VA+tp}, v{u}")

    def kv_dma(self, which, n, soff, lds=None):
        srd = S_K if which == "K" else S_V
        if lds is None:
            lds = PAIR(n) + (16384 if which == "K" else 0)
        r = [f"s_add_u32 m0, s{S_W4K}, {lds}"]
        for i in range(4):
            off = f" offset:{i*1024}" if i else ""
            r.append(VM(f"buffer_load_dwordx4 v{V_OFFKV + (i & 1)}, {sr(srd)}, {soff} offen{off}{self.kvpol()} lds", f"{which}{n}"))
        return r

    def kv_touch(self):
        self.npf += 1
        return [VM(f"buffer_load_dword v{V_PFD}, v{V_PF}, {sr(S_PF)}, 0 offen{self.o.pfpol}", "PF"),
                f"v_add_u32 v{V_PF}, 16384, v{V_PF}"]

    def x_dma(self, st):
        buf = BUF[st % 3]
        r = []
        if self.o.qrot:
            if st:
                r += [f"s_add_u32 s{S_SOX}, s{S_SOX}, 128", f"s_cmp_eq_u32 s{S_SOX}, 1152", f"s_cselect_b32 s{S_SOX}, 0, s{S_SOX}"]
        else:
            r.append(f"s_mov_b32 s{S_SOX}, {st*128}")
        r.append(f"s_add_u32 m0, s{S_W1K7}, {buf}")
        for i in range(7):
            if i == 4:
                r.append(f"s_add_u32 m0, s{S_W1K7}, {buf + 4096}")
            off = f" offset:{(i%4)*1024}" if i % 4 else ""
            r.append(VM(f"buffer_load_dwordx4 v{V_OFFX+i}, {sr(S_X)}, s{S_SOX} offen{off}{self.o.xpol} lds", f"X{st}"))
        if self.o.qrot:
            r.append(f"s_lshl_b32 s{S_SOW}, s{S_SOX}, 12")
        else:
            r.append(f"s_mov_b32 s{S_SOW}, {st*64*8192}")
        r.append(f"s_add_u32 m0, s{S_W4K}, {buf + 28672}")
        for i in range(4):
            off = f" offset:{i*1024}" if i else ""
            r.append(VM(f"buffer_load_dwordx4 v{V_OFFW+i}, {sr(S_WQ)}, s{S_SOW} offen{off}{self.o.wqpol} lds", f"X{st}"))
        return r

    def q_reads(self, st):
        buf = BUF[st % 3]
        sset = 1 if buf == 90112 else 0
        base = buf - (90112 if sset else 0)
        p = (st & 1) * 88
        r = []
        for s in range(2):
            for T in range(4):
                jj = T >> 1
                for hf in range(2):
                    off = base + 8192 * s + 1024 * hf + 8 * (T & 1)
                    r.append(DS(f"ds_read_b64_tr_b16 {ar(p + 56 + (s*4+T)*4 + 2*hf, 2)}, v{V_WR + sset*2 + jj} offset:{off}", f"R{st}"))
            for qt in range(7):
                off = base + qt * 2048
                r.append(DS(f"ds_read_b128 {ar(p + (s*7+qt)*4)}, v{V_XR + sset*2 + s} offset:{off}", f"R{st}"))
        return r

    def q_mf(self, st, s, T, qt, first):
        p = (st & 1) * 88
        d = vr((T * 7 + qt) * 4)
        c = "0" if (first and s == 0) else d
        return f"{MF} {d}, {ar(p + 56 + (s*4+T)*4)}, {ar(p + (s*7+qt)*4)}, {c}"

    def q_mfmas(self, st, first):
        return [self.q_mf(st, s, T, qt, first) for s in range(2) for T in range(4) for qt in range(7)]

    def k_read(self, kt, ks, n):
        off = f" offset:{kt*4096}" if kt else ""
        return DS(f"ds_read_b128 {vr(V_K + (kt*4+ks)*4)}, v{V_KA+ks}{off}", f"k{n}.{kt}")

    def v_read(self, tp, hf, n):
        off = f" offset:{hf*4096}" if hf else ""
        return DS(f"ds_read_b64_tr_b16 {vr(V_V + tp*4 + 2*hf, 2)}, v{V_VA+tp}{off}", f"v{n}.{tp}")

    def q_read(self, qt):
        return [DS(f"ds_read_b128 {ar(A_Q + (qt*4+ks)*4)}, v{V_QR} offset:{(ks*7+qt)*1024}", f"q{qt}") for ks in range(4)]

    def qk_mfmas(self, par, j2):
        r = []
        for kt in range(2):
            for ks in range(4):
                d = vr(V_S + par * 8 + kt * 4)
                c = vr(V_NEGM + j2 * 4) if ks == 0 else d
                r.append(f"{MF} {d}, {vr(V_K + (kt*4+ks)*4)}, {ar(A_Q + (j2*4+ks)*4)}, {c}")
        return r

    def pv_mfmas(self, par, j, first):
        r = []
        p = vr(V_P + par * 4)
        for tp in range(8):
            d = o_reg(j, tp)
            r.append(f"{MF} {d}, {vr(V_V + tp*4)}, {p}, {'0' if first else d}")
        d = ar(A_L + j * 4)
        r.append(f"{MF} {d}, {ar(A_ONES)}, {p}, {'0' if first else d}")
        return r

    def exps(self, par):
        return [f"v_exp_f32 v{V_S + par*8 + i}, v{V_S + par*8 + i}" for i in range(8)]

    def cvts(self, par):
        return [f"v_cvt_pk_bf16_f32 v{V_P + par*4 + i}, v{V_S + par*8 + 2*i}, v{V_S + par*8 + 2*i + 1}" for i in range(4)]

    def tile(self, n):
        t = self.t
        first = (n == 0)
        last = (n == 15)
        dl = (PAIR(n + 1) - PAIR(n)) & 0xffffffff
        vdma = self.kv_dma("V", n + 3, "0") if (n + 3 <= 15 and n >= 1) else None
        kdma = self.kv_dma("K", n + 4, "0") if n + 4 <= 15 else None
        adv = [f"v_add_u32 v{V_OFFKV}, 16384, v{V_OFFKV}", f"v_add_u32 v{V_OFFKV+1}, 16384, v{V_OFFKV+1}"]
        for j in range(7):
            par = (n + j) & 1
            mf = self.pv_mfmas(par, j, first)
            has_qk = not (last and j >= 5)
            if has_qk:
                mf = mf + self.qk_mfmas(par, (j + 2) % 7)
            S = Sched(mf)
            G, PRE = S.post, S.pre
            if not (last and j == 6):
                ex = self.exps(par ^ 1); cv = self.cvts(par ^ 1)
                if has_qk:
                    for i in range(8): G[2 * i].append(ex[i])
                    for i in range(4): G[4 * i + 3].append(cv[i])
                else:
                    for i in range(8): G[i // 2].append(ex[i])
                    G[2].append(cv[0]); G[3].append(cv[1]); G[4].append(cv[2]); G[5].append(cv[3])
            nn = n + 1
            if j == 0:
                PRE[0].append(WL(f"v{n}.0", f"v{n}.1", f"v{n}.2"))
                G[1] += [self.v_read(7, 0, n), self.v_read(7, 1, n)]
                PRE[3].append(WL(f"v{n}.3", f"v{n}.4", f"v{n}.5"))
                PRE[6].append(WL(f"v{n}.6", f"v{n}.7"))
                if vdma:
                    G[9] += [vdma[0]]
                    G[13] += [vdma[1]]
            if first and j <= 3:
                q = self.q_read(j + 3)
                G[5] += q[:2]; G[9] += q[2:]
            if first and j <= 4:
                PRE[9].append(WL(f"q{j+2}"))
            if j == 1:
                if vdma: G[5] += [vdma[2]]
                if not last:
                    G[9] += [f"v_add_u32 v{V_VA+0}, {dl}, v{V_VA+0}", f"v_add_u32 v{V_VA+1}, {dl}, v{V_VA+1}"] if not first else []
                    G[13] += [f"v_add_u32 v{V_VA+2}, {dl}, v{V_VA+2}", f"v_add_u32 v{V_VA+3}, {dl}, v{V_VA+3}"]
                    if first:
                        G[1] += [f"v_add_u32 v{V_VA+0}, {dl}, v{V_VA+0}", f"v_add_u32 v{V_VA+1}, {dl}, v{V_VA+1}"]
            if j == 2:
                if vdma: G[5] += [vdma[3]]
                if not last:
                    G[1] += [f"v_add_u32 v{V_VA+4}, {dl}, v{V_VA+4}", f"v_add_u32 v{V_VA+5}, {dl}, v{V_VA+5}"]
                    G[13] += [f"v_add_u32 v{V_VA+6}, {dl}, v{V_VA+6}", f"v_add_u32 v{V_VA+7}, {dl}, v{V_VA+7}"]
            if j == 3:
                if vdma: G[5] += [vdma[4]]
                if not last:
                    G[1] += [f"v_add_u32 v{V_KA+0}, {dl}, v{V_KA+0}", f"v_add_u32 v{V_KA+1}, {dl}, v{V_KA+1}"]
                    G[13] += [f"v_add_u32 v{V_KA+2}, {dl}, v{V_KA+2}", f"v_add_u32 v{V_KA+3}, {dl}, v{V_KA+3}"]
                if kdma and not first:
                    G[16] += adv
            if j == 4:
                if first:
                    G[5] += [WL("q6")]
                if not last:
                    G[5] += [WV(f"K{nn}", f"V{nn}")]
                else:
                    G[5] += [WL("ow0", "ow1", "ow2", "ow3")]
                G[7] += ["s_barrier"]
                if not last:
                    G[9] += [self.k_read(0, 0, nn)]
                    G[11] += [self.k_read(0, 1, nn)]
                    G[13] += [self.k_read(0, 2, nn), self.k_read(0, 3, nn)]
                    G[15] += [self.k_read(1, 0, nn)]
                    G[16] += [self.k_read(1, 1, nn), self.k_read(1, 2, nn)]
                if first:
                    k3 = self.kv_dma("K", 3, "0")
                    G[9] += [k3[0]]
                    self.k3 = k3
            if j == 5 and not last:
                G[1] += [self.k_read(1, 3, nn)]
                PRE[9].append(WL(f"k{nn}.0", f"k{nn}.1"))
                if first:
                    k3 = self.k3
                    G[1] += [k3[1]]; G[3] += [k3[2]]; G[5] += [k3[3]]; G[7] += [k3[4]]
                    v3 = self.kv_dma("V", 3, "0")
                    G[9] += [v3[0], v3[1]]; G[11] += [v3[2]]; G[13] += [v3[3]]; G[15] += [v3[4]]
                    G[16] += adv
                elif kdma:
                    G[0] += [kdma[0]]
                    G[1] += [kdma[1]]; G[5] += [kdma[2]]; G[9] += [kdma[3]]; G[13] += [kdma[4]]
            if j == self.o.pfas and self.o.pfa and n <= self.o.pfan:
                tc = self.kv_touch()
                G[14] += [tc[0]]; G[16] += [tc[1]]
            if self.o.pfw and self.o.pfwsp:
                sp = [tuple(int(z) for z in q.split(".")) for q in self.o.pfwsp.split(",")]
                w = self.wo_touch()
                if (n, j) == (12, 4):
                    for i, x in enumerate(w[0]): G[9 + (i * 7) // len(w[0])].append(x)
                tch = w[1] + w[2]
                for i, q in enumerate(sp):
                    if q == (n, j): G[6 if sp.count(q) == 1 else 2 + 6 * sp[:i].count(q)].append(tch[i])
            elif self.o.pfw and n == self.o.pfwt and j in (4, 5, 6):
                w = self.wo_touch()
                if j == 4:
                    for i, x in enumerate(w[0]): G[9 + (i * 7) // len(w[0])].append(x)
                else:
                    tch = w[1] if j == 5 else w[2]
                    nv = sum(isinstance(x, VM) for x in tch)
                    gi = 2
                    for x in tch:
                        G[gi].append(x)
                        if isinstance(x, VM): gi += max(1, 14 // max(nv, 1))
                    if j == 6 and self.o.tlbt:
                        a = V_PF
                        D = V_PFD
                        q = self.QS
                        tl = []
                        if self.o.tlbt & 1:
                            tl += [f"v_and_b32 v{a}, 15, v{V_TID}", f"s_mul_i32 s{S_T0}, s{S_B}, 14",
                                   f"v_add_u32 v{a}, s{S_T0}, v{a}", f"v_min_u32 v{a}, 111, v{a}",
                                   f"s_mov_b32 s{S_T0}, {q}", f"v_mul_lo_u32 v{a}, v{a}, s{S_T0}", f"v_add_u32 v{a}, 131072, v{a}",
                                   VM(f"global_load_dword v{D}, v{a}, s[{S_O}:{S_O+1}] sc1", "PW"),
                                   f"v_and_b32 v{a}, 3, v{V_TID}", f"s_lshl_b32 s{S_T1}, s{S_MG}, 2",
                                   f"v_add_u32 v{a}, s{S_T1}, v{a}", f"v_mul_lo_u32 v{a}, v{a}, s{S_T0}", f"v_add_u32 v{a}, 131072, v{a}",
                                   VM(f"global_load_dword v{D}, v{a}, s[{S_O}:{S_O+1}] sc1", "PW")]
                        if self.o.tlbt & 2:
                            tl += [f"v_and_b32 v{a}, 63, v{V_TID}", f"s_lshl_b32 s{S_T1}, s{S_MG}, 6", f"v_add_u32 v{a}, s{S_T1}, v{a}",
                                   f"v_mul_u32_u24 v{a}, 1152, v{a}",
                                   VM(f"buffer_load_dword v{D}, v{a}, {sr(S_OUT)}, 0 offen", "PW")]
                        if self.o.tlbt & 4:
                            tl += [f"v_mov_b32 v{a}, 0", VM(f"global_load_dword v{D}, v{a}, s[8:9] sc1", "PW")]
                        g0 = 10
                        for x in tl:
                            G[min(g0, 16)].append(x)
                            if isinstance(x, VM): g0 += 2
            if j == 6 and not last:
                v = lambda a, b: self.v_read(a, b, nn)
                G[1] += [v(0, 0), v(0, 1)]
                G[3] += [v(1, 0)]
                G[5] += [v(1, 1), v(2, 0)]
                G[7] += [v(2, 1)]
                G[9] += [v(3, 0), v(3, 1)]
                G[11] += [v(4, 0)]
                G[13] += [v(4, 1), v(5, 0)]
                G[15] += [v(5, 1)]
                G[16] += [v(6, 0), v(6, 1)]
                if first:
                    PRE[0] += [kdma[0]]
                    G[0] += [kdma[1]]; G[4] += [kdma[2]]; G[8] += [kdma[3]]; G[12] += [kdma[4]]
            if last:
                if j == 1:
                    PRE[0] = ["s_barrier"] + PRE[0]
                    w = self.o_writes(0)
                    G[1] += [w[0]]; G[3] += [w[1]]; G[5] += [w[2]]; G[7] += [w[3]]; G[8] += [w[4]]
                if 1 <= j <= 4:
                    w = self.o_writes(j)
                    G[10] += [w[0]]; G[11] += [w[1]]; G[13] += [w[2], w[3]]; G[15] += [w[4]]
                if self.o.fused and j in (2, 3):
                    d = self.wo_dma(j - 2)
                    ns = len(d) - 4
                    G[0] += d[:ns]; G[1] += [d[ns]]; G[3] += [d[ns+1]]; G[5] += [d[ns+2]]; G[7] += [d[ns+3]]
                if j == 6:
                    w = self.o_writes(5)
                    G[1] += [w[0]]; G[3] += [w[1]]; G[4] += [w[2]]; G[6] += [w[3]]; G[7] += [w[4]]
                if j == 0:
                    PRE[0] = self.ox_addr() + PRE[0]
            t.c(f"tile {n} slot {j}")
            S.emit(t)
            t.many(self.stamp(f"s{n}_{j}"))

    def wo_touch(self):
        a = V_PF
        su = [f"v_and_b32 v{a}, 63, v{V_TID}", f"s_lshr_b32 s{S_T0}, s2, 3"]
        pol = self.o.pfwpol
        if self.o.pfw == 2:
            su = [f"v_and_b32 v{a}, 63, v{V_TID}", f"v_mul_u32_u24 v{a}, 73728, v{a}"]
            return su, [VM(f"buffer_load_dword v{V_PFD}, v{a}, {sr(S_WO)}, 0 offen{pol}", "PW")], []
        if self.o.pfw == 3:
            su = [f"v_and_b32 v{a}, 63, v{V_TID}", f"s_lshl_b32 s{S_T0}, s{S_W}, 6", f"v_add_u32 v{a}, s{S_T0}, v{a}", f"v_mul_u32_u24 v{a}, {16*1152}, v{a}"]
            return su, [VM(f"buffer_load_dword v{V_PFD}, v{a}, {sr(S_WO)}, 0 offen{pol}", "PW")], []
        if self.o.bmap == 0:
            su += [f"s_lshl_b32 s{S_T0}, s{S_T0}, 2", f"s_add_u32 s{S_T0}, s{S_T0}, s{S_W}",
                   f"s_mul_i32 s{S_T0}, s{S_T0}, {32*1152}",
                   f"s_and_b32 s{S_T1}, s2, 1", f"s_lshl_b32 s{S_T1}, s{S_T1}, 9", f"s_add_u32 s{S_T0}, s{S_T0}, s{S_T1}",
                   f"v_cmp_gt_u32 vcc, 32, v{a}",
                   f"v_mul_u32_u24 v{a}, 1152, v{a}", f"v_add_u32 v{a}, s{S_T0}, v{a}",
                   f"v_mov_b32 v{V_PFD}, 0x40000000",
                   f"v_cndmask_b32 v{a}, v{V_PFD}, v{a}, vcc"]
            T = [VM(f"buffer_load_dword v{V_PFD}, v{a}, {sr(S_WO)}, 0 offen" + (f" offset:{i*128}" if i else "") + pol, "PW") for i in range(5)]
            return su, T[:3], T[3:]
        su += [f"s_mul_i32 s{S_T0}, s{S_T0}, 147456", f"s_mul_i32 s{S_T1}, s{S_W}, 36864", f"s_add_u32 s{S_T0}, s{S_T0}, s{S_T1}",
               f"v_lshlrev_b32 v{a}, 7, v{a}", f"v_add_u32 v{a}, s{S_T0}, v{a}"]
        T = []
        for i in range(5):
            T.append([VM(f"buffer_load_dword v{V_PFD}, v{a}, {sr(S_WO)}, 0 offen{pol}", "PW"), f"v_add_u32 v{a}, 8192, v{a}"])
        return su, T[0] + T[1] + T[2], T[3] + T[4]

    def ox_addr(self):
        r = []
        T = V_T0
        r.append(f"v_and_b32 v{T}, 63, v{V_TID}")
        r.append(f"v_lshlrev_b32 v{T+1}, 4, v{T}")
        r.append(f"v_lshlrev_b32 v{T}, 2, v{T}")
        r.append(f"s_xor_b32 s{S_T3}, s{S_W}, 1")
        r.append(f"s_mul_i32 s{S_T0}, s{S_T3}, {RG}")
        r.append(f"v_add_u32 v{V_KA}, s{S_T0}, v{T+1}")
        r.append(f"s_add_u32 s{S_T0}, s{S_T0}, {LOFF}")
        r.append(f"v_add_u32 v{V_KA+1}, s{S_T0}, v{T}")
        r.append(f"s_mul_i32 s{S_T0}, s{S_W}, {RG}")
        r.append(f"v_add_u32 v{V_KA+2}, s{S_T0}, v{T+1}")
        r.append(f"s_add_u32 s{S_T0}, s{S_T0}, {LOFF}")
        r.append(f"v_add_u32 v{V_KA+3}, s{S_T0}, v{T}")
        r.append(f"s_mul_i32 s{S_T0}, s{S_B}, 14")
        r.append(f"s_mul_i32 s{S_T1}, s{S_QH}, 7")
        r.append(f"s_add_u32 s{S_T0}, s{S_T0}, s{S_T1}")
        r.append(f"s_mul_i32 s{S_T0}, s{S_T0}, {self.QS}")
        r.append(f"s_lshl_b32 s{S_T1}, s{S_H}, 1")
        r.append(f"s_add_u32 s{S_T1}, s{S_T1}, s{S_KH}")
        r.append(f"s_lshl_b32 s{S_T1}, s{S_T1}, 11")
        r.append(f"s_add_u32 s{S_OB}, s{S_T0}, s{S_T1}")
        return r

    def o_writes(self, j):
        r = []
        for tpp in range(4):
            i = j * 4 + tpp
            r.append(DS(f"ds_write_b128 v{V_KA}, {ar(A_OOTH + i*4)} offset:{i*1024}", f"ow{j}"))
        r.append(DS(f"ds_write_b32 v{V_KA+1}, a{A_L + 4*j} offset:{j*256}", f"ow{j}"))
        return r

    def gen(self):
        t_ = self.t
        o = self.o
        kn = f"{NAME}_kernel"
        t_.raw(f".globl {kn}\n.p2align 8\n.type {kn},@function\n{kn}:")
        t_.e("s_cmp_ge_u32 s2, 256")
        t_.e("s_cbranch_scc1 A_END")
        t_.e("s_load_dwordx8 s[4:11], s[0:1], 0")
        t_.e("s_load_dwordx2 s[12:13], s[0:1], 56")
        t_.many(self.stamp("start"))
        if o.stamps:
            t_.e(f"s_memrealtime s[{S_ST+36}:{S_ST+37}]")
        if o.ctouch:
            t_.e("s_getpc_b64 s[14:15]")
            t_.lab("CT_PC")
            t_.e("s_lshr_b32 s3, s2, 3")
            t_.e("s_and_b32 s3, s3, 1")
            t_.e("s_lshl_b32 s3, s3, 15")
            t_.e("v_lshlrev_b32 v1, 7, v0")
            t_.e("v_add_u32 v1, s3, v1")
            t_.e("v_min_u32 v1, CT_END-CT_PC-4, v1")
            t_.e(VM(f"global_load_dword v{V_PFD}, v1, s[14:15]", "PF"))
        t_.e(f"v_mov_b32 v{V_TID}, v0")
        t_.e(f"v_lshrrev_b32 v1, 6, v0")
        t_.e("s_and_b32 s3, s2, 7")
        t_.e(f"s_lshr_b32 s{S_T0}, s2, 3")
        t_.e(f"v_readfirstlane_b32 s{S_W}, v1")
        t_.e(f"s_and_b32 s{S_T1}, s3, 1")
        t_.e(f"s_lshl_b32 s{S_T1}, s{S_T1}, 2")
        t_.e(f"s_and_b32 s{S_T2}, s{S_T0}, 3")
        t_.e(f"s_add_u32 s{S_B}, s{S_T1}, s{S_T2}")
        t_.e(f"s_lshr_b32 s{S_T1}, s3, 1")
        t_.e(f"s_lshl_b32 s{S_T1}, s{S_T1}, 3")
        t_.e(f"s_lshr_b32 s{S_T2}, s{S_T0}, 2")
        t_.e(f"s_add_u32 s{S_H}, s{S_T1}, s{S_T2}")
        t_.e(f"s_lshr_b32 s{S_QH}, s{S_W}, 1")
        t_.e(f"s_and_b32 s{S_KH}, s{S_W}, 1")
        t_.e(f"s_mul_i32 s{S_W1K7}, s{S_W}, 7168")
        t_.e(f"s_lshl_b32 s{S_W4K}, s{S_W}, 12")
        L, l15, g, r4, c4, t, u = V_T0, V_T0+1, V_T0+2, V_T0+3, V_T0+4, V_T0+5, V_T0+6
        t_.e(f"v_and_b32 v{L}, 63, v{V_TID}")
        t_.e(f"v_and_b32 v{l15}, 15, v{L}")
        t_.e(f"v_lshrrev_b32 v{g}, 4, v{L}")
        t_.e(f"v_lshrrev_b32 v{t}, 3, v{L}")
        t_.e(f"v_and_b32 v{r4}, 7, v{L}")
        t_.e(f"v_xor_b32 v{u}, v{g}, v{r4}")
        t_.e(f"v_lshlrev_b32 v{u}, 4, v{u}")
        t_.e(f"s_lshl_b32 s{S_T0}, s{S_KH}, 6")
        t_.e(f"v_xor_b32 v{u}, s{S_T0}, v{u}")
        t_.e(f"v_mul_u32_u24 v{t}, 1152, v{t}")
        t_.e(f"s_mul_i32 s{S_T1}, s{S_W}, {56*1152}")
        t_.e(f"v_add_u32 v{t}, s{S_T1}, v{t}")
        t_.e(f"v_xor_b32 v{c4}, 64, v{u}")
        t_.e(f"v_add_u32 v{V_OFFX}, v{u}, v{t}")
        t_.e(f"v_add_u32 v{c4}, v{c4}, v{t}")
        for i in range(1, 7):
            src = V_OFFX if (i & 1) == 0 else c4
            k = i * 9216 - (i % 4) * 1024
            t_.e(f"v_add_u32 v{V_OFFX+i}, {k}, v{src}")
        t_.e(f"v_lshlrev_b32 v{t}, 2, v{g}")
        t_.e(f"v_xor_b32 v{t}, v{t}, v{l15}")
        t_.e(f"v_lshlrev_b32 v{t}, 4, v{t}")
        t_.e(f"v_lshlrev_b32 v{u}, 13, v{g}")
        t_.e(f"s_lshl_b32 s{S_T1}, s{S_W}, 17")
        t_.e(f"v_add_u32 v{u}, s{S_T1}, v{u}")
        t_.e(f"v_add_u32 v{V_OFFW}, v{t}, v{u}")
        for i in range(1, 4):
            t_.e(f"v_add_u32 v{V_OFFW+i}, {i*(32768-1024)}, v{V_OFFW}")
        t_.e(f"s_mul_i32 s{S_T0}, s{S_B}, 258048")
        t_.e(f"s_lshl_b32 s{S_T1}, s{S_H}, 8")
        t_.e(f"s_mov_b32 s{S_X+2}, 258048")
        t_.e(f"s_mov_b32 s{S_X+3}, 0x00020000")
        t_.e(f"s_sub_u32 s{S_WQ+2}, {576*8192}, s{S_T1}")
        t_.e(f"s_mov_b32 s{S_WQ+3}, 0x00020000")
        if o.qrot:
            al, be, sh = [int(z) for z in o.qrot.split(",")]
            t_.e(f"s_lshr_b32 s{S_T0}, s2, 5")
            t_.e(f"s_mul_i32 s{S_T0}, s{S_T0}, {al}")
            t_.e(f"s_bfe_u32 s{S_T1}, s2, {(2 << 16) | 3}")
            t_.e(f"s_mul_i32 s{S_T1}, s{S_T1}, {be}")
            t_.e(f"s_add_u32 s{S_T0}, s{S_T0}, s{S_T1}")
            t_.e(f"s_lshr_b32 s{S_T0}, s{S_T0}, {sh}")
            for _ in range(((7 * al + 3 * be) >> sh) // 9):
                t_.e(f"s_sub_u32 s{S_T1}, s{S_T0}, 9")
                t_.e(f"s_cmp_ge_u32 s{S_T0}, 9")
                t_.e(f"s_cselect_b32 s{S_T0}, s{S_T1}, s{S_T0}")
            t_.e(f"s_lshl_b32 s{S_SOX}, s{S_T0}, 7")
            t_.e(f"s_mul_i32 s{S_T0}, s{S_B}, 258048")
            t_.e(f"s_lshl_b32 s{S_T1}, s{S_H}, 8")
        t_.e("s_waitcnt lgkmcnt(0)")
        t_.many(self.stamp("karg"))
        t_.e(f"s_add_u32 s{S_X}, s4, s{S_T0}")
        t_.e(f"s_addc_u32 s{S_X+1}, s5, 0")
        t_.e(f"s_add_u32 s{S_WQ}, s10, s{S_T1}")
        t_.e(f"s_addc_u32 s{S_WQ+1}, s11, 0")
        t_.many(self.x_dma(0))
        t_.many(self.stamp("x0"))
        t_.many(self.x_dma(1))
        t_.many(self.stamp("x1"))
        t_.e(f"s_lshl_b32 s{S_T0}, s{S_B}, 5")
        t_.e(f"s_add_u32 s{S_T0}, s{S_T0}, s{S_H}")
        t_.e(f"s_lshl_b32 s{S_T0}, s{S_T0}, 18")
        t_.e(f"s_add_u32 s{S_K}, s6, s{S_T0}")
        t_.e(f"s_addc_u32 s{S_K+1}, s7, 0")
        t_.e(f"s_mov_b32 s{S_K+2}, 262144")
        t_.e(f"s_mov_b32 s{S_K+3}, 0x00020000")
        t_.e(f"s_add_u32 s{S_V}, s8, s{S_T0}")
        t_.e(f"s_addc_u32 s{S_V+1}, s9, 0")
        t_.e(f"s_mov_b32 s{S_V+2}, 262144")
        t_.e(f"s_mov_b32 s{S_V+3}, 0x00020000")
        t_.e(f"s_mov_b32 s{S_O}, s12")
        t_.e(f"s_mov_b32 s{S_O+1}, s13")
        t_.e(f"s_mov_b32 s{S_O+2}, {112*self.QS}")
        t_.e(f"s_mov_b32 s{S_O+3}, 0x00020000")
        if o.fused:
            t_.e("s_load_dwordx4 s[4:7], s[0:1], 32")
            t_.e("s_load_dwordx2 s[8:9], s[0:1], 48")
        self.emit_kv_addr(rd=False, dma=True)
        t_.many(self.kv_dma("K", 0, "0"))
        t_.many(self.stamp("k0i"))
        if o.pfq:
            a0, a1 = 112, 113
            pl = V_T0
            t_.e(f"s_and_b32 s{S_T0}, s{S_H}, 7")
            t_.e(f"s_mul_i32 s{S_T0}, s{S_T0}, 32256")
            t_.e(f"s_lshl_b32 s{S_T1}, s{S_W}, 13")
            t_.e(f"s_add_u32 s{S_T0}, s{S_T0}, s{S_T1}")
            t_.e(f"v_lshlrev_b32 v{a0}, 7, v{pl}")
            t_.e(f"v_add_u32 v{a0}, s{S_T0}, v{a0}")
            t_.e(VM(f"buffer_load_dword v{V_PFD}, v{a0}, {sr(S_X)}, 0 offen{o.pfqpol}", "PF"))
            t_.e(f"s_and_b32 s{S_T0}, s{S_B}, 3")
            t_.e(f"s_mul_i32 s{S_T0}, s{S_T0}, 144")
            t_.e(f"s_mul_i32 s{S_T1}, s{S_W}, 36")
            t_.e(f"s_add_u32 s{S_T0}, s{S_T0}, s{S_T1}")
            t_.e(f"s_lshl_b32 s{S_T0}, s{S_T0}, 13")
            t_.e(f"v_lshrrev_b32 v{a0}, 1, v{pl}")
            t_.e(f"v_lshlrev_b32 v{a0}, 13, v{a0}")
            t_.e(f"v_and_b32 v{a1}, 1, v{pl}")
            t_.e(f"v_lshlrev_b32 v{a1}, 7, v{a1}")
            t_.e(f"v_add_u32 v{a0}, v{a0}, v{a1}")
            t_.e(f"v_add_u32 v{a0}, s{S_T0}, v{a0}")
            t_.e(VM(f"buffer_load_dword v{V_PFD}, v{a0}, {sr(S_WQ)}, 0 offen{o.pfqpol}", "PF"))
            t_.e(f"v_add_u32 v{a1}, {32*8192}, v{a0}")
            t_.e(f"v_mov_b32 v{a0}, 0x40000000")
            t_.e(f"v_cmp_gt_u32 vcc, 8, v{pl}")
            t_.e(f"v_cndmask_b32 v{a1}, v{a0}, v{a1}, vcc")
            t_.e(VM(f"buffer_load_dword v{V_PFD}, v{a1}, {sr(S_WQ)}, 0 offen{o.pfqpol}", "PF"))
        if self.pf_on:
            t_.e(f"s_lshr_b32 s{S_T0}, s{S_W}, 1")
            t_.e(f"s_cmp_eq_u32 s{S_T0}, 0")
            t_.e(f"s_cselect_b32 s{S_PF}, s{S_K}, s{S_V}")
            t_.e(f"s_cselect_b32 s{S_PF+1}, s{S_K+1}, s{S_V+1}")
            t_.e(f"s_and_b32 s{S_T0}, s{S_W}, 1")
            t_.e(f"s_lshl_b32 s{S_T0}, s{S_T0}, 13")
            t_.e(f"s_add_u32 s{S_PF}, s{S_PF}, s{S_T0}")
            t_.e(f"s_addc_u32 s{S_PF+1}, s{S_PF+1}, 0")
            t_.e(f"s_sub_u32 s{S_PF+2}, 262144, s{S_T0}")
            t_.e(f"s_mov_b32 s{S_PF+3}, 0x00020000")
            t_.e(f"v_lshlrev_b32 v112, 7, v{V_T0}")
            if o.pf0: t_.e(f"v_add_u32 v112, {o.pf0*16384}, v112")
            self.pfreg = 112
            for i in range(self.pfc[0]):
                t_.e(VM(f"buffer_load_dword v{V_PFD}, v112, {sr(S_PF)}, 0 offen{o.pfpol}", "PF"))
                t_.e(f"v_add_u32 v112, 16384, v112")
        t_.many(self.stamp("k0"))
        self.emit_kv_addr(rd=True, dma=False)
        sc = f32(1.4426950408889634 / (128 ** 0.5))
        t_.e(f"s_mov_b32 s{S_SC}, {hex(sc)}")
        t_.e(f"s_mov_b32 s{S_PASS}, 0")
        t_.e(f"v_bfe_u32 v{r4}, v{L}, 2, 2")
        t_.e(f"v_and_b32 v{c4}, 3, v{L}")
        t_.e(f"v_lshrrev_b32 v{t}, 1, v{l15}")
        t_.e(f"v_xor_b32 v{t}, v{t}, v{g}")
        t_.e(f"v_lshlrev_b32 v{t}, 4, v{t}")
        t_.e(f"v_lshlrev_b32 v{u}, 7, v{l15}")
        t_.e(f"s_mul_i32 s{S_T0}, s{S_QH}, {112*128}")
        t_.e(f"v_add_u32 v{u}, s{S_T0}, v{u}")
        t_.e(f"v_add_u32 v{V_XR}, v{t}, v{u}")
        t_.e(f"v_xor_b32 v{t}, 64, v{t}")
        t_.e(f"v_add_u32 v{V_XR+1}, v{t}, v{u}")
        t_.e(f"v_add_u32 v{V_XR+2}, 90112, v{V_XR}")
        t_.e(f"v_add_u32 v{V_XR+3}, 90112, v{V_XR+1}")
        t_.e(f"s_lshl_b32 s{S_T0}, s{S_KH}, 1")
        t_.e(f"v_xor_b32 v{t}, s{S_T0}, v{r4}")
        t_.e(f"v_lshlrev_b32 v{t}, 6, v{t}")
        t_.e(f"v_lshlrev_b32 v{u}, 3, v{g}")
        t_.e(f"v_add_u32 v{u}, v{u}, v{r4}")
        t_.e(f"v_lshlrev_b32 v{u}, 8, v{u}")
        t_.e(f"v_lshlrev_b32 v{c4}, 4, v{c4}")
        t_.e(f"v_add_u32 v{u}, v{u}, v{c4}")
        t_.e(f"v_add_u32 v{u}, 28672, v{u}")
        t_.e(f"v_add_u32 v{V_WR}, v{t}, v{u}")
        t_.e(f"v_xor_b32 v{t}, 64, v{t}")
        t_.e(f"v_add_u32 v{V_WR+1}, v{t}, v{u}")
        t_.e(f"v_add_u32 v{V_WR+2}, 90112, v{V_WR}")
        t_.e(f"v_add_u32 v{V_WR+3}, 90112, v{V_WR+1}")
        t_.e(f"v_lshlrev_b32 v{t}, 4, v{L}")
        t_.e(f"s_mul_i32 s{S_T0}, s{S_QH}, 28672")
        t_.e(f"v_add_u32 v{V_QR}, s{S_T0}, v{t}")
        t_.e(f"s_mul_i32 s{S_T1}, s{S_KH}, 14336")
        t_.e(f"v_add_u32 v{V_QW}, s{S_T1}, v{V_QR}")
        for i in range(28):
            t_.e(f"v_mov_b32 v{V_NEGM+i}, 0")
        t_.e(f"v_mov_b32 v{t}, 0x3f803f80")
        for i in range(4):
            t_.e(f"v_accvgpr_write_b32 a{A_ONES+i}, v{t}")
        if self.pf_on:
            t_.e(f"v_mov_b32 v{V_PF}, v112")
        for k in range(9):
            t_.c(f"---- Q-proj period {k}")
            t_.many(self.stamp(f"a{k}"))
            t_.e(WV(f"X{k}"))
            t_.many(self.stamp(f"w{k}"))
            if k: t_.e(WL(f"R{k-1}"))
            t_.e("s_barrier")
            t_.many(self.stamp(f"p{k}"))
            rd = self.q_reads(k)
            if k <= 6:
                dm = self.x_dma(k + 2)
            elif k == 7:
                dm = self.kv_dma("V", 0, "0") + [f"s_mov_b32 s{S_SOKV}, 16384"] + self.kv_dma("K", 1, f"s{S_SOKV}") + \
                     self.kv_dma("V", 1, f"s{S_SOKV}")
            else:
                dm = [f"s_mov_b32 s{S_SOKV}, 32768"] + self.kv_dma("K", 2, f"s{S_SOKV}") + self.kv_dma("V", 2, f"s{S_SOKV}")
            for i in range(self.pfc[k + 1]): dm = dm + self.kv_touch()
            if k == 0:
                t_.many(rd); t_.many(self.stamp("r0")); t_.many(dm)
                continue
            S = Sched(self.q_mfmas(k - 1, k == 1))
            pos = [g for g in range(56) if g % 5 != 2][:len(rd)]
            for p_, r_ in zip(pos, rd): S.post[p_].append(r_)
            nvm = sum(isinstance(x, VM) for x in dm)
            step = 56.0 / nvm
            i = 0
            pend = []
            for x in dm:
                if isinstance(x, VM):
                    gpos = int(i * step + 2 - (i * step + 2) % 1)
                    gpos = min(55, gpos)
                    if pend:
                        S.post[gpos - 1] += pend; pend = []
                    S.post[gpos].append(x); i += 1
                else:
                    pend.append(x)
            if pend: S.post[55] += pend
            if o.fused and k in (3, 4, 8):
                extra = {3: self.b_addr_s, 4: self.b_addr_v, 8: self.b_srd}[k]()
                for i, x in enumerate(extra): S.post[38 + (i * 17) // len(extra)].append(x)
            S.emit(t_)
        t_.c("---- Q-proj period 9 + finalisation")
        t_.e(WL("R8"))
        t_.e("s_barrier")
        t_.many(self.stamp("p9"))
        groups = [(jj, qt) for jj in range(2) for qt in range(7)]
        mf = []
        for (jj, qt) in groups:
            for s in range(2):
                for T in (2 * jj, 2 * jj + 1):
                    mf.append(self.q_mf(8, s, T, qt, False))
        S = Sched(mf)
        def fin(gi):
            jj, qt = groups[gi]
            tb = V_QT + (gi & 1) * 4
            r0 = ((2 * jj) * 7 + qt) * 4
            r1 = ((2 * jj + 1) * 7 + qt) * 4
            m0_ = [f"v_mul_f32 v{r0+i}, s{S_SC}, v{r0+i}" for i in range(4)]
            m1_ = [f"v_mul_f32 v{r1+i}, s{S_SC}, v{r1+i}" for i in range(4)]
            c_ = [f"v_cvt_pk_bf16_f32 v{tb}, v{r0}, v{r0+1}", f"v_cvt_pk_bf16_f32 v{tb+1}, v{r0+2}, v{r0+3}",
                  f"v_cvt_pk_bf16_f32 v{tb+2}, v{r1}, v{r1+1}", f"v_cvt_pk_bf16_f32 v{tb+3}, v{r1+2}, v{r1+3}"]
            w_ = DS(f"ds_write_b128 v{V_QW}, {vr(tb)} offset:{(jj*7+qt)*1024}", "qw")
            return m0_, m1_, c_, w_
        for gi in range(13):
            m0_, m1_, c_, w_ = fin(gi)
            b = 4 * (gi + 1) + 1
            S.post[b] += m0_; S.post[b + 1] += m1_; S.post[b + 2] += c_; S.post[b + 3] += [w_]
        kr = [self.k_read(kt, ks, 0) for kt in range(2) for ks in range(4)]
        for i, x in enumerate(kr): S.post[i].append(x)
        S.emit(t_)
        t_.e("s_nop 7")
        m0_, m1_, c_, w_ = fin(13)
        t_.many(m0_); t_.many(m1_); t_.many(c_); t_.e(w_)
        t_.e(WL("qw"))
        t_.e(WV("V0"))
        t_.e("s_barrier")
        t_.many(self.stamp("qx"))
        if o.dbgq:
            for qt in range(7): t_.many(self.q_read(qt))
            t_.e(WALL('l'))
            t_.e(f"s_lshl_b32 s{S_T0}, s2, 2")
            t_.e(f"s_add_u32 s{S_T0}, s{S_T0}, s{S_W}")
            t_.e(f"s_mul_i32 s{S_T0}, s{S_T0}, 28672")
            t_.e(f"s_add_u32 s{S_T0}, s{S_T0}, {32<<20}")
            t_.e(f"s_mov_b32 s{S_O+2}, {256<<20}")
            t_.e(f"v_and_b32 v{V_T0}, 63, v{V_TID}")
            t_.e(f"v_lshlrev_b32 v{V_T0}, 4, v{V_T0}")
            for i in range(28):
                t_.e(f"buffer_store_dwordx4 {ar(A_Q + i*4)}, v{V_T0}, {sr(S_O)}, s{S_T0} offen")
                t_.e(f"s_add_u32 s{S_T0}, s{S_T0}, 1024")
            t_.e("s_waitcnt vmcnt(0)")
            t_.e(f"s_mov_b32 s{S_O+2}, {112*self.QS}")
        t_.lab("A_ATT")
        t_.many(self.q_read(0)); t_.many(self.q_read(1))
        t_.e(f"v_add_u32 v{V_OFFKV}, {3*16384}, v{V_OFFKV}")
        t_.e(f"v_add_u32 v{V_OFFKV+1}, {3*16384}, v{V_OFFKV+1}")
        self.preamble(True)
        self.body()
        self.epilogue()
        t_.lab("CT_END")
        self.slowpath()
        t_.lab("A_END")
        t_.e("s_endpgm")
        return "\n".join(t_.L)

    def preamble(self, with_q):
        t_ = self.t
        vr_ = [self.v_read(tp, hf, 0) for tp in range(7) for hf in range(2)]
        t_.e(WL("k0.0", "k0.1", "q0"))
        S = Sched(self.qk_mfmas(0, 0))
        for i, x in enumerate(vr_): S.post[i // 2].append(x)
        if with_q:
            q2 = self.q_read(2)
            S.post[7] += q2
        S.emit(t_)
        t_.e(WL("q1"))
        m1 = self.qk_mfmas(1, 1)
        ex = self.exps(0); cv = self.cvts(0)
        S = Sched(m1)
        S.post[0] += ex[0:2]; S.post[1] += ex[2:4]; S.post[2] += ex[4:6]; S.post[3] += ex[6:8]
        S.post[4] += cv[0:2]; S.post[5] += cv[2:4]
        S.emit(t_)
        t_.many(self.stamp("pre"))

    def body(self):
        t_ = self.t
        texts = []
        start = len(t_.L)
        for n in range(4):
            self.tile(n)
            t_.many(self.stamp(f"t{n}"))
        i0 = len(t_.L)
        if self.o.unroll:
            for n in range(4, 12): self.tile(n)
            t_.many(self.stamp("t11"))
            for n in range(12, 16): self.tile(n)
            t_.many(self.stamp("t15"))
            return
        for n in range(4, 8): self.tile(n)
        i1 = len(t_.L)
        for n in range(8, 12): self.tile(n)
        i2 = len(t_.L)
        strip = lambda xs: [x for x in xs if not x.strip().startswith(";")]
        assert strip(t_.L[i0:i1]) == strip(t_.L[i1:i2]), "loop iterations differ"
        body = t_.L[i0:i1]
        t_.L = t_.L[:i0]
        t_.e(f"s_mov_b32 s{S_CNT}, 2")
        t_.lab("A_LOOP")
        t_.L += body
        t_.e(f"s_sub_u32 s{S_CNT}, s{S_CNT}, 1")
        t_.e(f"s_cmp_lg_u32 s{S_CNT}, 0")
        t_.e("s_cbranch_scc1 A_LOOP")
        t_.many(self.stamp("t11"))
        for n in range(12, 16):
            self.tile(n)
            t_.many(self.stamp(f"t{n}"))

    def fin_tile(self, qt, pb, tb, lt):
        r = []
        ob = V_OOWN + qt * 16
        r.append(f"v_accvgpr_read_b32 v{lt}, a{A_L + 4*qt}")
        r.append(f"v_add_f32 v{lt}, v{lt}, v{lt+1}")
        r.append(f"v_rcp_f32 v{lt}, v{lt}")
        for k in range(8):
            r.append(f"v_pk_add_f32 {vr(ob+2*k,2)}, {vr(ob+2*k,2)}, {vr(pb+2*k,2)}")
        for k in range(8):
            r.append(f"v_pk_mul_f32 {vr(ob+2*k,2)}, {vr(ob+2*k,2)}, {vr(lt,2)} op_sel:[0,0] op_sel_hi:[1,0]")
        for jj in range(2):
            s0 = ob + jj * 8
            for k in range(4):
                r.append(f"v_cvt_pk_bf16_f32 v{tb + jj*4 + k}, v{s0 + 2*k}, v{s0 + 2*k + 1}")
        pol = " sc1" if (self.o.osc1 or self.o.fused) else ""
        for jj in range(2):
            off = " offset:1024" if jj else ""
            r.append(VM(f"buffer_store_dwordx4 {vr(tb + jj*4)}, v{V_T0+1}, {sr(S_O)}, s{S_OB} offen{off}{pol}", "ost"))
        r.append(f"s_add_u32 s{S_OB}, s{S_OB}, {self.QS}")
        return r

    def p_reads(self, qt, pb, lt):
        r = []
        for tpp in range(4):
            i = qt * 4 + tpp
            r.append(DS(f"ds_read_b128 {vr(pb + tpp*4)}, v{V_KA+2} offset:{i*1024}", f"p{qt}"))
        r.append(DS(f"ds_read_b32 v{lt+1}, v{V_KA+3} offset:{qt*256}", f"p{qt}"))
        return r

    def epilogue(self):
        t_ = self.t
        o = self.o
        t_.c("---- epilogue")
        PB = [112, 128, 144, 160]
        LT = [V_NEGM + 16, V_NEGM + 18, V_NEGM + 20, V_NEGM + 22]
        TB = [V_NEGM, V_NEGM + 8]
        t_.many(self.p_reads(0, PB[0], LT[0]))
        t_.many(self.p_reads(1, PB[1], LT[1]))
        t_.e("s_nop 7")
        t_.many(self.o_writes(6))
        t_.many(self.p_reads(2, PB[2], LT[2]))
        t_.many(self.p_reads(3, PB[3], LT[3]))
        T = V_S
        lo, hi = f32(2.0 ** -24), f32(2.0 ** 30)
        t_.e(f"s_mov_b32 s{S_T0}, {hex(lo)}")
        t_.e(f"s_mov_b32 s{S_T1}, {hex(hi - lo)}")
        for qt in range(7):
            t_.e(f"v_accvgpr_read_b32 v{T+qt}, a{A_L + 4*qt}")
        t_.e(f"v_subrev_u32 v{T+8}, s{S_T0}, v{T}")
        for qt in range(1, 7):
            t_.e(f"v_subrev_u32 v{T+9}, s{S_T0}, v{T+qt}")
            t_.e(f"v_max_u32 v{T+8}, v{T+8}, v{T+9}")
        t_.e(f"v_cmp_lt_u32 vcc, s{S_T1}, v{T+8}")
        t_.e(f"s_lshl_b32 s{S_T3}, s{S_W}, 2")
        t_.e(f"s_add_u32 s{S_T3}, s{S_T3}, {FOFF}")
        t_.e(f"s_cmp_lg_u64 vcc, 0")
        t_.e(f"s_cselect_b32 s{S_T2}, 1, 0")
        t_.e(f"v_mov_b32 v{T+10}, s{S_T2}")
        t_.e(f"v_and_b32 v{T+11}, 3, v{V_TID}")
        t_.e(f"v_mul_u32_u24 v{T+11}, {RG}, v{T+11}")
        t_.e(f"v_add_u32 v{T+11}, s{S_T3}, v{T+11}")
        t_.e(DS(f"ds_write_b32 v{T+11}, v{T+10}", "fl"))
        for qt in range(4):
            t_.e(WL(f"p{qt}"))
            t_.many(self.fin_tile(qt, PB[qt], TB[qt & 1], LT[qt]))
            if o.fused: t_.many(self.wo_dma(2 + qt))
        t_.e(WL("fl", "ow4", "ow5", "ow6"))
        t_.e("s_barrier")
        t_.many(self.stamp("e1"))
        F = V_P + 4
        t_.e(f"s_mul_i32 s{S_T0}, s{S_W}, {RG}")
        t_.e(f"s_add_u32 s{S_T0}, s{S_T0}, {FOFF}")
        t_.e(f"v_mov_b32 v{T+11}, s{S_T0}")
        t_.e(DS(f"ds_read_b128 {vr(F)}, v{T+11}", "flr"))
        for qt in range(4, 7):
            t_.many(self.p_reads(qt, PB[qt - 4], LT[qt - 4]))
        t_.e(WL("flr"))
        t_.e(f"v_or_b32 v{F}, v{F}, v{F+1}")
        t_.e(f"v_or_b32 v{F+2}, v{F+2}, v{F+3}")
        t_.e(f"v_or_b32 v{F}, v{F}, v{F+2}")
        t_.e("s_nop 1")
        t_.e(f"v_readfirstlane_b32 s{S_T0}, v{F}")
        t_.e(f"s_xor_b32 s{S_T1}, s{S_PASS}, 1")
        t_.e(f"s_and_b32 s{S_T0}, s{S_T0}, s{S_T1}")
        t_.e(f"s_cmp_lg_u32 s{S_T0}, 0")
        t_.e("s_cbranch_scc1 A_SLOW")
        for qt in range(4, 7):
            t_.e(WL(f"p{qt}"))
            if o.fused:
                t_.many(self.wo_dma(2 + qt))
                if qt == 6: t_.many(self.wo_dma(9))
            t_.many(self.fin_tile(qt, PB[qt - 4], TB[qt & 1], LT[qt - 4]))
        t_.many(self.stamp("e2"))
        if o.fused: self.phase_b()
        if o.stamps:
            t_.e(f"s_memrealtime s[{S_ST+38}:{S_ST+39}]")
            t_.e("s_waitcnt lgkmcnt(0)")
            t_.e(f"s_cmp_lg_u32 s{S_W}, 0")
            t_.e("s_cbranch_scc1 A_END")
            ns = 20
            t_.e(f"s_mul_i32 s{S_T0}, s2, {ns*4*2}")
            t_.e(f"s_add_u32 s{S_T0}, s{S_T0}, {64<<20}")
            t_.e(f"s_mov_b32 s{S_O+2}, {256<<20}")
            t_.e(f"v_mov_b32 v{V_T0+1}, 0")
            for i in range(ns * 2):
                if 2 * self.nst <= i < 36:
                    t_.e(f"v_mov_b32 v{V_T0}, 0")
                else:
                    t_.e(f"v_mov_b32 v{V_T0}, s{S_ST+i}")
                t_.e(f"buffer_store_dword v{V_T0}, v{V_T0+1}, {sr(S_O)}, s{S_T0} offen offset:{i*4}")
                t_.e("s_nop 1")
        t_.e("s_endpgm")

    def b_addr_v(self):
        L, t0, t1, t2 = 184, 185, 186, 187
        r = []
        r.append(f"v_and_b32 v{L}, 63, v{V_TID}")
        r.append(f"v_lshrrev_b32 v{t0}, 3, v{L}")
        r.append(f"v_and_b32 v{t1}, 7, v{L}")
        r.append(f"v_bfe_u32 v{t2}, v{L}, 4, 2")
        r.append(f"v_lshlrev_b32 v{t2}, 1, v{t2}")
        r.append(f"v_xor_b32 v{t1}, v{t1}, v{t2}")
        r.append(f"v_lshlrev_b32 v{t1}, 4, v{t1}")
        r.append(f"v_mul_u32_u24 v{t0}, 1152, v{t0}")
        r.append(f"v_add_u32 v{V_WOF}, v{t0}, v{t1}")
        for i in range(1, 4):
            r.append(f"v_add_u32 v{V_WOF+i}, {i*(9216-1024)}, v{V_WOF}")
        r.append(f"v_lshrrev_b32 v{t0}, 2, v{L}")
        r.append(f"v_bfe_u32 v{t1}, v{L}, 3, 2")
        r.append(f"v_lshlrev_b32 v{t1}, 5, v{t1}")
        r.append(f"v_lshlrev_b32 v{t0}, 7, v{t0}")
        r.append(f"v_and_b32 v{t2}, 3, v{L}")
        r.append(f"v_lshlrev_b32 v{t2}, 3, v{t2}")
        r.append(f"v_add_u32 v{t0}, v{t0}, v{t2}")
        r.append(f"v_add_u32 v{t0}, s{S_RB}, v{t0}")
        for nt in range(4):
            r.append(f"v_xor_b32 v{V_TR+nt}, {nt*32}, v{t1}")
            r.append(f"v_add_u32 v{V_TR+nt}, v{V_TR+nt}, v{t0}")
        return r

    def b_addr_s(self):
        r = []
        r.append(f"s_mul_i32 s{S_RB}, s{S_W}, {RG}")
        r.append(f"s_and_b32 s{S_T0}, s2, 7")
        r.append(f"s_lshr_b32 s{S_T1}, s2, 3")
        r.append(f"s_and_b32 s{S_T2}, s{S_T0}, 1")
        r.append(f"s_lshl_b32 s{S_T2}, s{S_T2}, 5")
        r.append(f"s_add_u32 s{S_T1}, s{S_T1}, s{S_T2}")
        r.append(f"s_lshr_b32 s{S_T0}, s{S_T0}, 1")
        r.append(f"s_mul_i32 s{S_T0}, s{S_T0}, 7")
        if self.o.bmap == 0:
            r.append(f"s_mul_i32 s{S_NG}, s{S_T1}, 37")
            r.append(f"s_lshr_b32 s{S_NG}, s{S_NG}, 8")
            r.append(f"s_mul_i32 s{S_T2}, s{S_NG}, 7")
            r.append(f"s_sub_u32 s{S_T2}, s{S_T1}, s{S_T2}")
            r.append(f"s_add_u32 s{S_MG}, s{S_T2}, s{S_T0}")
        else:
            r.append(f"s_mul_i32 s{S_T2}, s{S_T1}, 57")
            r.append(f"s_lshr_b32 s{S_T2}, s{S_T2}, 9")
            r.append(f"s_add_u32 s{S_MG}, s{S_T2}, s{S_T0}")
            r.append(f"s_mul_i32 s{S_T2}, s{S_T2}, 9")
            r.append(f"s_sub_u32 s{S_NG}, s{S_T1}, s{S_T2}")
        r.append(f"s_cmp_ge_u32 s{S_T1}, 63")
        r.append(f"s_cselect_b32 s{S_NG}, 15, s{S_NG}")
        r.append(f"s_cselect_b32 s{S_MG}, 0, s{S_MG}")
        if self.o.brot:
            r.append(f"s_mul_i32 s{S_ROT}, s{S_NG}, {self.o.brot * 1024}")
        r.append(f"s_mul_i32 s{S_T0}, s{S_W}, {1024*1152}")
        r.append(f"s_lshl_b32 s{S_T1}, s{S_NG}, 7")
        r.append(f"s_add_u32 s{S_SW}, s{S_T0}, s{S_T1}")
        r.append(f"s_mul_i32 s{S_T0}, s{S_MG}, {4*self.QS}")
        r.append(f"s_lshl_b32 s{S_T1}, s{S_W}, 15")
        r.append(f"s_add_u32 s{S_SO}, s{S_T0}, s{S_T1}")
        r.append(f"s_lshl_b32 s{S_T0}, s{S_MG}, 2")
        r.append(f"s_mul_i32 s{S_T1}, s{S_T0}, 147")
        r.append(f"s_lshr_b32 s{S_T1}, s{S_T1}, 11")
        r.append(f"s_lshl_b32 s{S_L0}, s{S_T1}, 3")
        r.append(f"s_add_u32 s{S_T0}, s{S_T0}, 3")
        r.append(f"s_mul_i32 s{S_T1}, s{S_T0}, 147")
        r.append(f"s_lshr_b32 s{S_T1}, s{S_T1}, 11")
        r.append(f"s_lshl_b32 s{S_L1}, s{S_T1}, 3")
        return r

    def b_srd(self):
        r = []
        r.append(f"s_mov_b32 s{S_WO}, s4"); r.append(f"s_mov_b32 s{S_WO+1}, s5")
        r.append(f"s_mov_b32 s{S_WO+2}, {4096*1152}"); r.append(f"s_mov_b32 s{S_WO+3}, 0x00020000")
        r.append(f"s_mov_b32 s{S_OUT}, s6"); r.append(f"s_mov_b32 s{S_OUT+1}, s7")
        r.append(f"s_mov_b32 s{S_OUT+2}, {1792*1152}"); r.append(f"s_mov_b32 s{S_OUT+3}, 0x00020000")
        return r

    @staticmethod
    def slot(f): return (f + 8) % 10

    def btime(self, f):
        NR, NL = self.o.nr, 10
        order = list(range(NR, NR + NL)) + list(range(NR)) + list(range(NR + NL, 32))
        return order.index(f)

    def wo_dma(self, f):
        if self.o.brot:
            r = [f"s_add_u32 s{S_RT}, s{S_ROT}, {self.btime(f)*1024}", f"s_and_b32 s{S_RT}, s{S_RT}, 0x7fff",
                 f"s_mul_i32 s{S_RT}, s{S_RT}, 36", f"s_add_u32 s{S_SWC}, s{S_SW}, s{S_RT}",
                 f"s_add_u32 m0, s{S_RB}, {self.slot(f)*4096}"]
            for i in range(4):
                off = f" offset:{i*1024}" if i else ""
                r.append(VM(f"buffer_load_dwordx4 v{V_WOF+i}, {sr(S_WO)}, s{S_SWC} offen{off} lds", f"W{f}"))
            return r
        fa = f % self.o.wsm if self.o.wsm else f
        r = [f"s_add_u32 s{S_SWC}, s{S_SW}, {fa*32*1152}", f"s_add_u32 m0, s{S_RB}, {self.slot(f)*4096}"]
        for i in range(4):
            off = f" offset:{i*1024}" if i else ""
            r.append(VM(f"buffer_load_dwordx4 v{V_WOF+i}, {sr(S_WO)}, s{S_SWC} offen{off} lds", f"W{f}"))
        return r

    def tr_reads(self, f, unit):
        k, b = unit
        r = []
        for nt in range(4):
            for hf in range(2):
                r.append(DS(f"ds_read_b64_tr_b16 {k}[{b + nt*4 + 2*hf}:{b + nt*4 + 2*hf + 1}], v{V_TR+nt} offset:{self.slot(f)*4096 + hf*2048}", f"t{f}"))
        return r

    def phase_b(self):
        t_, o = self.t, self.o
        NR, D, NL = o.nr, o.od, 10
        units = [("a", 16*i) for i in range(16)] + [("v", 64 + 16*i) for i in range(10)]
        assert NR + 2 + D <= len(units)
        res = units[:NR]; jit = units[-(D + 2):-D]; ring = units[-D:]
        U = lambda u, off: f"{u[0]}[{u[1]+off}:{u[1]+off+3}]"
        NK = 32
        order = list(range(NR, NR + NL)) + list(range(NR)) + list(range(NR + NL, NK))
        t_.c("---- out-projection: weight prefetch + publish")
        t_.e(WV("PW"))
        for mi in range(1, 4):
            t_.e(f"v_add_u32 v{V_OO[mi]}, {mi*self.QS}, v{V_OO[0]}")
        def publish():
            t_.e(WV("ost"))
            t_.e("s_barrier")
            t_.e(f"s_cmp_lg_u32 s{S_W}, {o.pubw}")
            t_.e("s_cbranch_scc1 B_PUB")
            if o.pubmode == 0:
                t_.e(f"s_lshl_b32 s{S_T0}, s{S_B}, 5")
                t_.e(f"v_mov_b32 v{V_S}, s{S_T0}")
                t_.e(f"v_mov_b32 v{V_S+1}, 1")
                t_.e("s_mov_b64 exec, 1")
                t_.e(f"global_atomic_add v{V_S}, v{V_S+1}, s[8:9]")
                t_.e("s_mov_b64 exec, -1")
            else:
                t_.e(f"s_lshl_b32 s{S_T0}, s{S_B}, 5")
                t_.e(f"s_add_u32 s{S_T0}, s{S_T0}, s{S_H}")
                t_.e(f"v_mov_b32 v{V_S}, s{S_T0}")
                t_.e(f"v_mov_b32 v{V_S+1}, 1")
                t_.e("s_mov_b64 exec, 1")
                t_.e(f"global_store_byte v{V_S}, v{V_S+1}, s[8:9] sc1")
                t_.e("s_mov_b64 exec, -1")
            t_.lab("B_PUB")
            t_.many(self.stamp("pub"))
            t_.e(f"s_cmp_eq_u32 s{S_NG}, 15")
            t_.e("s_cbranch_scc1 A_END")
        published = False
        nxt = NL
        for f in range(NR):
            if f == o.npre and not published:
                publish(); published = True
            t_.e(WV(f"W{f}"))
            t_.many(self.stamp(f"wf{f}"))
            if not (o.wdiag & 1): t_.many(self.tr_reads(f, res[f]))
            if f >= 1:
                t_.e(WL(f"t{f-1}"))
                if nxt < NK:
                    if not (o.wdiag & 2): t_.many(self.wo_dma(nxt))
                    nxt += 1
        if not published:
            publish(); published = True
        t_.e(WL(f"t{NR-1}"))
        if nxt < NK: t_.many(self.wo_dma(nxt)); nxt += 1
        for i in range(2):
            f = order[i]
            t_.e(WV(f"W{f}"))
            t_.many(self.tr_reads(f, jit[i]))
        for i in range(2):
            t_.e(WL(f"t{order[i]}"))
            if nxt < NK: t_.many(self.wo_dma(nxt)); nxt += 1
        t_.many(self.stamp("wpf"))
        P, Q = V_S, V_S + 1
        t_.e(f"s_cmp_lg_u32 s{S_W}, {o.pollw}")
        t_.e("s_cbranch_scc1 B_GO")
        if o.pubmode == 0:
            t_.e(f"v_and_b32 v{Q}, 63, v{V_TID}")
            t_.e(f"v_lshlrev_b32 v{Q}, 2, v{Q}")
            t_.e(f"s_mov_b32 s{S_CNT}, 200000")
            t_.lab("B_POLL")
            t_.e(f"global_load_dword v{P}, v{Q}, s[8:9] sc1")
            t_.e("s_waitcnt vmcnt(0)")
            t_.e(f"v_readlane_b32 s{S_T0}, v{P}, s{S_L0}")
            t_.e(f"v_readlane_b32 s{S_T1}, v{P}, s{S_L1}")
            t_.e(f"s_min_u32 s{S_T0}, s{S_T0}, s{S_T1}")
            t_.e(f"s_cmp_ge_u32 s{S_T0}, 32")
            t_.e("s_cbranch_scc1 B_GO")
        else:
            t_.e(f"v_and_b32 v{Q}, 63, v{V_TID}")
            t_.e(f"v_mov_b32 v{P}, s{S_L0}")
            t_.e(f"v_mov_b32 v{P+2}, s{S_L1}")
            t_.e(f"v_cmp_gt_u32 vcc, 8, v{Q}")
            t_.e(f"v_cndmask_b32 v{P}, v{P+2}, v{P}, vcc")
            t_.e(f"v_and_b32 v{Q}, 7, v{Q}")
            t_.e(f"v_add_u32 v{Q}, v{Q}, v{P}")
            t_.e(f"v_lshlrev_b32 v{Q}, 2, v{Q}")
            t_.e(f"s_mov_b32 s{S_CNT}, 200000")
            t_.e(f"s_mov_b32 s{S_T1}, 0x01010101")
            t_.e("s_mov_b64 exec, 0xffff")
            t_.lab("B_POLL")
            t_.e(f"global_load_dword v{P}, v{Q}, s[8:9] sc1")
            t_.e("s_waitcnt vmcnt(0)")
            t_.e(f"v_cmp_ne_u32 vcc, s{S_T1}, v{P}")
            t_.e("s_nop 4")
            t_.e("s_cbranch_vccz B_PD")
        t_.e(f"s_sub_u32 s{S_CNT}, s{S_CNT}, 1")
        t_.e(f"s_cmp_eq_u32 s{S_CNT}, 0")
        t_.e(f"s_cbranch_scc1 {'B_PD' if o.pubmode else 'B_GO'}")
        t_.e(f"s_sleep {o.psleep}")
        t_.e("s_branch B_POLL")
        if o.pubmode:
            t_.lab("B_PD")
            t_.e("s_mov_b64 exec, -1")
        t_.lab("B_GO")
        t_.e("s_barrier")
        t_.many(self.stamp("poll"))
        def o_soff(i):
            if o.brot:
                return [f"s_add_u32 s{S_RT}, s{S_ROT}, {i*1024}", f"s_and_b32 s{S_RT}, s{S_RT}, 0x7fff", f"s_add_u32 s{S_SOC}, s{S_SO}, s{S_RT}"]
            return [f"s_add_u32 s{S_SOC}, s{S_SO}, {order[i]*1024}"]
        def o_load(i, mi):
            if o.bnold and i >= D: return "s_nop 0"
            return VM(f"buffer_load_dwordx4 {U(ring[i % D], mi*4)}, v{V_OO[mi]}, {sr(S_O)}, s{S_SOC} offen{' sc1' if o.olsc else ''}", f"O{i}.{mi}")
        if o.b2x:
            t_.e(f"s_mov_b32 s{S_CNT}, 2")
            t_.lab("B_2X")
        for i in range(D):
            t_.many(o_soff(i))
            for mi in range(4): t_.e(o_load(i, mi))
        for i in range(NK):
            f = order[i]
            inlds = f >= NR
            wu = jit[i & 1] if inlds else res[f]
            if i == NK - (NK - NR - NL) and (i & 1) != ((NL) & 1):
                pass
            mf = []
            for mi in range(4):
                for nt in range(4):
                    d = vr((mi*4 + nt)*4)
                    mf.append(f"{MF} {d}, {U(wu, nt*4)}, {U(ring[i % D], mi*4)}, {'0' if i == 0 else d}")
            if o.bnomf: mf = ["s_nop 0"] * 16
            S = Sched(mf)
            if inlds: S.pre[0].append(WL(f"t{f}"))
            if inlds: S.pre[0].append(WV(f"W{f}"))
            for mi in range(4): S.pre[4*mi].append(WV(f"O{i}.{mi}"))
            if i + D < NK:
                S.post[0] += o_soff(i + D)
                for mi in range(4): S.post[4*mi + 3].append(o_load(i + D, mi))
            if i + 1 < NK and order[i + 1] >= NR and (i + 1) >= 2:
                fn = order[i + 1]
                rd = self.tr_reads(fn, jit[(i + 1) & 1])
                S.post[1].append(WV(f"W{fn}"))
                for k, x in enumerate(rd): S.post[1 + k].append(x)
            if inlds and i >= 2 and nxt < NK:
                d = self.wo_dma(nxt); nxt += 1
                ns = len(d) - 4
                S.post[9] += d[:ns]; S.post[10].append(d[ns]); S.post[12].append(d[ns+1]); S.post[13].append(d[ns+2]); S.post[14].append(d[ns+3])
            S.emit(t_)
        assert nxt == NK
        if o.b2x:
            t_.e(f"s_cmp_eq_u32 s{S_CNT}, 2")
            t_.e("s_cbranch_scc0 B_2XE")
            t_.e(f"s_memtime s[{S_ST+2}:{S_ST+3}]")
            t_.e(f"s_mov_b32 s{S_CNT}, 1")
            t_.e("s_branch B_2X")
            t_.lab("B_2XE")
        t_.many(self.stamp("main"))
        t0, t1, t2, t3, t4, L = 64, 65, 66, 67, 68, 69
        TRW = 70
        t_.e(f"v_and_b32 v{L}, 63, v{V_TID}")
        t_.e(f"v_and_b32 v{t0}, 15, v{L}")
        t_.e(f"v_lshrrev_b32 v{t1}, 4, v{L}")
        t_.e(f"v_xor_b32 v{t1}, v{t1}, v{t0}")
        t_.e(f"v_lshlrev_b32 v{t1}, 4, v{t1}")
        t_.e(f"v_lshlrev_b32 v{t0}, 8, v{t0}")
        t_.e(f"v_add_u32 v{t0}, s{S_RB}, v{t0}")
        for nt in range(4):
            t_.e(f"v_xor_b32 v{TRW+nt}, {nt*64}, v{t1}")
            t_.e(f"v_add_u32 v{TRW+nt}, v{TRW+nt}, v{t0}")
        t_.e("s_nop 7")
        for mi in range(4):
            for nt in range(4):
                t_.e(DS(f"ds_write_b128 v{TRW+nt}, {vr((mi*4+nt)*4)} offset:{mi*4096}", "rw"))
        t_.e(f"v_lshrrev_b32 v{t0}, 3, v{L}")
        t_.e(f"s_lshl_b32 s{S_T0}, s{S_W}, 4")
        t_.e(f"v_add_u32 v{t0}, s{S_T0}, v{t0}")
        t_.e(f"v_and_b32 v{t1}, 7, v{L}")
        t_.e(f"v_lshlrev_b32 v{t1}, 1, v{t1}")
        AD = 80
        for ps in range(2):
            if ps: t_.e(f"v_add_u32 v{t0}, 8, v{t0}")
            t_.e(f"v_and_b32 v{t2}, 15, v{t0}")
            t_.e(f"v_xor_b32 v{t3}, v{t1}, v{t2}")
            t_.e(f"v_lshlrev_b32 v{t3}, 4, v{t3}")
            t_.e(f"v_lshlrev_b32 v{t4}, 8, v{t0}")
            t_.e(f"v_add_u32 v{AD+ps*4}, v{t3}, v{t4}")
            t_.e(f"v_xor_b32 v{AD+ps*4+1}, 16, v{AD+ps*4}")
            t_.e(f"v_add_u32 v{AD+ps*4+2}, {2*RG}, v{AD+ps*4}")
            t_.e(f"v_add_u32 v{AD+ps*4+3}, {2*RG}, v{AD+ps*4+1}")
            t_.e(f"s_lshl_b32 s{S_T0}, s{S_MG}, 6")
            t_.e(f"v_add_u32 v{t4}, s{S_T0}, v{t0}")
            t_.e(f"v_mul_u32_u24 v{t4}, 1152, v{t4}")
            t_.e(f"v_lshlrev_b32 v{t2}, 3, v{t1}")
            t_.e(f"v_add_u32 v{88+ps}, v{t4}, v{t2}")
        t_.e(WL("rw"))
        t_.e("s_barrier")
        R = 96
        for ps in range(2):
            for wv in range(4):
                for ch in range(2):
                    a = AD + ps*4 + ch + (2 if wv >= 2 else 0)
                    off = (wv & 1) * RG
                    t_.e(DS(f"ds_read_b128 {vr(R + ps*32 + wv*8 + ch*4)}, v{a} offset:{off}", f"rr{ps}"))
        t_.e(f"s_lshl_b32 s{S_T1}, s{S_NG}, 7")
        for ps in range(2):
            t_.e(WL(f"rr{ps}"))
            B_ = R + ps*32
            for k in range(4):
                t_.e(f"v_pk_add_f32 {vr(B_+2*k,2)}, {vr(B_+2*k,2)}, {vr(B_+8+2*k,2)}")
                t_.e(f"v_pk_add_f32 {vr(B_+16+2*k,2)}, {vr(B_+16+2*k,2)}, {vr(B_+24+2*k,2)}")
            for k in range(4):
                t_.e(f"v_pk_add_f32 {vr(B_+2*k,2)}, {vr(B_+2*k,2)}, {vr(B_+16+2*k,2)}")
            for k in range(4):
                t_.e(f"v_cvt_pk_bf16_f32 v{72 + ps*4 + k}, v{B_+2*k}, v{B_+2*k+1}")
            t_.e(VM(f"buffer_store_dwordx4 {vr(72 + ps*4)}, v{88+ps}, {sr(S_OUT)}, s{S_T1} offen", "out"))
        t_.many(self.stamp("end"))

    def slowpath(self):
        a = self.t
        a.lab("A_SLOW")
        a.c("---- fallback: true row maximum, then redo the attention loop with it")
        a.lq, a.vq = [], []
        a.e("s_waitcnt vmcnt(0) lgkmcnt(0)")
        a.e("s_barrier")
        a.e(f"s_mov_b32 s{S_PASS}, 1")
        self.emit_kv_addr()
        for qt in range(7):
            a.e(f"v_mov_b32 v{V_NEGM + 4*qt}, 0xff800000")
        KA = V_V
        for ks in range(4):
            a.e(f"v_subrev_u32 v{KA+ks}, {PAIR(0)+16384}, v{V_KA+ks}")
        a.e(f"s_mov_b32 s{S_SOKV}, 0")
        a.lab("A_MAXLOOP")
        a.many([x.t if isinstance(x, VM) else x for x in self.kv_dma("K", 0, f"s{S_SOKV}", lds=0)])
        a.e("s_waitcnt vmcnt(0)")
        a.e("s_barrier")
        for kt in range(2):
            for ks in range(4):
                off = f" offset:{kt*4096}" if kt else ""
                a.e(f"ds_read_b128 {vr(V_K + (kt*4+ks)*4)}, v{KA+ks}{off}")
        a.e("s_waitcnt lgkmcnt(0)")
        for qt in range(7):
            for kt in range(2):
                for ks in range(4):
                    d = vr(V_S + kt * 4)
                    a.e(f"{MF} {d}, {vr(V_K + (kt*4+ks)*4)}, {ar(A_Q + (qt*4+ks)*4)}, {'0' if ks == 0 else d}")
            a.e("s_nop 15")
            m = V_NEGM + 4 * qt
            for i in range(4):
                a.e(f"v_max3_f32 v{m}, v{m}, v{V_S+2*i}, v{V_S+2*i+1}")
            a.e("s_nop 3")
        a.e("s_barrier")
        a.e(f"s_add_u32 s{S_SOKV}, s{S_SOKV}, 16384")
        a.e(f"s_cmp_lt_u32 s{S_SOKV}, 262144")
        a.e("s_cbranch_scc1 A_MAXLOOP")
        L, t, u = V_T0, V_T0 + 1, V_T0 + 2
        a.e(f"v_and_b32 v{L}, 63, v{V_TID}")
        a.e(f"v_lshlrev_b32 v{t}, 2, v{L}")
        a.e(f"s_mul_i32 s{S_T0}, s{S_W}, 1792")
        a.e(f"s_add_u32 s{S_T0}, s{S_T0}, {MXX}")
        a.e(f"v_add_u32 v{t}, s{S_T0}, v{t}")
        for qt in range(7):
            a.e(f"ds_write_b32 v{t}, v{V_NEGM + 4*qt} offset:{qt*256}")
        a.e("s_waitcnt lgkmcnt(0)")
        a.e("s_barrier")
        a.e(f"v_and_b32 v{u}, 15, v{L}")
        a.e(f"v_lshlrev_b32 v{u}, 2, v{u}")
        a.e(f"s_mul_i32 s{S_T0}, s{S_QH}, 3584")
        a.e(f"s_add_u32 s{S_T0}, s{S_T0}, {MXX}")
        a.e(f"v_add_u32 v{u}, s{S_T0}, v{u}")
        for qt in range(7):
            for i in range(8):
                off = (i >> 2) * 1792 + qt * 256 + (i & 3) * 64
                a.e(f"ds_read_b32 v{V_S+i}, v{u} offset:{off}")
            a.e("s_waitcnt lgkmcnt(0)")
            m = V_NEGM + 4 * qt
            a.e(f"v_max3_f32 v{m}, v{V_S}, v{V_S+1}, v{V_S+2}")
            a.e(f"v_max3_f32 v{m}, v{m}, v{V_S+3}, v{V_S+4}")
            a.e(f"v_max3_f32 v{m}, v{m}, v{V_S+5}, v{V_S+6}")
            a.e(f"v_max_f32 v{m}, v{m}, v{V_S+7}")
            a.e(f"v_sub_f32 v{m}, 0, v{m}")
            for i in range(1, 4):
                a.e(f"v_mov_b32 v{m+i}, v{m}")
        a.e("s_barrier")
        a.e(f"v_lshlrev_b32 v{t}, 4, v{L}")
        a.e(f"s_mul_i32 s{S_T0}, s{S_QH}, 28672")
        a.e(f"v_add_u32 v{V_QR}, s{S_T0}, v{t}")
        for ks in range(4):
            for qt in range(7):
                a.e(f"ds_write_b128 v{V_QR}, {ar(A_Q + (qt*4+ks)*4)} offset:{(ks*7+qt)*1024}")
        strip = lambda xs: [x.t if isinstance(x, VM) else x for x in xs]
        a.many(strip(self.kv_dma("K", 0, "0")))
        a.many(strip(self.kv_dma("V", 0, "0")))
        a.e(f"s_mov_b32 s{S_SOKV}, 16384")
        a.many(strip(self.kv_dma("K", 1, f"s{S_SOKV}")))
        a.many(strip(self.kv_dma("V", 1, f"s{S_SOKV}")))
        a.e(f"s_mov_b32 s{S_SOKV}, 32768")
        a.many(strip(self.kv_dma("K", 2, f"s{S_SOKV}")))
        a.many(strip(self.kv_dma("V", 2, f"s{S_SOKV}")))
        if self.o.fused: a.many(self.b_addr_v())
        if self.pf_on: a.e(f"v_mov_b32 v{V_PF}, 0x40000000")
        a.e(f"s_waitcnt vmcnt(16) lgkmcnt(0)")
        a.e("s_barrier")
        for kt in range(2):
            for ks in range(4):
                a.e(self.k_read(kt, ks, 0).t)
        a.e("s_branch A_ATT")


def main():
    import gen as G1
    ap = argparse.ArgumentParser()
    ap.add_argument("-o", default="cdna_kernels/" + NAME + ".s")
    ap.add_argument("--nt", type=int, default=0)
    ap.add_argument("--stamps", type=int, default=0)
    ap.add_argument("--dbgq", type=int, default=0)
    ap.add_argument("--bw", type=int, default=8)
    ap.add_argument("--brs", type=int, default=4)
    ap.add_argument("--only", default="")
    ap.add_argument("--rts", type=int, default=0)
    ap.add_argument("--osc1", type=int, default=0)
    ap.add_argument("--probe", default="")
    ap.add_argument("--fused", type=int, default=1)
    ap.add_argument("--bmap", type=int, default=0)
    ap.add_argument("--nr", type=int, default=16)
    ap.add_argument("--od", type=int, default=8)
    ap.add_argument("--npre", type=int, default=4)
    ap.add_argument("--opad", type=int, default=0)
    ap.add_argument("--bnomf", type=int, default=0)
    ap.add_argument("--bnold", type=int, default=0)
    ap.add_argument("--b2x", type=int, default=0)
    ap.add_argument("--olsc", type=int, default=1)
    ap.add_argument("--ctouch", type=int, default=0)
    ap.add_argument("--unroll", type=int, default=0)
    ap.add_argument("--xpol", default="")
    ap.add_argument("--wqpol", default="")
    ap.add_argument("--stsel", default="start,karg,k0,p0,p1,p8,p9,qx,pre,t11,t15,e1,e2,pub,wpf,poll,main,end")
    ap.add_argument("--qrot", default="", help="alpha,beta,shift: r = ((alpha*h' + beta*b') >> shift) mod 9")
    ap.add_argument("--brot", type=int, default=0)
    ap.add_argument("--pubmode", type=int, default=0)
    ap.add_argument("--wsm", type=int, default=0)
    ap.add_argument("--wdiag", type=int, default=0)
    ap.add_argument("--pubw", type=int, default=0)
    ap.add_argument("--pollw", type=int, default=0)
    ap.add_argument("--psleep", type=int, default=1)
    ap.add_argument("--pfq", type=int, default=0)
    ap.add_argument("--pfc", default="0,0,0,0,0,0,0,0,0,0")
    ap.add_argument("--pf0", type=int, default=0)
    ap.add_argument("--pfa", type=int, default=0)
    ap.add_argument("--pfpol", default="")
    ap.add_argument("--pfqpol", default="")
    ap.add_argument("--pfas", type=int, default=6)
    ap.add_argument("--pfan", type=int, default=11)
    ap.add_argument("--pfw", type=int, default=0)
    ap.add_argument("--pfwt", type=int, default=12)
    ap.add_argument("--tlbt", type=int, default=0)
    ap.add_argument("--pfwsp", default="")
    ap.add_argument("--pfwpol", default="")
    o = ap.parse_args()
    if o.xpol: o.xpol = " " + o.xpol.replace("+", " ")
    if o.wqpol: o.wqpol = " " + o.wqpol.replace("+", " ")
    if o.pfpol: o.pfpol = " " + o.pfpol
    if o.pfqpol: o.pfqpol = " " + o.pfqpol
    if o.pfwpol: o.pfwpol = " " + o.pfwpol
    ga = GenA(o); ta = ga.gen()
    if o.fused:
        hdr = G1.HDR.replace("Launch 1: one workgroup", "Phase 1: one workgroup").replace("Launch 2: out = O * wo.", "Phase 2 (same launch, after a counter hand-off): out = O * wo.")
        if o.probe:
            hdr += f"; @launch kernel={NAME}_kernel grid=(256,1,1) block=(256,1,1) lds=163840\n"
            hdr += "; @launch kernel=probe_kernel grid=(1,1,1) block=(64,1,1) lds=0\n"
        else:
            hdr += "; @launch grid=(256,1,1) block=(256,1,1) lds=163840\n"
        txt = hdr + '.amdgcn_target "amdgcn-amd-amdhsa--gfx950"\n.text\n' + G1.fix_hazards(ta) + "\n"
        if o.probe:
            txt += G1.gen_probe(o.probe) + "\n"
        txt += '.section .rodata,"a"\n.p2align 6\n' + G1.descriptor(NAME + "_kernel", 512, 256)
        if o.probe:
            txt += ".p2align 6\n" + G1.descriptor("probe_kernel", 32, 32)
        open(o.o, "w").write(txt)
        print("wrote", o.o, len(txt), "bytes; stamps", ga.nst)
        return
    gb = G1.GenB(o); tb = gb.gen()
    hdr = G1.HDR
    blds = max(o.bw * o.brs * 4096, o.bw * 16384)
    if o.only != "B":
        hdr += f"; @launch kernel={NAME}_kernel grid=(256,1,1) block=(256,1,1) lds=163840\n"
    if o.only != "A":
        hdr += f"; @launch kernel=oproj_kernel grid=(256,1,1) block=({o.bw*64},1,1) lds={blds}\n"
    if o.probe:
        hdr += "; @launch kernel=probe_kernel grid=(1,1,1) block=(64,1,1) lds=0\n"
    txt = hdr + '.amdgcn_target "amdgcn-amd-amdhsa--gfx950"\n.text\n' + G1.fix_hazards(ta) + "\n" + G1.fix_hazards(tb) + "\n"
    if o.probe:
        txt += G1.gen_probe(o.probe) + "\n"
    txt += '.section .rodata,"a"\n.p2align 6\n' + G1.descriptor(NAME + "_kernel", 512, 256)
    nvb = (gb.nv + 7) // 8 * 8
    txt += ".p2align 6\n" + G1.descriptor("oproj_kernel", nvb, (gb.nv + 3) // 4 * 4)
    if o.probe:
        txt += ".p2align 6\n" + G1.descriptor("probe_kernel", 32, 32)
    open(o.o, "w").write(txt)
    print("wrote", o.o, len(txt), "bytes; B vgprs", gb.nv, "stamps", ga.nst)

if __name__ == "__main__":
    main()
```

```python
import sys, struct, re, argparse
from collections import defaultdict
sys.path.insert(0, "tools")

NAME = "standalone__mha_block_cached__near_ridge"
MF = "v_mfma_f32_16x16x32_bf16"

def f32(x):
    return struct.unpack("<I", struct.pack("<f", x))[0]
def vr(b, n=4): return f"v[{b}:{b+n-1}]" if n > 1 else f"v{b}"
def ar(b, n=4): return f"a[{b}:{b+n-1}]" if n > 1 else f"a{b}"
def sr(b, n=4): return f"s[{b}:{b+n-1}]" if n > 1 else f"s{b}"

class DS:
    def __init__(s, t, tag): s.t, s.tag = t, tag
class VM:
    def __init__(s, t, tag): s.t, s.tag = t, tag
class WL:
    def __init__(s, *tags): s.tags = set(tags)
class WV:
    def __init__(s, *tags): s.tags = set(tags)
class WALL:
    def __init__(s, k): s.k = k

class Trace:
    def __init__(self):
        self.L = []
        self.lq = []
        self.vq = []
    def raw(self, s): self.L.append(s)
    def lab(self, s): self.L.append(s + ":")
    def c(self, s): self.L.append("    ; " + s)
    def e(self, x):
        if isinstance(x, str):
            self.L.append("    " + x)
        elif isinstance(x, DS):
            self.L.append("    " + x.t); self.lq.append(x.tag)
        elif isinstance(x, VM):
            self.L.append("    " + x.t); self.vq.append(x.tag)
        elif isinstance(x, WL):
            idx = max([i for i, t in enumerate(self.lq) if t in x.tags], default=-1)
            if idx >= 0:
                n = len(self.lq) - 1 - idx
                if n > 15:
                    n = 15
                self.L.append(f"    s_waitcnt lgkmcnt({n})")
                self.lq = self.lq[len(self.lq) - n:] if n else []
        elif isinstance(x, WV):
            idx = max([i for i, t in enumerate(self.vq) if t in x.tags], default=-1)
            if idx >= 0:
                n = len(self.vq) - 1 - idx
                if n > 63:
                    n = 63
                self.L.append(f"    s_waitcnt vmcnt({n})")
                self.vq = self.vq[len(self.vq) - n:] if n else []
        elif isinstance(x, WALL):
            w = []
            if 'v' in x.k: w.append("vmcnt(0)"); self.vq = []
            if 'l' in x.k: w.append("lgkmcnt(0)"); self.lq = []
            self.L.append("    s_waitcnt " + " ".join(w))
        else:
            raise TypeError(x)
    def many(self, xs):
        for x in xs: self.e(x)

class Sched:
    def __init__(self, mf):
        self.mf = mf
        self.pre = defaultdict(list)
        self.post = defaultdict(list)
    def emit(self, t):
        for g, m in enumerate(self.mf):
            t.many(self.pre[g])
            t.e(m)
            t.many(self.post[g])
        n = len(self.mf)
        for g in sorted(set(list(self.pre) + list(self.post))):
            if g >= n:
                t.many(self.pre[g]); t.many(self.post[g])

BUF = {0: 90112, 1: 45056, 2: 0}
def PAIR(n):
    return 32768 + ((3 - n) & 3) * 32768
QX = 0
RG = 40960
LOFF = 7 * 4096
FOFF = 7 * 4096 + 2048
MXX = 16384

V_OOWN = 0
V_K = 112
V_V = 144
V_S = 176
V_P = 192
V_NEGM = 200
V_KA = 228
V_VA = 232
V_OFFKV = 240
V_TID = 242
V_T0 = 243
V_OFFX = 144
V_OFFW = 151
V_XR = 156
V_WR = 160
V_QW = 253
V_QR = 254
V_QT = 176
V_WOF = 245
V_TR = 249
V_OO = [244, 253, 254, 255]
S_WO, S_OUT = 16, 20
S_MG, S_NG, S_SW, S_SO, S_L0, S_L1, S_RB, S_SWC, S_SOC = 57, 58, 59, 10, 11, 3, 100, 101, 42
S_ROT, S_RT = 54, 43
S_PF = 12
V_PF, V_PFD = 243, 255
A_Q = 0
A_OOTH = 112
A_L = 224
A_ONES = 252
S_X, S_WQ, S_K, S_V, S_O = 16, 20, 24, 28, 32
S_W, S_QH, S_KH = 36, 37, 38
S_W1K7 = 39
S_SC = 40
S_SOX, S_SOW = 42, 43
S_W4K = 44
S_B, S_H = 45, 46
S_CNT = 47
S_PASS = 48
S_T0, S_T1, S_T2, S_T3 = 49, 50, 51, 52
S_OB = 53
S_SOKV = 56
S_ST = 60


def o_reg(j, tp):
    if tp < 4:
        return vr(V_OOWN + (j * 4 + tp) * 4)
    return ar(A_OOTH + (j * 4 + tp - 4) * 4)


class GenA:
    def __init__(self, opt):
        self.o = opt
        self.t = Trace()
        self.nst = 0
        self.npf = 0
        self.pfc = [int(z) for z in opt.pfc.split(",")]
        assert len(self.pfc) == 10
        self.pf_on = (sum(self.pfc) > 0 or opt.pfa)
        self.QS = 131072 + opt.opad

    def stamp(self, name):
        if not self.o.stamps: return []
        sel = self.o.stsel.split(",")
        r = []
        for nm, ins in ((name, "s_memrealtime" if self.o.rts else "s_memtime"), (name + "@", "s_memrealtime")):
            if nm in sel:
                r.append(f"{ins} s[{S_ST + 2*self.nst}:{S_ST + 2*self.nst + 1}]")
                self.nst += 1
                assert self.nst <= 18
        return r

    def kvpol(self):
        return " nt" if self.o.nt else ""

    def emit_kv_addr(self, rd=True, dma=True):
        t_ = self.t
        L, l15, g, r4, c4, t, u = V_T0, V_T0+1, V_T0+2, V_T0+3, V_T0+4, V_T0+5, V_T0+6
        t_.e(f"v_and_b32 v{L}, 63, v{V_TID}")
        t_.e(f"v_and_b32 v{l15}, 15, v{L}")
        t_.e(f"v_lshrrev_b32 v{g}, 4, v{L}")
        if dma:
            t_.e(f"v_lshlrev_b32 v{t}, 1, v{g}")
            t_.e(f"v_xor_b32 v{t}, v{t}, v{l15}")
            t_.e(f"v_lshlrev_b32 v{t}, 4, v{t}")
            t_.e(f"v_lshlrev_b32 v{u}, 8, v{g}")
            t_.e(f"v_add_u32 v{u}, s{S_W4K}, v{u}")
            t_.e(f"v_add_u32 v{V_OFFKV}, v{t}, v{u}")
            t_.e(f"v_xor_b32 v{t}, 128, v{t}")
            t_.e(f"v_add_u32 v{V_OFFKV+1}, v{t}, v{u}")
        if rd:
            t_.e(f"v_bfe_u32 v{r4}, v{L}, 2, 2")
            t_.e(f"v_and_b32 v{c4}, 3, v{L}")
            t_.e(f"s_lshl_b32 s{S_T0}, s{S_KH}, 13")
            t_.e(f"s_add_u32 s{S_T1}, s{S_T0}, {PAIR(0) + 16384}")
            t_.e(f"v_and_b32 v{t}, 7, v{l15}")
            t_.e(f"v_lshlrev_b32 v{t}, 1, v{t}")
            t_.e(f"v_xor_b32 v{t}, v{t}, v{g}")
            t_.e(f"v_lshlrev_b32 v{t}, 4, v{t}")
            t_.e(f"v_lshlrev_b32 v{u}, 8, v{l15}")
            t_.e(f"v_add_u32 v{u}, s{S_T1}, v{u}")
            for ks in range(4):
                t_.e(f"v_xor_b32 v{V_KA+ks}, {ks*64}, v{t}")
                t_.e(f"v_add_u32 v{V_KA+ks}, v{V_KA+ks}, v{u}")
            t_.e(f"s_add_u32 s{S_T1}, s{S_T0}, {PAIR(0)}")
            t_.e(f"v_lshlrev_b32 v{u}, 2, v{g}")
            t_.e(f"v_add_u32 v{u}, v{u}, v{r4}")
            t_.e(f"v_and_b32 v{t}, 7, v{u}")
            t_.e(f"s_lshl_b32 s{S_T2}, s{S_KH}, 2")
            t_.e(f"v_xor_b32 v{t}, s{S_T2}, v{t}")
            t_.e(f"v_lshlrev_b32 v{t}, 5, v{t}")
            t_.e(f"v_lshlrev_b32 v{u}, 8, v{u}")
            t_.e(f"v_add_u32 v{u}, s{S_T1}, v{u}")
            t_.e(f"v_lshlrev_b32 v{c4}, 3, v{c4}")
            t_.e(f"v_add_u32 v{u}, v{u}, v{c4}")
            for tp in range(8):
                t_.e(f"v_xor_b32 v{V_VA+tp}, {tp*32}, v{t}")
                t_.e(f"v_add_u32 v{V_VA+tp}, v{V_VA+tp}, v{u}")

    def kv_dma(self, which, n, soff, lds=None):
        srd = S_K if which == "K" else S_V
        if lds is None:
            lds = PAIR(n) + (16384 if which == "K" else 0)
        r = [f"s_add_u32 m0, s{S_W4K}, {lds}"]
        for i in range(4):
            off = f" offset:{i*1024}" if i else ""
            r.append(VM(f"buffer_load_dwordx4 v{V_OFFKV + (i & 1)}, {sr(srd)}, {soff} offen{off}{self.kvpol()} lds", f"{which}{n}"))
        return r

    def kv_touch(self):
        self.npf += 1
        L = self.o.pfl
        per = 64 // L
        step = L * 128 if self.npf % per else 16384 - (per - 1) * L * 128
        return [VM(f"buffer_load_dword v{V_PFD}, v{V_PF}, {sr(S_PF)}, 0 offen{self.o.pfpol}", "PF"),
                f"v_add_u32 v{V_PF}, {step}, v{V_PF}"]

    def x_dma(self, st):
        buf = BUF[st % 3]
        r = []
        if self.o.qrot:
            if st:
                r += [f"s_add_u32 s{S_SOX}, s{S_SOX}, 128", f"s_cmp_eq_u32 s{S_SOX}, 1152", f"s_cselect_b32 s{S_SOX}, 0, s{S_SOX}"]
        else:
            r.append(f"s_mov_b32 s{S_SOX}, {st*128}")
        r.append(f"s_add_u32 m0, s{S_W1K7}, {buf}")
        for i in range(7):
            if i == 4:
                r.append(f"s_add_u32 m0, s{S_W1K7}, {buf + 4096}")
            off = f" offset:{(i%4)*1024}" if i % 4 else ""
            r.append(VM(f"buffer_load_dwordx4 v{V_OFFX+i}, {sr(S_X)}, s{S_SOX} offen{off}{self.o.xpol} lds", f"X{st}"))
        if self.o.qrot:
            r.append(f"s_lshl_b32 s{S_SOW}, s{S_SOX}, 12")
        else:
            r.append(f"s_mov_b32 s{S_SOW}, {st*64*8192}")
        r.append(f"s_add_u32 m0, s{S_W4K}, {buf + 28672}")
        for i in range(4):
            off = f" offset:{i*1024}" if i else ""
            r.append(VM(f"buffer_load_dwordx4 v{V_OFFW+i}, {sr(S_WQ)}, s{S_SOW} offen{off}{self.o.wqpol} lds", f"X{st}"))
        return r

    def q_reads(self, st):
        buf = BUF[st % 3]
        sset = 1 if buf == 90112 else 0
        base = buf - (90112 if sset else 0)
        p = (st & 1) * 88
        r = []
        for s in range(2):
            for T in range(4):
                jj = T >> 1
                for hf in range(2):
                    off = base + 8192 * s + 1024 * hf + 8 * (T & 1)
                    r.append(DS(f"ds_read_b64_tr_b16 {ar(p + 56 + (s*4+T)*4 + 2*hf, 2)}, v{V_WR + sset*2 + jj} offset:{off}", f"R{st}"))
            for qt in range(7):
                off = base + qt * 2048
                r.append(DS(f"ds_read_b128 {ar(p + (s*7+qt)*4)}, v{V_XR + sset*2 + s} offset:{off}", f"R{st}"))
        return r

    def q_mf(self, st, s, T, qt, first):
        p = (st & 1) * 88
        d = vr((T * 7 + qt) * 4)
        c = "0" if (first and s == 0) else d
        return f"{MF} {d}, {ar(p + 56 + (s*4+T)*4)}, {ar(p + (s*7+qt)*4)}, {c}"

    def q_mfmas(self, st, first):
        return [self.q_mf(st, s, T, qt, first) for s in range(2) for T in range(4) for qt in range(7)]

    def k_read(self, kt, ks, n):
        off = f" offset:{kt*4096}" if kt else ""
        return DS(f"ds_read_b128 {vr(V_K + (kt*4+ks)*4)}, v{V_KA+ks}{off}", f"k{n}.{kt}")

    def v_read(self, tp, hf, n):
        off = f" offset:{hf*4096}" if hf else ""
        return DS(f"ds_read_b64_tr_b16 {vr(V_V + tp*4 + 2*hf, 2)}, v{V_VA+tp}{off}", f"v{n}.{tp}")

    def q_read(self, qt):
        return [DS(f"ds_read_b128 {ar(A_Q + (qt*4+ks)*4)}, v{V_QR} offset:{(ks*7+qt)*1024}", f"q{qt}") for ks in range(4)]

    def qk_mfmas(self, par, j2):
        r = []
        for kt in range(2):
            for ks in range(4):
                d = vr(V_S + par * 8 + kt * 4)
                c = vr(V_NEGM + j2 * 4) if ks == 0 else d
                r.append(f"{MF} {d}, {vr(V_K + (kt*4+ks)*4)}, {ar(A_Q + (j2*4+ks)*4)}, {c}")
        return r

    def pv_mfmas(self, par, j, first):
        r = []
        p = vr(V_P + par * 4)
        for tp in range(8):
            d = o_reg(j, tp)
            r.append(f"{MF} {d}, {vr(V_V + tp*4)}, {p}, {'0' if first else d}")
        d = ar(A_L + j * 4)
        r.append(f"{MF} {d}, {ar(A_ONES)}, {p}, {'0' if first else d}")
        return r

    def exps(self, par):
        return [f"v_exp_f32 v{V_S + par*8 + i}, v{V_S + par*8 + i}" for i in range(8)]

    def cvts(self, par):
        return [f"v_cvt_pk_bf16_f32 v{V_P + par*4 + i}, v{V_S + par*8 + 2*i}, v{V_S + par*8 + 2*i + 1}" for i in range(4)]

    def tile(self, n):
        t = self.t
        first = (n == 0)
        last = (n == 15)
        dl = (PAIR(n + 1) - PAIR(n)) & 0xffffffff
        vdma = self.kv_dma("V", n + 3, "0") if (n + 3 <= 15 and n >= 1) else None
        kdma = self.kv_dma("K", n + 4, "0") if n + 4 <= 15 else None
        adv = [f"v_add_u32 v{V_OFFKV}, 16384, v{V_OFFKV}", f"v_add_u32 v{V_OFFKV+1}, 16384, v{V_OFFKV+1}"]
        for j in range(7):
            par = (n + j) & 1
            mf = self.pv_mfmas(par, j, first)
            has_qk = not (last and j >= 5)
            if has_qk:
                mf = mf + self.qk_mfmas(par, (j + 2) % 7)
            S = Sched(mf)
            G, PRE = S.post, S.pre
            if not (last and j == 6):
                ex = self.exps(par ^ 1); cv = self.cvts(par ^ 1)
                if has_qk:
                    for i in range(8): G[2 * i].append(ex[i])
                    for i in range(4): G[4 * i + 3].append(cv[i])
                else:
                    for i in range(8): G[i // 2].append(ex[i])
                    G[2].append(cv[0]); G[3].append(cv[1]); G[4].append(cv[2]); G[5].append(cv[3])
            nn = n + 1
            if j == 0:
                PRE[0].append(WL(f"v{n}.0", f"v{n}.1", f"v{n}.2"))
                G[1] += [self.v_read(7, 0, n), self.v_read(7, 1, n)]
                PRE[3].append(WL(f"v{n}.3", f"v{n}.4", f"v{n}.5"))
                PRE[6].append(WL(f"v{n}.6", f"v{n}.7"))
                if vdma:
                    G[9] += [vdma[0]]
                    G[13] += [vdma[1]]
            if first and j <= 3:
                q = self.q_read(j + 3)
                G[5] += q[:2]; G[9] += q[2:]
            if first and j <= 4:
                PRE[9].append(WL(f"q{j+2}"))
            if j == 1:
                if vdma: G[5] += [vdma[2]]
                if not last:
                    G[9] += [f"v_add_u32 v{V_VA+0}, {dl}, v{V_VA+0}", f"v_add_u32 v{V_VA+1}, {dl}, v{V_VA+1}"] if not first else []
                    G[13] += [f"v_add_u32 v{V_VA+2}, {dl}, v{V_VA+2}", f"v_add_u32 v{V_VA+3}, {dl}, v{V_VA+3}"]
                    if first:
                        G[1] += [f"v_add_u32 v{V_VA+0}, {dl}, v{V_VA+0}", f"v_add_u32 v{V_VA+1}, {dl}, v{V_VA+1}"]
            if j == 2:
                if vdma: G[5] += [vdma[3]]
                if not last:
                    G[1] += [f"v_add_u32 v{V_VA+4}, {dl}, v{V_VA+4}", f"v_add_u32 v{V_VA+5}, {dl}, v{V_VA+5}"]
                    G[13] += [f"v_add_u32 v{V_VA+6}, {dl}, v{V_VA+6}", f"v_add_u32 v{V_VA+7}, {dl}, v{V_VA+7}"]
            if j == 3:
                if vdma: G[5] += [vdma[4]]
                if not last:
                    G[1] += [f"v_add_u32 v{V_KA+0}, {dl}, v{V_KA+0}", f"v_add_u32 v{V_KA+1}, {dl}, v{V_KA+1}"]
                    G[13] += [f"v_add_u32 v{V_KA+2}, {dl}, v{V_KA+2}", f"v_add_u32 v{V_KA+3}, {dl}, v{V_KA+3}"]
                if kdma and not first:
                    G[16] += adv
            if j == 4:
                if first:
                    G[5] += [WL("q6")]
                if not last:
                    G[5] += [WV(f"K{nn}", f"V{nn}")]
                else:
                    G[5] += [WL("ow0", "ow1", "ow2", "ow3")]
                G[7] += ["s_barrier"]
                if not last:
                    G[9] += [self.k_read(0, 0, nn)]
                    G[11] += [self.k_read(0, 1, nn)]
                    G[13] += [self.k_read(0, 2, nn), self.k_read(0, 3, nn)]
                    G[15] += [self.k_read(1, 0, nn)]
                    G[16] += [self.k_read(1, 1, nn), self.k_read(1, 2, nn)]
                if first:
                    k3 = self.kv_dma("K", 3, "0")
                    G[9] += [k3[0]]
                    self.k3 = k3
            if j == 5 and not last:
                G[1] += [self.k_read(1, 3, nn)]
                PRE[9].append(WL(f"k{nn}.0", f"k{nn}.1"))
                if first:
                    k3 = self.k3
                    G[1] += [k3[1]]; G[3] += [k3[2]]; G[5] += [k3[3]]; G[7] += [k3[4]]
                    v3 = self.kv_dma("V", 3, "0")
                    G[9] += [v3[0], v3[1]]; G[11] += [v3[2]]; G[13] += [v3[3]]; G[15] += [v3[4]]
                    G[16] += adv
                elif kdma:
                    G[0] += [kdma[0]]
                    G[1] += [kdma[1]]; G[5] += [kdma[2]]; G[9] += [kdma[3]]; G[13] += [kdma[4]]
            if j == self.o.pfas and self.o.pfa and n <= self.o.pfan:
                tc = self.kv_touch()
                G[14] += [tc[0]]; G[16] += [tc[1]]
            if self.o.pfw and self.o.pfwsp:
                sp = [tuple(int(z) for z in q.split(".")) for q in self.o.pfwsp.split(",")]
                w = self.wo_touch()
                if (n, j) == (12, 4):
                    for i, x in enumerate(w[0]): G[9 + (i * 7) // len(w[0])].append(x)
                tch = w[1] + w[2]
                for i, q in enumerate(sp):
                    if q == (n, j): G[6 if sp.count(q) == 1 else 2 + 6 * sp[:i].count(q)].append(tch[i])
            elif self.o.pfw and n == self.o.pfwt and j in (4, 5, 6):
                w = self.wo_touch()
                if j == 4:
                    for i, x in enumerate(w[0]): G[9 + (i * 7) // len(w[0])].append(x)
                else:
                    tch = w[1] if j == 5 else w[2]
                    nv = sum(isinstance(x, VM) for x in tch)
                    gi = 2
                    for x in tch:
                        G[gi].append(x)
                        if isinstance(x, VM): gi += max(1, 14 // max(nv, 1))
                    if j == 6 and self.o.tlbt:
                        a = V_PF
                        D = V_PFD
                        q = self.QS
                        tl = []
                        if self.o.tlbt & 1:
                            tl += [f"v_and_b32 v{a}, 15, v{V_TID}", f"s_mul_i32 s{S_T0}, s{S_B}, 14",
                                   f"v_add_u32 v{a}, s{S_T0}, v{a}", f"v_min_u32 v{a}, 111, v{a}",
                                   f"s_mov_b32 s{S_T0}, {q}", f"v_mul_lo_u32 v{a}, v{a}, s{S_T0}", f"v_add_u32 v{a}, 131072, v{a}",
                                   VM(f"global_load_dword v{D}, v{a}, s[{S_O}:{S_O+1}] sc1", "PW"),
                                   f"v_and_b32 v{a}, 3, v{V_TID}", f"s_lshl_b32 s{S_T1}, s{S_MG}, 2",
                                   f"v_add_u32 v{a}, s{S_T1}, v{a}", f"v_mul_lo_u32 v{a}, v{a}, s{S_T0}", f"v_add_u32 v{a}, 131072, v{a}",
                                   VM(f"global_load_dword v{D}, v{a}, s[{S_O}:{S_O+1}] sc1", "PW")]
                        if self.o.tlbt & 2:
                            tl += [f"v_and_b32 v{a}, 63, v{V_TID}", f"s_lshl_b32 s{S_T1}, s{S_MG}, 6", f"v_add_u32 v{a}, s{S_T1}, v{a}",
                                   f"v_mul_u32_u24 v{a}, 1152, v{a}",
                                   VM(f"buffer_load_dword v{D}, v{a}, {sr(S_OUT)}, 0 offen", "PW")]
                        if self.o.tlbt & 4:
                            tl += [f"v_mov_b32 v{a}, 0", VM(f"global_load_dword v{D}, v{a}, s[8:9] sc1", "PW")]
                        g0 = 10
                        for x in tl:
                            G[min(g0, 16)].append(x)
                            if isinstance(x, VM): g0 += 2
            if j == 6 and not last:
                v = lambda a, b: self.v_read(a, b, nn)
                G[1] += [v(0, 0), v(0, 1)]
                G[3] += [v(1, 0)]
                G[5] += [v(1, 1), v(2, 0)]
                G[7] += [v(2, 1)]
                G[9] += [v(3, 0), v(3, 1)]
                G[11] += [v(4, 0)]
                G[13] += [v(4, 1), v(5, 0)]
                G[15] += [v(5, 1)]
                G[16] += [v(6, 0), v(6, 1)]
                if first:
                    PRE[0] += [kdma[0]]
                    G[0] += [kdma[1]]; G[4] += [kdma[2]]; G[8] += [kdma[3]]; G[12] += [kdma[4]]
            if last:
                if j == 1:
                    PRE[0] = ["s_barrier"] + PRE[0]
                    w = self.o_writes(0)
                    G[1] += [w[0]]; G[3] += [w[1]]; G[5] += [w[2]]; G[7] += [w[3]]; G[8] += [w[4]]
                if 1 <= j <= 4:
                    w = self.o_writes(j)
                    G[10] += [w[0]]; G[11] += [w[1]]; G[13] += [w[2], w[3]]; G[15] += [w[4]]
                if self.o.fused and j in (2, 3):
                    d = self.wo_dma(j - 2)
                    ns = len(d) - 4
                    G[0] += d[:ns]; G[1] += [d[ns]]; G[3] += [d[ns+1]]; G[5] += [d[ns+2]]; G[7] += [d[ns+3]]
                if j == 6:
                    w = self.o_writes(5)
                    G[1] += [w[0]]; G[3] += [w[1]]; G[4] += [w[2]]; G[6] += [w[3]]; G[7] += [w[4]]
                if j == 0:
                    PRE[0] = self.ox_addr() + PRE[0]
            t.c(f"tile {n} slot {j}")
            S.emit(t)
            t.many(self.stamp(f"s{n}_{j}"))

    def wo_touch(self):
        a = V_PF
        su = [f"v_and_b32 v{a}, 63, v{V_TID}", f"s_lshr_b32 s{S_T0}, s2, 3"]
        pol = self.o.pfwpol
        if self.o.pfw == 2:
            su = [f"v_and_b32 v{a}, 63, v{V_TID}", f"v_mul_u32_u24 v{a}, 73728, v{a}"]
            return su, [VM(f"buffer_load_dword v{V_PFD}, v{a}, {sr(S_WO)}, 0 offen{pol}", "PW")], []
        if self.o.pfw == 3:
            su = [f"v_and_b32 v{a}, 63, v{V_TID}", f"s_lshl_b32 s{S_T0}, s{S_W}, 6", f"v_add_u32 v{a}, s{S_T0}, v{a}", f"v_mul_u32_u24 v{a}, {16*1152}, v{a}"]
            return su, [VM(f"buffer_load_dword v{V_PFD}, v{a}, {sr(S_WO)}, 0 offen{pol}", "PW")], []
        if self.o.bmap == 0:
            su += [f"s_lshl_b32 s{S_T0}, s{S_T0}, 2", f"s_add_u32 s{S_T0}, s{S_T0}, s{S_W}",
                   f"s_mul_i32 s{S_T0}, s{S_T0}, {32*1152}",
                   f"s_and_b32 s{S_T1}, s2, 1", f"s_lshl_b32 s{S_T1}, s{S_T1}, 9", f"s_add_u32 s{S_T0}, s{S_T0}, s{S_T1}",
                   f"v_cmp_gt_u32 vcc, 32, v{a}",
                   f"v_mul_u32_u24 v{a}, 1152, v{a}", f"v_add_u32 v{a}, s{S_T0}, v{a}",
                   f"v_mov_b32 v{V_PFD}, 0x40000000",
                   f"v_cndmask_b32 v{a}, v{V_PFD}, v{a}, vcc"]
            T = [VM(f"buffer_load_dword v{V_PFD}, v{a}, {sr(S_WO)}, 0 offen" + (f" offset:{i*128}" if i else "") + pol, "PW") for i in range(5)]
            return su, T[:3], T[3:]
        su += [f"s_mul_i32 s{S_T0}, s{S_T0}, 147456", f"s_mul_i32 s{S_T1}, s{S_W}, 36864", f"s_add_u32 s{S_T0}, s{S_T0}, s{S_T1}",
               f"v_lshlrev_b32 v{a}, 7, v{a}", f"v_add_u32 v{a}, s{S_T0}, v{a}"]
        T = []
        for i in range(5):
            T.append([VM(f"buffer_load_dword v{V_PFD}, v{a}, {sr(S_WO)}, 0 offen{pol}", "PW"), f"v_add_u32 v{a}, 8192, v{a}"])
        return su, T[0] + T[1] + T[2], T[3] + T[4]

    def ox_addr(self):
        r = []
        T = V_T0
        r.append(f"v_and_b32 v{T}, 63, v{V_TID}")
        r.append(f"v_lshlrev_b32 v{T+1}, 4, v{T}")
        r.append(f"v_lshlrev_b32 v{T}, 2, v{T}")
        r.append(f"s_xor_b32 s{S_T3}, s{S_W}, 1")
        r.append(f"s_mul_i32 s{S_T0}, s{S_T3}, {RG}")
        r.append(f"v_add_u32 v{V_KA}, s{S_T0}, v{T+1}")
        r.append(f"s_add_u32 s{S_T0}, s{S_T0}, {LOFF}")
        r.append(f"v_add_u32 v{V_KA+1}, s{S_T0}, v{T}")
        r.append(f"s_mul_i32 s{S_T0}, s{S_W}, {RG}")
        r.append(f"v_add_u32 v{V_KA+2}, s{S_T0}, v{T+1}")
        r.append(f"s_add_u32 s{S_T0}, s{S_T0}, {LOFF}")
        r.append(f"v_add_u32 v{V_KA+3}, s{S_T0}, v{T}")
        r.append(f"s_mul_i32 s{S_T0}, s{S_B}, 14")
        r.append(f"s_mul_i32 s{S_T1}, s{S_QH}, 7")
        r.append(f"s_add_u32 s{S_T0}, s{S_T0}, s{S_T1}")
        r.append(f"s_mul_i32 s{S_T0}, s{S_T0}, {self.QS}")
        r.append(f"s_lshl_b32 s{S_T1}, s{S_H}, 1")
        r.append(f"s_add_u32 s{S_T1}, s{S_T1}, s{S_KH}")
        r.append(f"s_lshl_b32 s{S_T1}, s{S_T1}, 11")
        r.append(f"s_add_u32 s{S_OB}, s{S_T0}, s{S_T1}")
        return r

    def o_writes(self, j):
        r = []
        for tpp in range(4):
            i = j * 4 + tpp
            r.append(DS(f"ds_write_b128 v{V_KA}, {ar(A_OOTH + i*4)} offset:{i*1024}", f"ow{j}"))
        r.append(DS(f"ds_write_b32 v{V_KA+1}, a{A_L + 4*j} offset:{j*256}", f"ow{j}"))
        return r

    def gen(self):
        t_ = self.t
        o = self.o
        kn = f"{NAME}_kernel"
        t_.raw(f".globl {kn}\n.p2align 8\n.type {kn},@function\n{kn}:")
        t_.e("s_cmp_ge_u32 s2, 256")
        t_.e("s_cbranch_scc1 A_END")
        t_.e("s_load_dwordx8 s[4:11], s[0:1], 0")
        t_.e("s_load_dwordx2 s[12:13], s[0:1], 56")
        t_.many(self.stamp("start"))
        if o.stamps:
            t_.e(f"s_memrealtime s[{S_ST+36}:{S_ST+37}]")
        if o.ctouch:
            t_.e("s_getpc_b64 s[14:15]")
            t_.lab("CT_PC")
            t_.e("s_lshr_b32 s3, s2, 3")
            t_.e("s_and_b32 s3, s3, 1")
            t_.e("s_lshl_b32 s3, s3, 15")
            t_.e("v_lshlrev_b32 v1, 7, v0")
            t_.e("v_add_u32 v1, s3, v1")
            t_.e("v_min_u32 v1, CT_END-CT_PC-4, v1")
            t_.e(VM(f"global_load_dword v{V_PFD}, v1, s[14:15]", "PF"))
        t_.e(f"v_mov_b32 v{V_TID}, v0")
        t_.e(f"v_lshrrev_b32 v1, 6, v0")
        t_.e("s_and_b32 s3, s2, 7")
        t_.e(f"s_lshr_b32 s{S_T0}, s2, 3")
        t_.e(f"v_readfirstlane_b32 s{S_W}, v1")
        t_.e(f"s_and_b32 s{S_T1}, s3, 1")
        t_.e(f"s_lshl_b32 s{S_T1}, s{S_T1}, 2")
        t_.e(f"s_and_b32 s{S_T2}, s{S_T0}, 3")
        t_.e(f"s_add_u32 s{S_B}, s{S_T1}, s{S_T2}")
        t_.e(f"s_lshr_b32 s{S_T1}, s3, 1")
        t_.e(f"s_lshl_b32 s{S_T1}, s{S_T1}, 3")
        t_.e(f"s_lshr_b32 s{S_T2}, s{S_T0}, 2")
        t_.e(f"s_add_u32 s{S_H}, s{S_T1}, s{S_T2}")
        t_.e(f"s_lshr_b32 s{S_QH}, s{S_W}, 1")
        t_.e(f"s_and_b32 s{S_KH}, s{S_W}, 1")
        t_.e(f"s_mul_i32 s{S_W1K7}, s{S_W}, 7168")
        t_.e(f"s_lshl_b32 s{S_W4K}, s{S_W}, 12")
        L, l15, g, r4, c4, t, u = V_T0, V_T0+1, V_T0+2, V_T0+3, V_T0+4, V_T0+5, V_T0+6
        t_.e(f"v_and_b32 v{L}, 63, v{V_TID}")
        t_.e(f"v_and_b32 v{l15}, 15, v{L}")
        t_.e(f"v_lshrrev_b32 v{g}, 4, v{L}")
        t_.e(f"v_lshrrev_b32 v{t}, 3, v{L}")
        t_.e(f"v_and_b32 v{r4}, 7, v{L}")
        t_.e(f"v_xor_b32 v{u}, v{g}, v{r4}")
        t_.e(f"v_lshlrev_b32 v{u}, 4, v{u}")
        t_.e(f"s_lshl_b32 s{S_T0}, s{S_KH}, 6")
        t_.e(f"v_xor_b32 v{u}, s{S_T0}, v{u}")
        t_.e(f"v_mul_u32_u24 v{t}, 1152, v{t}")
        t_.e(f"s_mul_i32 s{S_T1}, s{S_W}, {56*1152}")
        t_.e(f"v_add_u32 v{t}, s{S_T1}, v{t}")
        t_.e(f"v_xor_b32 v{c4}, 64, v{u}")
        t_.e(f"v_add_u32 v{V_OFFX}, v{u}, v{t}")
        t_.e(f"v_add_u32 v{c4}, v{c4}, v{t}")
        for i in range(1, 7):
            src = V_OFFX if (i & 1) == 0 else c4
            k = i * 9216 - (i % 4) * 1024
            t_.e(f"v_add_u32 v{V_OFFX+i}, {k}, v{src}")
        t_.e(f"v_lshlrev_b32 v{t}, 2, v{g}")
        t_.e(f"v_xor_b32 v{t}, v{t}, v{l15}")
        t_.e(f"v_lshlrev_b32 v{t}, 4, v{t}")
        t_.e(f"v_lshlrev_b32 v{u}, 13, v{g}")
        t_.e(f"s_lshl_b32 s{S_T1}, s{S_W}, 17")
        t_.e(f"v_add_u32 v{u}, s{S_T1}, v{u}")
        t_.e(f"v_add_u32 v{V_OFFW}, v{t}, v{u}")
        for i in range(1, 4):
            t_.e(f"v_add_u32 v{V_OFFW+i}, {i*(32768-1024)}, v{V_OFFW}")
        t_.e(f"s_mul_i32 s{S_T0}, s{S_B}, 258048")
        t_.e(f"s_lshl_b32 s{S_T1}, s{S_H}, 8")
        t_.e(f"s_mov_b32 s{S_X+2}, 258048")
        t_.e(f"s_mov_b32 s{S_X+3}, 0x00020000")
        t_.e(f"s_sub_u32 s{S_WQ+2}, {576*8192}, s{S_T1}")
        t_.e(f"s_mov_b32 s{S_WQ+3}, 0x00020000")
        if o.qrot:
            al, be, sh = [int(z) for z in o.qrot.split(",")]
            t_.e(f"s_lshr_b32 s{S_T0}, s2, 5")
            t_.e(f"s_mul_i32 s{S_T0}, s{S_T0}, {al}")
            t_.e(f"s_bfe_u32 s{S_T1}, s2, {(2 << 16) | 3}")
            t_.e(f"s_mul_i32 s{S_T1}, s{S_T1}, {be}")
            t_.e(f"s_add_u32 s{S_T0}, s{S_T0}, s{S_T1}")
            t_.e(f"s_lshr_b32 s{S_T0}, s{S_T0}, {sh}")
            for _ in range(((7 * al + 3 * be) >> sh) // 9):
                t_.e(f"s_sub_u32 s{S_T1}, s{S_T0}, 9")
                t_.e(f"s_cmp_ge_u32 s{S_T0}, 9")
                t_.e(f"s_cselect_b32 s{S_T0}, s{S_T1}, s{S_T0}")
            t_.e(f"s_lshl_b32 s{S_SOX}, s{S_T0}, 7")
            t_.e(f"s_mul_i32 s{S_T0}, s{S_B}, 258048")
            t_.e(f"s_lshl_b32 s{S_T1}, s{S_H}, 8")
        t_.e("s_waitcnt lgkmcnt(0)")
        t_.many(self.stamp("karg"))
        t_.e(f"s_add_u32 s{S_X}, s4, s{S_T0}")
        t_.e(f"s_addc_u32 s{S_X+1}, s5, 0")
        t_.e(f"s_add_u32 s{S_WQ}, s10, s{S_T1}")
        t_.e(f"s_addc_u32 s{S_WQ+1}, s11, 0")
        t_.many(self.x_dma(0))
        t_.many(self.stamp("x0"))
        t_.many(self.x_dma(1))
        t_.many(self.stamp("x1"))
        t_.e(f"s_lshl_b32 s{S_T0}, s{S_B}, 5")
        t_.e(f"s_add_u32 s{S_T0}, s{S_T0}, s{S_H}")
        t_.e(f"s_lshl_b32 s{S_T0}, s{S_T0}, 18")
        t_.e(f"s_add_u32 s{S_K}, s6, s{S_T0}")
        t_.e(f"s_addc_u32 s{S_K+1}, s7, 0")
        t_.e(f"s_mov_b32 s{S_K+2}, 262144")
        t_.e(f"s_mov_b32 s{S_K+3}, 0x00020000")
        t_.e(f"s_add_u32 s{S_V}, s8, s{S_T0}")
        t_.e(f"s_addc_u32 s{S_V+1}, s9, 0")
        t_.e(f"s_mov_b32 s{S_V+2}, 262144")
        t_.e(f"s_mov_b32 s{S_V+3}, 0x00020000")
        t_.e(f"s_mov_b32 s{S_O}, s12")
        t_.e(f"s_mov_b32 s{S_O+1}, s13")
        t_.e(f"s_mov_b32 s{S_O+2}, {112*self.QS}")
        t_.e(f"s_mov_b32 s{S_O+3}, 0x00020000")
        if o.fused:
            t_.e("s_load_dwordx4 s[4:7], s[0:1], 32")
            t_.e("s_load_dwordx2 s[8:9], s[0:1], 48")
        self.emit_kv_addr(rd=False, dma=True)
        t_.many(self.kv_dma("K", 0, "0"))
        t_.many(self.stamp("k0i"))
        if o.pfq:
            a0, a1 = 112, 113
            pl = V_T0
            t_.e(f"s_and_b32 s{S_T0}, s{S_H}, 7")
            t_.e(f"s_mul_i32 s{S_T0}, s{S_T0}, 32256")
            t_.e(f"s_lshl_b32 s{S_T1}, s{S_W}, 13")
            t_.e(f"s_add_u32 s{S_T0}, s{S_T0}, s{S_T1}")
            t_.e(f"v_lshlrev_b32 v{a0}, 7, v{pl}")
            t_.e(f"v_add_u32 v{a0}, s{S_T0}, v{a0}")
            t_.e(VM(f"buffer_load_dword v{V_PFD}, v{a0}, {sr(S_X)}, 0 offen{o.pfqpol}", "PF"))
            t_.e(f"s_and_b32 s{S_T0}, s{S_B}, 3")
            t_.e(f"s_mul_i32 s{S_T0}, s{S_T0}, 144")
            t_.e(f"s_mul_i32 s{S_T1}, s{S_W}, 36")
            t_.e(f"s_add_u32 s{S_T0}, s{S_T0}, s{S_T1}")
            t_.e(f"s_lshl_b32 s{S_T0}, s{S_T0}, 13")
            t_.e(f"v_lshrrev_b32 v{a0}, 1, v{pl}")
            t_.e(f"v_lshlrev_b32 v{a0}, 13, v{a0}")
            t_.e(f"v_and_b32 v{a1}, 1, v{pl}")
            t_.e(f"v_lshlrev_b32 v{a1}, 7, v{a1}")
            t_.e(f"v_add_u32 v{a0}, v{a0}, v{a1}")
            t_.e(f"v_add_u32 v{a0}, s{S_T0}, v{a0}")
            t_.e(VM(f"buffer_load_dword v{V_PFD}, v{a0}, {sr(S_WQ)}, 0 offen{o.pfqpol}", "PF"))
            t_.e(f"v_add_u32 v{a1}, {32*8192}, v{a0}")
            t_.e(f"v_mov_b32 v{a0}, 0x40000000")
            t_.e(f"v_cmp_gt_u32 vcc, 8, v{pl}")
            t_.e(f"v_cndmask_b32 v{a1}, v{a0}, v{a1}, vcc")
            t_.e(VM(f"buffer_load_dword v{V_PFD}, v{a1}, {sr(S_WQ)}, 0 offen{o.pfqpol}", "PF"))
        if self.pf_on:
            t_.e(f"s_lshr_b32 s{S_T0}, s{S_W}, 1")
            t_.e(f"s_cmp_eq_u32 s{S_T0}, 0")
            t_.e(f"s_cselect_b32 s{S_PF}, s{S_K}, s{S_V}")
            t_.e(f"s_cselect_b32 s{S_PF+1}, s{S_K+1}, s{S_V+1}")
            t_.e(f"s_and_b32 s{S_T0}, s{S_W}, 1")
            t_.e(f"s_lshl_b32 s{S_T0}, s{S_T0}, 13")
            t_.e(f"s_add_u32 s{S_PF}, s{S_PF}, s{S_T0}")
            t_.e(f"s_addc_u32 s{S_PF+1}, s{S_PF+1}, 0")
            t_.e(f"s_sub_u32 s{S_PF+2}, 262144, s{S_T0}")
            t_.e(f"s_mov_b32 s{S_PF+3}, 0x00020000")
            t_.e(f"v_lshlrev_b32 v112, 7, v{V_T0}")
            if o.pf0: t_.e(f"v_add_u32 v112, {o.pf0*16384}, v112")
            if o.pfl != 64:
                assert self.pfc[0] == 0
                t_.e(f"v_mov_b32 v113, 0x40000000")
                t_.e(f"v_cmp_gt_u32 vcc, {o.pfl}, v{V_T0}")
                t_.e(f"v_cndmask_b32 v112, v113, v112, vcc")
            self.pfreg = 112
            for i in range(self.pfc[0]):
                t_.e(VM(f"buffer_load_dword v{V_PFD}, v112, {sr(S_PF)}, 0 offen{o.pfpol}", "PF"))
                t_.e(f"v_add_u32 v112, 16384, v112")
        t_.many(self.stamp("k0"))
        self.emit_kv_addr(rd=True, dma=False)
        sc = f32(1.4426950408889634 / (128 ** 0.5))
        t_.e(f"s_mov_b32 s{S_SC}, {hex(sc)}")
        t_.e(f"s_mov_b32 s{S_PASS}, 0")
        t_.e(f"v_bfe_u32 v{r4}, v{L}, 2, 2")
        t_.e(f"v_and_b32 v{c4}, 3, v{L}")
        t_.e(f"v_lshrrev_b32 v{t}, 1, v{l15}")
        t_.e(f"v_xor_b32 v{t}, v{t}, v{g}")
        t_.e(f"v_lshlrev_b32 v{t}, 4, v{t}")
        t_.e(f"v_lshlrev_b32 v{u}, 7, v{l15}")
        t_.e(f"s_mul_i32 s{S_T0}, s{S_QH}, {112*128}")
        t_.e(f"v_add_u32 v{u}, s{S_T0}, v{u}")
        t_.e(f"v_add_u32 v{V_XR}, v{t}, v{u}")
        t_.e(f"v_xor_b32 v{t}, 64, v{t}")
        t_.e(f"v_add_u32 v{V_XR+1}, v{t}, v{u}")
        t_.e(f"v_add_u32 v{V_XR+2}, 90112, v{V_XR}")
        t_.e(f"v_add_u32 v{V_XR+3}, 90112, v{V_XR+1}")
        t_.e(f"s_lshl_b32 s{S_T0}, s{S_KH}, 1")
        t_.e(f"v_xor_b32 v{t}, s{S_T0}, v{r4}")
        t_.e(f"v_lshlrev_b32 v{t}, 6, v{t}")
        t_.e(f"v_lshlrev_b32 v{u}, 3, v{g}")
        t_.e(f"v_add_u32 v{u}, v{u}, v{r4}")
        t_.e(f"v_lshlrev_b32 v{u}, 8, v{u}")
        t_.e(f"v_lshlrev_b32 v{c4}, 4, v{c4}")
        t_.e(f"v_add_u32 v{u}, v{u}, v{c4}")
        t_.e(f"v_add_u32 v{u}, 28672, v{u}")
        t_.e(f"v_add_u32 v{V_WR}, v{t}, v{u}")
        t_.e(f"v_xor_b32 v{t}, 64, v{t}")
        t_.e(f"v_add_u32 v{V_WR+1}, v{t}, v{u}")
        t_.e(f"v_add_u32 v{V_WR+2}, 90112, v{V_WR}")
        t_.e(f"v_add_u32 v{V_WR+3}, 90112, v{V_WR+1}")
        t_.e(f"v_lshlrev_b32 v{t}, 4, v{L}")
        t_.e(f"s_mul_i32 s{S_T0}, s{S_QH}, 28672")
        t_.e(f"v_add_u32 v{V_QR}, s{S_T0}, v{t}")
        t_.e(f"s_mul_i32 s{S_T1}, s{S_KH}, 14336")
        t_.e(f"v_add_u32 v{V_QW}, s{S_T1}, v{V_QR}")
        for i in range(28):
            t_.e(f"v_mov_b32 v{V_NEGM+i}, 0")
        t_.e(f"v_mov_b32 v{t}, 0x3f803f80")
        for i in range(4):
            t_.e(f"v_accvgpr_write_b32 a{A_ONES+i}, v{t}")
        if self.pf_on:
            t_.e(f"v_mov_b32 v{V_PF}, v112")
        for k in range(9):
            t_.c(f"---- Q-proj period {k}")
            t_.many(self.stamp(f"a{k}"))
            t_.e(WV(f"X{k}"))
            t_.many(self.stamp(f"w{k}"))
            if k: t_.e(WL(f"R{k-1}"))
            t_.e("s_barrier")
            t_.many(self.stamp(f"p{k}"))
            rd = self.q_reads(k)
            if k <= 6:
                dm = self.x_dma(k + 2)
            elif k == 7:
                dm = self.kv_dma("V", 0, "0") + [f"s_mov_b32 s{S_SOKV}, 16384"] + self.kv_dma("K", 1, f"s{S_SOKV}") + \
                     self.kv_dma("V", 1, f"s{S_SOKV}")
            else:
                dm = [f"s_mov_b32 s{S_SOKV}, 32768"] + self.kv_dma("K", 2, f"s{S_SOKV}") + self.kv_dma("V", 2, f"s{S_SOKV}")
            for i in range(self.pfc[k + 1]): dm = dm + self.kv_touch()
            if k == 0:
                t_.many(rd); t_.many(self.stamp("r0")); t_.many(dm)
                continue
            S = Sched(self.q_mfmas(k - 1, k == 1))
            pos = [g for g in range(56) if g % 5 != 2][:len(rd)]
            for p_, r_ in zip(pos, rd): S.post[p_].append(r_)
            nvm = sum(isinstance(x, VM) for x in dm)
            step = 56.0 / nvm
            i = 0
            pend = []
            for x in dm:
                if isinstance(x, VM):
                    gpos = int(i * step + 2 - (i * step + 2) % 1)
                    gpos = min(55, gpos)
                    if pend:
                        S.post[gpos - 1] += pend; pend = []
                    S.post[gpos].append(x); i += 1
                else:
                    pend.append(x)
            if pend: S.post[55] += pend
            if o.fused and k in (3, 4, 8):
                extra = {3: self.b_addr_s, 4: self.b_addr_v, 8: self.b_srd}[k]()
                for i, x in enumerate(extra): S.post[38 + (i * 17) // len(extra)].append(x)
            S.emit(t_)
        t_.c("---- Q-proj period 9 + finalisation")
        t_.e(WL("R8"))
        t_.e("s_barrier")
        t_.many(self.stamp("p9"))
        groups = [(jj, qt) for jj in range(2) for qt in range(7)]
        mf = []
        for (jj, qt) in groups:
            for s in range(2):
                for T in (2 * jj, 2 * jj + 1):
                    mf.append(self.q_mf(8, s, T, qt, False))
        S = Sched(mf)
        def fin(gi):
            jj, qt = groups[gi]
            tb = V_QT + (gi & 1) * 4
            r0 = ((2 * jj) * 7 + qt) * 4
            r1 = ((2 * jj + 1) * 7 + qt) * 4
            m0_ = [f"v_mul_f32 v{r0+i}, s{S_SC}, v{r0+i}" for i in range(4)]
            m1_ = [f"v_mul_f32 v{r1+i}, s{S_SC}, v{r1+i}" for i in range(4)]
            c_ = [f"v_cvt_pk_bf16_f32 v{tb}, v{r0}, v{r0+1}", f"v_cvt_pk_bf16_f32 v{tb+1}, v{r0+2}, v{r0+3}",
                  f"v_cvt_pk_bf16_f32 v{tb+2}, v{r1}, v{r1+1}", f"v_cvt_pk_bf16_f32 v{tb+3}, v{r1+2}, v{r1+3}"]
            w_ = DS(f"ds_write_b128 v{V_QW}, {vr(tb)} offset:{(jj*7+qt)*1024}", "qw")
            return m0_, m1_, c_, w_
        for gi in range(13):
            m0_, m1_, c_, w_ = fin(gi)
            b = 4 * (gi + 1) + 1
            S.post[b] += m0_; S.post[b + 1] += m1_; S.post[b + 2] += c_; S.post[b + 3] += [w_]
        kr = [self.k_read(kt, ks, 0) for kt in range(2) for ks in range(4)]
        for i, x in enumerate(kr): S.post[i].append(x)
        S.emit(t_)
        t_.e("s_nop 7")
        m0_, m1_, c_, w_ = fin(13)
        t_.many(m0_); t_.many(m1_); t_.many(c_); t_.e(w_)
        t_.e(WL("qw"))
        t_.e(WV("V0"))
        t_.e("s_barrier")
        t_.many(self.stamp("qx"))
        if o.dbgq:
            for qt in range(7): t_.many(self.q_read(qt))
            t_.e(WALL('l'))
            t_.e(f"s_lshl_b32 s{S_T0}, s2, 2")
            t_.e(f"s_add_u32 s{S_T0}, s{S_T0}, s{S_W}")
            t_.e(f"s_mul_i32 s{S_T0}, s{S_T0}, 28672")
            t_.e(f"s_add_u32 s{S_T0}, s{S_T0}, {32<<20}")
            t_.e(f"s_mov_b32 s{S_O+2}, {256<<20}")
            t_.e(f"v_and_b32 v{V_T0}, 63, v{V_TID}")
            t_.e(f"v_lshlrev_b32 v{V_T0}, 4, v{V_T0}")
            for i in range(28):
                t_.e(f"buffer_store_dwordx4 {ar(A_Q + i*4)}, v{V_T0}, {sr(S_O)}, s{S_T0} offen")
                t_.e(f"s_add_u32 s{S_T0}, s{S_T0}, 1024")
            t_.e("s_waitcnt vmcnt(0)")
            t_.e(f"s_mov_b32 s{S_O+2}, {112*self.QS}")
        t_.lab("A_ATT")
        t_.many(self.q_read(0)); t_.many(self.q_read(1))
        t_.e(f"v_add_u32 v{V_OFFKV}, {3*16384}, v{V_OFFKV}")
        t_.e(f"v_add_u32 v{V_OFFKV+1}, {3*16384}, v{V_OFFKV+1}")
        self.preamble(True)
        self.body()
        self.epilogue()
        t_.lab("CT_END")
        self.slowpath()
        t_.lab("A_END")
        t_.e("s_endpgm")
        return "\n".join(t_.L)

    def preamble(self, with_q):
        t_ = self.t
        vr_ = [self.v_read(tp, hf, 0) for tp in range(7) for hf in range(2)]
        t_.e(WL("k0.0", "k0.1", "q0"))
        S = Sched(self.qk_mfmas(0, 0))
        for i, x in enumerate(vr_): S.post[i // 2].append(x)
        if with_q:
            q2 = self.q_read(2)
            S.post[7] += q2
        S.emit(t_)
        t_.e(WL("q1"))
        m1 = self.qk_mfmas(1, 1)
        ex = self.exps(0); cv = self.cvts(0)
        S = Sched(m1)
        S.post[0] += ex[0:2]; S.post[1] += ex[2:4]; S.post[2] += ex[4:6]; S.post[3] += ex[6:8]
        S.post[4] += cv[0:2]; S.post[5] += cv[2:4]
        S.emit(t_)
        t_.many(self.stamp("pre"))

    def body(self):
        t_ = self.t
        texts = []
        start = len(t_.L)
        for n in range(4):
            self.tile(n)
            t_.many(self.stamp(f"t{n}"))
        i0 = len(t_.L)
        if self.o.unroll:
            for n in range(4, 12): self.tile(n)
            t_.many(self.stamp("t11"))
            for n in range(12, 16): self.tile(n)
            t_.many(self.stamp("t15"))
            return
        for n in range(4, 8): self.tile(n)
        i1 = len(t_.L)
        for n in range(8, 12): self.tile(n)
        i2 = len(t_.L)
        strip = lambda xs: [x for x in xs if not x.strip().startswith(";")]
        A_, B_ = t_.L[i0:i1], t_.L[i1:i2]
        assert len(A_) == len(B_), "loop iterations differ in length"
        body = []
        for x, y in zip(A_, B_):
            if x.strip().startswith(";") or x == y:
                body.append(x); continue
            mx, my = re.fullmatch(r"\s*s_waitcnt vmcnt\((\d+)\)", x), re.fullmatch(r"\s*s_waitcnt vmcnt\((\d+)\)", y)
            assert mx and my, f"loop iterations differ: {x} | {y}"
            body.append(f"    s_waitcnt vmcnt({min(int(mx.group(1)), int(my.group(1)))})")
        t_.L = t_.L[:i0]
        t_.e(f"s_mov_b32 s{S_CNT}, 2")
        t_.lab("A_LOOP")
        t_.L += body
        t_.e(f"s_sub_u32 s{S_CNT}, s{S_CNT}, 1")
        t_.e(f"s_cmp_lg_u32 s{S_CNT}, 0")
        t_.e("s_cbranch_scc1 A_LOOP")
        t_.many(self.stamp("t11"))
        for n in range(12, 16):
            self.tile(n)
            t_.many(self.stamp(f"t{n}"))

    def fin_tile(self, qt, pb, tb, lt):
        r = []
        ob = V_OOWN + qt * 16
        r.append(f"v_accvgpr_read_b32 v{lt}, a{A_L + 4*qt}")
        r.append(f"v_add_f32 v{lt}, v{lt}, v{lt+1}")
        r.append(f"v_rcp_f32 v{lt}, v{lt}")
        for k in range(8):
            r.append(f"v_pk_add_f32 {vr(ob+2*k,2)}, {vr(ob+2*k,2)}, {vr(pb+2*k,2)}")
        for k in range(8):
            r.append(f"v_pk_mul_f32 {vr(ob+2*k,2)}, {vr(ob+2*k,2)}, {vr(lt,2)} op_sel:[0,0] op_sel_hi:[1,0]")
        for jj in range(2):
            s0 = ob + jj * 8
            for k in range(4):
                r.append(f"v_cvt_pk_bf16_f32 v{tb + jj*4 + k}, v{s0 + 2*k}, v{s0 + 2*k + 1}")
        pol = " sc1" if (self.o.osc1 or self.o.fused) else ""
        for jj in range(2):
            off = " offset:1024" if jj else ""
            r.append(VM(f"buffer_store_dwordx4 {vr(tb + jj*4)}, v{V_T0+1}, {sr(S_O)}, s{S_OB} offen{off}{pol}", "ost"))
        r.append(f"s_add_u32 s{S_OB}, s{S_OB}, {self.QS}")
        return r

    def p_reads(self, qt, pb, lt):
        r = []
        for tpp in range(4):
            i = qt * 4 + tpp
            r.append(DS(f"ds_read_b128 {vr(pb + tpp*4)}, v{V_KA+2} offset:{i*1024}", f"p{qt}"))
        r.append(DS(f"ds_read_b32 v{lt+1}, v{V_KA+3} offset:{qt*256}", f"p{qt}"))
        return r

    def epilogue(self):
        t_ = self.t
        o = self.o
        t_.c("---- epilogue")
        PB = [112, 128, 144, 160]
        LT = [V_NEGM + 16, V_NEGM + 18, V_NEGM + 20, V_NEGM + 22]
        TB = [V_NEGM, V_NEGM + 8]
        t_.many(self.p_reads(0, PB[0], LT[0]))
        t_.many(self.p_reads(1, PB[1], LT[1]))
        t_.e("s_nop 7")
        t_.many(self.o_writes(6))
        t_.many(self.p_reads(2, PB[2], LT[2]))
        t_.many(self.p_reads(3, PB[3], LT[3]))
        T = V_S
        lo, hi = f32(2.0 ** -24), f32(2.0 ** 30)
        t_.e(f"s_mov_b32 s{S_T0}, {hex(lo)}")
        t_.e(f"s_mov_b32 s{S_T1}, {hex(hi - lo)}")
        for qt in range(7):
            t_.e(f"v_accvgpr_read_b32 v{T+qt}, a{A_L + 4*qt}")
        t_.e(f"v_subrev_u32 v{T+8}, s{S_T0}, v{T}")
        for qt in range(1, 7):
            t_.e(f"v_subrev_u32 v{T+9}, s{S_T0}, v{T+qt}")
            t_.e(f"v_max_u32 v{T+8}, v{T+8}, v{T+9}")
        t_.e(f"v_cmp_lt_u32 vcc, s{S_T1}, v{T+8}")
        t_.e(f"s_lshl_b32 s{S_T3}, s{S_W}, 2")
        t_.e(f"s_add_u32 s{S_T3}, s{S_T3}, {FOFF}")
        t_.e(f"s_cmp_lg_u64 vcc, 0")
        t_.e(f"s_cselect_b32 s{S_T2}, 1, 0")
        t_.e(f"v_mov_b32 v{T+10}, s{S_T2}")
        t_.e(f"v_and_b32 v{T+11}, 3, v{V_TID}")
        t_.e(f"v_mul_u32_u24 v{T+11}, {RG}, v{T+11}")
        t_.e(f"v_add_u32 v{T+11}, s{S_T3}, v{T+11}")
        t_.e(DS(f"ds_write_b32 v{T+11}, v{T+10}", "fl"))
        for qt in range(4):
            t_.e(WL(f"p{qt}"))
            t_.many(self.fin_tile(qt, PB[qt], TB[qt & 1], LT[qt]))
            if o.fused: t_.many(self.wo_dma(2 + qt))
        t_.e(WL("fl", "ow4", "ow5", "ow6"))
        t_.e("s_barrier")
        t_.many(self.stamp("e1"))
        F = V_P + 4
        t_.e(f"s_mul_i32 s{S_T0}, s{S_W}, {RG}")
        t_.e(f"s_add_u32 s{S_T0}, s{S_T0}, {FOFF}")
        t_.e(f"v_mov_b32 v{T+11}, s{S_T0}")
        t_.e(DS(f"ds_read_b128 {vr(F)}, v{T+11}", "flr"))
        for qt in range(4, 7):
            t_.many(self.p_reads(qt, PB[qt - 4], LT[qt - 4]))
        t_.e(WL("flr"))
        t_.e(f"v_or_b32 v{F}, v{F}, v{F+1}")
        t_.e(f"v_or_b32 v{F+2}, v{F+2}, v{F+3}")
        t_.e(f"v_or_b32 v{F}, v{F}, v{F+2}")
        t_.e("s_nop 1")
        t_.e(f"v_readfirstlane_b32 s{S_T0}, v{F}")
        t_.e(f"s_xor_b32 s{S_T1}, s{S_PASS}, 1")
        t_.e(f"s_and_b32 s{S_T0}, s{S_T0}, s{S_T1}")
        t_.e(f"s_cmp_lg_u32 s{S_T0}, 0")
        t_.e("s_cbranch_scc1 A_SLOW")
        for qt in range(4, 7):
            t_.e(WL(f"p{qt}"))
            if o.fused:
                t_.many(self.wo_dma(2 + qt))
                if qt == 6: t_.many(self.wo_dma(9))
            t_.many(self.fin_tile(qt, PB[qt - 4], TB[qt & 1], LT[qt - 4]))
        t_.many(self.stamp("e2"))
        if o.fused: self.phase_b()
        if o.stamps:
            t_.e(f"s_memrealtime s[{S_ST+38}:{S_ST+39}]")
            t_.e("s_waitcnt lgkmcnt(0)")
            t_.e(f"s_cmp_lg_u32 s{S_W}, 0")
            t_.e("s_cbranch_scc1 A_END")
            ns = 20
            t_.e(f"s_mul_i32 s{S_T0}, s2, {ns*4*2}")
            t_.e(f"s_add_u32 s{S_T0}, s{S_T0}, {64<<20}")
            t_.e(f"s_mov_b32 s{S_O+2}, {256<<20}")
            t_.e(f"v_mov_b32 v{V_T0+1}, 0")
            for i in range(ns * 2):
                if 2 * self.nst <= i < 36:
                    t_.e(f"v_mov_b32 v{V_T0}, 0")
                else:
                    t_.e(f"v_mov_b32 v{V_T0}, s{S_ST+i}")
                t_.e(f"buffer_store_dword v{V_T0}, v{V_T0+1}, {sr(S_O)}, s{S_T0} offen offset:{i*4}")
                t_.e("s_nop 1")
        t_.e("s_endpgm")

    def b_addr_v(self):
        L, t0, t1, t2 = 184, 185, 186, 187
        r = []
        r.append(f"v_and_b32 v{L}, 63, v{V_TID}")
        r.append(f"v_lshrrev_b32 v{t0}, 3, v{L}")
        r.append(f"v_and_b32 v{t1}, 7, v{L}")
        r.append(f"v_bfe_u32 v{t2}, v{L}, 4, 2")
        r.append(f"v_lshlrev_b32 v{t2}, 1, v{t2}")
        r.append(f"v_xor_b32 v{t1}, v{t1}, v{t2}")
        r.append(f"v_lshlrev_b32 v{t1}, 4, v{t1}")
        r.append(f"v_mul_u32_u24 v{t0}, 1152, v{t0}")
        r.append(f"v_add_u32 v{V_WOF}, v{t0}, v{t1}")
        for i in range(1, 4):
            r.append(f"v_add_u32 v{V_WOF+i}, {i*(9216-1024)}, v{V_WOF}")
        r.append(f"v_lshrrev_b32 v{t0}, 2, v{L}")
        r.append(f"v_bfe_u32 v{t1}, v{L}, 3, 2")
        r.append(f"v_lshlrev_b32 v{t1}, 5, v{t1}")
        r.append(f"v_lshlrev_b32 v{t0}, 7, v{t0}")
        r.append(f"v_and_b32 v{t2}, 3, v{L}")
        r.append(f"v_lshlrev_b32 v{t2}, 3, v{t2}")
        r.append(f"v_add_u32 v{t0}, v{t0}, v{t2}")
        r.append(f"v_add_u32 v{t0}, s{S_RB}, v{t0}")
        for nt in range(4):
            r.append(f"v_xor_b32 v{V_TR+nt}, {nt*32}, v{t1}")
            r.append(f"v_add_u32 v{V_TR+nt}, v{V_TR+nt}, v{t0}")
        return r

    def b_addr_s(self):
        r = []
        r.append(f"s_mul_i32 s{S_RB}, s{S_W}, {RG}")
        r.append(f"s_and_b32 s{S_T0}, s2, 7")
        r.append(f"s_lshr_b32 s{S_T1}, s2, 3")
        r.append(f"s_and_b32 s{S_T2}, s{S_T0}, 1")
        r.append(f"s_lshl_b32 s{S_T2}, s{S_T2}, 5")
        r.append(f"s_add_u32 s{S_T1}, s{S_T1}, s{S_T2}")
        r.append(f"s_lshr_b32 s{S_T0}, s{S_T0}, 1")
        r.append(f"s_mul_i32 s{S_T0}, s{S_T0}, 7")
        if self.o.bmap == 0:
            r.append(f"s_mul_i32 s{S_NG}, s{S_T1}, 37")
            r.append(f"s_lshr_b32 s{S_NG}, s{S_NG}, 8")
            r.append(f"s_mul_i32 s{S_T2}, s{S_NG}, 7")
            r.append(f"s_sub_u32 s{S_T2}, s{S_T1}, s{S_T2}")
            r.append(f"s_add_u32 s{S_MG}, s{S_T2}, s{S_T0}")
        else:
            r.append(f"s_mul_i32 s{S_T2}, s{S_T1}, 57")
            r.append(f"s_lshr_b32 s{S_T2}, s{S_T2}, 9")
            r.append(f"s_add_u32 s{S_MG}, s{S_T2}, s{S_T0}")
            r.append(f"s_mul_i32 s{S_T2}, s{S_T2}, 9")
            r.append(f"s_sub_u32 s{S_NG}, s{S_T1}, s{S_T2}")
        r.append(f"s_cmp_ge_u32 s{S_T1}, 63")
        r.append(f"s_cselect_b32 s{S_NG}, 15, s{S_NG}")
        r.append(f"s_cselect_b32 s{S_MG}, 0, s{S_MG}")
        if self.o.brot:
            r.append(f"s_mul_i32 s{S_ROT}, s{S_NG}, {self.o.brot * 1024}")
        r.append(f"s_mul_i32 s{S_T0}, s{S_W}, {1024*1152}")
        r.append(f"s_lshl_b32 s{S_T1}, s{S_NG}, 7")
        r.append(f"s_add_u32 s{S_SW}, s{S_T0}, s{S_T1}")
        r.append(f"s_mul_i32 s{S_T0}, s{S_MG}, {4*self.QS}")
        r.append(f"s_lshl_b32 s{S_T1}, s{S_W}, 15")
        r.append(f"s_add_u32 s{S_SO}, s{S_T0}, s{S_T1}")
        r.append(f"s_lshl_b32 s{S_T0}, s{S_MG}, 2")
        r.append(f"s_mul_i32 s{S_T1}, s{S_T0}, 147")
        r.append(f"s_lshr_b32 s{S_T1}, s{S_T1}, 11")
        r.append(f"s_lshl_b32 s{S_L0}, s{S_T1}, 3")
        r.append(f"s_add_u32 s{S_T0}, s{S_T0}, 3")
        r.append(f"s_mul_i32 s{S_T1}, s{S_T0}, 147")
        r.append(f"s_lshr_b32 s{S_T1}, s{S_T1}, 11")
        r.append(f"s_lshl_b32 s{S_L1}, s{S_T1}, 3")
        return r

    def b_srd(self):
        r = []
        r.append(f"s_mov_b32 s{S_WO}, s4"); r.append(f"s_mov_b32 s{S_WO+1}, s5")
        r.append(f"s_mov_b32 s{S_WO+2}, {4096*1152}"); r.append(f"s_mov_b32 s{S_WO+3}, 0x00020000")
        r.append(f"s_mov_b32 s{S_OUT}, s6"); r.append(f"s_mov_b32 s{S_OUT+1}, s7")
        r.append(f"s_mov_b32 s{S_OUT+2}, {1792*1152}"); r.append(f"s_mov_b32 s{S_OUT+3}, 0x00020000")
        return r

    @staticmethod
    def slot(f): return (f + 8) % 10

    def btime(self, f):
        NR, NL = self.o.nr, 10
        order = list(range(NR, NR + NL)) + list(range(NR)) + list(range(NR + NL, 32))
        return order.index(f)

    def wo_dma(self, f):
        if self.o.brot:
            r = [f"s_add_u32 s{S_RT}, s{S_ROT}, {self.btime(f)*1024}", f"s_and_b32 s{S_RT}, s{S_RT}, 0x7fff",
                 f"s_mul_i32 s{S_RT}, s{S_RT}, 36", f"s_add_u32 s{S_SWC}, s{S_SW}, s{S_RT}",
                 f"s_add_u32 m0, s{S_RB}, {self.slot(f)*4096}"]
            for i in range(4):
                off = f" offset:{i*1024}" if i else ""
                r.append(VM(f"buffer_load_dwordx4 v{V_WOF+i}, {sr(S_WO)}, s{S_SWC} offen{off} lds", f"W{f}"))
            return r
        fa = f % self.o.wsm if self.o.wsm else f
        r = [f"s_add_u32 s{S_SWC}, s{S_SW}, {fa*32*1152}", f"s_add_u32 m0, s{S_RB}, {self.slot(f)*4096}"]
        for i in range(4):
            off = f" offset:{i*1024}" if i else ""
            r.append(VM(f"buffer_load_dwordx4 v{V_WOF+i}, {sr(S_WO)}, s{S_SWC} offen{off} lds", f"W{f}"))
        return r

    def tr_reads(self, f, unit):
        k, b = unit
        r = []
        for nt in range(4):
            for hf in range(2):
                r.append(DS(f"ds_read_b64_tr_b16 {k}[{b + nt*4 + 2*hf}:{b + nt*4 + 2*hf + 1}], v{V_TR+nt} offset:{self.slot(f)*4096 + hf*2048}", f"t{f}"))
        return r

    def phase_b(self):
        t_, o = self.t, self.o
        NR, D, NL = o.nr, o.od, 10
        units = [("a", 16*i) for i in range(16)] + [("v", 64 + 16*i) for i in range(10)]
        assert NR + 2 + D <= len(units)
        res = units[:NR]; jit = units[-(D + 2):-D]; ring = units[-D:]
        U = lambda u, off: f"{u[0]}[{u[1]+off}:{u[1]+off+3}]"
        NK = 32
        order = list(range(NR, NR + NL)) + list(range(NR)) + list(range(NR + NL, NK))
        t_.c("---- out-projection: weight prefetch + publish")
        t_.e(WV("PW"))
        for mi in range(1, 4):
            t_.e(f"v_add_u32 v{V_OO[mi]}, {mi*self.QS}, v{V_OO[0]}")
        def publish():
            t_.e(WV("ost"))
            t_.e("s_barrier")
            t_.e(f"s_cmp_lg_u32 s{S_W}, {o.pubw}")
            t_.e("s_cbranch_scc1 B_PUB")
            if o.pubmode == 0:
                t_.e(f"s_lshl_b32 s{S_T0}, s{S_B}, 5")
                t_.e(f"v_mov_b32 v{V_S}, s{S_T0}")
                t_.e(f"v_mov_b32 v{V_S+1}, 1")
                t_.e("s_mov_b64 exec, 1")
                t_.e(f"global_atomic_add v{V_S}, v{V_S+1}, s[8:9]")
                t_.e("s_mov_b64 exec, -1")
            else:
                t_.e(f"s_lshl_b32 s{S_T0}, s{S_B}, 5")
                t_.e(f"s_add_u32 s{S_T0}, s{S_T0}, s{S_H}")
                t_.e(f"v_mov_b32 v{V_S}, s{S_T0}")
                t_.e(f"v_mov_b32 v{V_S+1}, 1")
                t_.e("s_mov_b64 exec, 1")
                t_.e(f"global_store_byte v{V_S}, v{V_S+1}, s[8:9] sc1")
                t_.e("s_mov_b64 exec, -1")
            t_.lab("B_PUB")
            t_.many(self.stamp("pub"))
            t_.e(f"s_cmp_eq_u32 s{S_NG}, 15")
            t_.e("s_cbranch_scc1 A_END")
        published = False
        nxt = NL
        for f in range(NR):
            if f == o.npre and not published:
                publish(); published = True
            t_.e(WV(f"W{f}"))
            t_.many(self.stamp(f"wf{f}"))
            if not (o.wdiag & 1): t_.many(self.tr_reads(f, res[f]))
            if f >= 1:
                t_.e(WL(f"t{f-1}"))
                if nxt < NK:
                    if not (o.wdiag & 2): t_.many(self.wo_dma(nxt))
                    nxt += 1
        if not published:
            publish(); published = True
        t_.e(WL(f"t{NR-1}"))
        if nxt < NK: t_.many(self.wo_dma(nxt)); nxt += 1
        for i in range(2):
            f = order[i]
            t_.e(WV(f"W{f}"))
            t_.many(self.tr_reads(f, jit[i]))
        for i in range(2):
            t_.e(WL(f"t{order[i]}"))
            if nxt < NK: t_.many(self.wo_dma(nxt)); nxt += 1
        t_.many(self.stamp("wpf"))
        P, Q = V_S, V_S + 1
        t_.e(f"s_cmp_lg_u32 s{S_W}, {o.pollw}")
        t_.e("s_cbranch_scc1 B_GO")
        if o.pubmode == 0:
            t_.e(f"v_and_b32 v{Q}, 63, v{V_TID}")
            t_.e(f"v_lshlrev_b32 v{Q}, 2, v{Q}")
            t_.e(f"s_mov_b32 s{S_CNT}, 200000")
            t_.lab("B_POLL")
            t_.e(f"global_load_dword v{P}, v{Q}, s[8:9] sc1")
            t_.e("s_waitcnt vmcnt(0)")
            t_.e(f"v_readlane_b32 s{S_T0}, v{P}, s{S_L0}")
            t_.e(f"v_readlane_b32 s{S_T1}, v{P}, s{S_L1}")
            t_.e(f"s_min_u32 s{S_T0}, s{S_T0}, s{S_T1}")
            t_.e(f"s_cmp_ge_u32 s{S_T0}, 32")
            t_.e("s_cbranch_scc1 B_GO")
        else:
            t_.e(f"v_and_b32 v{Q}, 63, v{V_TID}")
            t_.e(f"v_mov_b32 v{P}, s{S_L0}")
            t_.e(f"v_mov_b32 v{P+2}, s{S_L1}")
            t_.e(f"v_cmp_gt_u32 vcc, 8, v{Q}")
            t_.e(f"v_cndmask_b32 v{P}, v{P+2}, v{P}, vcc")
            t_.e(f"v_and_b32 v{Q}, 7, v{Q}")
            t_.e(f"v_add_u32 v{Q}, v{Q}, v{P}")
            t_.e(f"v_lshlrev_b32 v{Q}, 2, v{Q}")
            t_.e(f"s_mov_b32 s{S_CNT}, 200000")
            t_.e(f"s_mov_b32 s{S_T1}, 0x01010101")
            t_.e("s_mov_b64 exec, 0xffff")
            t_.lab("B_POLL")
            t_.e(f"global_load_dword v{P}, v{Q}, s[8:9] sc1")
            t_.e("s_waitcnt vmcnt(0)")
            t_.e(f"v_cmp_ne_u32 vcc, s{S_T1}, v{P}")
            t_.e("s_nop 4")
            t_.e("s_cbranch_vccz B_PD")
        t_.e(f"s_sub_u32 s{S_CNT}, s{S_CNT}, 1")
        t_.e(f"s_cmp_eq_u32 s{S_CNT}, 0")
        t_.e(f"s_cbranch_scc1 {'B_PD' if o.pubmode else 'B_GO'}")
        t_.e(f"s_sleep {o.psleep}")
        t_.e("s_branch B_POLL")
        if o.pubmode:
            t_.lab("B_PD")
            t_.e("s_mov_b64 exec, -1")
        t_.lab("B_GO")
        t_.e("s_barrier")
        t_.many(self.stamp("poll"))
        def o_soff(i):
            if o.brot:
                return [f"s_add_u32 s{S_RT}, s{S_ROT}, {i*1024}", f"s_and_b32 s{S_RT}, s{S_RT}, 0x7fff", f"s_add_u32 s{S_SOC}, s{S_SO}, s{S_RT}"]
            return [f"s_add_u32 s{S_SOC}, s{S_SO}, {order[i]*1024}"]
        def o_load(i, mi):
            if o.bnold and i >= D: return "s_nop 0"
            return VM(f"buffer_load_dwordx4 {U(ring[i % D], mi*4)}, v{V_OO[mi]}, {sr(S_O)}, s{S_SOC} offen{' sc1' if o.olsc else ''}", f"O{i}.{mi}")
        if o.b2x:
            t_.e(f"s_mov_b32 s{S_CNT}, 2")
            t_.lab("B_2X")
        for i in range(D):
            t_.many(o_soff(i))
            for mi in range(4): t_.e(o_load(i, mi))
        for i in range(NK):
            f = order[i]
            inlds = f >= NR
            wu = jit[i & 1] if inlds else res[f]
            if i == NK - (NK - NR - NL) and (i & 1) != ((NL) & 1):
                pass
            mf = []
            for mi in range(4):
                for nt in range(4):
                    d = vr((mi*4 + nt)*4)
                    mf.append(f"{MF} {d}, {U(wu, nt*4)}, {U(ring[i % D], mi*4)}, {'0' if i == 0 else d}")
            if o.bnomf: mf = ["s_nop 0"] * 16
            S = Sched(mf)
            if inlds: S.pre[0].append(WL(f"t{f}"))
            if inlds: S.pre[0].append(WV(f"W{f}"))
            for mi in range(4): S.pre[4*mi].append(WV(f"O{i}.{mi}"))
            if i + D < NK:
                S.post[0] += o_soff(i + D)
                for mi in range(4): S.post[4*mi + 3].append(o_load(i + D, mi))
            if i + 1 < NK and order[i + 1] >= NR and (i + 1) >= 2:
                fn = order[i + 1]
                rd = self.tr_reads(fn, jit[(i + 1) & 1])
                S.post[1].append(WV(f"W{fn}"))
                for k, x in enumerate(rd): S.post[1 + k].append(x)
            if inlds and i >= 2 and nxt < NK:
                d = self.wo_dma(nxt); nxt += 1
                ns = len(d) - 4
                S.post[9] += d[:ns]; S.post[10].append(d[ns]); S.post[12].append(d[ns+1]); S.post[13].append(d[ns+2]); S.post[14].append(d[ns+3])
            S.emit(t_)
        assert nxt == NK
        if o.b2x:
            t_.e(f"s_cmp_eq_u32 s{S_CNT}, 2")
            t_.e("s_cbranch_scc0 B_2XE")
            t_.e(f"s_memtime s[{S_ST+2}:{S_ST+3}]")
            t_.e(f"s_mov_b32 s{S_CNT}, 1")
            t_.e("s_branch B_2X")
            t_.lab("B_2XE")
        t_.many(self.stamp("main"))
        t0, t1, t2, t3, t4, L = 64, 65, 66, 67, 68, 69
        TRW = 70
        t_.e(f"v_and_b32 v{L}, 63, v{V_TID}")
        t_.e(f"v_and_b32 v{t0}, 15, v{L}")
        t_.e(f"v_lshrrev_b32 v{t1}, 4, v{L}")
        t_.e(f"v_xor_b32 v{t1}, v{t1}, v{t0}")
        t_.e(f"v_lshlrev_b32 v{t1}, 4, v{t1}")
        t_.e(f"v_lshlrev_b32 v{t0}, 8, v{t0}")
        t_.e(f"v_add_u32 v{t0}, s{S_RB}, v{t0}")
        for nt in range(4):
            t_.e(f"v_xor_b32 v{TRW+nt}, {nt*64}, v{t1}")
            t_.e(f"v_add_u32 v{TRW+nt}, v{TRW+nt}, v{t0}")
        t_.e("s_nop 7")
        for mi in range(4):
            for nt in range(4):
                t_.e(DS(f"ds_write_b128 v{TRW+nt}, {vr((mi*4+nt)*4)} offset:{mi*4096}", "rw"))
        t_.e(f"v_lshrrev_b32 v{t0}, 3, v{L}")
        t_.e(f"s_lshl_b32 s{S_T0}, s{S_W}, 4")
        t_.e(f"v_add_u32 v{t0}, s{S_T0}, v{t0}")
        t_.e(f"v_and_b32 v{t1}, 7, v{L}")
        t_.e(f"v_lshlrev_b32 v{t1}, 1, v{t1}")
        AD = 80
        for ps in range(2):
            if ps: t_.e(f"v_add_u32 v{t0}, 8, v{t0}")
            t_.e(f"v_and_b32 v{t2}, 15, v{t0}")
            t_.e(f"v_xor_b32 v{t3}, v{t1}, v{t2}")
            t_.e(f"v_lshlrev_b32 v{t3}, 4, v{t3}")
            t_.e(f"v_lshlrev_b32 v{t4}, 8, v{t0}")
            t_.e(f"v_add_u32 v{AD+ps*4}, v{t3}, v{t4}")
            t_.e(f"v_xor_b32 v{AD+ps*4+1}, 16, v{AD+ps*4}")
            t_.e(f"v_add_u32 v{AD+ps*4+2}, {2*RG}, v{AD+ps*4}")
            t_.e(f"v_add_u32 v{AD+ps*4+3}, {2*RG}, v{AD+ps*4+1}")
            t_.e(f"s_lshl_b32 s{S_T0}, s{S_MG}, 6")
            t_.e(f"v_add_u32 v{t4}, s{S_T0}, v{t0}")
            t_.e(f"v_mul_u32_u24 v{t4}, 1152, v{t4}")
            t_.e(f"v_lshlrev_b32 v{t2}, 3, v{t1}")
            t_.e(f"v_add_u32 v{88+ps}, v{t4}, v{t2}")
        t_.e(WL("rw"))
        t_.e("s_barrier")
        R = 96
        for ps in range(2):
            for wv in range(4):
                for ch in range(2):
                    a = AD + ps*4 + ch + (2 if wv >= 2 else 0)
                    off = (wv & 1) * RG
                    t_.e(DS(f"ds_read_b128 {vr(R + ps*32 + wv*8 + ch*4)}, v{a} offset:{off}", f"rr{ps}"))
        t_.e(f"s_lshl_b32 s{S_T1}, s{S_NG}, 7")
        for ps in range(2):
            t_.e(WL(f"rr{ps}"))
            B_ = R + ps*32
            for k in range(4):
                t_.e(f"v_pk_add_f32 {vr(B_+2*k,2)}, {vr(B_+2*k,2)}, {vr(B_+8+2*k,2)}")
                t_.e(f"v_pk_add_f32 {vr(B_+16+2*k,2)}, {vr(B_+16+2*k,2)}, {vr(B_+24+2*k,2)}")
            for k in range(4):
                t_.e(f"v_pk_add_f32 {vr(B_+2*k,2)}, {vr(B_+2*k,2)}, {vr(B_+16+2*k,2)}")
            for k in range(4):
                t_.e(f"v_cvt_pk_bf16_f32 v{72 + ps*4 + k}, v{B_+2*k}, v{B_+2*k+1}")
            t_.e(VM(f"buffer_store_dwordx4 {vr(72 + ps*4)}, v{88+ps}, {sr(S_OUT)}, s{S_T1} offen", "out"))
        t_.many(self.stamp("end"))

    def slowpath(self):
        a = self.t
        a.lab("A_SLOW")
        a.c("---- fallback: true row maximum, then redo the attention loop with it")
        a.lq, a.vq = [], []
        a.e("s_waitcnt vmcnt(0) lgkmcnt(0)")
        a.e("s_barrier")
        a.e(f"s_mov_b32 s{S_PASS}, 1")
        self.emit_kv_addr()
        for qt in range(7):
            a.e(f"v_mov_b32 v{V_NEGM + 4*qt}, 0xff800000")
        KA = V_V
        for ks in range(4):
            a.e(f"v_subrev_u32 v{KA+ks}, {PAIR(0)+16384}, v{V_KA+ks}")
        a.e(f"s_mov_b32 s{S_SOKV}, 0")
        a.lab("A_MAXLOOP")
        a.many([x.t if isinstance(x, VM) else x for x in self.kv_dma("K", 0, f"s{S_SOKV}", lds=0)])
        a.e("s_waitcnt vmcnt(0)")
        a.e("s_barrier")
        for kt in range(2):
            for ks in range(4):
                off = f" offset:{kt*4096}" if kt else ""
                a.e(f"ds_read_b128 {vr(V_K + (kt*4+ks)*4)}, v{KA+ks}{off}")
        a.e("s_waitcnt lgkmcnt(0)")
        for qt in range(7):
            for kt in range(2):
                for ks in range(4):
                    d = vr(V_S + kt * 4)
                    a.e(f"{MF} {d}, {vr(V_K + (kt*4+ks)*4)}, {ar(A_Q + (qt*4+ks)*4)}, {'0' if ks == 0 else d}")
            a.e("s_nop 15")
            m = V_NEGM + 4 * qt
            for i in range(4):
                a.e(f"v_max3_f32 v{m}, v{m}, v{V_S+2*i}, v{V_S+2*i+1}")
            a.e("s_nop 3")
        a.e("s_barrier")
        a.e(f"s_add_u32 s{S_SOKV}, s{S_SOKV}, 16384")
        a.e(f"s_cmp_lt_u32 s{S_SOKV}, 262144")
        a.e("s_cbranch_scc1 A_MAXLOOP")
        L, t, u = V_T0, V_T0 + 1, V_T0 + 2
        a.e(f"v_and_b32 v{L}, 63, v{V_TID}")
        a.e(f"v_lshlrev_b32 v{t}, 2, v{L}")
        a.e(f"s_mul_i32 s{S_T0}, s{S_W}, 1792")
        a.e(f"s_add_u32 s{S_T0}, s{S_T0}, {MXX}")
        a.e(f"v_add_u32 v{t}, s{S_T0}, v{t}")
        for qt in range(7):
            a.e(f"ds_write_b32 v{t}, v{V_NEGM + 4*qt} offset:{qt*256}")
        a.e("s_waitcnt lgkmcnt(0)")
        a.e("s_barrier")
        a.e(f"v_and_b32 v{u}, 15, v{L}")
        a.e(f"v_lshlrev_b32 v{u}, 2, v{u}")
        a.e(f"s_mul_i32 s{S_T0}, s{S_QH}, 3584")
        a.e(f"s_add_u32 s{S_T0}, s{S_T0}, {MXX}")
        a.e(f"v_add_u32 v{u}, s{S_T0}, v{u}")
        for qt in range(7):
            for i in range(8):
                off = (i >> 2) * 1792 + qt * 256 + (i & 3) * 64
                a.e(f"ds_read_b32 v{V_S+i}, v{u} offset:{off}")
            a.e("s_waitcnt lgkmcnt(0)")
            m = V_NEGM + 4 * qt
            a.e(f"v_max3_f32 v{m}, v{V_S}, v{V_S+1}, v{V_S+2}")
            a.e(f"v_max3_f32 v{m}, v{m}, v{V_S+3}, v{V_S+4}")
            a.e(f"v_max3_f32 v{m}, v{m}, v{V_S+5}, v{V_S+6}")
            a.e(f"v_max_f32 v{m}, v{m}, v{V_S+7}")
            a.e(f"v_sub_f32 v{m}, 0, v{m}")
            for i in range(1, 4):
                a.e(f"v_mov_b32 v{m+i}, v{m}")
        a.e("s_barrier")
        a.e(f"v_lshlrev_b32 v{t}, 4, v{L}")
        a.e(f"s_mul_i32 s{S_T0}, s{S_QH}, 28672")
        a.e(f"v_add_u32 v{V_QR}, s{S_T0}, v{t}")
        for ks in range(4):
            for qt in range(7):
                a.e(f"ds_write_b128 v{V_QR}, {ar(A_Q + (qt*4+ks)*4)} offset:{(ks*7+qt)*1024}")
        strip = lambda xs: [x.t if isinstance(x, VM) else x for x in xs]
        a.many(strip(self.kv_dma("K", 0, "0")))
        a.many(strip(self.kv_dma("V", 0, "0")))
        a.e(f"s_mov_b32 s{S_SOKV}, 16384")
        a.many(strip(self.kv_dma("K", 1, f"s{S_SOKV}")))
        a.many(strip(self.kv_dma("V", 1, f"s{S_SOKV}")))
        a.e(f"s_mov_b32 s{S_SOKV}, 32768")
        a.many(strip(self.kv_dma("K", 2, f"s{S_SOKV}")))
        a.many(strip(self.kv_dma("V", 2, f"s{S_SOKV}")))
        if self.o.fused: a.many(self.b_addr_v())
        if self.pf_on: a.e(f"v_mov_b32 v{V_PF}, 0x40000000")
        a.e(f"s_waitcnt vmcnt(16) lgkmcnt(0)")
        a.e("s_barrier")
        for kt in range(2):
            for ks in range(4):
                a.e(self.k_read(kt, ks, 0).t)
        a.e("s_branch A_ATT")


def main():
    import gen as G1
    ap = argparse.ArgumentParser()
    ap.add_argument("-o", default="cdna_kernels/" + NAME + ".s")
    ap.add_argument("--nt", type=int, default=0)
    ap.add_argument("--stamps", type=int, default=0)
    ap.add_argument("--dbgq", type=int, default=0)
    ap.add_argument("--bw", type=int, default=8)
    ap.add_argument("--brs", type=int, default=4)
    ap.add_argument("--only", default="")
    ap.add_argument("--rts", type=int, default=0)
    ap.add_argument("--osc1", type=int, default=0)
    ap.add_argument("--probe", default="")
    ap.add_argument("--fused", type=int, default=1)
    ap.add_argument("--bmap", type=int, default=0)
    ap.add_argument("--nr", type=int, default=16)
    ap.add_argument("--od", type=int, default=8)
    ap.add_argument("--npre", type=int, default=4)
    ap.add_argument("--opad", type=int, default=0)
    ap.add_argument("--bnomf", type=int, default=0)
    ap.add_argument("--bnold", type=int, default=0)
    ap.add_argument("--b2x", type=int, default=0)
    ap.add_argument("--olsc", type=int, default=1)
    ap.add_argument("--ctouch", type=int, default=0)
    ap.add_argument("--unroll", type=int, default=0)
    ap.add_argument("--xpol", default="")
    ap.add_argument("--wqpol", default="")
    ap.add_argument("--stsel", default="start,karg,k0,p0,p1,p8,p9,qx,pre,t11,t15,e1,e2,pub,wpf,poll,main,end")
    ap.add_argument("--qrot", default="", help="alpha,beta,shift: r = ((alpha*h' + beta*b') >> shift) mod 9")
    ap.add_argument("--brot", type=int, default=0)
    ap.add_argument("--pubmode", type=int, default=0)
    ap.add_argument("--wsm", type=int, default=0)
    ap.add_argument("--wdiag", type=int, default=0)
    ap.add_argument("--pubw", type=int, default=0)
    ap.add_argument("--pollw", type=int, default=0)
    ap.add_argument("--psleep", type=int, default=1)
    ap.add_argument("--pfq", type=int, default=0)
    ap.add_argument("--pfc", default="0,0,0,0,0,0,0,0,0,0")
    ap.add_argument("--pf0", type=int, default=0)
    ap.add_argument("--pfa", type=int, default=0)
    ap.add_argument("--pfpol", default="")
    ap.add_argument("--pfqpol", default="")
    ap.add_argument("--pfas", type=int, default=6)
    ap.add_argument("--pfan", type=int, default=11)
    ap.add_argument("--pfw", type=int, default=0)
    ap.add_argument("--pfwt", type=int, default=12)
    ap.add_argument("--tlbt", type=int, default=0)
    ap.add_argument("--pfl", type=int, default=64)
    ap.add_argument("--pfwsp", default="")
    ap.add_argument("--pfwpol", default="")
    o = ap.parse_args()
    if o.xpol: o.xpol = " " + o.xpol.replace("+", " ")
    if o.wqpol: o.wqpol = " " + o.wqpol.replace("+", " ")
    if o.pfpol: o.pfpol = " " + o.pfpol
    if o.pfqpol: o.pfqpol = " " + o.pfqpol
    if o.pfwpol: o.pfwpol = " " + o.pfwpol
    ga = GenA(o); ta = ga.gen()
    if o.fused:
        hdr = G1.HDR.replace("Launch 1: one workgroup", "Phase 1: one workgroup").replace("Launch 2: out = O * wo.", "Phase 2 (same launch, after a counter hand-off): out = O * wo.")
        if o.probe:
            hdr += f"; @launch kernel={NAME}_kernel grid=(256,1,1) block=(256,1,1) lds=163840\n"
            hdr += "; @launch kernel=probe_kernel grid=(1,1,1) block=(64,1,1) lds=0\n"
        else:
            hdr += "; @launch grid=(256,1,1) block=(256,1,1) lds=163840\n"
        txt = hdr + '.amdgcn_target "amdgcn-amd-amdhsa--gfx950"\n.text\n' + G1.fix_hazards(ta) + "\n"
        if o.probe:
            txt += G1.gen_probe(o.probe) + "\n"
        txt += '.section .rodata,"a"\n.p2align 6\n' + G1.descriptor(NAME + "_kernel", 512, 256)
        if o.probe:
            txt += ".p2align 6\n" + G1.descriptor("probe_kernel", 32, 32)
        open(o.o, "w").write(txt)
        print("wrote", o.o, len(txt), "bytes; stamps", ga.nst)
        return
    gb = G1.GenB(o); tb = gb.gen()
    hdr = G1.HDR
    blds = max(o.bw * o.brs * 4096, o.bw * 16384)
    if o.only != "B":
        hdr += f"; @launch kernel={NAME}_kernel grid=(256,1,1) block=(256,1,1) lds=163840\n"
    if o.only != "A":
        hdr += f"; @launch kernel=oproj_kernel grid=(256,1,1) block=({o.bw*64},1,1) lds={blds}\n"
    if o.probe:
        hdr += "; @launch kernel=probe_kernel grid=(1,1,1) block=(64,1,1) lds=0\n"
    txt = hdr + '.amdgcn_target "amdgcn-amd-amdhsa--gfx950"\n.text\n' + G1.fix_hazards(ta) + "\n" + G1.fix_hazards(tb) + "\n"
    if o.probe:
        txt += G1.gen_probe(o.probe) + "\n"
    txt += '.section .rodata,"a"\n.p2align 6\n' + G1.descriptor(NAME + "_kernel", 512, 256)
    nvb = (gb.nv + 7) // 8 * 8
    txt += ".p2align 6\n" + G1.descriptor("oproj_kernel", nvb, (gb.nv + 3) // 4 * 4)
    if o.probe:
        txt += ".p2align 6\n" + G1.descriptor("probe_kernel", 32, 32)
    open(o.o, "w").write(txt)
    print("wrote", o.o, len(txt), "bytes; B vgprs", gb.nv, "stamps", ga.nst)

if __name__ == "__main__":
    main()
```

```python
import sys, struct, re, argparse
from collections import defaultdict
sys.path.insert(0, "tools")

NAME = "standalone__mha_block_cached__near_ridge"
MF = "v_mfma_f32_16x16x32_bf16"

def f32(x):
    return struct.unpack("<I", struct.pack("<f", x))[0]
def vr(b, n=4): return f"v[{b}:{b+n-1}]" if n > 1 else f"v{b}"
def ar(b, n=4): return f"a[{b}:{b+n-1}]" if n > 1 else f"a{b}"
def sr(b, n=4): return f"s[{b}:{b+n-1}]" if n > 1 else f"s{b}"

class DS:
    def __init__(s, t, tag): s.t, s.tag = t, tag
class VM:
    def __init__(s, t, tag): s.t, s.tag = t, tag
class WL:
    def __init__(s, *tags): s.tags = set(tags)
class WV:
    def __init__(s, *tags): s.tags = set(tags)
class WALL:
    def __init__(s, k): s.k = k

class Trace:
    def __init__(self):
        self.L = []
        self.lq = []
        self.vq = []
    def raw(self, s): self.L.append(s)
    def lab(self, s): self.L.append(s + ":")
    def c(self, s): self.L.append("    ; " + s)
    def e(self, x):
        if isinstance(x, str):
            self.L.append("    " + x)
        elif isinstance(x, DS):
            self.L.append("    " + x.t); self.lq.append(x.tag)
        elif isinstance(x, VM):
            self.L.append("    " + x.t); self.vq.append(x.tag)
        elif isinstance(x, WL):
            idx = max([i for i, t in enumerate(self.lq) if t in x.tags], default=-1)
            if idx >= 0:
                n = len(self.lq) - 1 - idx
                if n > 15:
                    n = 15
                self.L.append(f"    s_waitcnt lgkmcnt({n})")
                self.lq = self.lq[len(self.lq) - n:] if n else []
        elif isinstance(x, WV):
            idx = max([i for i, t in enumerate(self.vq) if t in x.tags], default=-1)
            if idx >= 0:
                n = len(self.vq) - 1 - idx
                if n > 63:
                    n = 63
                self.L.append(f"    s_waitcnt vmcnt({n})")
                self.vq = self.vq[len(self.vq) - n:] if n else []
        elif isinstance(x, WALL):
            w = []
            if 'v' in x.k: w.append("vmcnt(0)"); self.vq = []
            if 'l' in x.k: w.append("lgkmcnt(0)"); self.lq = []
            self.L.append("    s_waitcnt " + " ".join(w))
        else:
            raise TypeError(x)
    def many(self, xs):
        for x in xs: self.e(x)

class Sched:
    def __init__(self, mf):
        self.mf = mf
        self.pre = defaultdict(list)
        self.post = defaultdict(list)
    def emit(self, t):
        for g, m in enumerate(self.mf):
            t.many(self.pre[g])
            t.e(m)
            t.many(self.post[g])
        n = len(self.mf)
        for g in sorted(set(list(self.pre) + list(self.post))):
            if g >= n:
                t.many(self.pre[g]); t.many(self.post[g])

BUF = {0: 90112, 1: 45056, 2: 0}
def PAIR(n):
    return 32768 + ((3 - n) & 3) * 32768
QX = 0
RG = 40960
LOFF = 7 * 4096
FOFF = 7 * 4096 + 2048
MXX = 16384

V_OOWN = 0
V_K = 112
V_V = 144
V_S = 176
V_P = 192
V_NEGM = 200
V_KA = 228
V_VA = 232
V_OFFKV = 240
V_TID = 242
V_T0 = 243
V_OFFX = 144
V_OFFW = 151
V_XR = 156
V_WR = 160
V_QW = 253
V_QR = 254
V_QT = 176
V_WOF = 245
V_TR = 249
V_OO = [244, 253, 254, 255]
S_WO, S_OUT = 16, 20
S_MG, S_NG, S_SW, S_SO, S_L0, S_L1, S_RB, S_SWC, S_SOC = 57, 58, 59, 10, 11, 3, 100, 101, 42
S_ROT, S_RT = 54, 43
S_PF = 12
V_PF, V_PFD = 243, 255
A_Q = 0
A_OOTH = 112
A_L = 224
A_ONES = 252
S_X, S_WQ, S_K, S_V, S_O = 16, 20, 24, 28, 32
S_W, S_QH, S_KH = 36, 37, 38
S_W1K7 = 39
S_SC = 40
S_SOX, S_SOW = 42, 43
S_W4K = 44
S_B, S_H = 45, 46
S_CNT = 47
S_PASS = 48
S_T0, S_T1, S_T2, S_T3 = 49, 50, 51, 52
S_OB = 53
S_SOKV = 56
S_ST = 60


def o_reg(j, tp):
    if tp < 4:
        return vr(V_OOWN + (j * 4 + tp) * 4)
    return ar(A_OOTH + (j * 4 + tp - 4) * 4)


class GenA:
    def __init__(self, opt):
        self.o = opt
        self.t = Trace()
        self.nst = 0
        self.npf = 0
        self.pfc = [int(z) for z in opt.pfc.split(",")]
        assert len(self.pfc) == 10
        self.pf_on = (sum(self.pfc) > 0 or opt.pfa)
        self.QS = 131072 + opt.opad

    def stamp(self, name):
        if not self.o.stamps: return []
        sel = self.o.stsel.split(",")
        r = []
        for nm, ins in ((name, "s_memrealtime" if self.o.rts else "s_memtime"), (name + "@", "s_memrealtime")):
            if nm in sel:
                r.append(f"{ins} s[{S_ST + 2*self.nst}:{S_ST + 2*self.nst + 1}]")
                self.nst += 1
                assert self.nst <= 18
        return r

    def kvpol(self):
        return " nt" if self.o.nt else ""

    def emit_kv_addr(self, rd=True, dma=True):
        t_ = self.t
        L, l15, g, r4, c4, t, u = V_T0, V_T0+1, V_T0+2, V_T0+3, V_T0+4, V_T0+5, V_T0+6
        t_.e(f"v_and_b32 v{L}, 63, v{V_TID}")
        t_.e(f"v_and_b32 v{l15}, 15, v{L}")
        t_.e(f"v_lshrrev_b32 v{g}, 4, v{L}")
        if dma:
            t_.e(f"v_lshlrev_b32 v{t}, 1, v{g}")
            t_.e(f"v_xor_b32 v{t}, v{t}, v{l15}")
            t_.e(f"v_lshlrev_b32 v{t}, 4, v{t}")
            t_.e(f"v_lshlrev_b32 v{u}, 8, v{g}")
            t_.e(f"v_add_u32 v{u}, s{S_W4K}, v{u}")
            t_.e(f"v_add_u32 v{V_OFFKV}, v{t}, v{u}")
            t_.e(f"v_xor_b32 v{t}, 128, v{t}")
            t_.e(f"v_add_u32 v{V_OFFKV+1}, v{t}, v{u}")
        if rd:
            t_.e(f"v_bfe_u32 v{r4}, v{L}, 2, 2")
            t_.e(f"v_and_b32 v{c4}, 3, v{L}")
            t_.e(f"s_lshl_b32 s{S_T0}, s{S_KH}, 13")
            t_.e(f"s_add_u32 s{S_T1}, s{S_T0}, {PAIR(0) + 16384}")
            t_.e(f"v_and_b32 v{t}, 7, v{l15}")
            t_.e(f"v_lshlrev_b32 v{t}, 1, v{t}")
            t_.e(f"v_xor_b32 v{t}, v{t}, v{g}")
            t_.e(f"v_lshlrev_b32 v{t}, 4, v{t}")
            t_.e(f"v_lshlrev_b32 v{u}, 8, v{l15}")
            t_.e(f"v_add_u32 v{u}, s{S_T1}, v{u}")
            for ks in range(4):
                t_.e(f"v_xor_b32 v{V_KA+ks}, {ks*64}, v{t}")
                t_.e(f"v_add_u32 v{V_KA+ks}, v{V_KA+ks}, v{u}")
            t_.e(f"s_add_u32 s{S_T1}, s{S_T0}, {PAIR(0)}")
            t_.e(f"v_lshlrev_b32 v{u}, 2, v{g}")
            t_.e(f"v_add_u32 v{u}, v{u}, v{r4}")
            t_.e(f"v_and_b32 v{t}, 7, v{u}")
            t_.e(f"s_lshl_b32 s{S_T2}, s{S_KH}, 2")
            t_.e(f"v_xor_b32 v{t}, s{S_T2}, v{t}")
            t_.e(f"v_lshlrev_b32 v{t}, 5, v{t}")
            t_.e(f"v_lshlrev_b32 v{u}, 8, v{u}")
            t_.e(f"v_add_u32 v{u}, s{S_T1}, v{u}")
            t_.e(f"v_lshlrev_b32 v{c4}, 3, v{c4}")
            t_.e(f"v_add_u32 v{u}, v{u}, v{c4}")
            for tp in range(8):
                t_.e(f"v_xor_b32 v{V_VA+tp}, {tp*32}, v{t}")
                t_.e(f"v_add_u32 v{V_VA+tp}, v{V_VA+tp}, v{u}")

    def kv_dma(self, which, n, soff, lds=None):
        srd = S_K if which == "K" else S_V
        if lds is None:
            lds = PAIR(n) + (16384 if which == "K" else 0)
        r = [f"s_add_u32 m0, s{S_W4K}, {lds}"]
        for i in range(4):
            off = f" offset:{i*1024}" if i else ""
            r.append(VM(f"buffer_load_dwordx4 v{V_OFFKV + (i & 1)}, {sr(srd)}, {soff} offen{off}{self.kvpol()} lds", f"{which}{n}"))
        return r

    def kv_touch(self):
        self.npf += 1
        L = self.o.pfl
        per = 64 // L
        step = L * 128 if self.npf % per else 16384 - (per - 1) * L * 128
        return [VM(f"buffer_load_dword v{V_PFD}, v{V_PF}, {sr(S_PF)}, 0 offen{self.o.pfpol}", "PF"),
                f"v_add_u32 v{V_PF}, {step}, v{V_PF}"]

    def x_dma(self, st):
        buf = BUF[st % 3]
        r = []
        if self.o.qrot:
            if st:
                r += [f"s_add_u32 s{S_SOX}, s{S_SOX}, 128", f"s_cmp_eq_u32 s{S_SOX}, 1152", f"s_cselect_b32 s{S_SOX}, 0, s{S_SOX}"]
        else:
            r.append(f"s_mov_b32 s{S_SOX}, {st*128}")
        r.append(f"s_add_u32 m0, s{S_W1K7}, {buf}")
        for i in range(7):
            if i == 4:
                r.append(f"s_add_u32 m0, s{S_W1K7}, {buf + 4096}")
            off = f" offset:{(i%4)*1024}" if i % 4 else ""
            r.append(VM(f"buffer_load_dwordx4 v{V_OFFX+i}, {sr(S_X)}, s{S_SOX} offen{off}{self.o.xpol} lds", f"X{st}"))
        if self.o.qrot:
            r.append(f"s_lshl_b32 s{S_SOW}, s{S_SOX}, 12")
        else:
            r.append(f"s_mov_b32 s{S_SOW}, {st*64*8192}")
        r.append(f"s_add_u32 m0, s{S_W4K}, {buf + 28672}")
        for i in range(4):
            off = f" offset:{i*1024}" if i else ""
            r.append(VM(f"buffer_load_dwordx4 v{V_OFFW+i}, {sr(S_WQ)}, s{S_SOW} offen{off}{self.o.wqpol} lds", f"X{st}"))
        return r

    def q_reads(self, st):
        buf = BUF[st % 3]
        sset = 1 if buf == 90112 else 0
        base = buf - (90112 if sset else 0)
        p = (st & 1) * 88
        r = []
        for s in range(2):
            for T in range(4):
                jj = T >> 1
                for hf in range(2):
                    off = base + 8192 * s + 1024 * hf + 8 * (T & 1)
                    r.append(DS(f"ds_read_b64_tr_b16 {ar(p + 56 + (s*4+T)*4 + 2*hf, 2)}, v{V_WR + sset*2 + jj} offset:{off}", f"R{st}"))
            for qt in range(7):
                off = base + qt * 2048
                r.append(DS(f"ds_read_b128 {ar(p + (s*7+qt)*4)}, v{V_XR + sset*2 + s} offset:{off}", f"R{st}"))
        return r

    def q_mf(self, st, s, T, qt, first):
        p = (st & 1) * 88
        d = vr((T * 7 + qt) * 4)
        c = "0" if (first and s == 0) else d
        return f"{MF} {d}, {ar(p + 56 + (s*4+T)*4)}, {ar(p + (s*7+qt)*4)}, {c}"

    def q_mfmas(self, st, first):
        return [self.q_mf(st, s, T, qt, first) for s in range(2) for T in range(4) for qt in range(7)]

    def k_read(self, kt, ks, n):
        off = f" offset:{kt*4096}" if kt else ""
        return DS(f"ds_read_b128 {vr(V_K + (kt*4+ks)*4)}, v{V_KA+ks}{off}", f"k{n}.{kt}")

    def v_read(self, tp, hf, n):
        off = f" offset:{hf*4096}" if hf else ""
        return DS(f"ds_read_b64_tr_b16 {vr(V_V + tp*4 + 2*hf, 2)}, v{V_VA+tp}{off}", f"v{n}.{tp}")

    def q_read(self, qt):
        return [DS(f"ds_read_b128 {ar(A_Q + (qt*4+ks)*4)}, v{V_QR} offset:{(ks*7+qt)*1024}", f"q{qt}") for ks in range(4)]

    def qk_mfmas(self, par, j2):
        r = []
        for kt in range(2):
            for ks in range(4):
                d = vr(V_S + par * 8 + kt * 4)
                c = vr(V_NEGM + j2 * 4) if ks == 0 else d
                r.append(f"{MF} {d}, {vr(V_K + (kt*4+ks)*4)}, {ar(A_Q + (j2*4+ks)*4)}, {c}")
        return r

    def pv_mfmas(self, par, j, first):
        r = []
        p = vr(V_P + par * 4)
        for tp in range(8):
            d = o_reg(j, tp)
            r.append(f"{MF} {d}, {vr(V_V + tp*4)}, {p}, {'0' if first else d}")
        d = ar(A_L + j * 4)
        r.append(f"{MF} {d}, {ar(A_ONES)}, {p}, {'0' if first else d}")
        return r

    def exps(self, par):
        return [f"v_exp_f32 v{V_S + par*8 + i}, v{V_S + par*8 + i}" for i in range(8)]

    def cvts(self, par):
        return [f"v_cvt_pk_bf16_f32 v{V_P + par*4 + i}, v{V_S + par*8 + 2*i}, v{V_S + par*8 + 2*i + 1}" for i in range(4)]

    def tile(self, n):
        t = self.t
        first = (n == 0)
        last = (n == 15)
        dl = (PAIR(n + 1) - PAIR(n)) & 0xffffffff
        vdma = self.kv_dma("V", n + 3, "0") if (n + 3 <= 15 and n >= 1) else None
        kdma = self.kv_dma("K", n + 4, "0") if n + 4 <= 15 else None
        adv = [f"v_add_u32 v{V_OFFKV}, 16384, v{V_OFFKV}", f"v_add_u32 v{V_OFFKV+1}, 16384, v{V_OFFKV+1}"]
        for j in range(7):
            par = (n + j) & 1
            mf = self.pv_mfmas(par, j, first)
            has_qk = not (last and j >= 5)
            if has_qk:
                mf = mf + self.qk_mfmas(par, (j + 2) % 7)
            S = Sched(mf)
            G, PRE = S.post, S.pre
            if not (last and j == 6):
                ex = self.exps(par ^ 1); cv = self.cvts(par ^ 1)
                if has_qk:
                    for i in range(8): G[2 * i].append(ex[i])
                    for i in range(4): G[4 * i + 3].append(cv[i])
                else:
                    for i in range(8): G[i // 2].append(ex[i])
                    G[2].append(cv[0]); G[3].append(cv[1]); G[4].append(cv[2]); G[5].append(cv[3])
            nn = n + 1
            if j == 0:
                PRE[0].append(WL(f"v{n}.0", f"v{n}.1", f"v{n}.2"))
                G[1] += [self.v_read(7, 0, n), self.v_read(7, 1, n)]
                PRE[3].append(WL(f"v{n}.3", f"v{n}.4", f"v{n}.5"))
                PRE[6].append(WL(f"v{n}.6", f"v{n}.7"))
                if vdma:
                    G[9] += [vdma[0]]
                    G[13] += [vdma[1]]
            if first and j <= 3:
                q = self.q_read(j + 3)
                G[5] += q[:2]; G[9] += q[2:]
            if first and j <= 4:
                PRE[9].append(WL(f"q{j+2}"))
            if j == 1:
                if vdma: G[5] += [vdma[2]]
                if not last:
                    G[9] += [f"v_add_u32 v{V_VA+0}, {dl}, v{V_VA+0}", f"v_add_u32 v{V_VA+1}, {dl}, v{V_VA+1}"] if not first else []
                    G[13] += [f"v_add_u32 v{V_VA+2}, {dl}, v{V_VA+2}", f"v_add_u32 v{V_VA+3}, {dl}, v{V_VA+3}"]
                    if first:
                        G[1] += [f"v_add_u32 v{V_VA+0}, {dl}, v{V_VA+0}", f"v_add_u32 v{V_VA+1}, {dl}, v{V_VA+1}"]
            if j == 2:
                if vdma: G[5] += [vdma[3]]
                if not last:
                    G[1] += [f"v_add_u32 v{V_VA+4}, {dl}, v{V_VA+4}", f"v_add_u32 v{V_VA+5}, {dl}, v{V_VA+5}"]
                    G[13] += [f"v_add_u32 v{V_VA+6}, {dl}, v{V_VA+6}", f"v_add_u32 v{V_VA+7}, {dl}, v{V_VA+7}"]
            if j == 3:
                if vdma: G[5] += [vdma[4]]
                if not last:
                    G[1] += [f"v_add_u32 v{V_KA+0}, {dl}, v{V_KA+0}", f"v_add_u32 v{V_KA+1}, {dl}, v{V_KA+1}"]
                    G[13] += [f"v_add_u32 v{V_KA+2}, {dl}, v{V_KA+2}", f"v_add_u32 v{V_KA+3}, {dl}, v{V_KA+3}"]
                if kdma and not first:
                    G[16] += adv
            if j == 4:
                if first:
                    G[5] += [WL("q6")]
                if not last:
                    G[5] += [WV(f"K{nn}", f"V{nn}")]
                else:
                    G[5] += [WL("ow0", "ow1", "ow2", "ow3")]
                G[7] += ["s_barrier"]
                if not last:
                    G[9] += [self.k_read(0, 0, nn)]
                    G[11] += [self.k_read(0, 1, nn)]
                    G[13] += [self.k_read(0, 2, nn), self.k_read(0, 3, nn)]
                    G[15] += [self.k_read(1, 0, nn)]
                    G[16] += [self.k_read(1, 1, nn), self.k_read(1, 2, nn)]
                if first:
                    k3 = self.kv_dma("K", 3, "0")
                    G[9] += [k3[0]]
                    self.k3 = k3
            if j == 5 and not last:
                G[1] += [self.k_read(1, 3, nn)]
                PRE[9].append(WL(f"k{nn}.0", f"k{nn}.1"))
                if first:
                    k3 = self.k3
                    G[1] += [k3[1]]; G[3] += [k3[2]]; G[5] += [k3[3]]; G[7] += [k3[4]]
                    v3 = self.kv_dma("V", 3, "0")
                    G[9] += [v3[0], v3[1]]; G[11] += [v3[2]]; G[13] += [v3[3]]; G[15] += [v3[4]]
                    G[16] += adv
                elif kdma:
                    G[0] += [kdma[0]]
                    G[1] += [kdma[1]]; G[5] += [kdma[2]]; G[9] += [kdma[3]]; G[13] += [kdma[4]]
            if j == self.o.pfas and self.o.pfa and n <= self.o.pfan:
                tc = self.kv_touch()
                G[14] += [tc[0]]; G[16] += [tc[1]]
            if self.o.pfw and self.o.pfwsp:
                sp = [tuple(int(z) for z in q.split(".")) for q in self.o.pfwsp.split(",")]
                w = self.wo_touch()
                if (n, j) == (12, 4):
                    for i, x in enumerate(w[0]): G[9 + (i * 7) // len(w[0])].append(x)
                tch = w[1] + w[2]
                for i, q in enumerate(sp):
                    if q == (n, j): G[6 if sp.count(q) == 1 else 2 + 6 * sp[:i].count(q)].append(tch[i])
            elif self.o.pfw and n == self.o.pfwt and j in (4, 5, 6):
                w = self.wo_touch()
                if j == 4:
                    for i, x in enumerate(w[0]): G[9 + (i * 7) // len(w[0])].append(x)
                else:
                    tch = w[1] if j == 5 else w[2]
                    nv = sum(isinstance(x, VM) for x in tch)
                    gi = 2
                    for x in tch:
                        G[gi].append(x)
                        if isinstance(x, VM): gi += max(1, 14 // max(nv, 1))
                    if j == 6 and self.o.tlbt:
                        a = V_PF
                        D = V_PFD
                        q = self.QS
                        tl = []
                        if self.o.tlbt & 1:
                            tl += [f"v_and_b32 v{a}, 15, v{V_TID}", f"s_mul_i32 s{S_T0}, s{S_B}, 14",
                                   f"v_add_u32 v{a}, s{S_T0}, v{a}", f"v_min_u32 v{a}, 111, v{a}",
                                   f"s_mov_b32 s{S_T0}, {q}", f"v_mul_lo_u32 v{a}, v{a}, s{S_T0}", f"v_add_u32 v{a}, 131072, v{a}",
                                   VM(f"global_load_dword v{D}, v{a}, s[{S_O}:{S_O+1}] sc1", "PW"),
                                   f"v_and_b32 v{a}, 3, v{V_TID}", f"s_lshl_b32 s{S_T1}, s{S_MG}, 2",
                                   f"v_add_u32 v{a}, s{S_T1}, v{a}", f"v_mul_lo_u32 v{a}, v{a}, s{S_T0}", f"v_add_u32 v{a}, 131072, v{a}",
                                   VM(f"global_load_dword v{D}, v{a}, s[{S_O}:{S_O+1}] sc1", "PW")]
                        if self.o.tlbt & 2:
                            tl += [f"v_and_b32 v{a}, 63, v{V_TID}", f"s_lshl_b32 s{S_T1}, s{S_MG}, 6", f"v_add_u32 v{a}, s{S_T1}, v{a}",
                                   f"v_mul_u32_u24 v{a}, 1152, v{a}",
                                   VM(f"buffer_load_dword v{D}, v{a}, {sr(S_OUT)}, 0 offen", "PW")]
                        if self.o.tlbt & 4:
                            tl += [f"v_mov_b32 v{a}, 0", VM(f"global_load_dword v{D}, v{a}, s[8:9] sc1", "PW")]
                        g0 = 10
                        for x in tl:
                            G[min(g0, 16)].append(x)
                            if isinstance(x, VM): g0 += 2
            if j == 6 and not last:
                v = lambda a, b: self.v_read(a, b, nn)
                G[1] += [v(0, 0), v(0, 1)]
                G[3] += [v(1, 0)]
                G[5] += [v(1, 1), v(2, 0)]
                G[7] += [v(2, 1)]
                G[9] += [v(3, 0), v(3, 1)]
                G[11] += [v(4, 0)]
                G[13] += [v(4, 1), v(5, 0)]
                G[15] += [v(5, 1)]
                G[16] += [v(6, 0), v(6, 1)]
                if first:
                    PRE[0] += [kdma[0]]
                    G[0] += [kdma[1]]; G[4] += [kdma[2]]; G[8] += [kdma[3]]; G[12] += [kdma[4]]
            if last:
                if j == 1:
                    PRE[0] = ["s_barrier"] + PRE[0]
                    w = self.o_writes(0)
                    G[1] += [w[0]]; G[3] += [w[1]]; G[5] += [w[2]]; G[7] += [w[3]]; G[8] += [w[4]]
                if 1 <= j <= 4:
                    w = self.o_writes(j)
                    G[10] += [w[0]]; G[11] += [w[1]]; G[13] += [w[2], w[3]]; G[15] += [w[4]]
                if self.o.fused and j in (2, 3):
                    d = self.wo_dma(j - 2)
                    ns = len(d) - 4
                    wp = [int(z) for z in self.o.w01g.split(",")]
                    G[0] += d[:ns]
                    for i in range(4): G[wp[i]] += [d[ns+i]]
                if j == 6:
                    w = self.o_writes(5)
                    G[1] += [w[0]]; G[3] += [w[1]]; G[4] += [w[2]]; G[6] += [w[3]]; G[7] += [w[4]]
                if j == 0:
                    PRE[0] = self.ox_addr() + PRE[0]
            t.c(f"tile {n} slot {j}")
            S.emit(t)
            t.many(self.stamp(f"s{n}_{j}"))

    def wo_touch(self):
        a = V_PF
        su = [f"v_and_b32 v{a}, 63, v{V_TID}", f"s_lshr_b32 s{S_T0}, s2, 3"]
        pol = self.o.pfwpol
        if self.o.pfw == 2:
            su = [f"v_and_b32 v{a}, 63, v{V_TID}", f"v_mul_u32_u24 v{a}, 73728, v{a}"]
            return su, [VM(f"buffer_load_dword v{V_PFD}, v{a}, {sr(S_WO)}, 0 offen{pol}", "PW")], []
        if self.o.pfw == 3:
            su = [f"v_and_b32 v{a}, 63, v{V_TID}", f"s_lshl_b32 s{S_T0}, s{S_W}, 6", f"v_add_u32 v{a}, s{S_T0}, v{a}", f"v_mul_u32_u24 v{a}, {16*1152}, v{a}"]
            return su, [VM(f"buffer_load_dword v{V_PFD}, v{a}, {sr(S_WO)}, 0 offen{pol}", "PW")], []
        if self.o.bmap == 0:
            su += [f"s_lshl_b32 s{S_T0}, s{S_T0}, 2", f"s_add_u32 s{S_T0}, s{S_T0}, s{S_W}",
                   f"s_mul_i32 s{S_T0}, s{S_T0}, {32*1152}",
                   f"s_and_b32 s{S_T1}, s2, 1", f"s_lshl_b32 s{S_T1}, s{S_T1}, 9", f"s_add_u32 s{S_T0}, s{S_T0}, s{S_T1}",
                   f"v_cmp_gt_u32 vcc, 32, v{a}",
                   f"v_mul_u32_u24 v{a}, 1152, v{a}", f"v_add_u32 v{a}, s{S_T0}, v{a}",
                   f"v_mov_b32 v{V_PFD}, 0x40000000",
                   f"v_cndmask_b32 v{a}, v{V_PFD}, v{a}, vcc"]
            T = [VM(f"buffer_load_dword v{V_PFD}, v{a}, {sr(S_WO)}, 0 offen" + (f" offset:{i*128}" if i else "") + pol, "PW") for i in range(5)]
            return su, T[:3], T[3:]
        su += [f"s_mul_i32 s{S_T0}, s{S_T0}, 147456", f"s_mul_i32 s{S_T1}, s{S_W}, 36864", f"s_add_u32 s{S_T0}, s{S_T0}, s{S_T1}",
               f"v_lshlrev_b32 v{a}, 7, v{a}", f"v_add_u32 v{a}, s{S_T0}, v{a}"]
        T = []
        for i in range(5):
            T.append([VM(f"buffer_load_dword v{V_PFD}, v{a}, {sr(S_WO)}, 0 offen{pol}", "PW"), f"v_add_u32 v{a}, 8192, v{a}"])
        return su, T[0] + T[1] + T[2], T[3] + T[4]

    def ox_addr(self):
        r = []
        T = V_T0
        r.append(f"v_and_b32 v{T}, 63, v{V_TID}")
        r.append(f"v_lshlrev_b32 v{T+1}, 4, v{T}")
        r.append(f"v_lshlrev_b32 v{T}, 2, v{T}")
        r.append(f"s_xor_b32 s{S_T3}, s{S_W}, 1")
        r.append(f"s_mul_i32 s{S_T0}, s{S_T3}, {RG}")
        r.append(f"v_add_u32 v{V_KA}, s{S_T0}, v{T+1}")
        r.append(f"s_add_u32 s{S_T0}, s{S_T0}, {LOFF}")
        r.append(f"v_add_u32 v{V_KA+1}, s{S_T0}, v{T}")
        r.append(f"s_mul_i32 s{S_T0}, s{S_W}, {RG}")
        r.append(f"v_add_u32 v{V_KA+2}, s{S_T0}, v{T+1}")
        r.append(f"s_add_u32 s{S_T0}, s{S_T0}, {LOFF}")
        r.append(f"v_add_u32 v{V_KA+3}, s{S_T0}, v{T}")
        r.append(f"s_mul_i32 s{S_T0}, s{S_B}, 14")
        r.append(f"s_mul_i32 s{S_T1}, s{S_QH}, 7")
        r.append(f"s_add_u32 s{S_T0}, s{S_T0}, s{S_T1}")
        r.append(f"s_mul_i32 s{S_T0}, s{S_T0}, {self.QS}")
        r.append(f"s_lshl_b32 s{S_T1}, s{S_H}, 1")
        r.append(f"s_add_u32 s{S_T1}, s{S_T1}, s{S_KH}")
        r.append(f"s_lshl_b32 s{S_T1}, s{S_T1}, 11")
        r.append(f"s_add_u32 s{S_OB}, s{S_T0}, s{S_T1}")
        return r

    def o_writes(self, j):
        r = []
        for tpp in range(4):
            i = j * 4 + tpp
            r.append(DS(f"ds_write_b128 v{V_KA}, {ar(A_OOTH + i*4)} offset:{i*1024}", f"ow{j}"))
        r.append(DS(f"ds_write_b32 v{V_KA+1}, a{A_L + 4*j} offset:{j*256}", f"ow{j}"))
        return r

    def gen(self):
        t_ = self.t
        o = self.o
        kn = f"{NAME}_kernel"
        t_.raw(f".globl {kn}\n.p2align 8\n.type {kn},@function\n{kn}:")
        t_.e("s_cmp_ge_u32 s2, 256")
        t_.e("s_cbranch_scc1 A_END")
        t_.e("s_load_dwordx8 s[4:11], s[0:1], 0")
        t_.e("s_load_dwordx2 s[12:13], s[0:1], 56")
        t_.many(self.stamp("start"))
        if o.stamps:
            t_.e(f"s_memrealtime s[{S_ST+36}:{S_ST+37}]")
        if o.ctouch:
            t_.e("s_getpc_b64 s[14:15]")
            t_.lab("CT_PC")
            t_.e("s_lshr_b32 s3, s2, 3")
            t_.e("s_and_b32 s3, s3, 1")
            t_.e("s_lshl_b32 s3, s3, 15")
            t_.e("v_lshlrev_b32 v1, 7, v0")
            t_.e("v_add_u32 v1, s3, v1")
            t_.e("v_min_u32 v1, CT_END-CT_PC-4, v1")
            t_.e(VM(f"global_load_dword v{V_PFD}, v1, s[14:15]", "PF"))
        t_.e(f"v_mov_b32 v{V_TID}, v0")
        t_.e(f"v_lshrrev_b32 v1, 6, v0")
        t_.e("s_and_b32 s3, s2, 7")
        t_.e(f"s_lshr_b32 s{S_T0}, s2, 3")
        t_.e(f"v_readfirstlane_b32 s{S_W}, v1")
        t_.e(f"s_and_b32 s{S_T1}, s3, 1")
        t_.e(f"s_lshl_b32 s{S_T1}, s{S_T1}, 2")
        t_.e(f"s_and_b32 s{S_T2}, s{S_T0}, 3")
        t_.e(f"s_add_u32 s{S_B}, s{S_T1}, s{S_T2}")
        t_.e(f"s_lshr_b32 s{S_T1}, s3, 1")
        t_.e(f"s_lshl_b32 s{S_T1}, s{S_T1}, 3")
        t_.e(f"s_lshr_b32 s{S_T2}, s{S_T0}, 2")
        t_.e(f"s_add_u32 s{S_H}, s{S_T1}, s{S_T2}")
        t_.e(f"s_lshr_b32 s{S_QH}, s{S_W}, 1")
        t_.e(f"s_and_b32 s{S_KH}, s{S_W}, 1")
        t_.e(f"s_mul_i32 s{S_W1K7}, s{S_W}, 7168")
        t_.e(f"s_lshl_b32 s{S_W4K}, s{S_W}, 12")
        L, l15, g, r4, c4, t, u = V_T0, V_T0+1, V_T0+2, V_T0+3, V_T0+4, V_T0+5, V_T0+6
        t_.e(f"v_and_b32 v{L}, 63, v{V_TID}")
        t_.e(f"v_and_b32 v{l15}, 15, v{L}")
        t_.e(f"v_lshrrev_b32 v{g}, 4, v{L}")
        t_.e(f"v_lshrrev_b32 v{t}, 3, v{L}")
        t_.e(f"v_and_b32 v{r4}, 7, v{L}")
        t_.e(f"v_xor_b32 v{u}, v{g}, v{r4}")
        t_.e(f"v_lshlrev_b32 v{u}, 4, v{u}")
        t_.e(f"s_lshl_b32 s{S_T0}, s{S_KH}, 6")
        t_.e(f"v_xor_b32 v{u}, s{S_T0}, v{u}")
        t_.e(f"v_mul_u32_u24 v{t}, 1152, v{t}")
        t_.e(f"s_mul_i32 s{S_T1}, s{S_W}, {56*1152}")
        t_.e(f"v_add_u32 v{t}, s{S_T1}, v{t}")
        t_.e(f"v_xor_b32 v{c4}, 64, v{u}")
        t_.e(f"v_add_u32 v{V_OFFX}, v{u}, v{t}")
        t_.e(f"v_add_u32 v{c4}, v{c4}, v{t}")
        for i in range(1, 7):
            src = V_OFFX if (i & 1) == 0 else c4
            k = i * 9216 - (i % 4) * 1024
            t_.e(f"v_add_u32 v{V_OFFX+i}, {k}, v{src}")
        t_.e(f"v_lshlrev_b32 v{t}, 2, v{g}")
        t_.e(f"v_xor_b32 v{t}, v{t}, v{l15}")
        t_.e(f"v_lshlrev_b32 v{t}, 4, v{t}")
        t_.e(f"v_lshlrev_b32 v{u}, 13, v{g}")
        t_.e(f"s_lshl_b32 s{S_T1}, s{S_W}, 17")
        t_.e(f"v_add_u32 v{u}, s{S_T1}, v{u}")
        t_.e(f"v_add_u32 v{V_OFFW}, v{t}, v{u}")
        for i in range(1, 4):
            t_.e(f"v_add_u32 v{V_OFFW+i}, {i*(32768-1024)}, v{V_OFFW}")
        t_.e(f"s_mul_i32 s{S_T0}, s{S_B}, 258048")
        t_.e(f"s_lshl_b32 s{S_T1}, s{S_H}, 8")
        t_.e(f"s_mov_b32 s{S_X+2}, 258048")
        t_.e(f"s_mov_b32 s{S_X+3}, 0x00020000")
        t_.e(f"s_sub_u32 s{S_WQ+2}, {576*8192}, s{S_T1}")
        t_.e(f"s_mov_b32 s{S_WQ+3}, 0x00020000")
        if o.qrot:
            al, be, sh = [int(z) for z in o.qrot.split(",")]
            t_.e(f"s_lshr_b32 s{S_T0}, s2, 5")
            t_.e(f"s_mul_i32 s{S_T0}, s{S_T0}, {al}")
            t_.e(f"s_bfe_u32 s{S_T1}, s2, {(2 << 16) | 3}")
            t_.e(f"s_mul_i32 s{S_T1}, s{S_T1}, {be}")
            t_.e(f"s_add_u32 s{S_T0}, s{S_T0}, s{S_T1}")
            t_.e(f"s_lshr_b32 s{S_T0}, s{S_T0}, {sh}")
            for _ in range(((7 * al + 3 * be) >> sh) // 9):
                t_.e(f"s_sub_u32 s{S_T1}, s{S_T0}, 9")
                t_.e(f"s_cmp_ge_u32 s{S_T0}, 9")
                t_.e(f"s_cselect_b32 s{S_T0}, s{S_T1}, s{S_T0}")
            t_.e(f"s_lshl_b32 s{S_SOX}, s{S_T0}, 7")
            t_.e(f"s_mul_i32 s{S_T0}, s{S_B}, 258048")
            t_.e(f"s_lshl_b32 s{S_T1}, s{S_H}, 8")
        t_.e("s_waitcnt lgkmcnt(0)")
        t_.many(self.stamp("karg"))
        t_.e(f"s_add_u32 s{S_X}, s4, s{S_T0}")
        t_.e(f"s_addc_u32 s{S_X+1}, s5, 0")
        t_.e(f"s_add_u32 s{S_WQ}, s10, s{S_T1}")
        t_.e(f"s_addc_u32 s{S_WQ+1}, s11, 0")
        t_.many(self.x_dma(0))
        t_.many(self.stamp("x0"))
        t_.many(self.x_dma(1))
        t_.many(self.stamp("x1"))
        t_.e(f"s_lshl_b32 s{S_T0}, s{S_B}, 5")
        t_.e(f"s_add_u32 s{S_T0}, s{S_T0}, s{S_H}")
        t_.e(f"s_lshl_b32 s{S_T0}, s{S_T0}, 18")
        t_.e(f"s_add_u32 s{S_K}, s6, s{S_T0}")
        t_.e(f"s_addc_u32 s{S_K+1}, s7, 0")
        t_.e(f"s_mov_b32 s{S_K+2}, 262144")
        t_.e(f"s_mov_b32 s{S_K+3}, 0x00020000")
        t_.e(f"s_add_u32 s{S_V}, s8, s{S_T0}")
        t_.e(f"s_addc_u32 s{S_V+1}, s9, 0")
        t_.e(f"s_mov_b32 s{S_V+2}, 262144")
        t_.e(f"s_mov_b32 s{S_V+3}, 0x00020000")
        t_.e(f"s_mov_b32 s{S_O}, s12")
        t_.e(f"s_mov_b32 s{S_O+1}, s13")
        t_.e(f"s_mov_b32 s{S_O+2}, {112*self.QS}")
        t_.e(f"s_mov_b32 s{S_O+3}, 0x00020000")
        if o.fused:
            t_.e("s_load_dwordx4 s[4:7], s[0:1], 32")
            t_.e("s_load_dwordx2 s[8:9], s[0:1], 48")
        self.emit_kv_addr(rd=False, dma=True)
        t_.many(self.kv_dma("K", 0, "0"))
        t_.many(self.stamp("k0i"))
        if o.pfq:
            a0, a1 = 112, 113
            pl = V_T0
            t_.e(f"s_and_b32 s{S_T0}, s{S_H}, 7")
            t_.e(f"s_mul_i32 s{S_T0}, s{S_T0}, 32256")
            t_.e(f"s_lshl_b32 s{S_T1}, s{S_W}, 13")
            t_.e(f"s_add_u32 s{S_T0}, s{S_T0}, s{S_T1}")
            t_.e(f"v_lshlrev_b32 v{a0}, 7, v{pl}")
            t_.e(f"v_add_u32 v{a0}, s{S_T0}, v{a0}")
            t_.e(VM(f"buffer_load_dword v{V_PFD}, v{a0}, {sr(S_X)}, 0 offen{o.pfqpol}", "PF"))
            t_.e(f"s_and_b32 s{S_T0}, s{S_B}, 3")
            t_.e(f"s_mul_i32 s{S_T0}, s{S_T0}, 144")
            t_.e(f"s_mul_i32 s{S_T1}, s{S_W}, 36")
            t_.e(f"s_add_u32 s{S_T0}, s{S_T0}, s{S_T1}")
            t_.e(f"s_lshl_b32 s{S_T0}, s{S_T0}, 13")
            t_.e(f"v_lshrrev_b32 v{a0}, 1, v{pl}")
            t_.e(f"v_lshlrev_b32 v{a0}, 13, v{a0}")
            t_.e(f"v_and_b32 v{a1}, 1, v{pl}")
            t_.e(f"v_lshlrev_b32 v{a1}, 7, v{a1}")
            t_.e(f"v_add_u32 v{a0}, v{a0}, v{a1}")
            t_.e(f"v_add_u32 v{a0}, s{S_T0}, v{a0}")
            t_.e(VM(f"buffer_load_dword v{V_PFD}, v{a0}, {sr(S_WQ)}, 0 offen{o.pfqpol}", "PF"))
            t_.e(f"v_add_u32 v{a1}, {32*8192}, v{a0}")
            t_.e(f"v_mov_b32 v{a0}, 0x40000000")
            t_.e(f"v_cmp_gt_u32 vcc, 8, v{pl}")
            t_.e(f"v_cndmask_b32 v{a1}, v{a0}, v{a1}, vcc")
            t_.e(VM(f"buffer_load_dword v{V_PFD}, v{a1}, {sr(S_WQ)}, 0 offen{o.pfqpol}", "PF"))
        if self.pf_on:
            t_.e(f"s_lshr_b32 s{S_T0}, s{S_W}, 1")
            t_.e(f"s_cmp_eq_u32 s{S_T0}, 0")
            t_.e(f"s_cselect_b32 s{S_PF}, s{S_K}, s{S_V}")
            t_.e(f"s_cselect_b32 s{S_PF+1}, s{S_K+1}, s{S_V+1}")
            t_.e(f"s_and_b32 s{S_T0}, s{S_W}, 1")
            t_.e(f"s_lshl_b32 s{S_T0}, s{S_T0}, 13")
            t_.e(f"s_add_u32 s{S_PF}, s{S_PF}, s{S_T0}")
            t_.e(f"s_addc_u32 s{S_PF+1}, s{S_PF+1}, 0")
            t_.e(f"s_sub_u32 s{S_PF+2}, 262144, s{S_T0}")
            t_.e(f"s_mov_b32 s{S_PF+3}, 0x00020000")
            t_.e(f"v_lshlrev_b32 v112, 7, v{V_T0}")
            if o.pf0: t_.e(f"v_add_u32 v112, {o.pf0*16384}, v112")
            if o.pfl != 64:
                assert self.pfc[0] == 0
                t_.e(f"v_mov_b32 v113, 0x40000000")
                t_.e(f"v_cmp_gt_u32 vcc, {o.pfl}, v{V_T0}")
                t_.e(f"v_cndmask_b32 v112, v113, v112, vcc")
            self.pfreg = 112
            for i in range(self.pfc[0]):
                t_.e(VM(f"buffer_load_dword v{V_PFD}, v112, {sr(S_PF)}, 0 offen{o.pfpol}", "PF"))
                t_.e(f"v_add_u32 v112, 16384, v112")
        t_.many(self.stamp("k0"))
        self.emit_kv_addr(rd=True, dma=False)
        sc = f32(1.4426950408889634 / (128 ** 0.5))
        t_.e(f"s_mov_b32 s{S_SC}, {hex(sc)}")
        t_.e(f"s_mov_b32 s{S_PASS}, 0")
        t_.e(f"v_bfe_u32 v{r4}, v{L}, 2, 2")
        t_.e(f"v_and_b32 v{c4}, 3, v{L}")
        t_.e(f"v_lshrrev_b32 v{t}, 1, v{l15}")
        t_.e(f"v_xor_b32 v{t}, v{t}, v{g}")
        t_.e(f"v_lshlrev_b32 v{t}, 4, v{t}")
        t_.e(f"v_lshlrev_b32 v{u}, 7, v{l15}")
        t_.e(f"s_mul_i32 s{S_T0}, s{S_QH}, {112*128}")
        t_.e(f"v_add_u32 v{u}, s{S_T0}, v{u}")
        t_.e(f"v_add_u32 v{V_XR}, v{t}, v{u}")
        t_.e(f"v_xor_b32 v{t}, 64, v{t}")
        t_.e(f"v_add_u32 v{V_XR+1}, v{t}, v{u}")
        t_.e(f"v_add_u32 v{V_XR+2}, 90112, v{V_XR}")
        t_.e(f"v_add_u32 v{V_XR+3}, 90112, v{V_XR+1}")
        t_.e(f"s_lshl_b32 s{S_T0}, s{S_KH}, 1")
        t_.e(f"v_xor_b32 v{t}, s{S_T0}, v{r4}")
        t_.e(f"v_lshlrev_b32 v{t}, 6, v{t}")
        t_.e(f"v_lshlrev_b32 v{u}, 3, v{g}")
        t_.e(f"v_add_u32 v{u}, v{u}, v{r4}")
        t_.e(f"v_lshlrev_b32 v{u}, 8, v{u}")
        t_.e(f"v_lshlrev_b32 v{c4}, 4, v{c4}")
        t_.e(f"v_add_u32 v{u}, v{u}, v{c4}")
        t_.e(f"v_add_u32 v{u}, 28672, v{u}")
        t_.e(f"v_add_u32 v{V_WR}, v{t}, v{u}")
        t_.e(f"v_xor_b32 v{t}, 64, v{t}")
        t_.e(f"v_add_u32 v{V_WR+1}, v{t}, v{u}")
        t_.e(f"v_add_u32 v{V_WR+2}, 90112, v{V_WR}")
        t_.e(f"v_add_u32 v{V_WR+3}, 90112, v{V_WR+1}")
        t_.e(f"v_lshlrev_b32 v{t}, 4, v{L}")
        t_.e(f"s_mul_i32 s{S_T0}, s{S_QH}, 28672")
        t_.e(f"v_add_u32 v{V_QR}, s{S_T0}, v{t}")
        t_.e(f"s_mul_i32 s{S_T1}, s{S_KH}, 14336")
        t_.e(f"v_add_u32 v{V_QW}, s{S_T1}, v{V_QR}")
        for i in range(28):
            t_.e(f"v_mov_b32 v{V_NEGM+i}, 0")
        t_.e(f"v_mov_b32 v{t}, 0x3f803f80")
        for i in range(4):
            t_.e(f"v_accvgpr_write_b32 a{A_ONES+i}, v{t}")
        if self.pf_on:
            t_.e(f"v_mov_b32 v{V_PF}, v112")
        for k in range(9):
            t_.c(f"---- Q-proj period {k}")
            t_.many(self.stamp(f"a{k}"))
            t_.e(WV(f"X{k}"))
            t_.many(self.stamp(f"w{k}"))
            if k: t_.e(WL(f"R{k-1}"))
            t_.e("s_barrier")
            t_.many(self.stamp(f"p{k}"))
            rd = self.q_reads(k)
            if k <= 6:
                dm = self.x_dma(k + 2)
            elif k == 7:
                dm = self.kv_dma("V", 0, "0") + [f"s_mov_b32 s{S_SOKV}, 16384"] + self.kv_dma("K", 1, f"s{S_SOKV}") + \
                     self.kv_dma("V", 1, f"s{S_SOKV}")
            else:
                dm = [f"s_mov_b32 s{S_SOKV}, 32768"] + self.kv_dma("K", 2, f"s{S_SOKV}") + self.kv_dma("V", 2, f"s{S_SOKV}")
            for i in range(self.pfc[k + 1]): dm = dm + self.kv_touch()
            if k == 0:
                t_.many(rd); t_.many(self.stamp("r0")); t_.many(dm)
                continue
            S = Sched(self.q_mfmas(k - 1, k == 1))
            pos = [g for g in range(56) if g % 5 != 2][:len(rd)]
            for p_, r_ in zip(pos, rd): S.post[p_].append(r_)
            nvm = sum(isinstance(x, VM) for x in dm)
            step = 56.0 / nvm
            i = 0
            pend = []
            for x in dm:
                if isinstance(x, VM):
                    gpos = int(i * step + 2 - (i * step + 2) % 1)
                    gpos = min(55, gpos)
                    if pend:
                        S.post[gpos - 1] += pend; pend = []
                    S.post[gpos].append(x); i += 1
                else:
                    pend.append(x)
            if pend: S.post[55] += pend
            if o.fused and k in (3, 4, 8):
                extra = {3: self.b_addr_s, 4: self.b_addr_v, 8: self.b_srd}[k]()
                for i, x in enumerate(extra): S.post[38 + (i * 17) // len(extra)].append(x)
            S.emit(t_)
        t_.c("---- Q-proj period 9 + finalisation")
        t_.e(WL("R8"))
        t_.e("s_barrier")
        t_.many(self.stamp("p9"))
        groups = [(jj, qt) for jj in range(2) for qt in range(7)]
        mf = []
        for (jj, qt) in groups:
            for s in range(2):
                for T in (2 * jj, 2 * jj + 1):
                    mf.append(self.q_mf(8, s, T, qt, False))
        S = Sched(mf)
        def fin(gi):
            jj, qt = groups[gi]
            tb = V_QT + (gi & 1) * 4
            r0 = ((2 * jj) * 7 + qt) * 4
            r1 = ((2 * jj + 1) * 7 + qt) * 4
            m0_ = [f"v_mul_f32 v{r0+i}, s{S_SC}, v{r0+i}" for i in range(4)]
            m1_ = [f"v_mul_f32 v{r1+i}, s{S_SC}, v{r1+i}" for i in range(4)]
            c_ = [f"v_cvt_pk_bf16_f32 v{tb}, v{r0}, v{r0+1}", f"v_cvt_pk_bf16_f32 v{tb+1}, v{r0+2}, v{r0+3}",
                  f"v_cvt_pk_bf16_f32 v{tb+2}, v{r1}, v{r1+1}", f"v_cvt_pk_bf16_f32 v{tb+3}, v{r1+2}, v{r1+3}"]
            w_ = DS(f"ds_write_b128 v{V_QW}, {vr(tb)} offset:{(jj*7+qt)*1024}", "qw")
            return m0_, m1_, c_, w_
        for gi in range(13):
            m0_, m1_, c_, w_ = fin(gi)
            b = 4 * (gi + 1) + 1
            S.post[b] += m0_; S.post[b + 1] += m1_; S.post[b + 2] += c_; S.post[b + 3] += [w_]
        kr = [self.k_read(kt, ks, 0) for kt in range(2) for ks in range(4)]
        for i, x in enumerate(kr): S.post[i].append(x)
        S.emit(t_)
        t_.e("s_nop 7")
        m0_, m1_, c_, w_ = fin(13)
        t_.many(m0_); t_.many(m1_); t_.many(c_); t_.e(w_)
        t_.e(WL("qw"))
        t_.e(WV("V0"))
        t_.e("s_barrier")
        t_.many(self.stamp("qx"))
        if o.dbgq:
            for qt in range(7): t_.many(self.q_read(qt))
            t_.e(WALL('l'))
            t_.e(f"s_lshl_b32 s{S_T0}, s2, 2")
            t_.e(f"s_add_u32 s{S_T0}, s{S_T0}, s{S_W}")
            t_.e(f"s_mul_i32 s{S_T0}, s{S_T0}, 28672")
            t_.e(f"s_add_u32 s{S_T0}, s{S_T0}, {32<<20}")
            t_.e(f"s_mov_b32 s{S_O+2}, {256<<20}")
            t_.e(f"v_and_b32 v{V_T0}, 63, v{V_TID}")
            t_.e(f"v_lshlrev_b32 v{V_T0}, 4, v{V_T0}")
            for i in range(28):
                t_.e(f"buffer_store_dwordx4 {ar(A_Q + i*4)}, v{V_T0}, {sr(S_O)}, s{S_T0} offen")
                t_.e(f"s_add_u32 s{S_T0}, s{S_T0}, 1024")
            t_.e("s_waitcnt vmcnt(0)")
            t_.e(f"s_mov_b32 s{S_O+2}, {112*self.QS}")
        t_.lab("A_ATT")
        t_.many(self.q_read(0)); t_.many(self.q_read(1))
        t_.e(f"v_add_u32 v{V_OFFKV}, {3*16384}, v{V_OFFKV}")
        t_.e(f"v_add_u32 v{V_OFFKV+1}, {3*16384}, v{V_OFFKV+1}")
        self.preamble(True)
        self.body()
        self.epilogue()
        t_.lab("CT_END")
        self.slowpath()
        t_.lab("A_END")
        t_.e("s_endpgm")
        return "\n".join(t_.L)

    def preamble(self, with_q):
        t_ = self.t
        vr_ = [self.v_read(tp, hf, 0) for tp in range(7) for hf in range(2)]
        t_.e(WL("k0.0", "k0.1", "q0"))
        S = Sched(self.qk_mfmas(0, 0))
        for i, x in enumerate(vr_): S.post[i // 2].append(x)
        if with_q:
            q2 = self.q_read(2)
            S.post[7] += q2
        S.emit(t_)
        t_.e(WL("q1"))
        m1 = self.qk_mfmas(1, 1)
        ex = self.exps(0); cv = self.cvts(0)
        S = Sched(m1)
        S.post[0] += ex[0:2]; S.post[1] += ex[2:4]; S.post[2] += ex[4:6]; S.post[3] += ex[6:8]
        S.post[4] += cv[0:2]; S.post[5] += cv[2:4]
        S.emit(t_)
        t_.many(self.stamp("pre"))

    def body(self):
        t_ = self.t
        texts = []
        start = len(t_.L)
        for n in range(4):
            self.tile(n)
            t_.many(self.stamp(f"t{n}"))
        i0 = len(t_.L)
        if self.o.unroll:
            for n in range(4, 12): self.tile(n)
            t_.many(self.stamp("t11"))
            for n in range(12, 16): self.tile(n)
            t_.many(self.stamp("t15"))
            return
        for n in range(4, 8): self.tile(n)
        i1 = len(t_.L)
        for n in range(8, 12): self.tile(n)
        i2 = len(t_.L)
        strip = lambda xs: [x for x in xs if not x.strip().startswith(";")]
        A_, B_ = t_.L[i0:i1], t_.L[i1:i2]
        assert len(A_) == len(B_), "loop iterations differ in length"
        body = []
        for x, y in zip(A_, B_):
            if x.strip().startswith(";") or x == y:
                body.append(x); continue
            mx, my = re.fullmatch(r"\s*s_waitcnt vmcnt\((\d+)\)", x), re.fullmatch(r"\s*s_waitcnt vmcnt\((\d+)\)", y)
            assert mx and my, f"loop iterations differ: {x} | {y}"
            body.append(f"    s_waitcnt vmcnt({min(int(mx.group(1)), int(my.group(1)))})")
        t_.L = t_.L[:i0]
        t_.e(f"s_mov_b32 s{S_CNT}, 2")
        t_.lab("A_LOOP")
        t_.L += body
        t_.e(f"s_sub_u32 s{S_CNT}, s{S_CNT}, 1")
        t_.e(f"s_cmp_lg_u32 s{S_CNT}, 0")
        t_.e("s_cbranch_scc1 A_LOOP")
        t_.many(self.stamp("t11"))
        for n in range(12, 16):
            self.tile(n)
            t_.many(self.stamp(f"t{n}"))

    def fin_tile(self, qt, pb, tb, lt):
        r = []
        ob = V_OOWN + qt * 16
        if self.o.ostp: tb = V_OOWN + qt * 8
        r.append(f"v_accvgpr_read_b32 v{lt}, a{A_L + 4*qt}")
        r.append(f"v_add_f32 v{lt}, v{lt}, v{lt+1}")
        r.append(f"v_rcp_f32 v{lt}, v{lt}")
        for k in range(8):
            r.append(f"v_pk_add_f32 {vr(ob+2*k,2)}, {vr(ob+2*k,2)}, {vr(pb+2*k,2)}")
        for k in range(8):
            r.append(f"v_pk_mul_f32 {vr(ob+2*k,2)}, {vr(ob+2*k,2)}, {vr(lt,2)} op_sel:[0,0] op_sel_hi:[1,0]")
        for jj in range(2):
            s0 = ob + jj * 8
            for k in range(4):
                r.append(f"v_cvt_pk_bf16_f32 v{tb + jj*4 + k}, v{s0 + 2*k}, v{s0 + 2*k + 1}")
        if self.o.ostp:
            return r + self.o_st(f"f{qt}")
        pol = " sc1" if (self.o.osc1 or self.o.fused) else ""
        if self.o.ediag & 4: pol = ""
        for jj in range(2):
            off = " offset:1024" if jj else ""
            if self.o.ediag & 2: continue
            r.append(VM(f"buffer_store_dwordx4 {vr(tb + jj*4)}, v{V_T0+1}, {sr(S_O)}, s{S_OB} offen{off}{pol}", "ost"))
        r.append(f"s_add_u32 s{S_OB}, s{S_OB}, {self.QS}")
        return r

    def o_st(self, pos):
        r = []
        for i, p in enumerate(self.o.ostp.split(",")):
            if p != pos: continue
            qt, jj = i >> 1, i & 1
            if pos[0] == "f": assert qt <= int(pos[1:])
            off = " offset:1024" if jj else ""
            r.append(VM(f"buffer_store_dwordx4 {vr(V_OOWN + qt*8 + jj*4)}, v{V_T0+1}, {sr(S_O)}, s{S_OB} offen{off} sc1", "ost"))
            if jj: r.append(f"s_add_u32 s{S_OB}, s{S_OB}, {self.QS}")
        return r

    @staticmethod
    def mix(a, d, first=2):
        groups = []; pend = []
        for x in d:
            pend.append(x)
            if isinstance(x, VM): groups.append(pend); pend = []
        assert not pend
        n = len(groups)
        if n == 0: return a
        step = (len(a) - first) / n
        r = []; gi = 0
        for i, x in enumerate(a):
            while gi < n and i >= first + gi * step:
                r += groups[gi]; gi += 1
            r.append(x)
        for g in groups[gi:]: r += g
        return r

    def p_reads(self, qt, pb, lt):
        r = []
        for tpp in range(4):
            i = qt * 4 + tpp
            r.append(DS(f"ds_read_b128 {vr(pb + tpp*4)}, v{V_KA+2} offset:{i*1024}", f"p{qt}"))
        r.append(DS(f"ds_read_b32 v{lt+1}, v{V_KA+3} offset:{qt*256}", f"p{qt}"))
        return r

    def epilogue(self):
        t_ = self.t
        o = self.o
        t_.c("---- epilogue")
        PB = [112, 128, 144, 160]
        LT = [V_NEGM + 16, V_NEGM + 18, V_NEGM + 20, V_NEGM + 22]
        TB = [V_NEGM, V_NEGM + 8]
        t_.many(self.p_reads(0, PB[0], LT[0]))
        t_.many(self.p_reads(1, PB[1], LT[1]))
        t_.e("s_nop 7")
        t_.many(self.o_writes(6))
        t_.many(self.p_reads(2, PB[2], LT[2]))
        t_.many(self.p_reads(3, PB[3], LT[3]))
        T = V_S
        lo, hi = f32(2.0 ** -24), f32(2.0 ** 30)
        t_.e(f"s_mov_b32 s{S_T0}, {hex(lo)}")
        t_.e(f"s_mov_b32 s{S_T1}, {hex(hi - lo)}")
        for qt in range(7):
            t_.e(f"v_accvgpr_read_b32 v{T+qt}, a{A_L + 4*qt}")
        t_.e(f"v_subrev_u32 v{T+8}, s{S_T0}, v{T}")
        for qt in range(1, 7):
            t_.e(f"v_subrev_u32 v{T+9}, s{S_T0}, v{T+qt}")
            t_.e(f"v_max_u32 v{T+8}, v{T+8}, v{T+9}")
        t_.e(f"v_cmp_lt_u32 vcc, s{S_T1}, v{T+8}")
        t_.e(f"s_lshl_b32 s{S_T3}, s{S_W}, 2")
        t_.e(f"s_add_u32 s{S_T3}, s{S_T3}, {FOFF}")
        t_.e(f"s_cmp_lg_u64 vcc, 0")
        t_.e(f"s_cselect_b32 s{S_T2}, 1, 0")
        t_.e(f"v_mov_b32 v{T+10}, s{S_T2}")
        t_.e(f"v_and_b32 v{T+11}, 3, v{V_TID}")
        t_.e(f"v_mul_u32_u24 v{T+11}, {RG}, v{T+11}")
        t_.e(f"v_add_u32 v{T+11}, s{S_T3}, v{T+11}")
        t_.e(DS(f"ds_write_b32 v{T+11}, v{T+10}", "fl"))
        for qt in range(4):
            t_.e(WL(f"p{qt}"))
            if o.emix:
                t_.many(self.mix(self.fin_tile(qt, PB[qt], TB[qt & 1], LT[qt]), self.wo_dma(2 + qt)))
                t_.many(self.stamp(f"f{qt}"))
                continue
            t_.many(self.fin_tile(qt, PB[qt], TB[qt & 1], LT[qt]))
            t_.many(self.stamp(f"f{qt}"))
            if o.fused: t_.many(self.wo_dma(2 + qt))
            t_.many(self.stamp(f"g{qt}"))
        t_.e(WL("fl", "ow4", "ow5", "ow6"))
        t_.e("s_barrier")
        t_.many(self.stamp("e1"))
        F = V_P + 4
        t_.e(f"s_mul_i32 s{S_T0}, s{S_W}, {RG}")
        t_.e(f"s_add_u32 s{S_T0}, s{S_T0}, {FOFF}")
        t_.e(f"v_mov_b32 v{T+11}, s{S_T0}")
        t_.e(DS(f"ds_read_b128 {vr(F)}, v{T+11}", "flr"))
        for qt in range(4, 7):
            t_.many(self.p_reads(qt, PB[qt - 4], LT[qt - 4]))
        t_.e(WL("flr"))
        t_.e(f"v_or_b32 v{F}, v{F}, v{F+1}")
        t_.e(f"v_or_b32 v{F+2}, v{F+2}, v{F+3}")
        t_.e(f"v_or_b32 v{F}, v{F}, v{F+2}")
        t_.e("s_nop 1")
        t_.e(f"v_readfirstlane_b32 s{S_T0}, v{F}")
        t_.e(f"s_xor_b32 s{S_T1}, s{S_PASS}, 1")
        t_.e(f"s_and_b32 s{S_T0}, s{S_T0}, s{S_T1}")
        t_.e(f"s_cmp_lg_u32 s{S_T0}, 0")
        t_.e("s_cbranch_scc1 A_SLOW")
        for qt in range(4, 7):
            t_.e(WL(f"p{qt}"))
            if o.emix:
                t_.many(self.mix(self.fin_tile(qt, PB[qt - 4], TB[qt & 1], LT[qt - 4]), self.wo_dma(2 + qt) + (self.wo_dma(9) if qt == 6 else [])))
                t_.many(self.stamp(f"f{qt}"))
                continue
            if o.fused:
                t_.many(self.wo_dma(2 + qt))
                if qt == 6: t_.many(self.wo_dma(9))
            t_.many(self.stamp(f"g{qt}"))
            t_.many(self.fin_tile(qt, PB[qt - 4], TB[qt & 1], LT[qt - 4]))
            t_.many(self.stamp(f"f{qt}"))
        t_.many(self.stamp("e2"))
        if o.fused: self.phase_b()
        if o.stamps:
            t_.e(f"s_memrealtime s[{S_ST+38}:{S_ST+39}]")
            t_.e("s_waitcnt lgkmcnt(0)")
            t_.e(f"s_cmp_lg_u32 s{S_W}, 0")
            t_.e("s_cbranch_scc1 A_END")
            ns = 20
            t_.e(f"s_mul_i32 s{S_T0}, s2, {ns*4*2}")
            t_.e(f"s_add_u32 s{S_T0}, s{S_T0}, {64<<20}")
            t_.e(f"s_mov_b32 s{S_O+2}, {256<<20}")
            t_.e(f"v_mov_b32 v{V_T0+1}, 0")
            for i in range(ns * 2):
                if 2 * self.nst <= i < 36:
                    t_.e(f"v_mov_b32 v{V_T0}, 0")
                else:
                    t_.e(f"v_mov_b32 v{V_T0}, s{S_ST+i}")
                t_.e(f"buffer_store_dword v{V_T0}, v{V_T0+1}, {sr(S_O)}, s{S_T0} offen offset:{i*4}")
                t_.e("s_nop 1")
        t_.e("s_endpgm")

    def b_addr_v(self):
        L, t0, t1, t2 = 184, 185, 186, 187
        r = []
        r.append(f"v_and_b32 v{L}, 63, v{V_TID}")
        r.append(f"v_lshrrev_b32 v{t0}, 3, v{L}")
        r.append(f"v_and_b32 v{t1}, 7, v{L}")
        r.append(f"v_bfe_u32 v{t2}, v{L}, 4, 2")
        r.append(f"v_lshlrev_b32 v{t2}, 1, v{t2}")
        r.append(f"v_xor_b32 v{t1}, v{t1}, v{t2}")
        r.append(f"v_lshlrev_b32 v{t1}, 4, v{t1}")
        r.append(f"v_mul_u32_u24 v{t0}, 1152, v{t0}")
        r.append(f"v_add_u32 v{V_WOF}, v{t0}, v{t1}")
        for i in range(1, 4):
            r.append(f"v_add_u32 v{V_WOF+i}, {i*(9216-1024)}, v{V_WOF}")
        r.append(f"v_lshrrev_b32 v{t0}, 2, v{L}")
        r.append(f"v_bfe_u32 v{t1}, v{L}, 3, 2")
        r.append(f"v_lshlrev_b32 v{t1}, 5, v{t1}")
        r.append(f"v_lshlrev_b32 v{t0}, 7, v{t0}")
        r.append(f"v_and_b32 v{t2}, 3, v{L}")
        r.append(f"v_lshlrev_b32 v{t2}, 3, v{t2}")
        r.append(f"v_add_u32 v{t0}, v{t0}, v{t2}")
        r.append(f"v_add_u32 v{t0}, s{S_RB}, v{t0}")
        for nt in range(4):
            r.append(f"v_xor_b32 v{V_TR+nt}, {nt*32}, v{t1}")
            r.append(f"v_add_u32 v{V_TR+nt}, v{V_TR+nt}, v{t0}")
        return r

    def b_addr_s(self):
        r = []
        r.append(f"s_mul_i32 s{S_RB}, s{S_W}, {RG}")
        r.append(f"s_and_b32 s{S_T0}, s2, 7")
        r.append(f"s_lshr_b32 s{S_T1}, s2, 3")
        r.append(f"s_and_b32 s{S_T2}, s{S_T0}, 1")
        r.append(f"s_lshl_b32 s{S_T2}, s{S_T2}, 5")
        r.append(f"s_add_u32 s{S_T1}, s{S_T1}, s{S_T2}")
        r.append(f"s_lshr_b32 s{S_T0}, s{S_T0}, 1")
        r.append(f"s_mul_i32 s{S_T0}, s{S_T0}, 7")
        if self.o.bmap == 0:
            r.append(f"s_mul_i32 s{S_NG}, s{S_T1}, 37")
            r.append(f"s_lshr_b32 s{S_NG}, s{S_NG}, 8")
            r.append(f"s_mul_i32 s{S_T2}, s{S_NG}, 7")
            r.append(f"s_sub_u32 s{S_T2}, s{S_T1}, s{S_T2}")
            r.append(f"s_add_u32 s{S_MG}, s{S_T2}, s{S_T0}")
        else:
            r.append(f"s_mul_i32 s{S_T2}, s{S_T1}, 57")
            r.append(f"s_lshr_b32 s{S_T2}, s{S_T2}, 9")
            r.append(f"s_add_u32 s{S_MG}, s{S_T2}, s{S_T0}")
            r.append(f"s_mul_i32 s{S_T2}, s{S_T2}, 9")
            r.append(f"s_sub_u32 s{S_NG}, s{S_T1}, s{S_T2}")
        r.append(f"s_cmp_ge_u32 s{S_T1}, 63")
        r.append(f"s_cselect_b32 s{S_NG}, 15, s{S_NG}")
        r.append(f"s_cselect_b32 s{S_MG}, 0, s{S_MG}")
        if self.o.brot:
            r.append(f"s_mul_i32 s{S_ROT}, s{S_NG}, {self.o.brot * 1024}")
        r.append(f"s_mul_i32 s{S_T0}, s{S_W}, {1024*1152}")
        r.append(f"s_lshl_b32 s{S_T1}, s{S_NG}, 7")
        r.append(f"s_add_u32 s{S_SW}, s{S_T0}, s{S_T1}")
        r.append(f"s_mul_i32 s{S_T0}, s{S_MG}, {4*self.QS}")
        r.append(f"s_lshl_b32 s{S_T1}, s{S_W}, 15")
        r.append(f"s_add_u32 s{S_SO}, s{S_T0}, s{S_T1}")
        r.append(f"s_lshl_b32 s{S_T0}, s{S_MG}, 2")
        r.append(f"s_mul_i32 s{S_T1}, s{S_T0}, 147")
        r.append(f"s_lshr_b32 s{S_T1}, s{S_T1}, 11")
        r.append(f"s_lshl_b32 s{S_L0}, s{S_T1}, 3")
        r.append(f"s_add_u32 s{S_T0}, s{S_T0}, 3")
        r.append(f"s_mul_i32 s{S_T1}, s{S_T0}, 147")
        r.append(f"s_lshr_b32 s{S_T1}, s{S_T1}, 11")
        r.append(f"s_lshl_b32 s{S_L1}, s{S_T1}, 3")
        return r

    def b_srd(self):
        r = []
        r.append(f"s_mov_b32 s{S_WO}, s4"); r.append(f"s_mov_b32 s{S_WO+1}, s5")
        r.append(f"s_mov_b32 s{S_WO+2}, {4096*1152}"); r.append(f"s_mov_b32 s{S_WO+3}, 0x00020000")
        r.append(f"s_mov_b32 s{S_OUT}, s6"); r.append(f"s_mov_b32 s{S_OUT+1}, s7")
        r.append(f"s_mov_b32 s{S_OUT+2}, {1792*1152}"); r.append(f"s_mov_b32 s{S_OUT+3}, 0x00020000")
        return r

    @staticmethod
    def slot(f): return (f + 8) % 10

    def btime(self, f):
        NR, NL = self.o.nr, 10
        order = list(range(NR, NR + NL)) + list(range(NR)) + list(range(NR + NL, 32))
        return order.index(f)

    def wo_dma(self, f):
        if (self.o.ediag & 1) and 2 <= f <= 9: return []
        if (self.o.ediag & 8) and f <= 1: return ["s_nop 0"] * 6
        if self.o.brot:
            r = [f"s_add_u32 s{S_RT}, s{S_ROT}, {self.btime(f)*1024}", f"s_and_b32 s{S_RT}, s{S_RT}, 0x7fff",
                 f"s_mul_i32 s{S_RT}, s{S_RT}, 36", f"s_add_u32 s{S_SWC}, s{S_SW}, s{S_RT}",
                 f"s_add_u32 m0, s{S_RB}, {self.slot(f)*4096}"]
            for i in range(4):
                off = f" offset:{i*1024}" if i else ""
                r.append(VM(f"buffer_load_dwordx4 v{V_WOF+i}, {sr(S_WO)}, s{S_SWC} offen{off} lds", f"W{f}"))
            return r
        fa = f % self.o.wsm if self.o.wsm else f
        r = [f"s_add_u32 s{S_SWC}, s{S_SW}, {fa*32*1152}", f"s_add_u32 m0, s{S_RB}, {self.slot(f)*4096}"]
        for i in range(4):
            off = f" offset:{i*1024}" if i else ""
            r.append(VM(f"buffer_load_dwordx4 v{V_WOF+i}, {sr(S_WO)}, s{S_SWC} offen{off} lds", f"W{f}"))
        return r

    def tr_reads(self, f, unit):
        k, b = unit
        r = []
        for nt in range(4):
            for hf in range(2):
                r.append(DS(f"ds_read_b64_tr_b16 {k}[{b + nt*4 + 2*hf}:{b + nt*4 + 2*hf + 1}], v{V_TR+nt} offset:{self.slot(f)*4096 + hf*2048}", f"t{f}"))
        return r

    def phase_b(self):
        t_, o = self.t, self.o
        NR, D, NL = o.nr, o.od, 10
        units = [("a", 16*i) for i in range(16)] + [("v", 64 + 16*i) for i in range(11 if o.xunit else 10)]
        assert NR + 2 + D <= len(units)
        res = units[:NR]; jit = units[-(D + 2):-D]; ring = units[-D:]
        U = lambda u, off: f"{u[0]}[{u[1]+off}:{u[1]+off+3}]"
        NK = 32
        order = list(range(NR, NR + NL)) + list(range(NR)) + list(range(NR + NL, NK))
        t_.c("---- out-projection: weight prefetch + publish")
        t_.e(WV("PW"))
        for mi in range(1, 4):
            t_.e(f"v_add_u32 v{V_OO[mi]}, {mi*self.QS}, v{V_OO[0]}")
        def publish():
            t_.e(WV("ost"))
            t_.e("s_barrier")
            t_.e(f"s_cmp_lg_u32 s{S_W}, {o.pubw}")
            t_.e("s_cbranch_scc1 B_PUB")
            if o.pubmode == 0:
                t_.e(f"s_lshl_b32 s{S_T0}, s{S_B}, 5")
                t_.e(f"v_mov_b32 v{V_S}, s{S_T0}")
                t_.e(f"v_mov_b32 v{V_S+1}, 1")
                t_.e("s_mov_b64 exec, 1")
                t_.e(f"global_atomic_add v{V_S}, v{V_S+1}, s[8:9]")
                t_.e("s_mov_b64 exec, -1")
            else:
                t_.e(f"s_lshl_b32 s{S_T0}, s{S_B}, 5")
                t_.e(f"s_add_u32 s{S_T0}, s{S_T0}, s{S_H}")
                t_.e(f"v_mov_b32 v{V_S}, s{S_T0}")
                t_.e(f"v_mov_b32 v{V_S+1}, 1")
                t_.e("s_mov_b64 exec, 1")
                t_.e(f"global_store_byte v{V_S}, v{V_S+1}, s[8:9] sc1")
                t_.e("s_mov_b64 exec, -1")
            t_.lab("B_PUB")
            t_.many(self.stamp("pub"))
            t_.e(f"s_cmp_eq_u32 s{S_NG}, 15")
            t_.e("s_cbranch_scc1 A_END")
        published = False
        nxt = NL
        for f in range(NR):
            if f == o.npre and not published:
                publish(); published = True
            t_.e(WV(f"W{f}"))
            t_.many(self.stamp(f"wf{f}"))
            if not (o.wdiag & 1): t_.many(self.tr_reads(f, res[f]))
            if f >= 1:
                t_.e(WL(f"t{f-1}"))
                if nxt < NK:
                    if not (o.wdiag & 2): t_.many(self.wo_dma(nxt))
                    nxt += 1
            if o.ostp:
                if published: assert not self.o_st(f"w{f}")
                t_.many(self.o_st(f"w{f}"))
            if o.epoll and f == o.epoll:
                assert published
                t_.e(f"v_and_b32 v240, 63, v{V_TID}")
                t_.e(f"v_lshlrev_b32 v240, 2, v240")
                if o.epw:
                    t_.e(f"s_cmp_eq_u32 s{S_W}, {o.pollw}")
                    t_.e("s_cselect_b64 exec, -1, 0")
                t_.e(VM(f"global_load_dword v241, v240, s[8:9] sc1", "pl"))
                if o.epw: t_.e("s_mov_b64 exec, -1")
        if not published:
            publish(); published = True
        t_.e(WL(f"t{NR-1}"))
        if nxt < NK: t_.many(self.wo_dma(nxt)); nxt += 1
        for i in range(2):
            f = order[i]
            t_.e(WV(f"W{f}"))
            t_.many(self.tr_reads(f, jit[i]))
        for i in range(2):
            t_.e(WL(f"t{order[i]}"))
            if nxt < NK: t_.many(self.wo_dma(nxt)); nxt += 1
        t_.many(self.stamp("wpf"))
        P, Q = V_S, V_S + 1
        if o.epoll:
            assert o.pubmode == 0
            if o.epw:
                t_.e(f"s_cmp_lg_u32 s{S_W}, {o.pollw}")
                t_.e("s_cbranch_scc1 B_GO")
            t_.e(WV("pl"))
            t_.e(f"v_readlane_b32 s{S_T0}, v241, s{S_L0}")
            t_.e(f"v_readlane_b32 s{S_T1}, v241, s{S_L1}")
            t_.e(f"s_min_u32 s{S_T0}, s{S_T0}, s{S_T1}")
            t_.e(f"s_cmp_ge_u32 s{S_T0}, 32")
            t_.e("s_cbranch_scc1 B_GO")
            t_.e(f"s_mov_b32 s{S_CNT}, 200000")
            t_.lab("B_POLL")
            t_.e(f"global_load_dword v241, v240, s[8:9] sc1")
            t_.e("s_waitcnt vmcnt(0)")
            t_.e(f"v_readlane_b32 s{S_T0}, v241, s{S_L0}")
            t_.e(f"v_readlane_b32 s{S_T1}, v241, s{S_L1}")
            t_.e(f"s_min_u32 s{S_T0}, s{S_T0}, s{S_T1}")
            t_.e(f"s_cmp_ge_u32 s{S_T0}, 32")
            t_.e("s_cbranch_scc1 B_GO")
        else:
            t_.e(f"s_cmp_lg_u32 s{S_W}, {o.pollw}")
            t_.e("s_cbranch_scc1 B_GO")
        if o.epoll:
            pass
        elif o.pubmode == 0:
            t_.e(f"v_and_b32 v{Q}, 63, v{V_TID}")
            t_.e(f"v_lshlrev_b32 v{Q}, 2, v{Q}")
            t_.e(f"s_mov_b32 s{S_CNT}, 200000")
            t_.lab("B_POLL")
            t_.e(f"global_load_dword v{P}, v{Q}, s[8:9] sc1")
            t_.e("s_waitcnt vmcnt(0)")
            t_.e(f"v_readlane_b32 s{S_T0}, v{P}, s{S_L0}")
            t_.e(f"v_readlane_b32 s{S_T1}, v{P}, s{S_L1}")
            t_.e(f"s_min_u32 s{S_T0}, s{S_T0}, s{S_T1}")
            t_.e(f"s_cmp_ge_u32 s{S_T0}, 32")
            t_.e("s_cbranch_scc1 B_GO")
        else:
            t_.e(f"v_and_b32 v{Q}, 63, v{V_TID}")
            t_.e(f"v_mov_b32 v{P}, s{S_L0}")
            t_.e(f"v_mov_b32 v{P+2}, s{S_L1}")
            t_.e(f"v_cmp_gt_u32 vcc, 8, v{Q}")
            t_.e(f"v_cndmask_b32 v{P}, v{P+2}, v{P}, vcc")
            t_.e(f"v_and_b32 v{Q}, 7, v{Q}")
            t_.e(f"v_add_u32 v{Q}, v{Q}, v{P}")
            t_.e(f"v_lshlrev_b32 v{Q}, 2, v{Q}")
            t_.e(f"s_mov_b32 s{S_CNT}, 200000")
            t_.e(f"s_mov_b32 s{S_T1}, 0x01010101")
            t_.e("s_mov_b64 exec, 0xffff")
            t_.lab("B_POLL")
            t_.e(f"global_load_dword v{P}, v{Q}, s[8:9] sc1")
            t_.e("s_waitcnt vmcnt(0)")
            t_.e(f"v_cmp_ne_u32 vcc, s{S_T1}, v{P}")
            t_.e("s_nop 4")
            t_.e("s_cbranch_vccz B_PD")
        t_.e(f"s_sub_u32 s{S_CNT}, s{S_CNT}, 1")
        t_.e(f"s_cmp_eq_u32 s{S_CNT}, 0")
        t_.e(f"s_cbranch_scc1 {'B_PD' if o.pubmode else 'B_GO'}")
        t_.e(f"s_sleep {o.psleep}")
        t_.e("s_branch B_POLL")
        if o.pubmode:
            t_.lab("B_PD")
            t_.e("s_mov_b64 exec, -1")
        t_.lab("B_GO")
        if not o.epoll or o.epw: t_.e("s_barrier")
        t_.many(self.stamp("poll"))
        def o_soff(i):
            if o.brot:
                return [f"s_add_u32 s{S_RT}, s{S_ROT}, {i*1024}", f"s_and_b32 s{S_RT}, s{S_RT}, 0x7fff", f"s_add_u32 s{S_SOC}, s{S_SO}, s{S_RT}"]
            return [f"s_add_u32 s{S_SOC}, s{S_SO}, {order[i]*1024}"]
        def o_load(i, mi):
            if o.bnold and i >= D: return "s_nop 0"
            return VM(f"buffer_load_dwordx4 {U(ring[i % D], mi*4)}, v{V_OO[mi]}, {sr(S_O)}, s{S_SOC} offen{' sc1' if o.olsc else ''}", f"O{i}.{mi}")
        if o.b2x:
            t_.e(f"s_mov_b32 s{S_CNT}, 2")
            t_.lab("B_2X")
        for i in range(D):
            t_.many(o_soff(i))
            for mi in range(4): t_.e(o_load(i, mi))
        for i in range(NK):
            f = order[i]
            inlds = f >= NR
            wu = jit[i & 1] if inlds else res[f]
            if i == NK - (NK - NR - NL) and (i & 1) != ((NL) & 1):
                pass
            mf = []
            for mi in range(4):
                for nt in range(4):
                    d = vr((mi*4 + nt)*4)
                    mf.append(f"{MF} {d}, {U(wu, nt*4)}, {U(ring[i % D], mi*4)}, {'0' if i == 0 else d}")
            if o.bnomf: mf = ["s_nop 0"] * 16
            S = Sched(mf)
            if inlds: S.pre[0].append(WL(f"t{f}"))
            if inlds: S.pre[0].append(WV(f"W{f}"))
            for mi in range(4): S.pre[4*mi].append(WV(f"O{i}.{mi}"))
            if i + D < NK:
                S.post[0] += o_soff(i + D)
                for mi in range(4): S.post[4*mi + 3].append(o_load(i + D, mi))
            if i + 1 < NK and order[i + 1] >= NR and (i + 1) >= 2:
                fn = order[i + 1]
                rd = self.tr_reads(fn, jit[(i + 1) & 1])
                S.post[1].append(WV(f"W{fn}"))
                for k, x in enumerate(rd): S.post[1 + k].append(x)
            if inlds and i >= 2 and nxt < NK:
                d = self.wo_dma(nxt); nxt += 1
                ns = len(d) - 4
                S.post[9] += d[:ns]; S.post[10].append(d[ns]); S.post[12].append(d[ns+1]); S.post[13].append(d[ns+2]); S.post[14].append(d[ns+3])
            S.emit(t_)
        assert nxt == NK
        if o.b2x:
            t_.e(f"s_cmp_eq_u32 s{S_CNT}, 2")
            t_.e("s_cbranch_scc0 B_2XE")
            t_.e(f"s_memtime s[{S_ST+2}:{S_ST+3}]")
            t_.e(f"s_mov_b32 s{S_CNT}, 1")
            t_.e("s_branch B_2X")
            t_.lab("B_2XE")
        t_.many(self.stamp("main"))
        t0, t1, t2, t3, t4, L = 64, 65, 66, 67, 68, 69
        TRW = 70
        t_.e(f"v_and_b32 v{L}, 63, v{V_TID}")
        t_.e(f"v_and_b32 v{t0}, 15, v{L}")
        t_.e(f"v_lshrrev_b32 v{t1}, 4, v{L}")
        t_.e(f"v_xor_b32 v{t1}, v{t1}, v{t0}")
        t_.e(f"v_lshlrev_b32 v{t1}, 4, v{t1}")
        t_.e(f"v_lshlrev_b32 v{t0}, 8, v{t0}")
        t_.e(f"v_add_u32 v{t0}, s{S_RB}, v{t0}")
        for nt in range(4):
            t_.e(f"v_xor_b32 v{TRW+nt}, {nt*64}, v{t1}")
            t_.e(f"v_add_u32 v{TRW+nt}, v{TRW+nt}, v{t0}")
        t_.e("s_nop 7")
        for mi in range(4):
            for nt in range(4):
                t_.e(DS(f"ds_write_b128 v{TRW+nt}, {vr((mi*4+nt)*4)} offset:{mi*4096}", "rw"))
        t_.e(f"v_lshrrev_b32 v{t0}, 3, v{L}")
        t_.e(f"s_lshl_b32 s{S_T0}, s{S_W}, 4")
        t_.e(f"v_add_u32 v{t0}, s{S_T0}, v{t0}")
        t_.e(f"v_and_b32 v{t1}, 7, v{L}")
        t_.e(f"v_lshlrev_b32 v{t1}, 1, v{t1}")
        AD = 80
        for ps in range(2):
            if ps: t_.e(f"v_add_u32 v{t0}, 8, v{t0}")
            t_.e(f"v_and_b32 v{t2}, 15, v{t0}")
            t_.e(f"v_xor_b32 v{t3}, v{t1}, v{t2}")
            t_.e(f"v_lshlrev_b32 v{t3}, 4, v{t3}")
            t_.e(f"v_lshlrev_b32 v{t4}, 8, v{t0}")
            t_.e(f"v_add_u32 v{AD+ps*4}, v{t3}, v{t4}")
            t_.e(f"v_xor_b32 v{AD+ps*4+1}, 16, v{AD+ps*4}")
            t_.e(f"v_add_u32 v{AD+ps*4+2}, {2*RG}, v{AD+ps*4}")
            t_.e(f"v_add_u32 v{AD+ps*4+3}, {2*RG}, v{AD+ps*4+1}")
            t_.e(f"s_lshl_b32 s{S_T0}, s{S_MG}, 6")
            t_.e(f"v_add_u32 v{t4}, s{S_T0}, v{t0}")
            t_.e(f"v_mul_u32_u24 v{t4}, 1152, v{t4}")
            t_.e(f"v_lshlrev_b32 v{t2}, 3, v{t1}")
            t_.e(f"v_add_u32 v{88+ps}, v{t4}, v{t2}")
        t_.e(WL("rw"))
        t_.e("s_barrier")
        R = 96
        for ps in range(2):
            for wv in range(4):
                for ch in range(2):
                    a = AD + ps*4 + ch + (2 if wv >= 2 else 0)
                    off = (wv & 1) * RG
                    t_.e(DS(f"ds_read_b128 {vr(R + ps*32 + wv*8 + ch*4)}, v{a} offset:{off}", f"rr{ps}"))
        t_.e(f"s_lshl_b32 s{S_T1}, s{S_NG}, 7")
        for ps in range(2):
            t_.e(WL(f"rr{ps}"))
            B_ = R + ps*32
            for k in range(4):
                t_.e(f"v_pk_add_f32 {vr(B_+2*k,2)}, {vr(B_+2*k,2)}, {vr(B_+8+2*k,2)}")
                t_.e(f"v_pk_add_f32 {vr(B_+16+2*k,2)}, {vr(B_+16+2*k,2)}, {vr(B_+24+2*k,2)}")
            for k in range(4):
                t_.e(f"v_pk_add_f32 {vr(B_+2*k,2)}, {vr(B_+2*k,2)}, {vr(B_+16+2*k,2)}")
            for k in range(4):
                t_.e(f"v_cvt_pk_bf16_f32 v{72 + ps*4 + k}, v{B_+2*k}, v{B_+2*k+1}")
            t_.e(VM(f"buffer_store_dwordx4 {vr(72 + ps*4)}, v{88+ps}, {sr(S_OUT)}, s{S_T1} offen", "out"))
        t_.many(self.stamp("end"))

    def slowpath(self):
        a = self.t
        a.lab("A_SLOW")
        a.c("---- fallback: true row maximum, then redo the attention loop with it")
        a.lq, a.vq = [], []
        a.e("s_waitcnt vmcnt(0) lgkmcnt(0)")
        a.e("s_barrier")
        a.e(f"s_mov_b32 s{S_PASS}, 1")
        self.emit_kv_addr()
        for qt in range(7):
            a.e(f"v_mov_b32 v{V_NEGM + 4*qt}, 0xff800000")
        KA = V_V
        for ks in range(4):
            a.e(f"v_subrev_u32 v{KA+ks}, {PAIR(0)+16384}, v{V_KA+ks}")
        a.e(f"s_mov_b32 s{S_SOKV}, 0")
        a.lab("A_MAXLOOP")
        a.many([x.t if isinstance(x, VM) else x for x in self.kv_dma("K", 0, f"s{S_SOKV}", lds=0)])
        a.e("s_waitcnt vmcnt(0)")
        a.e("s_barrier")
        for kt in range(2):
            for ks in range(4):
                off = f" offset:{kt*4096}" if kt else ""
                a.e(f"ds_read_b128 {vr(V_K + (kt*4+ks)*4)}, v{KA+ks}{off}")
        a.e("s_waitcnt lgkmcnt(0)")
        for qt in range(7):
            for kt in range(2):
                for ks in range(4):
                    d = vr(V_S + kt * 4)
                    a.e(f"{MF} {d}, {vr(V_K + (kt*4+ks)*4)}, {ar(A_Q + (qt*4+ks)*4)}, {'0' if ks == 0 else d}")
            a.e("s_nop 15")
            m = V_NEGM + 4 * qt
            for i in range(4):
                a.e(f"v_max3_f32 v{m}, v{m}, v{V_S+2*i}, v{V_S+2*i+1}")
            a.e("s_nop 3")
        a.e("s_barrier")
        a.e(f"s_add_u32 s{S_SOKV}, s{S_SOKV}, 16384")
        a.e(f"s_cmp_lt_u32 s{S_SOKV}, 262144")
        a.e("s_cbranch_scc1 A_MAXLOOP")
        L, t, u = V_T0, V_T0 + 1, V_T0 + 2
        a.e(f"v_and_b32 v{L}, 63, v{V_TID}")
        a.e(f"v_lshlrev_b32 v{t}, 2, v{L}")
        a.e(f"s_mul_i32 s{S_T0}, s{S_W}, 1792")
        a.e(f"s_add_u32 s{S_T0}, s{S_T0}, {MXX}")
        a.e(f"v_add_u32 v{t}, s{S_T0}, v{t}")
        for qt in range(7):
            a.e(f"ds_write_b32 v{t}, v{V_NEGM + 4*qt} offset:{qt*256}")
        a.e("s_waitcnt lgkmcnt(0)")
        a.e("s_barrier")
        a.e(f"v_and_b32 v{u}, 15, v{L}")
        a.e(f"v_lshlrev_b32 v{u}, 2, v{u}")
        a.e(f"s_mul_i32 s{S_T0}, s{S_QH}, 3584")
        a.e(f"s_add_u32 s{S_T0}, s{S_T0}, {MXX}")
        a.e(f"v_add_u32 v{u}, s{S_T0}, v{u}")
        for qt in range(7):
            for i in range(8):
                off = (i >> 2) * 1792 + qt * 256 + (i & 3) * 64
                a.e(f"ds_read_b32 v{V_S+i}, v{u} offset:{off}")
            a.e("s_waitcnt lgkmcnt(0)")
            m = V_NEGM + 4 * qt
            a.e(f"v_max3_f32 v{m}, v{V_S}, v{V_S+1}, v{V_S+2}")
            a.e(f"v_max3_f32 v{m}, v{m}, v{V_S+3}, v{V_S+4}")
            a.e(f"v_max3_f32 v{m}, v{m}, v{V_S+5}, v{V_S+6}")
            a.e(f"v_max_f32 v{m}, v{m}, v{V_S+7}")
            a.e(f"v_sub_f32 v{m}, 0, v{m}")
            for i in range(1, 4):
                a.e(f"v_mov_b32 v{m+i}, v{m}")
        a.e("s_barrier")
        a.e(f"v_lshlrev_b32 v{t}, 4, v{L}")
        a.e(f"s_mul_i32 s{S_T0}, s{S_QH}, 28672")
        a.e(f"v_add_u32 v{V_QR}, s{S_T0}, v{t}")
        for ks in range(4):
            for qt in range(7):
                a.e(f"ds_write_b128 v{V_QR}, {ar(A_Q + (qt*4+ks)*4)} offset:{(ks*7+qt)*1024}")
        strip = lambda xs: [x.t if isinstance(x, VM) else x for x in xs]
        a.many(strip(self.kv_dma("K", 0, "0")))
        a.many(strip(self.kv_dma("V", 0, "0")))
        a.e(f"s_mov_b32 s{S_SOKV}, 16384")
        a.many(strip(self.kv_dma("K", 1, f"s{S_SOKV}")))
        a.many(strip(self.kv_dma("V", 1, f"s{S_SOKV}")))
        a.e(f"s_mov_b32 s{S_SOKV}, 32768")
        a.many(strip(self.kv_dma("K", 2, f"s{S_SOKV}")))
        a.many(strip(self.kv_dma("V", 2, f"s{S_SOKV}")))
        if self.o.fused: a.many(self.b_addr_v())
        if self.pf_on: a.e(f"v_mov_b32 v{V_PF}, 0x40000000")
        a.e(f"s_waitcnt vmcnt(16) lgkmcnt(0)")
        a.e("s_barrier")
        for kt in range(2):
            for ks in range(4):
                a.e(self.k_read(kt, ks, 0).t)
        a.e("s_branch A_ATT")


def main():
    import gen as G1
    ap = argparse.ArgumentParser()
    ap.add_argument("-o", default="cdna_kernels/" + NAME + ".s")
    ap.add_argument("--nt", type=int, default=0)
    ap.add_argument("--stamps", type=int, default=0)
    ap.add_argument("--dbgq", type=int, default=0)
    ap.add_argument("--bw", type=int, default=8)
    ap.add_argument("--brs", type=int, default=4)
    ap.add_argument("--only", default="")
    ap.add_argument("--rts", type=int, default=0)
    ap.add_argument("--osc1", type=int, default=0)
    ap.add_argument("--probe", default="")
    ap.add_argument("--fused", type=int, default=1)
    ap.add_argument("--bmap", type=int, default=0)
    ap.add_argument("--nr", type=int, default=16)
    ap.add_argument("--od", type=int, default=8)
    ap.add_argument("--npre", type=int, default=4)
    ap.add_argument("--opad", type=int, default=0)
    ap.add_argument("--bnomf", type=int, default=0)
    ap.add_argument("--bnold", type=int, default=0)
    ap.add_argument("--b2x", type=int, default=0)
    ap.add_argument("--olsc", type=int, default=1)
    ap.add_argument("--ctouch", type=int, default=0)
    ap.add_argument("--unroll", type=int, default=0)
    ap.add_argument("--xpol", default="")
    ap.add_argument("--wqpol", default="")
    ap.add_argument("--stsel", default="start,karg,k0,p0,p1,p8,p9,qx,pre,t11,t15,e1,e2,pub,wpf,poll,main,end")
    ap.add_argument("--qrot", default="", help="alpha,beta,shift: r = ((alpha*h' + beta*b') >> shift) mod 9")
    ap.add_argument("--brot", type=int, default=0)
    ap.add_argument("--pubmode", type=int, default=0)
    ap.add_argument("--wsm", type=int, default=0)
    ap.add_argument("--wdiag", type=int, default=0)
    ap.add_argument("--pubw", type=int, default=0)
    ap.add_argument("--pollw", type=int, default=0)
    ap.add_argument("--psleep", type=int, default=1)
    ap.add_argument("--pfq", type=int, default=0)
    ap.add_argument("--pfc", default="0,0,0,0,0,0,0,0,0,0")
    ap.add_argument("--pf0", type=int, default=0)
    ap.add_argument("--pfa", type=int, default=0)
    ap.add_argument("--pfpol", default="")
    ap.add_argument("--pfqpol", default="")
    ap.add_argument("--pfas", type=int, default=6)
    ap.add_argument("--pfan", type=int, default=11)
    ap.add_argument("--pfw", type=int, default=0)
    ap.add_argument("--pfwt", type=int, default=12)
    ap.add_argument("--tlbt", type=int, default=0)
    ap.add_argument("--pfl", type=int, default=64)
    ap.add_argument("--pfwsp", default="")
    ap.add_argument("--pfwpol", default="")
    ap.add_argument("--emix", type=int, default=0)
    ap.add_argument("--xunit", type=int, default=0)
    ap.add_argument("--epoll", type=int, default=0)
    ap.add_argument("--epw", type=int, default=0)
    ap.add_argument("--ostp", default="")
    ap.add_argument("--ediag", type=int, default=0)
    ap.add_argument("--w01g", default="1,3,5,7")
    o = ap.parse_args()
    if o.xpol: o.xpol = " " + o.xpol.replace("+", " ")
    if o.wqpol: o.wqpol = " " + o.wqpol.replace("+", " ")
    if o.pfpol: o.pfpol = " " + o.pfpol
    if o.pfqpol: o.pfqpol = " " + o.pfqpol
    if o.pfwpol: o.pfwpol = " " + o.pfwpol
    ga = GenA(o); ta = ga.gen()
    if o.fused:
        hdr = G1.HDR.replace("Launch 1: one workgroup", "Phase 1: one workgroup").replace("Launch 2: out = O * wo.", "Phase 2 (same launch, after a counter hand-off): out = O * wo.")
        if o.probe:
            hdr += f"; @launch kernel={NAME}_kernel grid=(256,1,1) block=(256,1,1) lds=163840\n"
            hdr += "; @launch kernel=probe_kernel grid=(1,1,1) block=(64,1,1) lds=0\n"
        else:
            hdr += "; @launch grid=(256,1,1) block=(256,1,1) lds=163840\n"
        txt = hdr + '.amdgcn_target "amdgcn-amd-amdhsa--gfx950"\n.text\n' + G1.fix_hazards(ta) + "\n"
        if o.probe:
            txt += G1.gen_probe(o.probe) + "\n"
        txt += '.section .rodata,"a"\n.p2align 6\n' + G1.descriptor(NAME + "_kernel", 512, 256)
        if o.probe:
            txt += ".p2align 6\n" + G1.descriptor("probe_kernel", 32, 32)
        open(o.o, "w").write(txt)
        print("wrote", o.o, len(txt), "bytes; stamps", ga.nst)
        return
    gb = G1.GenB(o); tb = gb.gen()
    hdr = G1.HDR
    blds = max(o.bw * o.brs * 4096, o.bw * 16384)
    if o.only != "B":
        hdr += f"; @launch kernel={NAME}_kernel grid=(256,1,1) block=(256,1,1) lds=163840\n"
    if o.only != "A":
        hdr += f"; @launch kernel=oproj_kernel grid=(256,1,1) block=({o.bw*64},1,1) lds={blds}\n"
    if o.probe:
        hdr += "; @launch kernel=probe_kernel grid=(1,1,1) block=(64,1,1) lds=0\n"
    txt = hdr + '.amdgcn_target "amdgcn-amd-amdhsa--gfx950"\n.text\n' + G1.fix_hazards(ta) + "\n" + G1.fix_hazards(tb) + "\n"
    if o.probe:
        txt += G1.gen_probe(o.probe) + "\n"
    txt += '.section .rodata,"a"\n.p2align 6\n' + G1.descriptor(NAME + "_kernel", 512, 256)
    nvb = (gb.nv + 7) // 8 * 8
    txt += ".p2align 6\n" + G1.descriptor("oproj_kernel", nvb, (gb.nv + 3) // 4 * 4)
    if o.probe:
        txt += ".p2align 6\n" + G1.descriptor("probe_kernel", 32, 32)
    open(o.o, "w").write(txt)
    print("wrote", o.o, len(txt), "bytes; B vgprs", gb.nv, "stamps", ga.nst)

if __name__ == "__main__":
    main()
```
